```python
import torch

def _softmax(x, axis=-1):
    return torch.softmax(x, dim=axis)
def _gelu(x):
    return torch.nn.functional.gelu(x, approximate="tanh")
def _silu(x):
    return torch.nn.functional.silu(x)
def _sigmoid(x):
    return torch.sigmoid(x)
def _layernorm(x, axis=-1, eps=1e-5):
    m = x.mean(dim=axis, keepdim=True)
    v = x.var(dim=axis, keepdim=True, unbiased=False)
    return (x - m) / torch.sqrt(v + eps)
def _scatter_add(tgt, idx, src, axis=0):
    return tgt.clone().index_add_(axis, idx, src)
def _segment_sum(src, seg, n):
    out = torch.zeros((n,) + src.shape[1:], dtype=src.dtype)
    return out.index_add_(0, seg, src)
def _pad(x, pw):
    flat = tuple(v for pair in reversed(pw) for v in pair)
    return torch.nn.functional.pad(x, flat)

kernel_name = 'parallel_sum__softmax_full_mha__swiglu_ffn__prompt'

def setup_inputs():

    _w = (lambda a: (lambda t: t.to(torch.bfloat16) if t.is_floating_point() else t)(torch.as_tensor(a)))
    def _A_setup():
        B, S, D = 1, 2048, 640
        return {
            "x": _w((lambda *s: torch.randn(*s, dtype=torch.bfloat16) * 0.05)(B, S, D)),
            "wqkv": _w((lambda *s: torch.randn(*s, dtype=torch.bfloat16) * 0.2)(D, 3 * D)),
            "wo": _w((lambda *s: torch.randn(*s, dtype=torch.bfloat16) * 0.1)(D, D)),
        }
    _A_in = _A_setup()

    def _B_setup():
        B, S, D, F = 1, 2048, 640, 1536
        return {
            "x": _w((lambda *s: torch.randn(*s, dtype=torch.bfloat16) * 0.05)(B, S, D)),
            "w_gate": _w((lambda *s: torch.randn(*s, dtype=torch.bfloat16) * 0.1)(D, F)),
            "w_up": _w((lambda *s: torch.randn(*s, dtype=torch.bfloat16) * 0.1)(D, F)),
            "w_down": _w((lambda *s: torch.randn(*s, dtype=torch.bfloat16) * 0.1)(F, D)),
        }
    _B_in = _B_setup()

    return {
        "A_x": _A_in["x"],
        "A_wqkv": _A_in["wqkv"],
        "A_wo": _A_in["wo"],
        "B_x": _B_in["x"],
        "B_w_gate": _B_in["w_gate"],
        "B_w_up": _B_in["w_up"],
        "B_w_down": _B_in["w_down"],
    }

def reference(A_x, A_wqkv, A_wo, B_x, B_w_gate, B_w_up, B_w_down):
    def _A_ref(x, wqkv, wo):
        B, S, D = x.shape
        H = 32; Dh = D // H
        qkv = (lambda x, *d: x.permute(*d))((x @ wqkv).reshape(B, S, 3, H, Dh), 2, 0, 3, 1, 4)
        q, k, v = qkv[0], qkv[1], qkv[2]
        scale = Dh ** -0.5
        scores = torch.einsum("bhqd,bhkd->bhqk", q, k) * scale
        p = _softmax(scores, axis=-1)
        o = torch.einsum("bhqk,bhkd->bhqd", p, v)
        return (lambda x, *d: x.permute(*d))(o, 0, 2, 1, 3).reshape(B, S, D) @ wo

    def _B_ref(x, w_gate, w_up, w_down):
        g = _silu(x @ w_gate)
        u = x @ w_up
        return (g * u) @ w_down

    x = A_x
    xn = _layernorm(x, axis=-1)
    return x + _A_ref(xn, A_wqkv, A_wo) + _B_ref(xn, B_w_gate, B_w_up, B_w_down)
```

```python
import sys, os, subprocess, struct, ctypes
sys.path.insert(0, 'cdna_kernels')
import numpy as np
import cdna_launch as cl

def attn_body(order):
    out = []
    def tile(Sc, Sn, Kn, Knn, Vc, Vn, off):
        o = []
        o.append(f"s_waitcnt lgkmcnt(2)")
        o.append(f"v_mfma_f32_32x32x16_bf16 v[{Sn}:{Sn+15}], v[{Kn}:{Kn+3}], v[88:91], v[72:87]")
        e = lambda i: f"v_exp_f32 v{Sc+i}, v{Sc+i}"
        c = lambda i: f"v_cvt_pk_bf16_f32 v{48+i}, v{Sc+2*i}, v{Sc+2*i+1}"
        o += [e(0), e(1), e(2), e(3)]
        o.append(f"v_mfma_f32_32x32x8_bf16 v[{Sn}:{Sn+15}], v[{Kn+4}:{Kn+5}], v[92:93], v[{Sn}:{Sn+15}]")
        o.append(f"ds_read_b128 v[{Knn}:{Knn+3}], v3 offset:{off}")
        o.append(f"ds_read_b64 v[{Knn+4}:{Knn+5}], v4 offset:{off+1024}")
        o += [e(4), e(5), c(0), e(6), e(7), c(1), c(2), c(3), e(8)]
        o.append(f"s_waitcnt lgkmcnt(2)")
        o.append(f"v_mfma_f32_32x32x16_bf16 v[56:71], v[{Vc}:{Vc+3}], v[48:51], v[56:71]")
        o += [e(9), e(10), e(11), e(12), e(13), c(4), e(14), e(15), c(5), c(6), c(7)]
        o.append("s_mov_b64 exec, s[30:31]")
        o.append(f"ds_read_b128 v[{Vn}:{Vn+3}], v3 offset:{off+1280}")
        o.append(f"ds_read_b128 v[{Vn+4}:{Vn+7}], v3 offset:{off+1920}")
        o.append("s_mov_b64 exec, -1")
        o.append(f"v_mfma_f32_32x32x16_bf16 v[56:71], v[{Vc+4}:{Vc+7}], v[52:55], v[56:71]")
        return o
    for t in range(8):
        if t % 2 == 0: out += tile(16, 32, 94, 100, 106, 114, 2560*t)
        else: out += tile(32, 16, 100, 94, 114, 106, 2560*t)
    return "\n".join("    "+x for x in out)

def gemm_body(nmf=3):
    out = []
    for s in range(8):
        Wc = 72 if s%2==0 else 84; Wn = 84 if s%2==0 else 72
        for j in range(nmf):
            out.append(f"ds_read_b64_tr_b16 v[{Wn+4*j}:{Wn+4*j+1}], v5 offset:{32768+ s*3072 + j*64}")
            out.append(f"ds_read_b64_tr_b16 v[{Wn+4*j+2}:{Wn+4*j+3}], v5 offset:{32768+ s*3072 + j*64+768}")
        out.append(f"s_waitcnt lgkmcnt({2*nmf})")
        for j in range(nmf):
            out.append(f"v_mfma_f32_32x32x16_bf16 v[{16+16*j}:{31+16*j}], v[{Wc+4*j}:{Wc+4*j+3}], v[64:67], v[{16+16*j}:{31+16*j}]")
    return "\n".join("    "+x for x in out)

ASM = """; @launch grid=(256,1,1) block=(1024,1,1) lds=65536
.amdgcn_target "amdgcn-amd-amdhsa--gfx950"
.text
.globl co_kernel
.p2align 8
.type co_kernel,@function
co_kernel:
    s_load_dwordx2 s[6:7], s[0:1], 0
    v_lshrrev_b32 v1, 6, v0
    v_and_b32 v2, 63, v0
    s_nop 1
    v_readfirstlane_b32 s20, v1
    s_waitcnt lgkmcnt(0)
    s_mov_b32 s12, s6
    s_mov_b32 s13, s7
    s_mov_b32 s14, 65536
    s_mov_b32 s15, 0x00020000
    s_mov_b32 s30, 0x000fffff
    s_mov_b32 s31, 0x000fffff
    v_lshlrev_b32 v3, 4, v2
    v_lshlrev_b32 v4, 3, v2
    v_and_b32 v5, 3, v2
    v_lshlrev_b32 v5, 3, v5
    v_bfe_u32 v6, v2, 2, 2
    v_mul_u32_u24 v6, 192, v6
    v_add_u32 v5, v5, v6
    v_bfe_u32 v6, v2, 4, 1
    v_lshlrev_b32 v6, 5, v6
    v_add_u32 v5, v5, v6
    v_lshrrev_b32 v6, 5, v2
    v_mul_u32_u24 v6, 1536, v6
    v_add_u32 v5, v5, v6
{init}
    v_lshlrev_b32 v7, 4, v0
    v_mov_b32 v8, 0
    v_mov_b32 v9, 0
    v_mov_b32 v10, 0
    v_mov_b32 v11, 0
    ds_write_b128 v7, v[8:11]
    ds_write_b128 v7, v[8:11] offset:16384
    ds_write_b128 v7, v[8:11] offset:32768
    ds_write_b128 v7, v[8:11] offset:49152
    s_waitcnt lgkmcnt(0)
    s_barrier
    s_memtime s[8:9]
    s_waitcnt lgkmcnt(0)
    s_cmp_ge_u32 s20, {nattn}
    s_cbranch_scc1 L_gemm
    s_setprio {prio_a}
    s_mov_b32 s21, {iters_a}
    s_cmp_eq_u32 s21, 0
    s_cbranch_scc1 L_done
.p2align 6
L_loop_a:
{abody}
    s_sub_u32 s21, s21, 1
    s_cmp_lg_u32 s21, 0
    s_cbranch_scc1 L_loop_a
    s_branch L_done
L_gemm:
    s_setprio {prio_g}
    s_mov_b32 s21, {iters_g}
    s_cmp_eq_u32 s21, 0
    s_cbranch_scc1 L_done
.p2align 6
L_loop_g:
{gbody}
    s_sub_u32 s21, s21, 1
    s_cmp_lg_u32 s21, 0
    s_cbranch_scc1 L_loop_g
L_done:
    s_waitcnt lgkmcnt(0)
    s_memtime s[10:11]
    s_waitcnt lgkmcnt(0)
    s_sub_u32 s10, s10, s8
    s_lshl_b32 s3, s2, 4
    s_add_u32 s3, s3, s20
    s_lshl_b32 s3, s3, 2
    v_mov_b32 v1, s3
    v_mov_b32 v2, s10
    buffer_store_dword v2, v1, s[12:15], 0 offen
    s_waitcnt vmcnt(0)
    s_endpgm
.section .rodata,"a"
.p2align 6
.amdhsa_kernel co_kernel
  .amdhsa_next_free_vgpr 128
  .amdhsa_next_free_sgpr 64
  .amdhsa_accum_offset 128
  .amdhsa_group_segment_fixed_size 0
  .amdhsa_kernarg_size 8
  .amdhsa_user_sgpr_count 2
  .amdhsa_user_sgpr_kernarg_segment_ptr 1
  .amdhsa_system_sgpr_workgroup_id_x 1
  .amdhsa_float_denorm_mode_32 3
.end_amdhsa_kernel
"""
def run(tag, iters_a, iters_g, prio_a=0, prio_g=0, nattn=8, nw=16):
    init = "\n".join(f"    v_mov_b32 v{i}, 0" for i in range(16, 124))
    asm = ASM.format(init=init, iters_a=iters_a, iters_g=iters_g, prio_a=prio_a, prio_g=prio_g, abody=attn_body(0), gbody=gemm_body(), nattn=nattn)
    full = cl.with_harness_metadata(asm, "co_kernel", 1)
    open('co.s','w').write(full)
    r = subprocess.run(["clang", "-x", "assembler", "-target", "amdgcn-amd-amdhsa","-mcpu=gfx950", "co.s", "-o", "co.co"], capture_output=True, text=True)
    if r.returncode: print(r.stderr[:500]); raise SystemExit(1)
    if not os.path.exists('/dev/kfd'): return
    k = cl.AsmKernel('co.co', 'co_kernel')
    out = cl.DeviceBuffer(65536)
    ka = struct.pack("<Q", out.ptr)
    for rep in range(2):
        k.launch((256,1,1),(64*nw,1,1),ka,65536)
        cl._hip.hipDeviceSynchronize()
    res = out.to_numpy(np.uint32, (256,16))[:, :nw]
    a = res[:, :nattn].max(axis=1) if iters_a else np.zeros(1); g = res[:, nattn:].max(axis=1) if iters_g and nw>nattn else np.zeros(1)
    print(f"{tag:40s} attn done {np.median(a):8.0f}  gemm done {np.median(g):8.0f}")
    k.unload(); out.free()
if __name__ == "__main__":
    run("attn only (2 waves/simd)", 8, 0)
    run("gemm only", 0, 8)
    run("both prio 0/0", 8, 8)
    run("both prio a=1", 8, 8, prio_a=1)
    run("both prio g=1", 8, 8, prio_g=1)
    run("both prio a=1, gemm 5 iters", 8, 5, prio_a=1)
    run("both prio g=1, gemm 5 iters", 8, 5, prio_g=1)
    run("both prio 0/0, gemm 5 iters", 8, 5)
    run("attn only 4 waves/simd half iters", 4, 0, nattn=16)
    run("attn only 1 wave/simd 16 iters", 16, 0, nattn=4, nw=4)
    run("attn 3 waves/simd 8 it (x1.5 work)", 8, 0, nattn=12, nw=12)
```

```python
import sys, os, subprocess, struct, ctypes
sys.path.insert(0, 'cdna_kernels')
import numpy as np
import cdna_launch as cl
from t7 import ASM, gemm_body

def attn_body(variant, prio_pat=None):
    out = []
    def tile(t, Sc, Sn, Kn, Knn, Vc, Vn, off):
        o = []
        e = lambda i: f"v_exp_f32 v{Sc+i}, v{Sc+i}"
        c = lambda i: f"v_cvt_pk_bf16_f32 v{48+i}, v{Sc+2*i}, v{Sc+2*i+1}"
        qk1 = f"v_mfma_f32_32x32x16_bf16 v[{Sn}:{Sn+15}], v[{Kn}:{Kn+3}], v[88:91], v[72:87]"
        qk2 = f"v_mfma_f32_32x32x8_bf16 v[{Sn}:{Sn+15}], v[{Kn+4}:{Kn+5}], v[92:93], v[{Sn}:{Sn+15}]"
        pv1 = f"v_mfma_f32_32x32x16_bf16 v[56:71], v[{Vc}:{Vc+3}], v[48:51], v[56:71]"
        pv2 = f"v_mfma_f32_32x32x16_bf16 v[56:71], v[{Vc+4}:{Vc+7}], v[52:55], v[56:71]"
        rk = [f"ds_read_b128 v[{Knn}:{Knn+3}], v3 offset:{off}", f"ds_read_b64 v[{Knn+4}:{Knn+5}], v4 offset:{off+1024}"]
        rv = ["s_mov_b64 exec, s[30:31]", f"ds_read_b128 v[{Vn}:{Vn+3}], v3 offset:{off+1280}", f"ds_read_b128 v[{Vn+4}:{Vn+7}], v3 offset:{off+1920}", "s_mov_b64 exec, -1"]
        if prio_pat is not None and prio_pat[t] is not None:
            o.append(f"s_setprio {prio_pat[t]}")
        if variant == 0:
            o += ["s_waitcnt lgkmcnt(2)", qk1, e(0), e(1), e(2), e(3), qk2] + rk + [e(4), e(5), c(0), e(6), e(7), c(1), c(2), c(3), e(8), "s_waitcnt lgkmcnt(2)", pv1,
                  e(9), e(10), e(11), e(12), e(13), c(4), e(14), e(15), c(5), c(6), c(7)] + rv + [pv2]
        elif variant == 1:
            o += ["s_waitcnt lgkmcnt(0)", qk1] + rk + rv + [e(0), e(1), e(2), e(3), c(0), c(1), qk2, e(4), e(5), e(6), e(7), c(2), c(3), e(8), pv1,
                  e(9), e(10), e(11), e(12), c(4), e(13), c(5), e(14), e(15), c(6), c(7), "s_nop 0", pv2]
        elif variant == 2:
            o += [qk1, e(0), e(1), e(2), e(3), c(0), c(1), qk2, e(4), e(5), e(6), e(7), c(2), c(3), e(8), pv1,
                  e(9), e(10), e(11), e(12), c(4), e(13), c(5), e(14), e(15), c(6), c(7), pv2]
        elif variant == 3:
            o += ["s_waitcnt lgkmcnt(0)", qk1] + rk + rv + [e(0), e(1), e(2), e(3), c(0), c(1), qk2, e(4), e(5), e(6), e(7), c(2), c(3), e(8), e(9), pv1,
                  e(10), e(11), c(4), c(5), e(12), e(13), e(14), e(15), c(6), c(7), "s_nop 0", pv2]
        return o
    for t in range(8):
        if t % 2 == 0: out += tile(t, 16, 32, 94, 100, 106, 114, 2560*t)
        else: out += tile(t, 32, 16, 100, 94, 114, 106, 2560*t)
    return "\n".join("    "+x for x in out)

def run(tag, iters_a, iters_g, variant=0, prio_a=0, prio_g=0, nattn=8, nw=16, young_pat=None, old_pat=None):
    init = "\n".join(f"    v_mov_b32 v{i}, 0" for i in range(16, 124))
    if young_pat is not None or old_pat is not None:
        abody = "    s_cmp_ge_u32 s20, 4\n    s_cbranch_scc1 L_young\nL_old:\n" + attn_body(variant, old_pat) + \
                "\n    s_sub_u32 s21, s21, 1\n    s_cmp_lg_u32 s21, 0\n    s_cbranch_scc1 L_old\n    s_branch L_done\n.p2align 6\nL_young:\n" + attn_body(variant, young_pat) + \
                "\n    s_sub_u32 s21, s21, 1\n    s_cmp_lg_u32 s21, 0\n    s_cbranch_scc1 L_young\n    s_branch L_done\n"
    else:
        abody = attn_body(variant)
    asm = ASM.format(init=init, iters_a=iters_a, iters_g=iters_g, prio_a=prio_a, prio_g=prio_g, abody=abody, gbody=gemm_body(), nattn=nattn)
    full = cl.with_harness_metadata(asm, "co_kernel", 1)
    open('co.s','w').write(full)
    r = subprocess.run(["clang", "-x", "assembler", "-target", "amdgcn-amd-amdhsa","-mcpu=gfx950", "co.s", "-o", "co.co"], capture_output=True, text=True)
    if r.returncode: print(r.stderr[:500]); raise SystemExit(1)
    if not os.path.exists('/dev/kfd'): return
    k = cl.AsmKernel('co.co', 'co_kernel')
    out = cl.DeviceBuffer(65536)
    ka = struct.pack("<Q", out.ptr)
    for rep in range(2):
        k.launch((256,1,1),(64*nw,1,1),ka,65536)
        cl._hip.hipDeviceSynchronize()
    res = out.to_numpy(np.uint32, (256,16))[:, :nw]
    a0 = np.median(res[:, :4].max(axis=1)); a1 = np.median(res[:, 4:8].max(axis=1))
    g0 = np.median(res[:, 8:12].max(axis=1)) if iters_g else 0; g1 = np.median(res[:, 12:16].max(axis=1)) if iters_g else 0
    print(f"{tag:50s} attn old {a0:8.0f} young {a1:8.0f}  gemm {g0:8.0f} {g1:8.0f}")
    k.unload(); out.free()
if __name__ == "__main__":
    N=None
    for v in [0,1,2,3]:
        run(f"v{v} attn only", 8, 0, variant=v)
        run(f"v{v} attn only, young hi 6/8", 8, 0, variant=v, young_pat=[2,N,N,N,N,N,0,N], old_pat=[1,N,N,N,N,N,N,N])
        run(f"v{v} attn only, young hi 4/8", 8, 0, variant=v, young_pat=[2,N,N,N,0,N,N,N], old_pat=[1,N,N,N,N,N,N,N])
        run(f"v{v} attn only, alternate per tile", 8, 0, variant=v, young_pat=[2,0,2,0,2,0,2,0], old_pat=[1,N,N,N,N,N,N,N])
        run(f"v{v} both", 8, 8, variant=v)
        run(f"v{v} both, young hi 6/8", 8, 8, variant=v, young_pat=[3,N,N,N,N,N,1,N], old_pat=[2,N,N,N,N,N,N,N])
        run(f"v{v} both, young hi 4/8", 8, 8, variant=v, young_pat=[3,N,N,N,1,N,N,N], old_pat=[2,N,N,N,N,N,N,N])
        run(f"v{v} both, gemm mid prio, young hi 6/8", 8, 8, variant=v, prio_g=1, young_pat=[3,N,N,N,N,N,0,N], old_pat=[0,N,N,N,N,N,2,N])
```

```python
import re

class Asm:
    def __init__(self):
        self.lines = []
    def __call__(self, s):
        for l in s.split("\n"):
            l = l.strip()
            if l:
                self.lines.append(l)
    def label(self, name):
        self.lines.append(name + ":")
    def text(self):
        out = []
        for l in self.lines:
            if l.endswith(":") or l.startswith("."):
                out.append(l)
            else:
                out.append("    " + l)
        return "\n".join(out) + "\n"

def vr(a, n=1):
    return f"v{a}" if n == 1 else f"v[{a}:{a+n-1}]"
def ar(a, n=1):
    return f"a{a}" if n == 1 else f"a[{a}:{a+n-1}]"
def sr(a, n=1):
    return f"s{a}" if n == 1 else f"s[{a}:{a+n-1}]"

_REG = re.compile(r"(?<![\w.])([vas])(?:\[(\d+):(\d+)\]|(\d+))(?![\w])")
TRANS = ("v_exp_f32", "v_log_f32", "v_rcp_f32", "v_rsq_f32", "v_sqrt_f32", "v_sin_f32", "v_cos_f32",
         "v_exp_f16", "v_rcp_iflag_f32")

def regs_of(op):
    r = set()
    for m in _REG.finditer(op):
        k = m.group(1)
        if m.group(4) is not None:
            r.add((k, int(m.group(4))))
        else:
            for i in range(int(m.group(2)), int(m.group(3)) + 1):
                r.add((k, i))
    if re.search(r"\bvcc\b", op): r |= {("s", "vcc")}
    if re.search(r"\bexec\b", op): r |= {("s", "exec")}
    if re.search(r"\bm0\b", op): r |= {("s", "m0")}
    return r

def split_ops(rest):
    ops, depth, cur = [], 0, ""
    for ch in rest:
        if ch == "[": depth += 1
        if ch == "]": depth -= 1
        if ch == "," and depth == 0:
            ops.append(cur.strip()); cur = ""
        else:
            cur += ch
    if cur.strip(): ops.append(cur.strip())
    return ops

def mfma_passes(mn):
    if "32x32x4_2b" in mn or "32x32x1_2b" in mn: return 16
    if "32x32x16" in mn or "32x32x8" in mn: return 8
    if "16x16x4_4b" in mn: return 8
    if "16x16x32" in mn or "16x16x16" in mn: return 4
    if "4x4x4" in mn: return 2
    raise ValueError(mn)

class Ins:
    def __init__(self, line):
        self.line = line
        l = line.split(";")[0].strip()
        p = l.split(None, 1)
        self.mn = p[0]
        self.ops = split_ops(p[1]) if len(p) > 1 else []
        mn = self.mn
        self.kind = "other"
        self.w = set(); self.r = set()
        self.A = self.B = self.C = set()
        self.states = 1
        ops = self.ops
        if mn == "s_nop":
            self.states = int(ops[0], 0) + 1
        elif mn.startswith("v_mfma"):
            self.kind = "mfma"; self.passes = mfma_passes(mn)
            self.w = regs_of(ops[0]); self.A = regs_of(ops[1]); self.B = regs_of(ops[2]); self.C = regs_of(ops[3].split()[0])
            self.r = self.A | self.B | self.C
        elif mn.startswith("v_"):
            self.kind = "valu"
            self.w = regs_of(ops[0].split()[0])
            rs = ops[1:]
            if mn.startswith(("v_add_co", "v_sub_co", "v_addc_co", "v_subb_co", "v_div_scale", "v_mad_u64")):
                self.w |= regs_of(ops[1]); rs = ops[2:]
            for o in rs: self.r |= regs_of(o)
            if mn.startswith(("v_fmac", "v_dot2c", "v_pk_fmac")) or "permlane" in mn or "UNUSED_PRESERVE" in l or mn.startswith("v_writelane"):
                self.r |= regs_of(ops[0])
            if "swap" in mn:
                self.w |= regs_of(ops[1])
            if mn.startswith("v_cmpx"): self.w |= {("s", "exec")}
            if mn.startswith("v_cndmask") and len(ops) == 3: self.r |= {("s", "vcc")}
            self.dpp = bool(re.search(r"row_|quad_perm|wave_|row_bcast|dpp", l))
            self.trans = mn.replace("_e32", "").replace("_e64", "") in TRANS
        elif mn.startswith("ds_"):
            self.kind = "ds"
            if mn.startswith(("ds_read", "ds_bpermute", "ds_permute", "ds_swizzle")) or "_rtn" in mn:
                self.w = regs_of(ops[0])
                for o in ops[1:]: self.r |= regs_of(o)
            else:
                for o in ops: self.r |= regs_of(o)
        elif mn.startswith(("buffer_", "global_")):
            self.kind = "vmem"
            lds = bool(re.search(r"\blds\b", l)) or "_lds_" in mn
            self.lds = lds
            isstore = "store" in mn or ("atomic" in mn)
            self.store = isstore
            if lds or mn.startswith(("buffer_wbl2", "buffer_inv")):
                for o in ops: self.r |= regs_of(o)
                if lds: self.r |= {("s", "m0")}
            elif isstore:
                for o in ops: self.r |= regs_of(o)
                if mn.startswith("buffer_"): self.data = regs_of(ops[0])
                else: self.data = regs_of(ops[1])
                if "atomic" in mn and re.search(r"\bsc0\b", l):
                    self.w = regs_of(ops[0])
            else:
                self.w = regs_of(ops[0])
                for o in ops[1:]: self.r |= regs_of(o)
        elif mn.startswith("s_"):
            self.kind = "salu"
            if mn.startswith(("s_cmp", "s_cbranch", "s_branch", "s_waitcnt", "s_barrier", "s_endpgm", "s_setprio", "s_sleep", "s_bitcmp")):
                for o in ops: self.r |= regs_of(o)
            else:
                if ops: self.w = regs_of(ops[0])
                for o in ops[1:]: self.r |= regs_of(o)
                if "saveexec" in mn: self.w |= {("s", "exec")}

def need(p, c):
    n = 0
    vw = {x for x in p.w if x[0] in "va"}
    sw = {x for x in p.w if x[0] == "s"}
    if p.kind == "valu" and p.mn.startswith("v_dot") and c.kind in ("valu", "mfma", "vmem", "ds"):
        if c.mn != p.mn and vw & (c.r | c.w): n = max(n, 3)
    if p.kind == "valu":
        if c.kind == "mfma" and vw & c.r: n = max(n, 2)
        if c.kind == "valu":
            if getattr(c, "dpp", False) and vw & c.r: n = max(n, 2)
            if "permlane" in c.mn and vw & c.r: n = max(n, 2)
            if c.mn.startswith(("v_readlane", "v_readfirstlane")) and vw & c.r: n = max(n, 1)
            if p.trans and not c.trans and vw & c.r: n = max(n, 1)
            if sw & c.r and not (("s", "exec") in sw and not (sw - {("s","exec")}) & c.r): n = max(n, 2)
            if ("s", "exec") in sw and getattr(c, "dpp", False): n = max(n, 5)
            if ("s", "exec") in sw and (c.mn.startswith(("v_readlane", "v_readfirstlane", "v_writelane")) or "permlane" in c.mn): n = max(n, 4)
            if "sdwa" in p.mn or "op_sel" in p.line:
                if vw & (c.r | c.w): n = max(n, 1)
            if c.mn.startswith("v_div_fmas") and ("s", "vcc") in sw: n = max(n, 4)
        if c.kind == "vmem" and sw & c.r: n = max(n, 5)
        if c.kind == "mfma" and ("s", "exec") in sw: n = max(n, 4)
    if p.kind == "salu":
        if ("s", "m0") in p.w and c.kind == "vmem" and getattr(c, "lds", False): n = max(n, 1)
    if p.kind == "vmem" and getattr(p, "store", False) and ("x3" in p.mn or "x4" in p.mn):
        if c.kind == "valu" and p.data & c.w: n = max(n, 2)
        elif p.data & c.w: n = max(n, 1)
    if p.kind == "mfma":
        P = p.passes
        tab = lambda a, b, c_, d: {2: a, 4: b, 8: c_, 16: d}[P]
        if c.kind == "mfma":
            if p.w & c.C:
                if p.w == c.C and c.passes == P: n = max(n, tab(2, 0, 0, 0))
                else: n = max(n, tab(4, 6, 10, 18))
            if p.w & (c.A | c.B): n = max(n, tab(5, 8, 12, 20))
            if (p.w & c.w) and not (p.w & c.C): n = max(n, tab(5, 8, 12, 20))
        elif c.kind in ("valu", "vmem", "ds"):
            if p.w & (c.r | c.w): n = max(n, tab(5, 8, 12, 20))
            if c.kind == "valu" and p.C & c.w: n = max(n, tab(1, 3, 7, 15))
    return n

def check_seq(lines, tag=""):
    ins = [Ins(l) for l in lines if not (l.endswith(":") or l.startswith(".") or l.startswith(";"))]
    probs = []
    for i, p in enumerate(ins):
        if p.kind not in ("valu", "salu", "vmem", "mfma"): continue
        dist = 0
        for j in range(i + 1, min(i + 24, len(ins))):
            c = ins[j]
            k = need(p, c)
            if k > dist:
                probs.append(f"{tag}: need {k} have {dist}: [{p.line}] -> [{c.line}]")
            dist += c.states
            if dist >= 20: break
    return probs

def check_program(lines):
    probs = check_seq(lines, "lin")
    labels = {l[:-1]: i for i, l in enumerate(lines) if l.endswith(":")}
    for i, l in enumerate(lines):
        m = re.match(r"s_(?:cbranch_\w+|branch)\s+(\S+)", l)
        if m and m.group(1) in labels:
            t = labels[m.group(1)]
            seq = lines[max(0, i - 24):i + 1] + lines[t:t + 24]
            probs += check_seq(seq, f"br@{m.group(1)}")
    return sorted(set(probs))
```

```python
from asmlib import *

NAME = "parallel_sum__softmax_full_mha__swiglu_ffn__prompt"
WS_XN = 0x0
WS_QM = 0x280000
WS_QR = 0x480000
WS_KV = 0x500000
WS_H  = 0xA00000
WS_O  = 0x1000000
WS_FP = 0x1280000
WS_SIZE = 0x2000000

S_X, S_WQKV, S_WO, S_BX, S_WG, S_WU, S_WD, S_OUT, S_DBG, S_WS = 4, 6, 8, 10, 12, 14, 16, 18, 20, 22

def load_args(a):
    a("s_load_dwordx16 s[4:19], s[0:1], 0")
    a("s_load_dwordx4 s[20:23], s[0:1], 64")

def srd(a, d, base, size):
    a(f"s_mov_b32 s{d}, s{base}")
    a(f"s_mov_b32 s{d+1}, s{base+1}")
    a(f"s_mov_b32 s{d+2}, {size}")
    a(f"s_mov_b32 s{d+3}, 0x00020000")

class VM:
    def __init__(self, a):
        self.a = a
        self.q = []
    def issue(self, line, tag):
        self.a(line)
        self.q.append(tag)
    def count_after(self, pred):
        last = -1
        for i, t in enumerate(self.q):
            if pred(t): last = i
        return len(self.q) - 1 - last if last >= 0 else None
    def wait(self, pred, extra=""):
        n = self.count_after(pred)
        if n is None:
            if extra: self.a(f"s_waitcnt {extra}")
            return
        n = min(n, 63)
        self.a(f"s_waitcnt vmcnt({n}) {extra}".strip())
        self.q = self.q[len(self.q) - n:] if n > 0 else []

def kernel_header(name):
    return f""".globl {name}
.p2align 8
.type {name},@function
{name}:
"""

def kernel_desc(name, nvgpr, accoff, nsgpr=96):
    return f""".p2align 6
.amdhsa_kernel {name}
  .amdhsa_next_free_vgpr {nvgpr}
  .amdhsa_next_free_sgpr {nsgpr}
  .amdhsa_accum_offset {accoff}
  .amdhsa_group_segment_fixed_size 0
  .amdhsa_kernarg_size 80
  .amdhsa_user_sgpr_count 2
  .amdhsa_user_sgpr_kernarg_segment_ptr 1
  .amdhsa_system_sgpr_workgroup_id_x 1
  .amdhsa_float_denorm_mode_32 3
.end_amdhsa_kernel
"""

import os
PROFILE = os.environ.get("PROFILE", "0") == "1"
WS_PROF = 0x1800000
def stamp(a, idx, real=False):
    if not PROFILE: return
    a(f"{'s_memrealtime' if real else 's_memtime'} s[84:85]")
    a("s_waitcnt lgkmcnt(0)")
    a(f"s_mov_b32 s{64+idx}, s84")
def stamp_start(a):
    if not PROFILE: return
    for i in range(16): a(f"s_mov_b32 s{64+i}, 0")
    stamp(a, 0); stamp(a, 15, True)
def stamp_flush(a, kidx, wave_sgpr, srd_ws=32):
    if not PROFILE: return
    a("s_waitcnt vmcnt(0)")
    stamp(a, 13); stamp(a, 14, True)
    a("s_mov_b64 exec, -1")
    for i in range(16):
        a(f"v_writelane_b32 v0, s{64+i}, {i}")
    a(f"s_lshl_b32 s84, s2, 4")
    a(f"s_add_u32 s84, s84, s{wave_sgpr}")
    a(f"s_lshl_b32 s84, s84, 6")
    a(f"s_add_u32 s84, s84, {WS_PROF + kidx * 0x100000}")
    a("v_mbcnt_lo_u32_b32 v1, -1, 0")
    a("v_mbcnt_hi_u32_b32 v1, -1, v1")
    a("v_lshlrev_b32 v1, 2, v1")
    a("s_mov_b64 exec, 0xffff")
    a(f"buffer_store_dword v0, v1, s[{srd_ws}:{srd_ws+3}], s84 offen")
```

```python
from common import *

def ln_rows(a, vx, vf, vt, srd_x, v_off, vm=None):
    for i in range(20):
        a(f"v_lshlrev_b32 v{vf+2*i}, 16, v{vx+i}")
        a(f"v_and_b32 v{vf+2*i+1}, 0xffff0000, v{vx+i}")
    t0, t1, t2, t3 = vt, vt + 2, vt + 4, vt + 6
    t4 = vt + 8
    a(f"v_pk_add_f32 v[{t0}:{t0+1}], v[{vf}:{vf+1}], v[{vf+2}:{vf+3}]")
    a(f"v_pk_mul_f32 v[{t1}:{t1+1}], v[{vf}:{vf+1}], v[{vf}:{vf+1}]")
    a(f"v_pk_add_f32 v[{t3}:{t3+1}], v[{vf+4}:{vf+5}], v[{vf+6}:{vf+7}]")
    a(f"v_pk_mul_f32 v[{t2}:{t2+1}], v[{vf+2}:{vf+3}], v[{vf+2}:{vf+3}]")
    for i in range(2, 20):
        q = t1 if i % 2 == 0 else t2
        a(f"v_pk_fma_f32 v[{q}:{q+1}], v[{vf+2*i}:{vf+2*i+1}], v[{vf+2*i}:{vf+2*i+1}], v[{q}:{q+1}]")
        if i >= 4:
            t = t0 if i % 2 == 0 else t3
            a(f"v_pk_add_f32 v[{t}:{t+1}], v[{t}:{t+1}], v[{vf+2*i}:{vf+2*i+1}]")
    a(f"v_pk_add_f32 v[{t0}:{t0+1}], v[{t0}:{t0+1}], v[{t3}:{t3+1}]")
    a(f"v_pk_add_f32 v[{t1}:{t1+1}], v[{t1}:{t1+1}], v[{t2}:{t2+1}]")
    a(f"v_add_f32 v{t0}, v{t0}, v{t0+1}")
    a(f"v_add_f32 v{t1}, v{t1}, v{t1+1}")
    for sh in (8, 4, 2, 1):
        a("s_nop 0")
        a(f"v_add_f32_dpp v{t0}, v{t0}, v{t0} row_ror:{sh} row_mask:0xf bank_mask:0xf")
        a(f"v_add_f32_dpp v{t1}, v{t1}, v{t1} row_ror:{sh} row_mask:0xf bank_mask:0xf")
    a(f"v_mul_f32 v{t2}, 0xbacccccd, v{t0}")
    a(f"v_mul_f32 v{t0}, 0x3acccccd, v{t1}")
    a(f"v_fma_f32 v{t0}, -v{t2}, v{t2}, v{t0}")
    a(f"v_max_f32 v{t0}, 0, v{t0}")
    a(f"v_cvt_pk_bf16_f32 v{t1}, v{t2}, v{t0}")
    a(f"v_lshlrev_b32 v{t2}, 16, v{t1}")
    a(f"v_lshlrev_b32 v{t2+1}, 16, v{t1}")
    a(f"v_and_b32 v{t0}, 0xffff0000, v{t1}")
    a(f"v_add_f32 v{t0}, 0x3727c5ac, v{t0}")
    a(f"v_cvt_pk_bf16_f32 v{t0}, v{t0}, v{t0}")
    a(f"v_and_b32 v{t0}, 0xffff0000, v{t0}")
    a(f"v_sqrt_f32 v{t0}, v{t0}")
    a("s_nop 0")
    a(f"v_cvt_pk_bf16_f32 v{t0}, v{t0}, v{t0}")
    a(f"v_and_b32 v{t0}, 0xffff0000, v{t0}")
    a(f"v_rcp_f32 v{t0}, v{t0}")
    a("s_nop 0")
    a(f"v_mov_b32 v{t0+1}, v{t0}")
    for i in range(20):
        a(f"v_pk_add_f32 v[{t3}:{t3+1}], v[{vf+2*i}:{vf+2*i+1}], v[{t2}:{t2+1}]")
        a(f"v_cvt_pk_bf16_f32 v{t1}, v{t3}, v{t3+1}")
        a(f"v_lshlrev_b32 v{t3}, 16, v{t1}")
        a(f"v_and_b32 v{t3+1}, 0xffff0000, v{t1}")
        a(f"v_pk_mul_f32 v[{t3}:{t3+1}], v[{t3}:{t3+1}], v[{t0}:{t0+1}]")
        a(f"v_cvt_pk_bf16_f32 v{vx+i}, v{t3}, v{t3+1}")

def gen_ln():
    a = Asm()
    a("s_cmp_ge_u32 s2, 128")
    a("s_cbranch_scc1 L_ln_end")
    stamp_start(a)
    load_args(a)
    a("v_lshrrev_b32 v1, 6, v0")
    a("v_and_b32 v2, 63, v0")
    a("s_lshl_b32 s3, s2, 4")
    a("v_readfirstlane_b32 s24, v1")
    a("v_lshrrev_b32 v3, 4, v0")
    a("v_add_u32 v3, s3, v3")
    a("v_mul_u32_u24 v3, 1280, v3")
    a("v_and_b32 v4, 15, v0")
    a("v_lshl_add_u32 v3, v4, 4, v3")
    a("v_and_b32 v4, 3, v2")
    a("v_lshrrev_b32 v5, 2, v2")
    a("v_lshl_add_u32 v6, v4, 4, v5")
    a("v_lshlrev_b32 v6, 2, v6")
    a("s_lshl_b32 s25, s24, 2")
    a("s_add_u32 s25, s25, s3")
    a("s_lshr_b32 s26, s25, 5")
    a("s_mul_i32 s26, s26, 40960")
    a("s_and_b32 s25, s25, 31")
    a("s_lshl_b32 s25, s25, 4")
    a("s_add_u32 s26, s26, s25")
    a("v_lshrrev_b32 v7, 1, v5")
    a("v_lshlrev_b32 v7, 10, v7")
    a("v_and_b32 v5, 1, v5")
    a("v_lshl_add_u32 v7, v5, 9, v7")
    a("v_lshl_add_u32 v7, v4, 4, v7")
    a("v_add_u32 v7, s26, v7")
    a("s_waitcnt lgkmcnt(0)")
    srd(a, 28, S_X, 2621440)
    srd(a, 32, S_WS, WS_SIZE)
    for i in range(5):
        a(f"buffer_load_dwordx4 v[{8+4*i}:{11+4*i}], v3, s[28:31], 0 offen offset:{256*i}")
    for i in range(1, 5):
        a(f"s_mov_b32 s{36+i}, {WS_XN + 8192*i}")
    a(f"s_mov_b32 s36, {WS_XN}")
    stamp(a, 1)
    a("s_waitcnt vmcnt(0)")
    stamp(a, 2)
    ln_rows(a, 8, 32, 72, 28, 3)
    stamp(a, 3)
    for i in range(20):
        a(f"ds_bpermute_b32 v{32+i}, v6, v{8+i}")
    for i in range(5):
        a(f"s_waitcnt lgkmcnt({min(15, 16-4*i)})")
        a(f"buffer_store_dwordx4 v[{32+4*i}:{35+4*i}], v7, s[32:35], s{36+i} offen")
    stamp_flush(a, 0, 24)
    a.label("L_ln_end")
    a("s_endpgm")
    return a, dict(name="ln_kernel", grid=128, block=256, lds=0, nvgpr=80, accoff=80)
```

```python
from common import *
from k_qkv import f2hex

CHUNK = 20480
NBUF = 3
DELTA = 90.0

SA, SB, P, O, NM, Q, K0, K1, V0, V1 = 16, 32, 48, 56, 72, 88, 94, 100, 106, 114
AK, AKR, AV = 3, 4, 5

def attn_role(a):
    vm = VM(a)
    a("s_and_b32 s24, s2, 7")
    a("s_lshr_b32 s26, s2, 3")
    a("s_lshl_b32 s24, s24, 2")
    a("s_lshr_b32 s27, s26, 3")
    a("s_add_u32 s24, s24, s27")
    a("s_and_b32 s26, s26, 7")
    a("s_lshl_b32 s26, s26, 3")
    a("s_add_u32 s26, s26, s25")
    a("s_lshl_b32 s27, s24, 6")
    a("s_add_u32 s27, s27, s26")
    a("s_lshl_b32 s40, s27, 10")
    a(f"s_add_u32 s40, s40, {WS_QM}")
    a("s_lshl_b32 s41, s27, 8")
    a(f"s_add_u32 s41, s41, {WS_QR}")
    a("s_mul_i32 s42, s24, 163840")
    a(f"s_add_u32 s42, s42, {WS_KV}")
    a("s_mul_i32 s3, s25, 5120")
    a("s_add_u32 s43, s42, s3")
    a("s_mov_b32 s44, s3")
    a("v_lshlrev_b32 v3, 4, v2")
    a("v_and_b32 v6, 31, v2")
    a("v_lshlrev_b32 v4, 3, v6")
    a("v_lshrrev_b32 v7, 5, v2")
    a("v_mul_u32_u24 v5, 320, v7")
    a("v_lshl_add_u32 v5, v6, 4, v5")
    a("s_mov_b32 s30, 0x000fffff")
    a("s_mov_b32 s31, 0x000fffff")
    a("s_waitcnt lgkmcnt(0)")
    srd(a, 32, S_WS, WS_SIZE)

    def dma_chunk(tag, first=False):
        for i in range(5):
            if i == 0: a("s_mov_b32 m0, s44")
            if i == 4:
                a("s_add_u32 m0, s44, 4096")
                a("s_add_u32 s3, s43, 4096")
            if i in (0,): a("s_nop 0")
            so = "s43" if i < 4 else "s3"
            off = f" offset:{1024*i}" if 0 < i < 4 else ""
            vm.issue(f"buffer_load_dwordx4 v3, s[32:35], {so} offen{off} lds", tag)
        a(f"s_add_u32 s43, s43, {CHUNK}")
    a("s_cmp_ge_u32 s25, 4")
    a("s_cbranch_scc1 L_at_nodma0")
    dma_chunk(("C", 0))
    a(f"s_add_u32 s44, s44, {CHUNK}")
    dma_chunk(("C", 1))
    a(f"s_add_u32 s44, s44, {CHUNK}")
    a.label("L_at_nodma0")
    a(f"buffer_load_dwordx4 v[{Q}:{Q+3}], v3, s[32:35], s40 offen")
    a(f"v_mov_b32 v{Q+4}, 0")
    a(f"v_mov_b32 v{Q+5}, 0")
    a("s_mov_b32 exec_hi, 0")
    a(f"buffer_load_dwordx2 v[{Q+4}:{Q+5}], v4, s[32:35], s41 offen")
    a("s_mov_b32 exec_hi, -1")
    for i in range(16):
        a(f"v_mov_b32 v{O+i}, 0")
    if os.environ.get("EXP_VONES"):
        a("v_mov_b32 v8, 0x3f803f80")
    else:
        a("v_cmp_eq_u32 vcc, 20, v6")
        a("v_mov_b32 v8, 0x3f803f80")
        a("s_nop 0")
        a("v_cndmask_b32 v8, 0, v8, vcc")
    for i in range(16):
        a(f"v_mov_b32 v{V0+i}, v8")
    stamp(a, 1)
    a("s_waitcnt vmcnt(0)")
    a("s_barrier")
    stamp(a, 2)
    vm.q = []
    a(f"ds_read_b128 v[{K0}:{K0+3}], v{AK}")
    a(f"ds_read_b64 v[{K0+4}:{K0+5}], v{AKR} offset:1024")
    a(f"ds_read_b128 v[{K1}:{K1+3}], v{AK} offset:2560")
    a(f"ds_read_b64 v[{K1+4}:{K1+5}], v{AKR} offset:{2560+1024}")
    a("s_mov_b64 exec, s[30:31]")
    a(f"ds_read_b128 v[{V0}:{V0+3}], v{AV} offset:1280")
    a(f"ds_read_b128 v[{V0+4}:{V0+7}], v{AV} offset:1920")
    a("s_mov_b64 exec, -1")
    a("s_waitcnt lgkmcnt(4)")
    a(f"v_mfma_f32_32x32x16_bf16 v[{SA}:{SA+15}], v[{K0}:{K0+3}], v[{Q}:{Q+3}], 0")
    a(f"v_mfma_f32_32x32x8_bf16 v[{SA}:{SA+15}], v[{K0+4}:{K0+5}], v[{Q+4}:{Q+5}], v[{SA}:{SA+15}]")
    a("s_nop 11")
    rowmax16(a, SA, 8)
    a(f"v_add_f32 v8, {f2hex(DELTA)}, v8")
    a("v_sub_f32 v8, 0, v8")
    for i in range(16):
        a(f"v_mov_b32 v{NM+i}, v8")
    for i in range(16):
        a(f"v_add_f32 v{SA+i}, v8, v{SA+i}")
    a("s_mov_b32 s45, 8")
    a(f"s_mov_b32 s46, {CHUNK}")
    a("s_mov_b32 s47, 0")
    stamp(a, 3)
    a(".p2align 6")
    a.label("L_at_loop")
    if PROFILE:
        a("s_memtime s[84:85]")
        a("s_memrealtime s[86:87]")
        a("s_waitcnt lgkmcnt(0)")
        a("s_sub_u32 m0, 8, s45")
        a("s_nop 0")
        a("v_writelane_b32 v126, s84, m0")
        a("s_add_u32 m0, m0, 8")
        a("s_nop 0")
        a("v_writelane_b32 v126, s86, m0")
    for t in range(8):
        Sc, Sn = (SA, SB) if t % 2 == 0 else (SB, SA)
        Kn, Knn = (K1, K0) if t % 2 == 0 else (K0, K1)
        Vc, Vn = (V0, V1) if t % 2 == 0 else (V1, V0)
        e = lambda i: f"v_exp_f32 v{Sc+i}, v{Sc+i}"
        c = lambda i: f"v_cvt_pk_bf16_f32 v{P+i}, v{Sc+2*i}, v{Sc+2*i+1}"
        qk1 = f"v_mfma_f32_32x32x16_bf16 v[{Sn}:{Sn+15}], v[{Kn}:{Kn+3}], v[{Q}:{Q+3}], v[{NM}:{NM+15}]"
        qk2 = f"v_mfma_f32_32x32x8_bf16 v[{Sn}:{Sn+15}], v[{Kn+4}:{Kn+5}], v[{Q+4}:{Q+5}], v[{Sn}:{Sn+15}]"
        pv1 = f"v_mfma_f32_32x32x16_bf16 v[{O}:{O+15}], v[{Vc}:{Vc+3}], v[{P}:{P+3}], v[{O}:{O+15}]"
        pv2 = f"v_mfma_f32_32x32x16_bf16 v[{O}:{O+15}], v[{Vc+4}:{Vc+7}], v[{P+4}:{P+7}], v[{O}:{O+15}]"
        ok = 2560 * ((t + 2) % 8)
        ov = 2560 * ((t + 1) % 8)
        if t == 0:
            a("s_cmp_ge_u32 s25, 4")
            a("s_cbranch_scc1 L_at_y0")
            a("s_setprio 2")
            a("s_branch L_at_y1")
            a.label("L_at_y0")
            a("s_setprio 3")
            a.label("L_at_y1")
        if t == 6:
            a("s_waitcnt vmcnt(0) lgkmcnt(0)")
            a("s_barrier")
            a("s_sub_u32 s3, s46, s47")
            a(f"v_add_u32 v{AK}, s3, v{AK}")
            a(f"v_add_u32 v{AKR}, s3, v{AKR}")
            a("s_cmp_ge_u32 s25, 4")
            a("s_cbranch_scc1 L_at_young6")
            a("s_cmp_le_u32 s45, 2")
            a("s_cbranch_scc1 L_at_nodma1")
            for i in range(5):
                if i == 0: a("s_mov_b32 m0, s44")
                if i == 4:
                    a("s_add_u32 m0, s44, 4096")
                    a("s_add_u32 s50, s43, 4096")
                if i == 0: a("s_nop 0")
                so = "s43" if i < 4 else "s50"
                off = f" offset:{1024*i}" if 0 < i < 4 else ""
                a(f"buffer_load_dwordx4 v9, s[32:35], {so} offen{off} lds")
            a(f"s_add_u32 s43, s43, {CHUNK}")
            a(f"s_add_u32 s44, s44, {CHUNK}")
            a(f"s_cmp_ge_u32 s44, {NBUF*CHUNK}")
            a(f"s_cselect_b32 s50, {NBUF*CHUNK}, 0")
            a("s_sub_u32 s44, s44, s50")
            a("s_branch L_at_nodma1")
            a.label("L_at_young6")
            a("s_setprio 1")
            a.label("L_at_nodma1")
        else:
            a("s_waitcnt lgkmcnt(0)")
        if t == 7:
            a(f"v_add_u32 v{AV}, s3, v{AV}")
            a("s_mov_b32 s47, s46")
            a(f"s_add_u32 s46, s46, {CHUNK}")
            a(f"s_cmp_ge_u32 s46, {NBUF*CHUNK}")
            a("s_cselect_b32 s46, 0, s46")
        X = os.environ.get("EXP_AT", "")
        a(qk1)
        if not ("halfread" in X and t % 2 == 1) and "noread" not in X:
            a(f"ds_read_b128 v[{Knn}:{Knn+3}], v{AK} offset:{ok}")
            a(f"ds_read_b64 v[{Knn+4}:{Knn+5}], v{AKR} offset:{ok+1024}")
            a("s_mov_b64 exec, s[30:31]")
            a(f"ds_read_b128 v[{Vn}:{Vn+3}], v{AV} offset:{ov+1280}")
            a(f"ds_read_b128 v[{Vn+4}:{Vn+7}], v{AV} offset:{ov+1920}")
            a("s_mov_b64 exec, -1")
        seq = [e(0), e(1), e(2), e(3), c(0), c(1), qk2, e(4), e(5), e(6), e(7), c(2), c(3), e(8), e(9), pv1,
                  e(10), e(11), c(4), c(5), e(12), e(13), e(14), e(15), c(6), c(7), "s_nop 0"]
        if "noqk2" in X: seq = [x for x in seq if x != qk2]
        if "nopv" in X: seq = [x for x in seq if x != pv1]; pv2 = "s_nop 0"
        if "nocvt" in X: seq = [x for x in seq if "cvt" not in x]
        if "halfexp" in X: seq = [x for x in seq if not ("v_exp" in x and int(x.split()[-1][1:]) % 2 == 1)]
        for x in seq:
            a(x)
        if t == 7:
            a("s_sub_u32 s45, s45, 1")
            a("s_cmp_lg_u32 s45, 0")
        else:
            a("s_nop 0")
        a(pv2)
    a("s_cbranch_scc1 L_at_loop")
    stamp(a, 4)
    a("s_mov_b32 s51, 0")
    a.label("L_at_fin")
    a("s_waitcnt lgkmcnt(0)")
    a("s_nop 11")
    a(f"v_mov_b32 v8, v{O+8}")
    a(f"v_mov_b32 v10, v{O+8}")
    a("s_nop 1")
    a("v_permlane32_swap_b32 v8, v10")
    a("v_rcp_f32 v11, v10")
    a("s_nop 0")
    for i in range(12):
        a(f"v_mul_f32 v{SA+i}, v11, v{O+i}")
    a("s_cmp_eq_u32 s51, 1")
    a("s_cbranch_scc1 L_at_store")
    a(f"v_add_f32 v12, |v{SA}|, |v{SA+1}|")
    for i in range(2, 8):
        a(f"v_add_f32 v12, |v{SA+i}|, v12")
    a(f"v_add_f32 v13, |v{SA+8}|, |v{SA+9}|")
    a(f"v_add_f32 v13, |v{SA+10}|, v13")
    a(f"v_add_f32 v13, |v{SA+11}|, v13")
    a("v_cmp_gt_u32 vcc, 32, v2")
    a("s_nop 1")
    a("v_cndmask_b32 v13, 0, v13, vcc")
    a("v_add_f32 v12, v12, v13")
    a("v_cmp_gt_f32 s[52:53], v10, s54")
    a("v_cmp_lt_f32 s[56:57], v10, s55")
    a("v_cmp_lt_f32 vcc, v12, s58")
    a("s_and_b64 s[52:53], s[52:53], s[56:57]")
    a("s_and_b64 s[52:53], s[52:53], vcc")
    a("s_cmp_eq_u64 s[52:53], exec")
    if not os.environ.get("EXP_AT"): a("s_cbranch_scc0 L_at_slow")
    a.label("L_at_store")
    for i in range(6):
        a(f"v_cvt_pk_bf16_f32 v{P+i}, v{SA+2*i}, v{SA+2*i+1}")
    a("s_mul_i32 s3, s26, 40")
    a("s_add_u32 s50, s3, s24")
    a("s_lshl_b32 s50, s50, 10")
    a(f"s_add_u32 s50, s50, {WS_O}")
    a(f"buffer_store_dwordx4 v[{P}:{P+3}], v9, s[32:35], s50 offen")
    a("s_lshr_b32 s50, s24, 2")
    a("s_add_u32 s50, s50, s3")
    a("s_add_u32 s50, s50, 32")
    a("s_lshl_b32 s50, s50, 10")
    a("s_and_b32 s3, s24, 1")
    a("s_lshl_b32 s3, s3, 9")
    a("s_add_u32 s50, s50, s3")
    a("s_bfe_u32 s3, s24, 0x10001")
    a("s_lshl_b32 s3, s3, 3")
    a("s_add_u32 s50, s50, s3")
    a(f"s_add_u32 s50, s50, {WS_O}")
    a("s_mov_b32 exec_hi, 0")
    a(f"buffer_store_dwordx2 v[{P+4}:{P+5}], v9, s[32:35], s50 offen")
    stamp_flush(a, 2, 25)
    if PROFILE:
        a("s_add_u32 s84, s84, 0x400000")
        a("buffer_store_dword v126, v1, s[32:35], s84 offen")
    a("s_endpgm")
    a.label("L_at_slow")
    a("v_and_b32 v6, 31, v2")
    a("v_lshlrev_b32 v4, 3, v6")
    a("v_lshrrev_b32 v7, 5, v2")
    a("v_mul_u32_u24 v5, 320, v7")
    a("v_lshl_add_u32 v5, v6, 4, v5")
    a("v_mov_b32 v14, 0xff800000")
    a("s_mov_b32 s50, s42")
    a("s_mov_b32 s45, 64")
    a.label("L_at_slow1")
    a(f"buffer_load_dwordx4 v[{K0}:{K0+3}], v9, s[32:35], s50 offen")
    a(f"buffer_load_dwordx2 v[{K0+4}:{K0+5}], v4, s[32:35], s50 offen offset:1024")
    a("s_waitcnt vmcnt(0)")
    a(f"v_mfma_f32_32x32x16_bf16 v[{SA}:{SA+15}], v[{K0}:{K0+3}], v[{Q}:{Q+3}], 0")
    a(f"v_mfma_f32_32x32x8_bf16 v[{SA}:{SA+15}], v[{K0+4}:{K0+5}], v[{Q+4}:{Q+5}], v[{SA}:{SA+15}]")
    a("s_nop 11")
    rowmax16(a, SA, 8)
    a("v_max_f32 v14, v14, v8")
    a("s_add_u32 s50, s50, 2560")
    a("s_sub_u32 s45, s45, 1")
    a("s_cmp_lg_u32 s45, 0")
    a("s_cbranch_scc1 L_at_slow1")
    a("v_sub_f32 v8, 0, v14")
    for i in range(16):
        a(f"v_mov_b32 v{NM+i}, v8")
        a(f"v_mov_b32 v{O+i}, 0")
    a("s_mov_b32 s50, s42")
    a("s_mov_b32 s45, 64")
    a.label("L_at_slow2")
    a(f"buffer_load_dwordx4 v[{K0}:{K0+3}], v9, s[32:35], s50 offen")
    a(f"buffer_load_dwordx2 v[{K0+4}:{K0+5}], v4, s[32:35], s50 offen offset:1024")
    a("s_mov_b64 exec, s[30:31]")
    a(f"buffer_load_dwordx4 v[{V0}:{V0+3}], v5, s[32:35], s50 offen offset:1280")
    a(f"buffer_load_dwordx4 v[{V0+4}:{V0+7}], v5, s[32:35], s50 offen offset:1920")
    a("s_mov_b64 exec, -1")
    a("s_waitcnt vmcnt(0)")
    a(f"v_mfma_f32_32x32x16_bf16 v[{SA}:{SA+15}], v[{K0}:{K0+3}], v[{Q}:{Q+3}], v[{NM}:{NM+15}]")
    a(f"v_mfma_f32_32x32x8_bf16 v[{SA}:{SA+15}], v[{K0+4}:{K0+5}], v[{Q+4}:{Q+5}], v[{SA}:{SA+15}]")
    a("s_nop 11")
    for i in range(16):
        a(f"v_exp_f32 v{SA+i}, v{SA+i}")
    a("s_nop 0")
    for i in range(8):
        a(f"v_cvt_pk_bf16_f32 v{P+i}, v{SA+2*i}, v{SA+2*i+1}")
    a("s_nop 1")
    a(f"v_mfma_f32_32x32x16_bf16 v[{O}:{O+15}], v[{V0}:{V0+3}], v[{P}:{P+3}], v[{O}:{O+15}]")
    a(f"v_mfma_f32_32x32x16_bf16 v[{O}:{O+15}], v[{V0+4}:{V0+7}], v[{P+4}:{P+7}], v[{O}:{O+15}]")
    a("s_add_u32 s50, s50, 2560")
    a("s_sub_u32 s45, s45, 1")
    a("s_cmp_lg_u32 s45, 0")
    a("s_cbranch_scc1 L_at_slow2")
    a("s_mov_b32 s51, 1")
    a("s_branch L_at_fin")

def rowmax16(a, S, d):
    a(f"v_max3_f32 v{d}, v{S}, v{S+1}, v{S+2}")
    a(f"v_max3_f32 v10, v{S+3}, v{S+4}, v{S+5}")
    a(f"v_max3_f32 v{d}, v{d}, v{S+6}, v{S+7}")
    a(f"v_max3_f32 v10, v10, v{S+8}, v{S+9}")
    a(f"v_max3_f32 v{d}, v{d}, v{S+10}, v{S+11}")
    a(f"v_max3_f32 v10, v10, v{S+12}, v{S+13}")
    a(f"v_max3_f32 v{d}, v{d}, v{S+14}, v{S+15}")
    a(f"v_max_f32 v{d}, v{d}, v10")
    a(f"v_mov_b32 v10, v{d}")
    a("s_nop 1")
    a(f"v_permlane32_swap_b32 v{d}, v10")
    a(f"v_max_f32 v{d}, v{d}, v10")

GU_BUF = 24832
GU_UP = 12416
def gu_role(a):
    vm = VM(a)
    ACC, XF, WF = 16, 64, 96
    XD = 8
    a("s_sub_u32 s3, s2, 256")
    a("s_and_b32 s24, s3, 7")
    a("s_lshr_b32 s26, s3, 3")
    a("s_lshr_b32 s27, s24, 2")
    a("s_lshl_b32 s27, s27, 2")
    a("s_and_b32 s3, s26, 3")
    a("s_add_u32 s27, s27, s3")
    a("s_and_b32 s24, s24, 3")
    a("s_lshl_b32 s24, s24, 3")
    a("s_lshr_b32 s26, s26, 2")
    a("s_add_u32 s24, s24, s26")
    a("s_lshl_b32 s26, s27, 3")
    a("s_add_u32 s26, s26, s25")
    a("s_mul_i32 s40, s26, 40960")
    a(f"s_add_u32 s40, s40, {WS_XN}")
    a("s_mul_i32 s41, s24, 96")
    a("s_and_b32 s3, s25, 3")
    a("s_mul_i32 s42, s3, 3072")
    a("s_cmp_ge_u32 s25, 4")
    a(f"s_cselect_b32 s43, {GU_UP}, 0")
    a("s_add_u32 s42, s42, s43")
    a("s_mul_i32 s3, s3, 192")
    a("v_lshlrev_b32 v3, 4, v2")
    a("s_movk_i32 s43, 3072")
    for i in range(3):
        a(f"v_add_u32 v8, s3, v2")
        if i: a(f"v_add_u32 v8, {64*i}, v8")
        a("v_mul_u32_u24 v9, 10923, v8")
        a("v_lshrrev_b32 v9, 16, v9")
        a("v_mul_u32_u24 v10, 6, v9")
        a("v_sub_u32 v10, v8, v10")
        a("v_lshlrev_b32 v10, 4, v10")
        a(f"v_mad_u32_u24 v{4+i}, v9, s43, v10")
    a("s_waitcnt lgkmcnt(0)")
    a("s_cmp_ge_u32 s25, 4")
    a(f"s_cselect_b32 s28, s{S_WU}, s{S_WG}")
    a(f"s_cselect_b32 s29, s{S_WU+1}, s{S_WG+1}")
    a("s_mov_b32 s30, 1966080")
    a("s_mov_b32 s31, 0x00020000")
    srd(a, 32, S_WS, WS_SIZE)
    def dma_stage(st):
        for i in range(3):
            a(f"s_add_u32 m0, s42, {(st % 3) * GU_BUF + 1024 * i}")
            a("s_nop 0")
            vm.issue(f"buffer_load_dwordx4 v{4+i}, s[28:31], s41 offen lds", ("W", st))
        a(f"s_add_u32 s41, s41, {128*3072}")
    def xload(s):
        r = XF + 4 * (s % XD)
        vm.issue(f"buffer_load_dwordx4 v[{r}:{r+3}], v3, s[32:35], s40 offen offset:{1024*(s%4)}", ("X", s))
        if s % 4 == 3: a("s_add_u32 s40, s40, 4096")
    dma_stage(0)
    for s in range(4): xload(s)
    dma_stage(1)
    for s in range(4, XD): xload(s)
    dma_stage(2)
    a("v_bfe_u32 v8, v2, 2, 2")
    a("v_lshrrev_b32 v9, 5, v2")
    a("v_lshl_add_u32 v8, v9, 3, v8")
    a("v_mul_u32_u24 v8, 96, v8")
    a("v_and_b32 v9, 3, v2")
    a("v_lshl_add_u32 v8, v9, 3, v8")
    a("v_bfe_u32 v9, v2, 4, 1")
    a(f"v_mul_u32_u24 v9, {GU_UP}, v9")
    a("v_add_u32 v7, v8, v9")
    a(f"v_add_u32 v8, {2*GU_BUF}, v7")
    for i in range(48):
        a(f"v_mov_b32 v{ACC+i}, 0")
    def reads(s):
        st, sp = s // 8, s % 8
        w = WF + 12 * (s % 2)
        buf = st % 3
        base = "v8" if buf == 2 else "v7"
        bo = 0 if buf == 2 else buf * GU_BUF
        for ft in range(3):
            for u in range(2):
                a(f"ds_read_b64_tr_b16 v[{w+4*ft+2*u}:{w+4*ft+2*u+1}], {base} offset:{bo + (16*sp+4*u)*96 + 32*ft}")
    def pre(s):
        if s % 8 == 0:
            st = s // 8
            vm.wait(lambda t: t == ("W", st), "lgkmcnt(0)" if s else "")
            a("s_barrier")
            stamp(a, 2 + st)
            if st >= 1 and st + 2 < 5:
                dma_stage(st + 2)
    pre(0); reads(0)
    for s in range(40):
        if s + 1 < 40:
            pre(s + 1); reads(s + 1)
            vm.wait(lambda t: t == ("X", s), "lgkmcnt(6)")
        else:
            vm.wait(lambda t: t == ("X", s), "lgkmcnt(0)")
        w = WF + 12 * (s % 2)
        x = XF + 4 * (s % XD)
        for ft in range(3):
            D = f"v[{ACC+16*ft}:{ACC+16*ft+15}]"
            a(f"v_mfma_f32_32x32x16_bf16 {D}, v[{w+4*ft}:{w+4*ft+3}], v[{x}:{x+3}], {D}")
        if s + XD < 40:
            xload(s + XD)
    stamp(a, 8)
    a("s_mul_i32 s50, s26, 96")
    a("s_mul_i32 s3, s24, 3")
    a("s_add_u32 s50, s50, s3")
    a("s_lshl_b32 s50, s50, 10")
    a(f"s_add_u32 s50, s50, {WS_H}")
    a(f"s_mov_b32 s52, {f2hex(-1.4426950408889634)}")
    a("s_mov_b32 s53, s52")
    a("s_mov_b32 s54, 1.0")
    a("s_mov_b32 s55, 1.0")
    a("s_nop 2")
    T = XF
    for ft in range(3):
        g = ACC + 16 * ft; u = g + 8
        for i in range(0, 8, 2):
            a(f"v_pk_mul_f32 v[{T+i}:{T+i+1}], v[{g+i}:{g+i+1}], s[52:53]")
        for i in range(8):
            a(f"v_exp_f32 v{T+i}, v{T+i}")
        for i in range(0, 8, 2):
            a(f"v_pk_add_f32 v[{T+i}:{T+i+1}], v[{T+i}:{T+i+1}], s[54:55]")
        for i in range(8):
            a(f"v_rcp_f32 v{T+i}, v{T+i}")
        for i in range(0, 8, 2):
            a(f"v_pk_mul_f32 v[{g+i}:{g+i+1}], v[{g+i}:{g+i+1}], v[{u+i}:{u+i+1}]")
        for i in range(0, 8, 2):
            a(f"v_pk_mul_f32 v[{g+i}:{g+i+1}], v[{g+i}:{g+i+1}], v[{T+i}:{T+i+1}]")
        for i in range(4):
            a(f"v_cvt_pk_bf16_f32 v{g+i}, v{g+2*i}, v{g+2*i+1}")
        a(f"buffer_store_dwordx4 v[{g}:{g+3}], v3, s[32:35], s50 offen offset:{1024*ft}")
    stamp(a, 9)
    stamp_flush(a, 2, 25)
    a("s_endpgm")

def gen_mid():
    a = Asm()
    if os.environ.get("EXP_NOGU"):
        a("s_cmp_ge_u32 s2, 256")
        a("s_cbranch_scc1 L_mid_end")
    if os.environ.get("EXP_NOATT"):
        a("s_cmp_lt_u32 s2, 256")
        a("s_cbranch_scc1 L_mid_end")
    a("s_cmp_ge_u32 s2, 512")
    a("s_cbranch_scc1 L_mid_end")
    stamp_start(a)
    load_args(a)
    a("v_lshrrev_b32 v1, 6, v0")
    a("v_and_b32 v2, 63, v0")
    a("s_cmp_ge_u32 s2, 256")
    a("v_readfirstlane_b32 s25, v1")
    a("s_cbranch_scc1 L_mid_gu")
    a("v_lshlrev_b32 v9, 4, v2")
    a(f"s_mov_b32 s54, {f2hex(2.0**-95)}")
    a(f"s_mov_b32 s55, {f2hex(2.0**118)}")
    a("s_mov_b32 s58, 0x7f800000")
    attn_role(a)
    a.label("L_mid_gu")
    gu_role(a)
    a.label("L_mid_end")
    a("s_endpgm")
    return a, dict(name="mid_kernel", grid=512, block=512, lds=81920, nvgpr=128, accoff=128)
```

```python
from common import *

def gen_out():
    a = Asm()
    vm = VM(a)
    ACC, WF, XR = 16, 40, 80
    XD = 24
    RING = 102400
    a("s_cmp_ge_u32 s2, 256")
    a("s_cbranch_scc1 L_out_end")
    stamp_start(a)
    load_args(a)
    a("v_lshrrev_b32 v1, 6, v0")
    a("v_and_b32 v2, 63, v0")
    a("s_and_b32 s24, s2, 7")
    a("v_readfirstlane_b32 s25, v1")
    a("s_lshr_b32 s26, s2, 3")
    a("s_lshr_b32 s27, s24, 1")
    a("s_lshl_b32 s27, s27, 3")
    a("s_and_b32 s3, s26, 7")
    a("s_add_u32 s27, s27, s3")
    a("s_and_b32 s24, s24, 1")
    a("s_lshl_b32 s24, s24, 2")
    a("s_lshr_b32 s26, s26, 3")
    a("s_add_u32 s24, s24, s26")
    a("s_lshl_b32 s26, s27, 2")
    a("s_add_u32 s26, s26, s25")
    a("s_lshr_b32 s27, s26, 1")
    a("s_and_b32 s3, s26, 1")
    a("s_lshl_b32 s3, s3, 8")
    a("s_mul_i32 s40, s27, 40960")
    a("s_add_u32 s40, s40, s3")
    a(f"s_add_u32 s40, s40, {WS_O}")
    a("s_mul_i32 s43, s27, 98304")
    a("s_add_u32 s43, s43, s3")
    a(f"s_add_u32 s43, s43, {WS_H}")
    a("s_mul_i32 s41, s24, 160")
    a("s_mul_i32 s3, s25, 40960")
    a("s_add_u32 s41, s41, s3")
    a("s_mov_b32 s44, s41")
    a("s_mul_i32 s42, s25, 5120")
    a("v_lshrrev_b32 v8, 4, v2")
    a("v_and_b32 v9, 15, v2")
    a("v_lshlrev_b32 v3, 4, v9")
    a("v_lshl_add_u32 v3, v8, 9, v3")
    DV = [4, 5, 6, 7, 10]
    a("s_movk_i32 s3, 1280")
    for b in range(5):
        a(f"v_add_u32 v11, {64*b}, v2")
        a("v_mul_u32_u24 v12, 6554, v11")
        a("v_lshrrev_b32 v12, 16, v12")
        a("v_mul_u32_u24 v13, 10, v12")
        a("v_sub_u32 v13, v11, v13")
        a("v_lshlrev_b32 v13, 4, v13")
        a(f"v_mad_u32_u24 v{DV[b]}, v12, s3, v13")
    a("s_lshl_b32 s45, s26, 4")
    a("v_add_u32 v11, s45, v9")
    a("v_mul_u32_u24 v11, 1280, v11")
    a("v_lshl_add_u32 v11, v8, 3, v11")
    a("s_mul_i32 s45, s24, 160")
    a("v_add_u32 v14, s45, v11")
    a("s_waitcnt lgkmcnt(0)")
    srd(a, 28, S_WO, 819200)
    srd(a, 32, S_WS, WS_SIZE)
    srd(a, 36, S_WD, 1966080)
    srd(a, 48, S_X, 2621440)
    srd(a, 52, S_OUT, 2621440)
    def dma(kind, st):
        for b in range(5):
            base = st * 20480 if kind == "O" else RING + (st % 3) * 20480
            a(f"s_add_u32 m0, s42, {base + 1024*b}")
            a("s_nop 0")
            if kind == "O":
                vm.issue(f"buffer_load_dwordx4 v{DV[b]}, s[28:31], s41 offen lds", ("WO", st))
            else:
                vm.issue(f"buffer_load_dwordx4 v{DV[b]}, s[36:39], s44 offen lds", ("WD", st))
        a(f"s_add_u32 {'s41' if kind == 'O' else 's44'}, {'s41' if kind == 'O' else 's44'}, {128*1280}")
    NS = 68
    def xload(s):
        r = 4 * (s % XD)
        so = "s40" if s < 20 else "s43"
        sl = s if s < 20 else s - 20
        vm.issue(f"buffer_load_dwordx4 a[{r}:{r+3}], v3, s[32:35], {so} offen offset:{2048*(sl%2)}", ("X", s))
        if sl % 2 == 1: a(f"s_add_u32 {so}, {so}, 4096")
    xs = 0
    stamp(a, 1)
    for st in range(5):
        dma("O", st)
        for _ in range(4):
            xload(xs); xs += 1
    dma("D", 0)
    for _ in range(4):
        xload(xs); xs += 1
    dma("D", 1)
    stamp(a, 2)
    a("v_bfe_u32 v11, v2, 2, 2")
    a("v_bfe_u32 v12, v2, 4, 1")
    a("v_lshrrev_b32 v13, 5, v2")
    a("v_and_b32 v15, 3, v2")
    a("v_lshlrev_b32 v15, 3, v15")
    a("s_movk_i32 s3, 160")
    TM, TM2, TRM, TRM2, TH = 90, 91, 92, 93, 94
    a("v_lshl_add_u32 v1, v12, 2, v11")
    a("v_mul_u32_u24 v8, 20, v13")
    a("v_add_u32 v8, v8, v1")
    a(f"v_mad_u32_u24 v{TM}, v8, s3, v15")
    a(f"v_add_u32 v{TM2}, 51200, v{TM}")
    a("v_lshl_add_u32 v8, v13, 4, v1")
    a(f"v_mad_u32_u24 v{TH}, v8, s3, v15")
    a(f"v_add_u32 v{TH}, {RING}, v{TH}")
    a("v_mul_u32_u24 v8, 80, v13")
    a("v_mul_u32_u24 v9, 20, v12")
    a("v_add3_u32 v8, v8, v9, v11")
    a(f"v_mad_u32_u24 v{TRM}, v8, s3, v15")
    a(f"v_add_u32 v{TRM2}, 51200, v{TRM}")
    for i in range(20):
        a(f"v_mov_b32 v{ACC+i}, 0")
    def reads(s):
        w = WF + 20 * (s % 2)
        for ft in range(5):
            for u in range(2):
                if s < 16:
                    off = (40 * s + 8 * u) * 160 + 32 * ft; base = TM
                    if off >= 51200: off -= 51200; base = TM2
                elif s < 20:
                    off = (160 * (s - 16) + 40 * u + 16) * 160 + 32 * ft; base = TRM
                    if off >= 51200: off -= 51200; base = TRM2
                else:
                    sh = s - 20
                    off = ((sh // 4) % 3) * 20480 + (32 * (sh % 4) + 8 * u) * 160 + 32 * ft; base = TH
                a(f"ds_read_b64_tr_b16 v[{w+4*ft+2*u}:{w+4*ft+2*u+1}], v{base} offset:{off}")
    state = {"wo": -1}
    def pre(s):
        if s < 16:
            needst = (40 * s + 39) // 128
            if needst > state["wo"]:
                state["wo"] = needst
                vm.wait(lambda t: t == ("WO", needst))
                a("s_barrier")
                if needst in (0, 4): stamp(a, 3 if needst == 0 else 4)
        elif s >= 20 and (s - 20) % 4 == 0:
            st = (s - 20) // 4
            vm.wait(lambda t: t == ("WD", st), "lgkmcnt(0)")
            a("s_barrier")
            if st in (0, 4, 8, 11): stamp(a, {0:5, 4:6, 8:7, 11:8}[st])
            if st + 2 < 12:
                dma("D", st + 2)
    pre(0); reads(0)
    for s in range(NS):
        if s + 1 < NS:
            pre(s + 1); reads(s + 1)
            vm.wait(lambda t: t == ("X", s), "lgkmcnt(10)")
        else:
            vm.wait(lambda t: t == ("X", s), "lgkmcnt(0)")
        w = WF + 20 * (s % 2)
        x = 4 * (s % XD)
        for ft in range(5):
            D = f"v[{ACC+4*ft}:{ACC+4*ft+3}]"
            a(f"v_mfma_f32_16x16x32_bf16 {D}, v[{w+4*ft}:{w+4*ft+3}], a[{x}:{x+3}], {D}")
        if xs < NS:
            xload(xs); xs += 1
        if s == NS - 12:
            for ft in range(5):
                vm.issue(f"buffer_load_dwordx2 v[{XR+2*ft}:{XR+2*ft+1}], v14, s[48:51], 0 offen offset:{32*ft}", ("R", 0))
    stamp(a, 9)
    vm.wait(lambda t: t == ("R", 0))
    a("s_nop 3")
    for ft in range(5):
        r = ACC + 4 * ft; xr = XR + 2 * ft
        a(f"v_lshlrev_b32 v4, 16, v{xr}")
        a(f"v_and_b32 v5, 0xffff0000, v{xr}")
        a(f"v_lshlrev_b32 v6, 16, v{xr+1}")
        a(f"v_and_b32 v7, 0xffff0000, v{xr+1}")
        a(f"v_pk_add_f32 v[{r}:{r+1}], v[{r}:{r+1}], v[4:5]")
        a(f"v_pk_add_f32 v[{r+2}:{r+3}], v[{r+2}:{r+3}], v[6:7]")
        a(f"v_cvt_pk_bf16_f32 v{r}, v{r}, v{r+1}")
        a(f"v_cvt_pk_bf16_f32 v{r+1}, v{r+2}, v{r+3}")
        a(f"buffer_store_dwordx2 v[{r}:{r+1}], v14, s[52:55], 0 offen offset:{32*ft}")
    stamp_flush(a, 3, 25)
    a.label("L_out_end")
    a("s_endpgm")
    return a, dict(name="out_kernel", grid=256, block=256, lds=163840, nvgpr=96 + 96, accoff=96)
```

```python
from common import *
import struct

def f2hex(x):
    return "0x%08x" % struct.unpack("<I", struct.pack("<f", x))[0]

QSCALE = (20 ** -0.5) * 1.4426950408889634

def gen_qkv():
    a = Asm()
    vm = VM(a)
    ACC = 128
    WF = 64
    AD = 32
    TR = 48
    a("s_cmp_ge_u32 s2, 240")
    a("s_cbranch_scc1 L_qkv_end")
    stamp_start(a)
    load_args(a)
    a("v_lshrrev_b32 v1, 6, v0")
    a("v_and_b32 v2, 63, v0")
    a("s_and_b32 s24, s2, 7")
    a("v_readfirstlane_b32 s25, v1")
    a("s_lshr_b32 s26, s2, 3")
    a("s_mul_i32 s24, s24, 30")
    a("s_add_u32 s24, s24, s26")
    a("s_cmp_ge_u32 s24, 80")
    a("s_cselect_b32 s27, 1, 0")
    a("s_cmp_ge_u32 s24, 160")
    a("s_cselect_b32 s27, 2, s27")
    a("s_mul_i32 s26, s27, 80")
    a("s_sub_u32 s24, s24, s26")
    a("s_mul_i32 s26, s24, 205")
    a("s_lshr_b32 s26, s26, 10")
    a("s_mul_i32 s3, s26, 5")
    a("s_sub_u32 s24, s24, s3")
    a("s_lshl_b32 s26, s26, 2")
    a("s_add_u32 s26, s26, s25")
    a("s_mul_i32 s40, s26, 40960")
    a(f"s_add_u32 s40, s40, {WS_XN}")
    a("s_mul_i32 s41, s27, 5")
    a("s_add_u32 s41, s41, s24")
    a("s_lshl_b32 s41, s41, 8")
    a("s_mul_i32 s3, s25, 61440")
    a("s_add_u32 s41, s41, s3")
    a("s_lshl_b32 s42, s25, 12")
    a("v_lshlrev_b32 v3, 4, v2")
    a("v_lshrrev_b32 v4, 4, v2")
    a("v_bfe_u32 v5, v2, 2, 2")
    a("v_xor_b32 v5, v5, v4")
    a("v_lshlrev_b32 v5, 6, v5")
    a("v_and_b32 v6, 3, v2")
    a("v_lshl_add_u32 v5, v6, 4, v5")
    a("s_movk_i32 s3, 3840")
    a("v_mad_u32_u24 v4, v4, s3, v5")
    a("s_waitcnt lgkmcnt(0)")
    srd(a, 28, S_WQKV, 2457600)
    srd(a, 32, S_WS, WS_SIZE)

    def issue_stage(st):
        for i in range(4):
            a("s_mov_b32 m0, s42")
            a(f"s_add_u32 s42, s42, {1024 if i < 3 else 16384 - 3072}")
            vm.issue("buffer_load_dwordx4 v4, s[28:31], s41 offen lds", ("W", st))
            a(f"s_add_u32 s41, s41, {15360 if i < 3 else 64*3840 - 3*15360}")
        for i in range(4):
            s = 4 * st + i
            vm.issue(f"buffer_load_dwordx4 a[{4*s}:{4*s+3}], v3, s[32:35], s40 offen offset:{1024*i}", ("X", st))
        a("s_add_u32 s40, s40, 4096")
    NUP = 7
    stamp(a, 1)
    for st in range(NUP):
        issue_stage(st)
    stamp(a, 2)

    a("v_bfe_u32 v5, v2, 2, 2")
    a("v_lshrrev_b32 v6, 5, v2")
    a("v_lshl_add_u32 v7, v6, 3, v5")
    a("v_lshlrev_b32 v7, 8, v7")
    a("v_bfe_u32 v8, v2, 4, 1")
    a("v_lshl_add_u32 v7, v8, 5, v7")
    a("v_and_b32 v8, 3, v2")
    a("v_lshl_add_u32 v7, v8, 3, v7")
    for ft in range(4):
        a(f"v_xor_b32 v8, {ft}, v5")
        a(f"v_lshl_add_u32 v{TR+ft}, v8, 6, v7")
    for i in range(64):
        a(f"v_mov_b32 v{ACC+i}, 0")
    a("v_and_b32 v9, 31, v2")
    a("s_cmp_eq_u32 s27, 2")
    a("s_cbranch_scc1 L_qkv_addrV")
    a("s_lshl_b32 s45, s26, 10")
    a(f"s_add_u32 s45, s45, {WS_QM}")
    a("s_lshl_b32 s47, s26, 8")
    a(f"s_add_u32 s47, s47, {WS_QR}")
    a("s_mov_b32 s44, 65536")
    a("s_mov_b32 s46, 16384")
    a(f"s_mov_b32 s48, {f2hex(QSCALE)}")
    a("s_cmp_eq_u32 s27, 0")
    a("s_cbranch_scc1 L_qkv_isq")
    a("s_mul_i32 s45, s26, 2560")
    a(f"s_add_u32 s45, s45, {WS_KV}")
    a("s_add_u32 s47, s45, 1024")
    a("s_mov_b32 s44, 163840")
    a("s_mov_b32 s46, 163840")
    a("s_mov_b32 s48, 1.0")
    a.label("L_qkv_isq")
    a("s_mov_b32 s49, s48")
    a("s_lshl_b32 s3, s24, 5")
    a("v_add_u32 v10, s3, v6")
    a("v_lshl_add_u32 v11, v9, 4, s45")
    a("v_lshl_add_u32 v12, v9, 3, s47")
    for cmb in range(16):
        a(f"v_add_u32 v13, {2*cmb}, v10")
        a("v_mul_u32_u24 v14, 205, v13")
        a("v_lshrrev_b32 v14, 10, v14")
        a("v_mul_u32_u24 v15, 5, v14")
        a("v_sub_u32 v15, v13, v15")
        a("v_lshrrev_b32 v16, 1, v15")
        a("v_lshl_add_u32 v16, v16, 9, v11")
        a("v_and_b32 v17, 1, v15")
        a("v_lshl_add_u32 v16, v17, 3, v16")
        a("v_cmp_eq_u32 vcc, 4, v15")
        a("v_mul_lo_u32 v17, v14, s44")
        a("v_add_u32 v16, v16, v17")
        a("v_mul_lo_u32 v17, v14, s46")
        a("v_add_u32 v17, v17, v12")
        a(f"v_cndmask_b32 v{AD+cmb}, v16, v17, vcc")
    def main_loop(vtype):
        vq = list(vm.q)
        def reads(s):
            w = WF + 16 * (s % 2)
            for ft in range(4):
                for u in range(2):
                    off = ((16 * s + 4 * u) * 256) % 65536
                    a(f"ds_read_b64_tr_b16 v[{w+4*ft+2*u}:{w+4*ft+2*u+1}], v{TR+ft} offset:{off}")
        def pre(s):
            if s % 4 == 0:
                st = s // 4
                vm.wait(lambda t: t[1] == st)
                a("s_barrier")
                if st in (0, 1, 3, 5, 7, 9): stamp(a, {0:3, 1:4, 3:5, 5:6, 7:7, 9:8}[st])
                if st + NUP < 10 :
                    issue_stage(st + NUP)
            if s % 16 == 0 and s > 0:
                for ft in range(4):
                    a(f"v_add_u32 v{TR+ft}, 0x10000, v{TR+ft}")
        pre(0); reads(0)
        for s in range(40):
            if s + 1 < 40:
                pre(s + 1); reads(s + 1)
                a("s_waitcnt lgkmcnt(8)")
            else:
                a("s_waitcnt lgkmcnt(0)")
            w = WF + 16 * (s % 2)
            for ft in range(4):
                W = f"v[{w+4*ft}:{w+4*ft+3}]"; X = f"a[{4*s}:{4*s+3}]"
                A, B = (X, W) if vtype else (W, X)
                D = f"v[{ACC+16*ft}:{ACC+16*ft+15}]"
                a(f"v_mfma_f32_32x32x16_bf16 {D}, {A}, {B}, {D}")
        vm.q = vq
    main_loop(False)
    a("s_nop 8")
    stamp(a, 9)
    for ft in range(4):
        for g in range(4):
            r = ACC + 16 * ft + 4 * g
            a(f"v_pk_mul_f32 v[{r}:{r+1}], v[{r}:{r+1}], s[48:49]")
            a(f"v_pk_mul_f32 v[{r+2}:{r+3}], v[{r+2}:{r+3}], s[48:49]")
            a(f"v_cvt_pk_bf16_f32 v{r}, v{r}, v{r+1}")
            a(f"v_cvt_pk_bf16_f32 v{r+1}, v{r+2}, v{r+3}")
            a(f"buffer_store_dwordx2 v[{r}:{r+1}], v{AD+4*ft+g}, s[32:35], 0 offen")
    stamp(a, 10)
    stamp_flush(a, 1, 25)
    a("s_endpgm")
    a.label("L_qkv_addrV")
    a("s_mul_i32 s45, s26, 2560")
    a(f"s_add_u32 s45, s45, {WS_KV + 1280}")
    a("s_lshl_b32 s3, s24, 7")
    a("v_add_u32 v10, s3, v9")
    a("v_mul_u32_u24 v11, 320, v6")
    a("v_add_u32 v11, s45, v11")
    a("s_mov_b32 s44, 163840")
    for ft in range(4):
        a(f"v_add_u32 v13, {32*ft}, v10")
        a("v_mul_u32_u24 v14, 3277, v13")
        a("v_lshrrev_b32 v14, 16, v14")
        a("v_mul_u32_u24 v15, 20, v14")
        a("v_sub_u32 v15, v13, v15")
        a("v_lshl_add_u32 v16, v15, 4, v11")
        a("v_mul_lo_u32 v17, v14, s44")
        a(f"v_add_u32 v{AD+ft}, v16, v17")
    main_loop(True)
    a("s_nop 8")
    stamp(a, 9)
    for ft in range(4):
        for gm in range(2):
            r = ACC + 16 * ft + 8 * gm
            for i in range(4):
                a(f"v_cvt_pk_bf16_f32 v{r+i}, v{r+2*i}, v{r+2*i+1}")
            a(f"buffer_store_dwordx4 v[{r}:{r+3}], v{AD+ft}, s[32:35], 0 offen offset:{640*gm}")
    stamp(a, 10)
    stamp_flush(a, 1, 25)
    a.label("L_qkv_end")
    a("s_endpgm")
    return a, dict(name="qkv_kernel", grid=240, block=256, lds=163840, nvgpr=192 + 160, accoff=192)
```

```python
from common import *
from k_ln import ln_rows
import struct

def f2hex(x):
    return "0x%08x" % struct.unpack("<I", struct.pack("<f", x))[0]

QSCALE = (20 ** -0.5) * 1.4426950408889634
WS_FL = 0x1400000
FSH = int(os.environ.get("FSH", "7"))
F_XN, F_QKV, F_QL, F_H, F_O = WS_FL, WS_FL + 0x10000, WS_FL + 0x20000, WS_FL + 0x30000, WS_FL + 0x40000
OOB = 0x7ffffff0
WS_ST = 0x1480000

class Cfg:
    fused = False
    sc = ""
cfg = Cfg()

_uid = [0]
def uid(p):
    _uid[0] += 1
    return f"{p}{_uid[0]}"

def publish(a, base, idx_sgpr, t=10, sh=None):
    if not cfg.fused: return
    a(f"s_lshl_b32 s62, s{idx_sgpr}, {FSH if sh is None else sh}")
    a(f"s_add_u32 s62, s62, {base}")
    a("v_mov_b32 v0, 0")
    a(f"v_mov_b32 v{t}, s60")
    a(f"v_mov_b32 v{t+1}, s61")
    a("s_mov_b64 exec, 1")
    a(f"buffer_store_dwordx2 v[{t}:{t+1}], v0, s[32:35], s62 offen sc1")
    a("s_mov_b64 exec, -1")

def poll(a, vaddr, t=10, sleep=2, single=False, sleep2=1):
    if not cfg.fused: return
    L = uid("L_poll")
    a("s_mov_b32 s83, 0x40000")
    a("s_mov_b64 exec, 1")
    a.label(L)
    a(f"buffer_load_dwordx2 v[{t}:{t+1}], v{vaddr}, s[32:35], 0 offen sc1")
    a("s_waitcnt vmcnt(0)")
    a(f"v_cmp_ne_u64 vcc, s[60:61], v[{t}:{t+1}]")
    a(f"s_cbranch_vccz {L}_1")
    a(f"s_sleep {sleep}")
    a("s_sub_u32 s83, s83, 1")
    a(f"s_cbranch_scc0 {L}")
    a.label(L + "_1")
    if not single:
        a("s_mov_b64 exec, -2")
        a.label(L + "_2")
        a(f"buffer_load_dwordx2 v[{t}:{t+1}], v{vaddr}, s[32:35], 0 offen sc1")
        a("s_waitcnt vmcnt(0)")
        a(f"v_cmp_ne_u64 vcc, s[60:61], v[{t}:{t+1}]")
        a(f"s_cbranch_vccz {L}_ok")
        a("s_mov_b64 exec, vcc")
        a(f"s_sleep {sleep2}")
        a("s_sub_u32 s83, s83, 1")
        a(f"s_cbranch_scc0 {L}_2")
        a.label(L + "_ok")
    a("s_mov_b64 exec, -1")

LNWG = ["s2"]
def ln_issue(a):
    a(f"s_lshl_b32 s3, {LNWG[0]}, 3")
    a("v_lshrrev_b32 v3, 4, v0")
    a("v_add_u32 v3, s3, v3")
    a("v_mul_u32_u24 v3, 1280, v3")
    a("v_and_b32 v4, 15, v0")
    a("v_lshl_add_u32 v3, v4, 4, v3")
    srd(a, 36, S_X, 2621440)
    for i in range(5):
        a(f"buffer_load_dwordx4 v[{16+4*i}:{19+4*i}], v3, s[36:39], 0 offen offset:{256*i}")

def ln_addr(a):
    a("v_and_b32 v4, 3, v2")
    a("v_lshrrev_b32 v5, 2, v2")
    a("v_lshl_add_u32 v6, v4, 4, v5")
    a("v_lshlrev_b32 v6, 2, v6")
    a(f"s_lshl_b32 s3, {LNWG[0]}, 3")
    a("s_lshl_b32 s26, s25, 2")
    a("s_add_u32 s3, s3, s26")
    a("s_lshr_b32 s26, s3, 5")
    a("s_mul_i32 s26, s26, 40960")
    a("s_and_b32 s3, s3, 31")
    a("s_lshl_b32 s3, s3, 4")
    a("s_add_u32 s26, s26, s3")
    a("v_lshrrev_b32 v7, 1, v5")
    a("v_lshlrev_b32 v7, 10, v7")
    a("v_and_b32 v5, 1, v5")
    a("v_lshl_add_u32 v7, v5, 9, v7")
    a("v_lshl_add_u32 v7, v4, 4, v7")
    a("v_add_u32 v7, s26, v7")
    for i in range(5):
        a(f"s_mov_b32 s{40+i}, {WS_XN + 8192*i}")

def ln_body(a):
    ln_rows(a, 16, 40, 80, None, None)
    for i in range(20):
        a(f"ds_bpermute_b32 v{40+i}, v6, v{16+i}")

def ln_finish(a):
    ln_addr(a)
    a("s_waitcnt vmcnt(0)")
    stamp(a, 1)
    ln_body(a)
    ln_store(a)

def ln_stats(a):
    a(f"s_lshl_b32 s3, {LNWG[0]}, 3")
    a("s_lshl_b32 s45, s25, 2")
    a("s_add_u32 s3, s3, s45")
    a("s_lshr_b32 s45, s3, 7")
    a("s_lshl_b32 s45, s45, 10")
    a("s_and_b32 s3, s3, 127")
    a("s_lshl_b32 s3, s3, 2")
    a("s_add_u32 s45, s45, s3")
    a(f"s_add_u32 s45, s45, {WS_ST}")
    a("v_lshrrev_b32 v4, 4, v2")
    a("v_lshlrev_b32 v4, 2, v4")
    a("s_mov_b32 exec_lo, 0x00010001")
    a("s_mov_b32 exec_hi, 0x00010001")
    a(f"buffer_store_dword v84, v4, s[32:35], s45 offen{cfg.sc}")
    a(f"buffer_store_dword v80, v4, s[32:35], s45 offen offset:512{cfg.sc}")
    a("s_mov_b64 exec, -1")

def ln_store(a):
    for i in range(5):
        a(f"s_waitcnt lgkmcnt({min(15, 16-4*i)})")
        a(f"buffer_store_dwordx4 v[{40+4*i}:{43+4*i}], v7, s[32:35], s{40+i} offen{cfg.sc}")

qkv_hook = None
attn_hook = None
def qkv_decode(a):
    a("s_and_b32 s24, s2, 7")
    a("s_lshr_b32 s26, s2, 3")
    a("s_lshr_b32 s27, s24, 1")
    a("s_lshl_b32 s27, s27, 1")
    a("s_and_b32 s3, s26, 1")
    a("s_add_u32 s27, s27, s3")
    a("s_and_b32 s24, s24, 1")
    a("s_mul_i32 s24, s24, 15")
    a("s_lshr_b32 s26, s26, 1")
    a("s_add_u32 s47, s24, s26")
    a("s_lshl_b32 s46, s47, 3")
    a("s_add_u32 s46, s46, s27")
    a("s_lshl_b32 s26, s27, 3")
    a("s_add_u32 s26, s26, s25")
    a("s_cmp_ge_u32 s47, 10")
    a("s_cselect_b32 s24, 1, 0")
    a("s_cmp_ge_u32 s47, 20")
    a("s_cselect_b32 s24, 2, s24")
    a("s_mul_i32 s3, s24, 10")
    a("s_sub_u32 s27, s47, s3")

def qkv_wdma(a, j0=0, j1=20, setup=True):
    if not setup:
        for j in range(j0, j1):
            a(f"s_add_u32 m0, s42, {4096*j}")
            a(f"s_add_u32 s3, s41, {4*30720*j}")
            a("buffer_load_dwordx4 v4, s[28:31], s3 offen lds")
        return
    srd(a, 28, S_WQKV, 2457600)
    a("v_lshrrev_b32 v4, 3, v2")
    a("v_bfe_u32 v5, v2, 2, 1")
    a("v_bfe_u32 v6, v2, 4, 1")
    a("v_xor_b32 v5, v5, v6")
    a("v_lshlrev_b32 v5, 6, v5")
    a("v_and_b32 v6, 3, v2")
    a("v_lshl_add_u32 v5, v6, 4, v5")
    a("s_movk_i32 s3, 3840")
    a("v_mad_u32_u24 v4, v4, s3, v5")
    a("s_sub_u32 s3, s25, 4")
    a("s_lshl_b32 s41, s47, 7")
    a("s_mul_i32 s42, s3, 30720")
    a("s_add_u32 s41, s41, s42")
    a("s_lshl_b32 s42, s3, 10")
    for j in range(j0, j1):
        a(f"s_add_u32 m0, s42, {4096*j}")
        a(f"s_add_u32 s3, s41, {4*30720*j}")
        a("buffer_load_dwordx4 v4, s[28:31], s3 offen lds")

def qkv_main(a):
    ACC, XF, WF, AD = 16, 48, 96, 112
    XD = 12
    T0, T1 = 4, 5
    vm = VM(a)
    a("s_mul_i32 s40, s26, 40960")
    a(f"s_add_u32 s40, s40, {WS_XN}")
    def xload(s):
        r = XF + 4 * (s % XD)
        vm.issue(f"buffer_load_dwordx4 v[{r}:{r+3}], v9, s[32:35], s40 offen offset:{1024*(s%4)}{cfg.sc}", ("X", s))
        if s % 4 == 3: a("s_add_u32 s40, s40, 4096")
    X0 = int(os.environ.get("QX0", "4"))
    for s in range(X0): xload(s)
    a("v_bfe_u32 v6, v2, 2, 2")
    a("v_lshrrev_b32 v7, 5, v2")
    a("v_lshl_add_u32 v8, v7, 3, v6")
    a("v_lshlrev_b32 v8, 7, v8")
    a("v_bfe_u32 v10, v2, 4, 1")
    a("v_lshl_add_u32 v8, v10, 5, v8")
    a("v_lshrrev_b32 v6, 1, v6")
    a("v_lshl_add_u32 v8, v6, 6, v8")
    a("v_and_b32 v10, 31, v2")
    for i in range(32):
        a(f"v_mov_b32 v{ACC+i}, 0")
    a("s_cmp_eq_u32 s24, 2")
    a("s_cbranch_scc1 L_qkv_V")
    a("v_and_b32 v11, 1, v2")
    a("v_lshlrev_b32 v11, 4, v11")
    a("v_bfe_u32 v12, v2, 1, 1")
    a("v_lshl_add_u32 v11, v12, 3, v11")
    a(f"v_add_u32 v{T0}, v8, v11")
    a(f"v_xor_b32 v{T1}, 64, v{T0}")
    a("s_lshl_b32 s45, s26, 10")
    a(f"s_add_u32 s45, s45, {WS_QM}")
    a("s_lshl_b32 s43, s26, 8")
    a(f"s_add_u32 s43, s43, {WS_QR}")
    a("s_mov_b32 s44, 65536")
    a("s_mov_b32 s42, 16384")
    a(f"s_mov_b32 s48, {f2hex(QSCALE)}")
    a("s_cmp_eq_u32 s24, 0")
    a("s_cbranch_scc1 L_qkv_isq")
    a("s_mul_i32 s45, s26, 2560")
    a(f"s_add_u32 s45, s45, {WS_KV}")
    a("s_add_u32 s43, s45, 1024")
    a("s_mov_b32 s44, 163840")
    a("s_mov_b32 s42, 163840")
    a("s_mov_b32 s48, 1.0")
    a.label("L_qkv_isq")
    a("s_mov_b32 s49, s48")
    a("s_lshl_b32 s3, s27, 3")
    a("v_add_u32 v11, s3, v7")
    a("v_lshl_add_u32 v12, v10, 4, s45")
    a("v_lshl_add_u32 v13, v10, 3, s43")
    a(f"s_mov_b32 s50, {OOB}")
    for q in range(4):
        a(f"v_add_u32 v14, {2*q}, v11")
        a("v_mul_u32_u24 v15, 205, v14")
        a("v_lshrrev_b32 v15, 10, v15")
        a("v_mul_u32_u24 v3, 5, v15")
        a("v_sub_u32 v14, v14, v3")
        a("v_lshlrev_b32 v15, 1, v15")
        a("v_mul_lo_u32 v3, v15, s42")
        a(f"v_add_u32 v{AD+3*q+1}, v3, v13")
        a(f"v_add_u32 v{AD+3*q+2}, s42, v{AD+3*q+1}")
        a("v_cmp_lt_u32 vcc, 2, v14")
        a("v_subrev_u32 v3, 3, v14")
        a("s_nop 0")
        a("v_addc_co_u32 v15, s[52:53], 0, v15, vcc")
        a("v_cndmask_b32 v3, v14, v3, vcc")
        a("v_mul_lo_u32 v15, v15, s44")
        a("v_lshl_add_u32 v3, v3, 9, v12")
        a("v_add_u32 v3, v3, v15")
        a("v_cmp_eq_u32 vcc, 2, v14")
        a("v_mov_b32 v15, s50")
        a("s_nop 0")
        a(f"v_cndmask_b32 v{AD+3*q}, v3, v15, vcc")
        a(f"v_cndmask_b32 v{AD+3*q+1}, v15, v{AD+3*q+1}, vcc")
        a(f"v_cndmask_b32 v{AD+3*q+2}, v15, v{AD+3*q+2}, vcc")
    def loop(vtype):
        vq = list(vm.q)
        def reads(s):
            w = WF + 8 * (s % 2)
            if s == 32:
                a(f"v_add_u32 v{T0}, 0x10000, v{T0}")
                a(f"v_add_u32 v{T1}, 0x10000, v{T1}")
            for ft in range(2):
                for u in range(2):
                    off = ((16 * s + 4 * u) * 128) % 65536
                    a(f"ds_read_b64_tr_b16 v[{w+4*ft+2*u}:{w+4*ft+2*u+1}], v{T0+ft} offset:{off}")
        reads(0)
        nx = X0
        for s in range(40):
            if s + 1 < 40:
                reads(s + 1)
                vm.wait(lambda t: t == ("X", s), "lgkmcnt(4)")
            else:
                vm.wait(lambda t: t == ("X", s), "lgkmcnt(0)")
            if s == 0 and not os.environ.get('LNSTAMP'): stamp(a, 5)
            w = WF + 8 * (s % 2); x = XF + 4 * (s % XD)
            for ft in range(2):
                W = f"v[{w+4*ft}:{w+4*ft+3}]"; X = f"v[{x}:{x+3}]"
                A, B = (X, W) if vtype else (W, X)
                D = f"v[{ACC+16*ft}:{ACC+16*ft+15}]"
                a(f"v_mfma_f32_32x32x16_bf16 {D}, {A}, {B}, {D}")
            for _ in range(2):
                if nx <= s + XD and nx < 40:
                    xload(nx); nx += 1
        vm.q = vq
        stamp(a, 6)
        if qkv_hook: qkv_hook()
    loop(False)
    a("s_nop 10")
    for q in range(4):
        r = ACC + 8 * q
        for i in range(0, 8, 2):
            a(f"v_pk_mul_f32 v[{r+i}:{r+i+1}], v[{r+i}:{r+i+1}], s[48:49]")
        for i in range(4):
            a(f"v_cvt_pk_bf16_f32 v{r+i}, v{r+2*i}, v{r+2*i+1}")
        a(f"buffer_store_dwordx4 v[{r}:{r+3}], v{AD+3*q}, s[32:35], 0 offen{cfg.sc}")
        a(f"buffer_store_dwordx2 v[{r}:{r+1}], v{AD+3*q+1}, s[32:35], 0 offen{cfg.sc}")
        a(f"buffer_store_dwordx2 v[{r+2}:{r+3}], v{AD+3*q+2}, s[32:35], 0 offen{cfg.sc}")
    a("s_branch L_qkv_done")
    a.label("L_qkv_V")
    a("v_and_b32 v11, 3, v2")
    a(f"v_lshl_add_u32 v{T0}, v11, 3, v8")
    a(f"v_xor_b32 v{T1}, 64, v{T0}")
    a("s_mul_i32 s45, s26, 2560")
    a(f"s_add_u32 s45, s45, {WS_KV + 1280}")
    a("s_lshl_b32 s3, s27, 6")
    a("v_add_u32 v10, s3, v10")
    a("v_mul_u32_u24 v11, 320, v7")
    a("v_add_u32 v11, s45, v11")
    a("s_mov_b32 s44, 163840")
    for ft in range(2):
        a(f"v_add_u32 v13, {32*ft}, v10")
        a("v_mul_u32_u24 v14, 3277, v13")
        a("v_lshrrev_b32 v14, 16, v14")
        a("v_mul_u32_u24 v15, 20, v14")
        a("v_sub_u32 v15, v13, v15")
        a("v_lshl_add_u32 v3, v15, 4, v11")
        a("v_mul_lo_u32 v14, v14, s44")
        a(f"v_add_u32 v{AD+ft}, v3, v14")
    loop(True)
    a("s_nop 10")
    for ft in range(2):
        for gm in range(2):
            r = ACC + 16 * ft + 8 * gm
            for i in range(4):
                a(f"v_cvt_pk_bf16_f32 v{r+i}, v{r+2*i}, v{r+2*i+1}")
            a(f"buffer_store_dwordx4 v[{r}:{r+3}], v{AD+ft}, s[32:35], 0 offen offset:{640*gm}{cfg.sc}")
    a.label("L_qkv_done")
    stamp(a, 7)

CHUNK = 20480
NBUF = 3
DELTA = 90.0
S0, S1, P, O0, O1, Q0, Q1, KA, KB, VA, VB = 16, 32, 48, 56, 72, 88, 94, 100, 106, 112, 120
AK, AKR, AV = 3, 4, 5

def rowmax16(a, S, d, t):
    a(f"v_max3_f32 v{d}, v{S}, v{S+1}, v{S+2}")
    a(f"v_max3_f32 v{t}, v{S+3}, v{S+4}, v{S+5}")
    a(f"v_max3_f32 v{d}, v{d}, v{S+6}, v{S+7}")
    a(f"v_max3_f32 v{t}, v{t}, v{S+8}, v{S+9}")
    a(f"v_max3_f32 v{d}, v{d}, v{S+10}, v{S+11}")
    a(f"v_max3_f32 v{t}, v{t}, v{S+12}, v{S+13}")
    a(f"v_max3_f32 v{d}, v{d}, v{S+14}, v{S+15}")
    a(f"v_max_f32 v{d}, v{d}, v{t}")
    a(f"v_mov_b32 v{t}, v{d}")
    a("s_nop 1")
    a(f"v_permlane32_swap_b32 v{d}, v{t}")
    a(f"v_max_f32 v{d}, v{d}, v{t}")

def attn_decode(a):
    a("s_and_b32 s24, s2, 7")
    a("s_lshr_b32 s27, s2, 3")
    a("s_lshl_b32 s24, s24, 2")
    a("s_lshr_b32 s3, s27, 3")
    a("s_add_u32 s24, s24, s3")
    a("s_and_b32 s27, s27, 7")

def attn_flag_addr(a, vd):
    a("s_mul_i32 s3, s24, 20")
    a("s_lshr_b32 s26, s3, 6")
    a("s_add_u32 s3, s3, 19")
    a("s_lshr_b32 s3, s3, 6")
    a("s_sub_u32 s3, s3, s26")
    a("v_min_u32 v10, 47, v2")
    a("v_lshrrev_b32 v11, 4, v10")
    a("v_mul_u32_u24 v11, 10, v11")
    a("v_bfe_u32 v12, v10, 3, 1")
    a("v_mul_lo_u32 v12, v12, s3")
    a("v_add3_u32 v11, v11, v12, s26")
    a("v_and_b32 v12, 7, v10")
    a("v_mov_b32 v13, s27")
    a("v_cmp_gt_u32 vcc, 16, v10")
    a("s_nop 1")
    a("v_cndmask_b32 v12, v12, v13, vcc")
    a(f"v_lshl_add_u32 v{vd}, v11, 3, v12")
    a(f"v_lshlrev_b32 v{vd}, {FSH}, v{vd}")
    a(f"v_add_u32 v{vd}, {F_QKV}, v{vd}")

PA = [int(x) for x in os.environ.get("PA", "2,3,1").split(",")]
def attn_main(a, prio=True):
    sc = cfg.sc
    a("s_and_b32 s46, s25, 3")
    a("s_lshr_b32 s47, s25, 2")
    a("s_lshl_b32 s26, s27, 3")
    a("s_lshl_b32 s3, s46, 1")
    a("s_add_u32 s26, s26, s3")
    a("s_lshl_b32 s3, s24, 6")
    a("s_add_u32 s3, s3, s26")
    a("s_lshl_b32 s40, s3, 10")
    a(f"s_add_u32 s40, s40, {WS_QM}")
    a("s_lshl_b32 s41, s3, 8")
    a(f"s_add_u32 s41, s41, {WS_QR}")
    a("s_mul_i32 s42, s24, 163840")
    a(f"s_add_u32 s42, s42, {WS_KV}")
    a("s_mul_i32 s3, s25, 5120")
    a("s_add_u32 s43, s42, s3")
    a("s_mov_b32 s44, s3")
    def dma_chunk():
        a("s_mov_b32 m0, s44")
        a("s_add_u32 s50, s43, 4096")
        for i in range(4):
            off = f" offset:{1024*i}" if i else ""
            a(f"buffer_load_dwordx4 v9, s[32:35], s43 offen{off}{sc} lds")
        a("s_add_u32 m0, s44, 4096")
        a(f"s_add_u32 s43, s43, {CHUNK}")
        a(f"buffer_load_dwordx4 v9, s[32:35], s50 offen{sc} lds")
        a(f"s_add_u32 s44, s44, {CHUNK}")
    a("v_and_b32 v6, 31, v2")
    a(f"v_lshlrev_b32 v{AKR}, 3, v6")
    a(f"buffer_load_dwordx4 v[{Q0}:{Q0+3}], v9, s[32:35], s40 offen{sc}")
    a(f"buffer_load_dwordx4 v[{Q1}:{Q1+3}], v9, s[32:35], s40 offen offset:1024{sc}")
    for r in (Q0 + 4, Q0 + 5, Q1 + 4, Q1 + 5, KA + 5, KB + 5):
        a(f"v_mov_b32 v{r}, 0")
    a("s_mov_b32 exec_hi, 0")
    a(f"buffer_load_dwordx2 v[{Q0+4}:{Q0+5}], v{AKR}, s[32:35], s41 offen{sc}")
    a(f"buffer_load_dwordx2 v[{Q1+4}:{Q1+5}], v{AKR}, s[32:35], s41 offen offset:256{sc}")
    a("s_mov_b32 exec_hi, -1")
    a("s_cmp_ge_u32 s25, 4")
    a("s_cbranch_scc1 L_at_nodma0")
    dma_chunk()
    dma_chunk()
    a.label("L_at_nodma0")
    a("v_lshrrev_b32 v7, 5, v2")
    a(f"v_mul_u32_u24 v{AV}, 320, v7")
    a(f"v_lshl_add_u32 v{AV}, v6, 4, v{AV}")
    a("s_mov_b32 s30, 0x000fffff")
    a("s_mov_b32 s31, 0x000fffff")
    a(f"v_mov_b32 v{KA+4}, 0x3f80")
    a(f"v_mov_b32 v{KB+4}, 0x3f80")
    a("v_cmp_eq_u32 vcc, 20, v6")
    a("v_mov_b32 v8, 0x3f803f80")
    a("s_nop 0")
    a("v_cndmask_b32 v8, 0, v8, vcc")
    for i in range(16):
        a(f"v_mov_b32 v{VA+i}, v8")
    for i in range(32):
        a(f"v_mov_b32 v{O0+i}, 0")
    for i in range(4, 8):
        a(f"v_mov_b32 v{P+i}, 0")
    a("s_cmp_ge_u32 s25, 4")
    a("s_cbranch_scc1 L_at_w0")
    a("s_waitcnt vmcnt(5)")
    a("s_branch L_at_w1")
    a.label("L_at_w0")
    a("s_waitcnt vmcnt(0)")
    a.label("L_at_w1")
    a("s_barrier")
    stamp(a, 10)
    if attn_hook: attn_hook()
    a(f"ds_read_b128 v[{KB}:{KB+3}], v9")
    a("s_mov_b32 exec_hi, 0")
    a(f"ds_read_b64 v[{KB+4}:{KB+5}], v{AKR} offset:1024")
    a("s_mov_b32 exec_hi, -1")
    a("s_mul_i32 s3, s47, 10240")
    a(f"v_add_u32 v{AK}, s3, v9")
    a(f"v_add_u32 v{AKR}, s3, v{AKR}")
    a(f"v_add_u32 v{AV}, s3, v{AV}")
    a(f"ds_read_b128 v[{KA}:{KA+3}], v{AK}")
    a("s_mov_b32 exec_hi, 0")
    a(f"ds_read_b64 v[{KA+4}:{KA+5}], v{AKR} offset:1024")
    a("s_mov_b64 exec, s[30:31]")
    a(f"ds_read_b128 v[{VA}:{VA+3}], v{AV} offset:1280")
    a(f"ds_read_b128 v[{VA+4}:{VA+7}], v{AV} offset:1920")
    a("s_mov_b64 exec, -1")
    a("s_waitcnt lgkmcnt(4)")
    def qk(S, K, Q):
        return (f"v_mfma_f32_32x32x16_bf16 v[{S}:{S+15}], v[{K}:{K+3}], v[{Q}:{Q+3}], 0",
                f"v_mfma_f32_32x32x8_bf16 v[{S}:{S+15}], v[{K+4}:{K+5}], v[{Q+4}:{Q+5}], v[{S}:{S+15}]")
    for x in qk(S0, KB, Q0) + qk(S1, KB, Q1): a(x)
    a("s_nop 9")
    rowmax16(a, S0, 10, 11)
    rowmax16(a, S1, 12, 13)
    a("v_cmp_lt_u32 vcc, 31, v2")
    for d, Q in ((10, Q0), (12, Q1)):
        a(f"v_add_f32 v{d}, {f2hex(DELTA)}, v{d}")
        a(f"v_sub_f32 v{d}, 0, v{d}")
        a(f"v_cvt_pk_bf16_f32 v{d}, v{d}, 0")
        a(f"v_cndmask_b32 v{Q+4}, v{Q+4}, v{d}, vcc")
    a("s_waitcnt lgkmcnt(0)")
    a("s_nop 0")
    for x in qk(S0, KA, Q0): a(x)
    a("s_mov_b32 s45, 8")
    a(f"s_mov_b32 s48, {CHUNK}")
    a("s_mov_b32 s49, 0")
    a("s_nop 7")
    a(".p2align 6")
    a.label("L_at_loop")
    if PROFILE:
        a("s_memtime s[84:85]")
        a("s_memrealtime s[86:87]")
        a("s_waitcnt lgkmcnt(0)")
        a("s_sub_u32 m0, 8, s45")
        a("s_nop 0")
        a("v_writelane_b32 v15, s84, m0")
        a("s_add_u32 m0, m0, 8")
        a("s_nop 0")
        a("v_writelane_b32 v15, s86, m0")
    def half(Sc, qks, pvp, pv1, mid=()):
        e = lambda i: f"v_exp_f32 v{Sc+i}, v{Sc+i}"
        c = lambda i: f"v_cvt_pk_bf16_f32 v{P+i}, v{Sc+2*i}, v{Sc+2*i+1}"
        seq = [qks[0], e(0), e(1), e(2), e(3), c(0), c(1), pvp] + list(mid) + [e(4), e(5), e(6), e(7), c(2), c(3), qks[1],
               e(8), e(9), e(10), e(11), e(12), pv1, e(13), e(14), e(15), c(4), c(5), c(6), c(7)]
        for x in seq: a(x)
    def pv(Oo, V, Pp):
        return f"v_mfma_f32_32x32x16_bf16 v[{Oo}:{Oo+15}], v[{V}:{V+3}], v[{Pp}:{Pp+3}], v[{Oo}:{Oo+15}]"
    for j in range(4):
        Kc, Kn = (KA, KB) if j % 2 == 0 else (KB, KA)
        Vc, Vn = (VA, VB) if j % 2 == 0 else (VB, VA)
        if j == 0 and prio:
            a("s_cmp_ge_u32 s25, 4")
            a("s_cbranch_scc1 L_at_y0")
            a(f"s_setprio {PA[0]}")
            a("s_branch L_at_y1")
            a.label("L_at_y0")
            a(f"s_setprio {PA[1]}")
            a.label("L_at_y1")
        if j == 3:
            a("s_waitcnt vmcnt(0)")
            a("s_barrier")
            a("s_sub_u32 s3, s48, s49")
            a(f"v_add_u32 v{AK}, s3, v{AK}")
            a(f"v_add_u32 v{AKR}, s3, v{AKR}")
            a(f"v_add_u32 v{AV}, s3, v{AV}")
            a("s_mov_b32 s49, s48")
            a(f"s_add_u32 s48, s48, {CHUNK}")
            a(f"s_cmp_ge_u32 s48, {NBUF*CHUNK}")
            a("s_cselect_b32 s48, 0, s48")
            a("s_cmp_ge_u32 s25, 4")
            a("s_cbranch_scc1 L_at_young")
            a("s_cmp_le_u32 s45, 2")
            a("s_cbranch_scc1 L_at_nodma1")
            dma_chunk()
            a(f"s_cmp_ge_u32 s44, {NBUF*CHUNK}")
            a(f"s_cselect_b32 s50, {NBUF*CHUNK}, 0")
            a("s_sub_u32 s44, s44, s50")
            a("s_branch L_at_nodma1")
            a.label("L_at_young")
            if prio: a(f"s_setprio {PA[2]}")
            a.label("L_at_nodma1")
        o = 2560 * ((j + 1) % 4)
        rd = [f"ds_read_b128 v[{Kn}:{Kn+3}], v{AK} offset:{o}",
              "s_mov_b32 exec_hi, 0",
              f"ds_read_b64 v[{Kn+4}:{Kn+5}], v{AKR} offset:{o+1024}",
              "s_mov_b64 exec, s[30:31]",
              f"ds_read_b128 v[{Vn}:{Vn+3}], v{AV} offset:{o+1280}",
              f"ds_read_b128 v[{Vn+4}:{Vn+7}], v{AV} offset:{o+1920}",
              "s_mov_b64 exec, -1"]
        half(S0, qk(S1, Kc, Q1), pv(O1, Vn + 4, P + 4), pv(O0, Vc, P), rd)
        a("s_waitcnt lgkmcnt(0)")
        half(S1, qk(S0, Kn, Q0), pv(O0, Vc + 4, P + 4), pv(O1, Vc, P))
    a("s_sub_u32 s45, s45, 1")
    a("s_cmp_lg_u32 s45, 0")
    a("s_cbranch_scc1 L_at_loop")
    a(pv(O1, VB + 4, P + 4))
    if prio: a("s_setprio 3")
    stamp(a, 11)
    a("s_lshl_b32 s3, s46, 12")
    a("v_add_u32 v6, s3, v9")
    a(f"v_add_u32 v7, {NBUF*CHUNK}, v6")
    a("s_cmp_eq_u32 s47, 0")
    a("s_cbranch_scc1 L_at_x0")
    for i in range(3):
        a(f"ds_write_b128 v7, v[{O0+4*i}:{O0+4*i+3}] offset:{1024*i}")
    a("v_mov_b32 v7, v6")
    for i in range(6):
        a(f"v_mov_b32 v{Q0+i}, v{Q1+i}")
    a("s_nop 0")
    for i in range(12):
        a(f"v_mov_b32 v{O0+i}, v{O1+i}")
    a("s_branch L_at_x1")
    a.label("L_at_x0")
    a("s_nop 6")
    for i in range(3):
        a(f"ds_write_b128 v6, v[{O1+4*i}:{O1+4*i+3}] offset:{1024*i}")
    a.label("L_at_x1")
    a("s_add_u32 s26, s26, s47")
    a("s_waitcnt lgkmcnt(0)")
    a("s_barrier")
    for i in range(3):
        a(f"ds_read_b128 v[{S1+4*i}:{S1+4*i+3}], v7 offset:{1024*i}")
    a("s_mov_b32 s51, 0")
    a(f"s_mov_b32 s54, {f2hex(2.0**-95)}")
    a(f"s_mov_b32 s55, {f2hex(2.0**118)}")
    a("s_mov_b32 s58, 0x7f800000")
    a("s_waitcnt lgkmcnt(0)")
    for i in range(0, 12, 2):
        a(f"v_pk_add_f32 v[{O0+i}:{O0+i+1}], v[{O0+i}:{O0+i+1}], v[{S1+i}:{S1+i+1}]")
    a.label("L_at_fin")
    a(f"v_mov_b32 v8, v{O0+8}")
    a(f"v_mov_b32 v10, v{O0+8}")
    a("s_nop 1")
    a("v_permlane32_swap_b32 v8, v10")
    a("v_rcp_f32 v11, v10")
    a("s_nop 0")
    for i in range(12):
        a(f"v_mul_f32 v{S0+i}, v11, v{O0+i}")
    a("s_cmp_eq_u32 s51, 1")
    a("s_cbranch_scc1 L_at_store")
    a(f"v_add_f32 v12, |v{S0}|, |v{S0+1}|")
    for i in range(2, 8):
        a(f"v_add_f32 v12, |v{S0+i}|, v12")
    a(f"v_add_f32 v13, |v{S0+8}|, |v{S0+9}|")
    a(f"v_add_f32 v13, |v{S0+10}|, v13")
    a(f"v_add_f32 v13, |v{S0+11}|, v13")
    a("v_cmp_gt_u32 vcc, 32, v2")
    a("s_nop 1")
    a("v_cndmask_b32 v13, 0, v13, vcc")
    a("v_add_f32 v12, v12, v13")
    a("v_cmp_gt_f32 s[52:53], v10, s54")
    a("v_cmp_lt_f32 s[56:57], v10, s55")
    a("v_cmp_lt_f32 vcc, v12, s58")
    a("s_and_b64 s[52:53], s[52:53], s[56:57]")
    a("s_and_b64 s[52:53], s[52:53], vcc")
    a("s_cmp_eq_u64 s[52:53], exec")
    a("s_cbranch_scc0 L_at_slow")
    a.label("L_at_store")
    for i in range(6):
        a(f"v_cvt_pk_bf16_f32 v{P+i}, v{S0+2*i}, v{S0+2*i+1}")
    a("s_mul_i32 s3, s26, 40")
    a("s_add_u32 s50, s3, s24")
    a("s_lshl_b32 s50, s50, 10")
    a(f"s_add_u32 s50, s50, {WS_O}")
    a(f"buffer_store_dwordx4 v[{P}:{P+3}], v9, s[32:35], s50 offen{sc}")
    a("s_lshr_b32 s50, s24, 2")
    a("s_add_u32 s50, s50, s3")
    a("s_add_u32 s50, s50, 32")
    a("s_lshl_b32 s50, s50, 10")
    a("s_and_b32 s3, s24, 1")
    a("s_lshl_b32 s3, s3, 9")
    a("s_add_u32 s50, s50, s3")
    a("s_bfe_u32 s3, s24, 0x10001")
    a("s_lshl_b32 s3, s3, 3")
    a("s_add_u32 s50, s50, s3")
    a(f"s_add_u32 s50, s50, {WS_O}")
    a("s_mov_b32 exec_hi, 0")
    a(f"buffer_store_dwordx2 v[{P+4}:{P+5}], v9, s[32:35], s50 offen{sc}")
    a("s_mov_b32 exec_hi, -1")
    a("s_branch L_at_done")
    NM = O1
    a.label("L_at_slow")
    a("v_and_b32 v6, 31, v2")
    a("v_lshlrev_b32 v4, 3, v6")
    a("v_lshrrev_b32 v7, 5, v2")
    a("v_mul_u32_u24 v5, 320, v7")
    a("v_lshl_add_u32 v5, v6, 4, v5")
    a("v_cmp_gt_u32 vcc, 32, v2")
    a("v_mov_b32 v14, 0xff800000")
    a("s_mov_b32 s50, s42")
    a(f"v_cndmask_b32 v{Q0+4}, 0, v{Q0+4}, vcc")
    a("s_mov_b32 s45, 64")
    a.label("L_at_slow1")
    a(f"buffer_load_dwordx4 v[{KA}:{KA+3}], v9, s[32:35], s50 offen{sc}")
    a(f"buffer_load_dwordx2 v[{KA+4}:{KA+5}], v4, s[32:35], s50 offen offset:1024{sc}")
    a("s_waitcnt vmcnt(0)")
    for x in qk(S0, KA, Q0): a(x)
    a("s_nop 11")
    rowmax16(a, S0, 8, 10)
    a("v_max_f32 v14, v14, v8")
    a("s_add_u32 s50, s50, 2560")
    a("s_sub_u32 s45, s45, 1")
    a("s_cmp_lg_u32 s45, 0")
    a("s_cbranch_scc1 L_at_slow1")
    a("v_sub_f32 v8, 0, v14")
    for i in range(16):
        a(f"v_mov_b32 v{NM+i}, v8")
        a(f"v_mov_b32 v{O0+i}, 0")
    a("s_mov_b32 s50, s42")
    a("s_mov_b32 s45, 64")
    a.label("L_at_slow2")
    a(f"buffer_load_dwordx4 v[{KA}:{KA+3}], v9, s[32:35], s50 offen{sc}")
    a(f"buffer_load_dwordx2 v[{KA+4}:{KA+5}], v4, s[32:35], s50 offen offset:1024{sc}")
    a("s_mov_b64 exec, s[30:31]")
    a(f"buffer_load_dwordx4 v[{VA}:{VA+3}], v5, s[32:35], s50 offen offset:1280{sc}")
    a(f"buffer_load_dwordx4 v[{VA+4}:{VA+7}], v5, s[32:35], s50 offen offset:1920{sc}")
    a("s_mov_b64 exec, -1")
    a("s_waitcnt vmcnt(0)")
    a(f"v_mfma_f32_32x32x16_bf16 v[{S0}:{S0+15}], v[{KA}:{KA+3}], v[{Q0}:{Q0+3}], v[{NM}:{NM+15}]")
    a(f"v_mfma_f32_32x32x8_bf16 v[{S0}:{S0+15}], v[{KA+4}:{KA+5}], v[{Q0+4}:{Q0+5}], v[{S0}:{S0+15}]")
    a("s_nop 11")
    for i in range(16):
        a(f"v_exp_f32 v{S0+i}, v{S0+i}")
    a("s_nop 0")
    for i in range(8):
        a(f"v_cvt_pk_bf16_f32 v{P+i}, v{S0+2*i}, v{S0+2*i+1}")
    a("s_nop 1")
    a(pv(O0, VA, P))
    a(pv(O0, VA + 4, P + 4))
    a("s_add_u32 s50, s50, 2560")
    a("s_sub_u32 s45, s45, 1")
    a("s_cmp_lg_u32 s45, 0")
    a("s_cbranch_scc1 L_at_slow2")
    a("s_mov_b32 s51, 1")
    a("s_nop 10")
    a("s_branch L_at_fin")
    a.label("L_at_done")

GU_BUF = 24832
GU_UP = 12416
def gu_decode(a):
    a("s_sub_u32 s3, s2, 256")
    a("s_and_b32 s24, s3, 7")
    a("s_lshr_b32 s26, s3, 3")
    a("s_lshr_b32 s27, s24, 2")
    a("s_lshl_b32 s27, s27, 2")
    a("s_and_b32 s3, s26, 3")
    a("s_add_u32 s27, s27, s3")
    a("s_and_b32 s24, s24, 3")
    a("s_lshl_b32 s24, s24, 3")
    a("s_lshr_b32 s26, s26, 2")
    a("s_add_u32 s24, s24, s26")
    a("s_lshl_b32 s26, s27, 3")
    a("s_add_u32 s26, s26, s25")

class GU:
    ACC, XF, WF, XD = 16, 64, 96, int(os.environ.get("GXD", "8"))
    def __init__(self, a):
        self.a = a; self.vm = VM(a)
    def setup(self):
        a = self.a
        a("s_mul_i32 s40, s26, 40960")
        a(f"s_add_u32 s40, s40, {WS_XN}")
        a("s_mul_i32 s41, s24, 96")
        a("s_and_b32 s3, s25, 3")
        a("s_mul_i32 s42, s3, 3072")
        a("s_cmp_ge_u32 s25, 4")
        a(f"s_cselect_b32 s43, {GU_UP}, 0")
        a(f"s_cselect_b32 s28, s{S_WU}, s{S_WG}")
        a(f"s_cselect_b32 s29, s{S_WU+1}, s{S_WG+1}")
        a("s_mov_b32 s30, 1966080")
        a("s_mov_b32 s31, 0x00020000")
        a("s_add_u32 s42, s42, s43")
        a("s_mul_i32 s3, s3, 192")
        a("s_movk_i32 s43, 3072")
        for i in range(3):
            a(f"v_add_u32 v8, s3, v2")
            if i: a(f"v_add_u32 v8, {64*i}, v8")
            a("v_mul_u32_u24 v10, 10923, v8")
            a("v_lshrrev_b32 v10, 16, v10")
            a("v_mul_u32_u24 v11, 6, v10")
            a("v_sub_u32 v11, v8, v11")
            a("v_lshlrev_b32 v11, 4, v11")
            a(f"v_mad_u32_u24 v{4+i}, v10, s43, v11")
        a("v_bfe_u32 v8, v2, 2, 2")
        a("v_lshrrev_b32 v10, 5, v2")
        a("v_lshl_add_u32 v8, v10, 3, v8")
        a("v_mul_u32_u24 v8, 96, v8")
        a("v_and_b32 v10, 3, v2")
        a("v_lshl_add_u32 v8, v10, 3, v8")
        a("v_bfe_u32 v10, v2, 4, 1")
        a(f"v_mul_u32_u24 v10, {GU_UP}, v10")
        a("v_add_u32 v7, v8, v10")
        a(f"v_add_u32 v8, {2*GU_BUF}, v7")
        for i in range(48):
            a(f"v_mov_b32 v{self.ACC+i}, 0")
    def dma_stage(self, st):
        a = self.a
        for i in range(3):
            a(f"s_add_u32 m0, s42, {(st % 3) * GU_BUF + 1024 * i}")
            a("s_nop 0")
            self.vm.issue(f"buffer_load_dwordx4 v{4+i}, s[28:31], s41 offen lds", ("W", st))
        a(f"s_add_u32 s41, s41, {128*3072}")
    def xload(self, s):
        r = self.XF + 4 * (s % self.XD)
        self.vm.issue(f"buffer_load_dwordx4 v[{r}:{r+3}], v9, s[32:35], s40 offen offset:{1024*(s%4)}{cfg.sc}", ("X", s))
        if s % 4 == 3: self.a("s_add_u32 s40, s40, 4096")
    def main(self, pre_dma, hook=None):
        a, vm, ACC, XF, WF, XD = self.a, self.vm, self.ACC, self.XF, self.WF, self.XD
        if pre_dma < 1: self.dma_stage(0)
        self.xload(0); self.xload(1)
        nx = [2]
        def reads(s):
            st, sp = s // 8, s % 8
            w = WF + 12 * (s % 2)
            buf = st % 3
            base = "v8" if buf == 2 else "v7"
            bo = 0 if buf == 2 else buf * GU_BUF
            for ft in range(3):
                for u in range(2):
                    a(f"ds_read_b64_tr_b16 v[{w+4*ft+2*u}:{w+4*ft+2*u+1}], {base} offset:{bo + (16*sp+4*u)*96 + 32*ft}")
        def pre(s):
            if s % 8 == 0:
                st = s // 8
                vm.wait(lambda t: t == ("W", st), "lgkmcnt(0)" if s else "")
                if os.environ.get("GSTAMP") and st == 0: stamp(a, 12)
                a("s_barrier")
                if st in (0, 2, 4): stamp(a, 3 + st // 2)
                if st >= 1 and st + 2 < 5:
                    self.dma_stage(st + 2)
        pre(0); reads(0)
        for s in range(40):
            if s + 1 < 40:
                pre(s + 1); reads(s + 1)
                vm.wait(lambda t: t == ("X", s), "lgkmcnt(6)")
            else:
                vm.wait(lambda t: t == ("X", s), "lgkmcnt(0)")
            w = WF + 12 * (s % 2)
            x = XF + 4 * (s % XD)
            for ft in range(3):
                D = f"v[{ACC+16*ft}:{ACC+16*ft+15}]"
                a(f"v_mfma_f32_32x32x16_bf16 {D}, v[{w+4*ft}:{w+4*ft+3}], v[{x}:{x+3}], {D}")
            for _ in range(2):
                if nx[0] <= s + XD and nx[0] < 40:
                    self.xload(nx[0]); nx[0] += 1
            if s == 1 and pre_dma < 2: self.dma_stage(1)
            if s == 4 and pre_dma < 3: self.dma_stage(2)
            if s == 6 and hook: hook()
        stamp(a, 6)
        a("s_setprio 3")
        a("s_mul_i32 s50, s26, 96")
        a("s_mul_i32 s3, s24, 3")
        a("s_add_u32 s50, s50, s3")
        a("s_lshl_b32 s50, s50, 10")
        a(f"s_add_u32 s50, s50, {WS_H}")
        a(f"s_mov_b32 s52, {f2hex(-1.4426950408889634)}")
        a("s_mov_b32 s53, s52")
        a("s_mov_b32 s54, 1.0")
        a("s_mov_b32 s55, 1.0")
        a("s_nop 1")
        T = XF
        for ft in range(3):
            g = ACC + 16 * ft; u = g + 8
            for i in range(0, 8, 2):
                a(f"v_pk_mul_f32 v[{T+i}:{T+i+1}], v[{g+i}:{g+i+1}], s[52:53]")
            for i in range(8):
                a(f"v_exp_f32 v{T+i}, v{T+i}")
            for i in range(0, 8, 2):
                a(f"v_pk_add_f32 v[{T+i}:{T+i+1}], v[{T+i}:{T+i+1}], s[54:55]")
            for i in range(8):
                a(f"v_rcp_f32 v{T+i}, v{T+i}")
            for i in range(0, 8, 2):
                a(f"v_pk_mul_f32 v[{g+i}:{g+i+1}], v[{g+i}:{g+i+1}], v[{u+i}:{u+i+1}]")
            for i in range(0, 8, 2):
                a(f"v_pk_mul_f32 v[{g+i}:{g+i+1}], v[{g+i}:{g+i+1}], v[{T+i}:{T+i+1}]")
            for i in range(4):
                a(f"v_cvt_pk_bf16_f32 v{g+i}, v{g+2*i}, v{g+2*i+1}")
            a(f"buffer_store_dwordx4 v[{g}:{g+3}], v9, s[32:35], s50 offen offset:{1024*ft}{cfg.sc}")
        stamp(a, 7)

def fin_decode(a):
    a("s_and_b32 s3, s2, 255")
    a("s_and_b32 s24, s3, 7")
    a("s_lshr_b32 s26, s3, 3")
    a("s_lshr_b32 s27, s24, 1")
    a("s_lshl_b32 s27, s27, 3")
    a("s_and_b32 s3, s26, 7")
    a("s_add_u32 s27, s27, s3")
    a("s_and_b32 s24, s24, 1")
    a("s_lshl_b32 s24, s24, 2")
    a("s_lshr_b32 s26, s26, 3")
    a("s_add_u32 s24, s24, s26")

class FIN:
    ACC, XF, WF = 16, 56, 88
    DV = [4, 5, 6, 7, 8]
    TD, TM, TR = 11, 12, 13
    def __init__(self, a):
        self.a = a; self.vm = VM(a); self.q = [[], []]
    def setup(self):
        a = self.a
        srd(a, 28, S_WD, 1966080)
        srd(a, 36, S_WO, 819200)
        a("s_and_b32 s46, s25, 1")
        a("s_lshr_b32 s47, s25, 1")
        a("s_lshl_b32 s26, s27, 1")
        a("s_add_u32 s26, s26, s46")
        a("s_lshl_b32 s3, s47, 11")
        a("s_mul_i32 s40, s26, 98304")
        a("s_add_u32 s40, s40, s3")
        a(f"s_add_u32 s40, s40, {WS_H}")
        a("s_mul_i32 s43, s26, 40960")
        a("s_add_u32 s43, s43, s3")
        a(f"s_add_u32 s43, s43, {WS_O}")
        a("s_mul_i32 s41, s24, 160")
        a("s_mul_i32 s3, s25, 40960")
        a("s_add_u32 s41, s41, s3")
        a("s_mov_b32 s44, s41")
        a("s_mul_i32 s49, s25, 5120")
        a("s_and_b32 s3, s25, 3")
        a("s_mul_i32 s42, s3, 5120")
        a("s_lshr_b32 s48, s25, 2")
        a("v_lshrrev_b32 v10, 4, v2")
        a("v_and_b32 v14, 15, v2")
        a("v_lshlrev_b32 v3, 4, v14")
        a("v_lshl_add_u32 v3, v10, 9, v3")
        a("s_movk_i32 s3, 1280")
        for b in range(5):
            a(f"v_add_u32 v11, {64*b}, v2")
            a("v_mul_u32_u24 v12, 6554, v11")
            a("v_lshrrev_b32 v12, 16, v12")
            a("v_mul_u32_u24 v13, 10, v12")
            a("v_sub_u32 v13, v11, v13")
            a("v_lshlrev_b32 v13, 4, v13")
            a(f"v_mad_u32_u24 v{self.DV[b]}, v12, s3, v13")
        a("s_lshl_b32 s45, s26, 5")
        a("v_add_u32 v14, s45, v14")
        a("v_mul_u32_u24 v14, 1280, v14")
        a("v_lshl_add_u32 v14, v10, 3, v14")
        a("s_mul_i32 s45, s24, 160")
        a("v_add_u32 v14, s45, v14")
        a("v_bfe_u32 v10, v2, 2, 2")
        a("v_bfe_u32 v15, v2, 4, 1")
        a("v_lshrrev_b32 v1, 5, v2")
        a("v_and_b32 v0, 3, v2")
        a("v_lshlrev_b32 v0, 3, v0")
        a("s_movk_i32 s3, 160")
        a(f"v_lshl_add_u32 v{self.TD}, v1, 4, v10")
        a(f"v_lshl_add_u32 v{self.TD}, v15, 2, v{self.TD}")
        a(f"v_mad_u32_u24 v{self.TD}, v{self.TD}, s3, v0")
        a("s_mul_i32 s45, s47, 5120")
        a(f"v_add_u32 v{self.TD}, s45, v{self.TD}")
        a(f"v_mul_u32_u24 v{self.TM}, 20, v1")
        a(f"v_lshl_add_u32 v{self.TM}, v15, 2, v{self.TM}")
        a(f"v_add_u32 v{self.TM}, v{self.TM}, v10")
        a(f"v_mad_u32_u24 v{self.TM}, v{self.TM}, s3, v0")
        a("s_mul_i32 s45, s47, 6400")
        a(f"v_add_u32 v{self.TM}, s45, v{self.TM}")
        a(f"v_mul_u32_u24 v{self.TR}, 80, v1")
        a("v_mul_u32_u24 v15, 20, v15")
        a(f"v_add3_u32 v{self.TR}, v{self.TR}, v15, v10")
        a(f"v_mad_u32_u24 v{self.TR}, v{self.TR}, s3, v0")
        a(f"v_add_u32 v{self.TR}, {16*160}, v{self.TR}")
        for i in range(40):
            a(f"v_mov_b32 v{self.ACC+i}, 0")
    def dma_wd(self, m):
        a = self.a
        L = uid("L_dwd")
        a(f"s_cmp_lg_u32 s48, {m % 2}")
        a(f"s_cbranch_scc1 {L}")
        for b in range(5):
            a(f"s_add_u32 m0, s42, {(m % 4) * 20480 + 1024 * b}")
            a("s_nop 0")
            a(f"buffer_load_dwordx4 v{self.DV[b]}, s[28:31], s41 offen lds")
        a(f"s_add_u32 s41, s41, {256*1280}")
        a.label(L)
        self.q[m % 2] += [("W", m)] * 5
    def hload(self, m):
        r = self.XF + 8 * (m % 4)
        for th in range(2):
            self.a(f"buffer_load_dwordx4 v[{r+4*th}:{r+4*th+3}], v3, s[32:35], s40 offen offset:{256*th}{cfg.sc}")
            for q in self.q: q.append(("X", m))
        self.a("s_add_u32 s40, s40, 8192")
    def wait2(self, preds, extra=""):
        n = 63
        for q in self.q:
            last = max([i for i, t in enumerate(q) if t in preds], default=-1)
            if last >= 0: n = min(n, len(q) - 1 - last)
        if n == 63:
            if extra: self.a(f"s_waitcnt {extra}")
            return
        self.a(f"s_waitcnt vmcnt({n}) {extra}".strip())
        self.q = [q[len(q) - n:] if n > 0 else [] for q in self.q]
    def wreads(self, w, base, off, ustep):
        for ft in range(5):
            for u in range(2):
                self.a(f"ds_read_b64_tr_b16 v[{w+4*ft+2*u}:{w+4*ft+2*u+1}], v{base} offset:{off + ustep*u + 32*ft}")
    def mfmas(self, w, x):
        for ft in range(5):
            for th in range(2):
                d = self.ACC + 4 * (5 * th + ft)
                self.a(f"v_mfma_f32_16x16x32_bf16 v[{d}:{d+3}], v[{w+4*ft}:{w+4*ft+3}], v[{x+4*th}:{x+4*th+3}], v[{d}:{d+3}]")
    def down(self):
        a = self.a
        for m in range(2): self.hload(m)
        nh = 2
        TD2 = 15
        a(f"v_add_u32 v{TD2}, 40960, v{self.TD}")
        def reads(m):
            base = self.TD if (m % 4) < 2 else TD2
            self.wreads(self.WF + 20 * (m % 2), base, (m % 2) * 20480, 1280)
        self.wait2([("W", 0)])
        a("s_barrier")
        if not os.environ.get("GSTAMP"): stamp(a, 9)
        reads(0)
        for m in range(12):
            if m + 1 < 12:
                self.wait2([("W", m + 1)], "lgkmcnt(0)")
                a("s_barrier")
                reads(m + 1)
                if m + 4 < 12: self.dma_wd(m + 4)
                if m == 9:
                    a("s_waitcnt vmcnt(0)")
                    self.q = [[], []]
                    self.wo_stage()
                self.wait2([("X", m)])
            else:
                self.wait2([("X", m)], "lgkmcnt(0)")
            self.mfmas(self.WF + 20 * (m % 2), self.XF + 8 * (m % 4))
            for _ in range(2):
                if nh <= m + 4 and nh < 12:
                    self.hload(nh); nh += 1
        if not os.environ.get("GSTAMP"): stamp(a, 10)
    def wo_stage(self):
        a = self.a
        a("s_cmp_ge_u32 s25, 5")
        a("s_cbranch_scc1 L_fin_p0")
        a(f"s_add_u32 s3, s44, {480*1280}")
        for b in range(5):
            a(f"s_add_u32 m0, s49, {1024*b}")
            a("s_nop 0")
            a(f"buffer_load_dwordx4 v{self.DV[b]}, s[36:39], s3 offen lds")
        a.label("L_fin_p0")
    def wo_prefetch(self):
        a = self.a
        a("s_waitcnt vmcnt(0)")
        a("s_barrier")
        self.wreads(self.WF + 20, self.TM, 0, 1280)
        a("s_cmp_lg_u32 s47, 3")
        a("s_cbranch_scc1 L_fin_p1")
        self.wreads(self.WF, self.TR, 0, 6400)
        a.label("L_fin_p1")
        a("s_mul_i32 s3, s47, 25600")
        a(f"v_add_u32 v{self.TR}, s3, v{self.TR}")
        a("s_waitcnt lgkmcnt(0)")
        a("s_barrier")
        for b in range(5):
            a(f"s_add_u32 m0, s49, {1024*b}")
            a("s_nop 0")
            a(f"buffer_load_dwordx4 v{self.DV[b]}, s[36:39], s44 offen lds")
        a("s_cmp_eq_u32 s25, 7")
        a("s_cbranch_scc1 L_fin_p2")
        a(f"s_add_u32 s3, s44, {256*1280}")
        for b in range(5):
            a(f"s_add_u32 m0, s49, {40960 + 1024*b}")
            a("s_nop 0")
            a(f"buffer_load_dwordx4 v{self.DV[b]}, s[36:39], s3 offen lds")
        a.label("L_fin_p2")
    def wo_main(self):
        a, vm = self.a, self.vm
        vm.q = []
        XS = {4: 56, 3: 64, 0: 72, 1: 80, 2: 4}
        def oload(rd):
            a(f"s_add_u32 s3, s43, {8192*rd}")
            for th in range(2):
                r = XS[rd] + 4 * th
                vm.issue(f"buffer_load_dwordx4 v[{r}:{r+3}], v3, s[32:35], s3 offen offset:{256*th}{cfg.sc}", ("X", rd))
        for rd in (4, 3, 0, 1, 2): oload(rd)
        srd(a, 28, S_X, 2621440)
        srd(a, 36, S_OUT, 2621440)
        A, B = self.WF, self.WF + 20
        a("s_cmp_eq_u32 s47, 3")
        a("s_cbranch_scc1 L_fin_r4")
        self.wreads(A, self.TR, 0, 6400)
        a.label("L_fin_r4")
        vm.wait(lambda t: t == ("X", 4), "lgkmcnt(0)")
        self.mfmas(A, XS[4])
        self.wreads(A, self.TM, 0, 1280)
        vm.wait(lambda t: t == ("X", 3))
        self.mfmas(B, XS[3])
        self.wreads(B, self.TM, 160 * 160, 1280)
        vm.wait(lambda t: t == ("X", 0), "lgkmcnt(10)")
        self.mfmas(A, XS[0])
        self.wreads(A, self.TM, 320 * 160, 1280)
        vm.wait(lambda t: t == ("X", 1), "lgkmcnt(10)")
        self.mfmas(B, XS[1])
        vm.wait(lambda t: t == ("X", 2), "lgkmcnt(0)")
        self.mfmas(A, XS[2])
        if not os.environ.get("GSTAMP"): stamp(a, 12)
        for i in range(3):
            a(f"s_add_u32 s3, s47, {4*i}")
            a("s_cmp_ge_u32 s3, 5")
            a(f"s_cselect_b32 s50, {20480 - 160}, 0")
            a("s_lshl_b32 s51, s3, 5")
            a(f"s_add_u32 s{52+i}, s50, s51")
        a("s_cmp_ge_u32 s47, 2")
        a("s_cselect_b32 s54, s53, s54")
        for i in range(3):
            a(f"buffer_load_dwordx2 v[{100+2*i}:{101+2*i}], v14, s[28:31], s{52+i} offen")
        a("v_lshlrev_b32 v9, 4, v2")
        a("s_barrier")
        a("s_mul_i32 s3, s25, 10240")
        a("v_add_u32 v10, s3, v9")
        for j in range(10):
            a(f"ds_write_b128 v10, v[{self.ACC+4*j}:{self.ACC+4*j+3}] offset:{1024*j}")
        a("s_mul_i32 s3, s46, 10240")
        a("s_lshl_b32 s50, s47, 10")
        a("s_add_u32 s3, s3, s50")
        a("v_add_u32 v10, s3, v9")
        a("s_waitcnt lgkmcnt(0)")
        a("s_barrier")
        R = 16
        for i in range(3):
            if i == 2:
                a("s_cmp_ge_u32 s47, 2")
                a("s_cbranch_scc1 L_fin_r2")
            for k in range(4):
                r = R + 16 * i + 4 * k
                off = 20480 * k + 4096 * i
                if off < 65536:
                    a(f"ds_read_b128 v[{r}:{r+3}], v10 offset:{off}")
                else:
                    a(f"v_add_u32 v11, 0x10000, v10")
                    a(f"ds_read_b128 v[{r}:{r+3}], v11 offset:{off-65536}")
        a.label("L_fin_r2")
        a("s_waitcnt vmcnt(0) lgkmcnt(0)")
        for i in range(3):
            r = R + 16 * i; xr = 100 + 2 * i
            if i == 2:
                a("s_cmp_ge_u32 s47, 2")
                a("s_cbranch_scc1 L_fin_end")
            a(f"v_lshlrev_b32 v4, 16, v{xr}")
            a(f"v_and_b32 v5, 0xffff0000, v{xr}")
            a(f"v_lshlrev_b32 v6, 16, v{xr+1}")
            a(f"v_and_b32 v7, 0xffff0000, v{xr+1}")
            for h in range(2):
                a(f"v_pk_add_f32 v[{r+2*h}:{r+2*h+1}], v[{r+2*h}:{r+2*h+1}], v[{r+4+2*h}:{r+5+2*h}]")
                a(f"v_pk_add_f32 v[{r+8+2*h}:{r+9+2*h}], v[{r+8+2*h}:{r+9+2*h}], v[{r+12+2*h}:{r+13+2*h}]")
                a(f"v_pk_add_f32 v[{r+2*h}:{r+2*h+1}], v[{r+2*h}:{r+2*h+1}], v[{4+2*h}:{5+2*h}]")
                a(f"v_pk_add_f32 v[{r+2*h}:{r+2*h+1}], v[{r+2*h}:{r+2*h+1}], v[{r+8+2*h}:{r+9+2*h}]")
            a(f"v_cvt_pk_bf16_f32 v{r}, v{r}, v{r+1}")
            a(f"v_cvt_pk_bf16_f32 v{r+1}, v{r+2}, v{r+3}")
            a(f"buffer_store_dwordx2 v[{r}:{r+1}], v14, s[36:39], s{52+i} offen")
        a.label("L_fin_end")

WS_ST = 0x1480000
def qkv2_decode(a):
    a("s_and_b32 s24, s2, 7")
    a("s_lshr_b32 s26, s2, 3")
    a("s_mul_i32 s24, s24, 30")
    a("s_add_u32 s27, s24, s26")
    a("s_cmp_ge_u32 s27, 80")
    a("s_cselect_b32 s24, 1, 0")
    a("s_cmp_ge_u32 s27, 160")
    a("s_cselect_b32 s24, 2, s24")
    a("s_mul_i32 s26, s24, 80")
    a("s_sub_u32 s27, s27, s26")
    a("s_mul_i32 s26, s27, 205")
    a("s_lshr_b32 s26, s26, 10")
    a("s_mul_i32 s3, s26, 5")
    a("s_sub_u32 s27, s27, s3")
    a("s_mul_i32 s47, s24, 5")
    a("s_add_u32 s47, s47, s27")
    a("s_lshl_b32 s46, s47, 4")
    a("s_add_u32 s46, s46, s26")

def qkv2(a, nonce_check):
    ACC, XF, WF, CS, SEL, AD = 16, 48, 64, 72, 76, 80
    XA0, XA1, TW, DX, DW = 3, 4, 5, 6, 7
    NSL, RING = 20, 4
    L_CS, L_ST = 65536, 65536 + 1024
    vm = VM(a)
    srd(a, 28, S_WQKV, 2457600)
    srd(a, 36, S_X, 2621440)
    a("v_lshrrev_b32 v10, 2, v2")
    a("s_lshl_b32 s3, s25, 4")
    a("v_add_u32 v10, s3, v10")
    a("v_mul_u32_u24 v10, 1280, v10")
    a("v_lshrrev_b32 v11, 4, v2")
    a("v_and_b32 v12, 3, v2")
    a("v_xor_b32 v13, v12, v11")
    a(f"v_lshl_add_u32 v{DX}, v13, 4, v10")
    a("s_lshl_b32 s3, s25, 2")
    a("v_add_u32 v10, s3, v11")
    a("v_mul_u32_u24 v10, 3840, v10")
    a("v_bfe_u32 v13, v2, 2, 2")
    a("v_xor_b32 v13, v13, v11")
    a("v_lshl_add_u32 v10, v13, 6, v10")
    a(f"v_lshl_add_u32 v{DW}, v12, 4, v10")
    a("s_mul_i32 s40, s26, 163840")
    a("s_lshl_b32 s41, s47, 8")
    a("s_lshl_b32 s42, s25, 10")
    def dma(sl):
        base = (sl % RING) * 16384
        a(f"s_add_u32 m0, s42, {base}")
        a("s_nop 0")
        vm.issue(f"buffer_load_dwordx4 v{DX}, s[36:39], s40 offen lds", ("S", sl))
        a(f"s_add_u32 m0, s42, {base + 8192}")
        a("s_add_u32 s40, s40, 64")
        vm.issue(f"buffer_load_dwordx4 v{DW}, s[28:31], s41 offen lds", ("S", sl))
        a(f"s_add_u32 s41, s41, {32*3840}")
    for sl in range(RING): dma(sl)
    stamp(a, 1)
    a("s_lshr_b32 s48, s25, 2")
    a("s_and_b32 s49, s25, 3")
    a("v_and_b32 v10, 31, v2")
    a("v_lshrrev_b32 v8, 5, v2")
    a("v_bfe_u32 v11, v2, 2, 2")
    a("v_xor_b32 v12, v8, v11")
    a("v_lshlrev_b32 v13, 6, v10")
    a("s_lshl_b32 s3, s48, 12")
    a("v_add_u32 v13, s3, v13")
    a(f"v_lshl_add_u32 v{XA0}, v12, 4, v13")
    a(f"v_xor_b32 v{XA1}, 32, v{XA0}")
    a("v_lshl_add_u32 v12, v8, 3, v11")
    a("v_lshlrev_b32 v12, 8, v12")
    a("v_xor_b32 v13, s49, v11")
    a("v_lshl_add_u32 v12, v13, 6, v12")
    a("v_bfe_u32 v13, v2, 4, 1")
    a("v_lshl_add_u32 v12, v13, 5, v12")
    a("v_add_u32 v12, 8192, v12")
    a("v_and_b32 v14, 15, v2")
    a("v_cmp_eq_u32 vcc, v14, v13")
    a("v_mov_b32 v14, 0x3f803f80")
    for i in range(32): a(f"v_mov_b32 v{ACC+i}, 0")
    a("v_cndmask_b32 v14, 0, v14, vcc")
    for i in range(4):
        a(f"v_mov_b32 v{SEL+i}, v14")
        a(f"v_mov_b32 v{CS+i}, 0")
    a("s_lshl_b32 s3, s26, 8")
    a(f"s_add_u32 s50, s3, {F_XN}")
    a("v_lshlrev_b32 v15, 3, v10")
    a("s_lshl_b32 s51, s26, 10")
    a(f"s_add_u32 s51, s51, {WS_ST}")
    a("s_lshl_b32 s43, s26, 2")
    a("s_lshl_b32 s3, s48, 1")
    a("s_add_u32 s43, s43, s3")
    a("s_cmp_eq_u32 s24, 2")
    a("s_cbranch_scc1 L_q2_V")
    a("v_and_b32 v13, 1, v2")
    a("v_lshl_add_u32 v12, v13, 4, v12")
    a("v_bfe_u32 v13, v2, 1, 1")
    a(f"v_lshl_add_u32 v{TW}, v13, 3, v12")
    a("s_lshl_b32 s45, s43, 10")
    a(f"s_add_u32 s45, s45, {WS_QM}")
    a("s_lshl_b32 s44, s43, 8")
    a(f"s_add_u32 s44, s44, {WS_QR}")
    a("s_mov_b32 s52, 65536")
    a("s_mov_b32 s53, 16384")
    a("s_movk_i32 s54, 1024")
    a("s_movk_i32 s55, 256")
    a(f"s_mov_b32 s63, {f2hex(QSCALE)}")
    a("s_cmp_eq_u32 s24, 0")
    a("s_cbranch_scc1 L_q2_isq")
    a("s_mul_i32 s45, s43, 2560")
    a(f"s_add_u32 s45, s45, {WS_KV}")
    a("s_add_u32 s44, s45, 1024")
    a("s_mov_b32 s52, 163840")
    a("s_mov_b32 s53, 163840")
    a("s_movk_i32 s54, 2560")
    a("s_movk_i32 s55, 2560")
    a("s_mov_b32 s63, 1.0")
    a.label("L_q2_isq")
    a("s_lshl_b32 s3, s27, 2")
    a("s_add_u32 s3, s3, s49")
    a("s_lshl_b32 s3, s3, 2")
    a("v_add_u32 v11, s3, v8")
    a("v_lshl_add_u32 v12, v10, 4, s45")
    a("v_lshl_add_u32 v13, v10, 3, s44")
    for q in range(2):
        a(f"v_add_u32 v14, {2*q}, v11")
        a("v_mul_u32_u24 v1, 205, v14")
        a("v_lshrrev_b32 v1, 10, v1")
        a("v_mul_u32_u24 v0, 5, v1")
        a("v_sub_u32 v14, v14, v0")
        a("v_lshlrev_b32 v1, 1, v1")
        a("v_mul_lo_u32 v0, v1, s53")
        a(f"v_add_u32 v{AD+3*q+1}, v0, v13")
        a(f"v_add_u32 v{AD+3*q+2}, s53, v{AD+3*q+1}")
        a("v_cmp_lt_u32 vcc, 2, v14")
        a("v_subrev_u32 v0, 3, v14")
        a("s_nop 0")
        a("v_addc_co_u32 v1, s[86:87], 0, v1, vcc")
        a("v_cndmask_b32 v0, v14, v0, vcc")
        a("v_mul_lo_u32 v1, v1, s52")
        a("v_lshl_add_u32 v0, v0, 9, v12")
        a("v_add_u32 v0, v0, v1")
        a("v_cmp_eq_u32 vcc, 2, v14")
        a(f"v_mov_b32 v1, {OOB - 0x100000}")
        a("s_nop 0")
        a(f"v_cndmask_b32 v{AD+3*q}, v0, v1, vcc")
        a(f"v_cndmask_b32 v{AD+3*q+1}, v1, v{AD+3*q+1}, vcc")
        a(f"v_cndmask_b32 v{AD+3*q+2}, v1, v{AD+3*q+2}, vcc")

    def loop(vtype):
        vq = list(vm.q)
        def reads(s):
            sl, sp = s // 2, s % 2
            base = (sl % RING) * 16384
            x = XF + 8 * (s % 2); w = WF + 4 * (s % 2)
            xa = XA1 if sp else XA0
            a(f"ds_read_b128 v[{x}:{x+3}], v{xa} offset:{base}")
            a(f"ds_read_b64_tr_b16 v[{w}:{w+1}], v{TW} offset:{base + 16*sp*256}")
            a(f"ds_read_b64_tr_b16 v[{w+2}:{w+3}], v{TW} offset:{base + (16*sp+4)*256}")
            a(f"ds_read_b128 v[{x+4}:{x+7}], v{xa} offset:{base + 2048}")
        def pre(s):
            if s % 2: return
            sl = s // 2
            vm.wait(lambda t: t == ("S", sl), "lgkmcnt(0)" if s else "")
            a("s_barrier")
            if sl in (0, 10): stamp(a, 2 if sl == 0 else 3)
            if sl >= 1 and sl - 1 + RING < NSL: dma(sl - 1 + RING)
            if cfg.fused:
                if sl == 6:
                    a("v_mov_b32 v0, 0")
                    vm.issue("buffer_load_dwordx2 v[88:89], v0, s[56:59], 0 offen sc1", ("N", 0))
                if sl == 11:
                    vm.wait(lambda t: t == ("N", 0))
                    nonce_check(88)
                    vm.issue("buffer_load_dwordx2 v[88:89], v15, s[32:35], s50 offen sc1", ("F", 0))
                if sl == 15:
                    vm.wait(lambda t: t == ("F", 0))
                    L = uid("L_q2f")
                    a("v_cmp_ne_u64 vcc, s[60:61], v[88:89]")
                    a(f"s_cbranch_vccz {L}")
                    a("v_add_u32 v0, s50, v15")
                    poll(a, 0, 88)
                    a.label(L)
            if sl == 15:
                a(f"s_mov_b32 m0, {L_ST}")
                a("s_nop 0")
                vm.issue(f"buffer_load_dwordx4 v9, s[32:35], s51 offen{cfg.sc} lds", ("T", 0))
        pre(0); reads(0)
        for s in range(2 * NSL):
            if s + 1 < 2 * NSL:
                pre(s + 1); reads(s + 1)
                a("s_waitcnt lgkmcnt(4)")
            else:
                a("s_waitcnt lgkmcnt(0)")
            x = XF + 8 * (s % 2); w = WF + 4 * (s % 2)
            for j in range(2):
                W = f"v[{w}:{w+3}]"; X = f"v[{x+4*j}:{x+4*j+3}]"
                A, B = (X, W) if vtype else (W, X)
                D = f"v[{ACC+16*j}:{ACC+16*j+15}]"
                a(f"v_mfma_f32_32x32x16_bf16 {D}, {A}, {B}, {D}")
            L = uid("L_q2s")
            a(f"s_cmp_lg_u32 s48, {s % 2}")
            a(f"s_cbranch_scc1 {L}")
            a(f"v_mfma_f32_16x16x32_bf16 v[{CS}:{CS+3}], v[{w}:{w+3}], v[{SEL}:{SEL+3}], v[{CS}:{CS+3}]")
            a.label(L)
        stamp(a, 6)
        if qkv_hook: qkv_hook()
        a("v_and_b32 v0, 15, v2")
        a("v_lshrrev_b32 v1, 4, v2")
        a("v_lshlrev_b32 v1, 4, v1")
        a("v_lshl_add_u32 v1, v0, 6, v1")
        a("s_lshl_b32 s3, s25, 7")
        a(f"s_add_u32 s3, s3, {L_CS}")
        a("v_add_u32 v1, s3, v1")
        a("v_cmp_gt_u32 vcc, 2, v0")
        a("s_nop 1")
        a("s_mov_b64 exec, vcc")
        a(f"ds_write_b128 v1, v[{CS}:{CS+3}]")
        a("s_mov_b64 exec, -1")
        vm.wait(lambda t: t == ("T", 0), "lgkmcnt(0)")
        a("s_barrier")
        vm.q = vq
    loop(False)
    C0, C1, MR = 48, 64, 88
    a("s_lshl_b32 s3, s49, 7")
    a(f"s_add_u32 s3, s3, {L_CS}")
    a("v_lshl_add_u32 v0, v8, 4, s3")
    for g in range(4):
        a(f"ds_read_b128 v[{C0+4*g}:{C0+4*g+3}], v0 offset:{32*g}")
        a(f"ds_read_b128 v[{C1+4*g}:{C1+4*g+3}], v0 offset:{512 + 32*g}")
    a("s_lshl_b32 s3, s48, 8")
    a(f"s_add_u32 s3, s3, {L_ST}")
    a("v_lshl_add_u32 v1, v10, 2, s3")
    for j in range(2):
        a(f"ds_read_b32 v{MR+4*j}, v1 offset:{128*j}")
        a(f"ds_read_b32 v{MR+4*j+2}, v1 offset:{512 + 128*j}")
    a("s_waitcnt lgkmcnt(0)")
    for i in range(0, 16, 2):
        a(f"v_pk_add_f32 v[{C0+i}:{C0+i+1}], v[{C0+i}:{C0+i+1}], v[{C1+i}:{C1+i+1}]")
    for j in range(2):
        a(f"v_mov_b32 v{MR+4*j+1}, v{MR+4*j}")
        a(f"v_mul_f32 v{MR+4*j+2}, s63, v{MR+4*j+2}")
        a(f"v_mov_b32 v{MR+4*j+3}, v{MR+4*j+2}")
    for j in range(2):
        for q in range(2):
            r = ACC + 16 * j + 8 * q
            for i in range(0, 8, 2):
                c = C0 + 8 * q + i
                a(f"v_pk_fma_f32 v[{r+i}:{r+i+1}], v[{c}:{c+1}], v[{MR+4*j}:{MR+4*j+1}], v[{r+i}:{r+i+1}]")
            for i in range(0, 8, 2):
                a(f"v_pk_mul_f32 v[{r+i}:{r+i+1}], v[{r+i}:{r+i+1}], v[{MR+4*j+2}:{MR+4*j+3}]")
            for i in range(4):
                a(f"v_cvt_pk_bf16_f32 v{r+i}, v{r+2*i}, v{r+2*i+1}")
            sm, sr_ = ("0", "0") if j == 0 else ("s54", "s55")
            a(f"buffer_store_dwordx4 v[{r}:{r+3}], v{AD+3*q}, s[32:35], {sm} offen{cfg.sc}")
            a(f"buffer_store_dwordx2 v[{r}:{r+1}], v{AD+3*q+1}, s[32:35], {sr_} offen{cfg.sc}")
            a(f"buffer_store_dwordx2 v[{r+2}:{r+3}], v{AD+3*q+2}, s[32:35], {sr_} offen{cfg.sc}")
    a("s_branch L_q2_done")
    a.label("L_q2_V")
    a("v_and_b32 v13, 3, v2")
    a(f"v_lshl_add_u32 v{TW}, v13, 3, v12")
    a("s_mul_i32 s45, s43, 2560")
    a(f"s_add_u32 s45, s45, {WS_KV + 1280}")
    a("s_lshl_b32 s3, s27, 2")
    a("s_add_u32 s3, s3, s49")
    a("s_lshl_b32 s3, s3, 5")
    a("v_add_u32 v13, s3, v10")
    a("v_mul_u32_u24 v11, 320, v8")
    a("v_add_u32 v11, s45, v11")
    a("s_mov_b32 s52, 163840")
    a("v_mul_u32_u24 v14, 3277, v13")
    a("v_lshrrev_b32 v14, 16, v14")
    a("v_mul_u32_u24 v1, 20, v14")
    a("v_sub_u32 v1, v13, v1")
    a("v_lshl_add_u32 v0, v1, 4, v11")
    a("v_mul_lo_u32 v14, v14, s52")
    a(f"v_add_u32 v{AD}, v0, v14")
    loop(True)
    MN, RS = 48, 88
    a("s_lshl_b32 s3, s49, 7")
    a(f"s_add_u32 s3, s3, {L_CS}")
    a("v_lshl_add_u32 v0, v10, 2, s3")
    a("ds_read_b32 v12, v0")
    a("ds_read_b32 v13, v0 offset:512")
    a("s_lshl_b32 s3, s48, 8")
    a(f"s_add_u32 s3, s3, {L_ST}")
    a("v_lshl_add_u32 v1, v8, 4, s3")
    for j in range(2):
        for g in range(4):
            a(f"ds_read_b128 v[{MN+16*j+4*g}:{MN+16*j+4*g+3}], v1 offset:{128*j + 32*g}")
            a(f"ds_read_b128 v[{RS+16*j+4*g}:{RS+16*j+4*g+3}], v1 offset:{512 + 128*j + 32*g}")
    a("s_waitcnt lgkmcnt(15)")
    a("v_add_f32 v12, v12, v13")
    a("v_mov_b32 v13, v12")
    a("s_waitcnt lgkmcnt(0)")
    for j in range(2):
        for gm in range(2):
            r = ACC + 16 * j + 8 * gm
            for i in range(0, 8, 2):
                m = MN + 16 * j + 8 * gm + i
                a(f"v_pk_fma_f32 v[{r+i}:{r+i+1}], v[{m}:{m+1}], v[12:13], v[{r+i}:{r+i+1}]")
            for i in range(0, 8, 2):
                m = RS + 16 * j + 8 * gm + i
                a(f"v_pk_mul_f32 v[{r+i}:{r+i+1}], v[{r+i}:{r+i+1}], v[{m}:{m+1}]")
            for i in range(4):
                a(f"v_cvt_pk_bf16_f32 v{r+i}, v{r+2*i}, v{r+2*i+1}")
            a(f"buffer_store_dwordx4 v[{r}:{r+3}], v{AD}, s[32:35], 0 offen offset:{2560*j + 640*gm}{cfg.sc}")
    a.label("L_q2_done")
    stamp(a, 7)

def attn_flag_addr2(a, vd):
    a("s_mul_i32 s3, s24, 20")
    a("s_lshr_b32 s26, s3, 7")
    a("s_add_u32 s3, s3, 19")
    a("s_lshr_b32 s3, s3, 7")
    a("s_sub_u32 s3, s3, s26")
    a("v_bfe_u32 v11, v2, 4, 1")
    a("v_mul_u32_u24 v11, 5, v11")
    a("v_lshrrev_b32 v12, 5, v2")
    a("v_mul_lo_u32 v12, v12, s3")
    a("v_add3_u32 v11, v11, v12, s26")
    a("v_add_u32 v11, 5, v11")
    a("v_and_b32 v12, 15, v2")
    a(f"v_lshl_add_u32 v{vd}, v11, 4, v12")
    a(f"v_lshlrev_b32 v{vd}, {FSH}, v{vd}")
    a(f"v_add_u32 v{vd}, {F_QKV}, v{vd}")
    a("v_bfe_u32 v12, v2, 1, 1")
    a("v_mul_lo_u32 v12, v12, s3")
    a("v_add_u32 v12, s26, v12")
    a("v_and_b32 v11, 1, v2")
    a("s_lshl_b32 s3, s27, 1")
    a("v_lshl_add_u32 v12, v12, 4, v11")
    a("v_add_u32 v12, s3, v12")
    a(f"v_lshlrev_b32 v{vd+1}, {FSH}, v12")
    a(f"v_add_u32 v{vd+1}, {F_QKV}, v{vd+1}")
```

```python
import sys, os
sys.path.insert(0, os.path.dirname(__file__))
from common import *
import roles
from roles import *
from gen2 import prologue, flush_attn

HEADER = open(os.path.join(os.path.dirname(__file__), "header.txt")).read()
PRE_DMA = int(os.environ.get("PRE_DMA", "0"))

def get_nonce(a, is_a):
    srd(a, 56, S_DBG, 256)
    L = uid("L_nonce")
    if is_a:
        a("s_add_u32 s3, s2, s25")
        a("s_cmp_lg_u32 s3, 0")
        a(f"s_cbranch_scc1 {L}")
        a("s_memrealtime s[60:61]")
        a("s_waitcnt lgkmcnt(0)")
        a("s_or_b32 s60, s60, 1")
        a("s_xor_b32 s61, s61, 0x9e3779b9")
        a("v_mov_b32 v10, s60")
        a("v_mov_b32 v11, s61")
        a("v_mov_b32 v12, 0")
        a("s_mov_b64 exec, 1")
        a("buffer_store_dwordx2 v[10:11], v12, s[56:59], 0 offen sc1")
        a("s_mov_b64 exec, -1")
    a.label(L)

def wait_nonce(a, first_issued=False):
    L = uid("L_wn")
    a("s_mov_b32 s83, 0x40000")
    if first_issued:
        a(f"s_branch {L}_chk")
    else:
        a("v_mov_b32 v12, 0")
    a.label(L)
    a("buffer_load_dwordx2 v[10:11], v12, s[56:59], 0 offen sc1")
    a.label(L + "_chk")
    a("s_waitcnt vmcnt(0)")
    a("v_readfirstlane_b32 s60, v10")
    a("v_readfirstlane_b32 s61, v11")
    a("s_cmp_lg_u32 s60, 0")
    a(f"s_cbranch_scc1 {L}_ok")
    a("s_sleep 1")
    a("s_sub_u32 s83, s83, 1")
    a(f"s_cbranch_scc0 {L}")
    a.label(L + "_ok")

def flag_addr(a, vd, base, s_first, mask):
    a(f"v_and_b32 v{vd}, {mask}, v2")
    a(f"v_add_u32 v{vd}, s{s_first}, v{vd}")
    a(f"v_lshlrev_b32 v{vd}, {FSH}, v{vd}")
    a(f"v_add_u32 v{vd}, {base}, v{vd}")

def wave0(a, fn):
    L = uid("L_w0")
    a("s_cmp_lg_u32 s25, 0")
    a(f"s_cbranch_scc1 {L}")
    fn()
    a.label(L)

def warm_weights(a, part):
    a("s_sub_u32 s50, s2, 256")
    L = uid("L_warm")
    if part == 0:
        spec = [(S_WQKV, 2457600, 4800, 0), (S_WQKV, 2457600, 4800, 1228800)]
    else:
        spec = [(S_WD, 1966080, 3840, 0), (S_WD, 1966080, 3840, 983040), (S_WO, 819200, 3200, 0)]
    for w, (ptr, size, per, base) in enumerate(spec):
        a(f"s_cmp_lg_u32 s25, {w + 1}")
        a(f"s_cbranch_scc1 {L}_{w}")
        srd(a, 36, ptr, size)
        a(f"s_mul_i32 s51, s50, {per}")
        if base: a(f"s_add_u32 s51, s51, {base}")
        n = (per + 1023) // 1024
        for i in range(n):
            if i == 4: a("s_add_u32 s51, s51, 4096")
            r = 96 + 4 * (i % 8) if part == 0 else 120
            a(f"buffer_load_dwordx4 v[{r}:{r+3}], v9, s[36:39], s51 offen offset:{1024*(i%4)}")
        if part == 0: a("s_waitcnt vmcnt(0)")
        a.label(f"{L}_{w}")

def code_prefetch(a):
    L = uid("L_cpf")
    a("s_cmp_ge_u32 s2, 264")
    a(f"s_cbranch_scc1 {L}")
    a("s_cmp_lg_u32 s25, 7")
    a(f"s_cbranch_scc1 {L}")
    a("s_getpc_b64 s[50:51]")
    a.label(L + "_pc")
    a(f"s_sub_u32 s50, s50, {L}_pc-{NAME}_kernel")
    a("s_subb_u32 s51, s51, 0")
    a(f"s_mov_b32 s52, (L_end-{NAME}_kernel)/1024")
    a("v_mov_b32 v10, v9")
    a.label(L + "_l")
    a("global_load_dwordx4 v[96:99], v10, s[50:51]")
    a("v_add_u32 v10, 1024, v10")
    a("s_sub_u32 s52, s52, 1")
    a("s_cmp_lg_u32 s52, 0")
    a(f"s_cbranch_scc1 {L}_l")
    a("s_waitcnt vmcnt(0)")
    a.label(L)

def gen_fused():
    cfg.fused = True; cfg.sc = " sc1"
    a = Asm()
    prologue(a, 512, "L_end")
    a("s_cmp_ge_u32 s2, 256")
    a("s_cbranch_scc1 L_roleB")
    DRY = int(os.environ.get("DRY", "0"))
    WLATE = int(os.environ.get("WLATE", "1"))
    a("s_cmp_ge_u32 s25, 2")
    a("s_cbranch_scc1 L_a_noln")
    ln_issue(a)
    get_nonce(a, True)
    if not WLATE: a("s_barrier")
    ln_addr(a)
    a("s_waitcnt vmcnt(0)")
    stamp(a, 1)
    a("v_mov_b32 v12, 0")
    a("buffer_load_dwordx2 v[10:11], v12, s[56:59], 0 offen sc1")
    a.label("L_a_lnbody")
    ln_body(a)
    if os.environ.get("LNSTAMP"): stamp(a, 5)
    if DRY:
        a("s_cmp_ge_u32 s25, 2")
        a("s_cbranch_scc1 L_a_dry_done")
    ln_store(a)
    if WLATE: a("s_barrier")
    stamp(a, 2)
    wait_nonce(a, first_issued=True)
    stamp(a, 3)
    a("s_lshl_b32 s63, s2, 1")
    a("s_add_u32 s63, s63, s25")
    publish(a, F_XN, 63)
    a("s_branch L_a_ln_done")
    a.label("L_a_noln")
    W1 = int(os.environ.get("W1", "0"))
    if W1:
        a("s_cmp_lt_u32 s25, 4")
        a("s_cbranch_scc1 L_a_now1")
        a("s_cmp_ge_u32 s2, 240")
        a("s_cbranch_scc1 L_a_now1")
        qkv_decode(a)
        qkv_wdma(a, 0, W1)
        a.label("L_a_now1")
    if int(os.environ.get("TLB", "0")):
        a("s_cmp_lg_u32 s25, 3")
        a("s_cbranch_scc1 L_a_notlb")
        a("v_min_u32 v10, 10, v2")
        a("v_lshlrev_b32 v10, 21, v10")
        a("buffer_load_dword v11, v10, s[32:35], 0 offen")
        a.label("L_a_notlb")
    if DRY:
        if not WLATE: a("s_barrier")
        a("s_cmp_eq_u32 s25, 2")
        a("s_cbranch_scc1 L_a_lnbody")
        a.label("L_a_dry_done")
        a("s_waitcnt lgkmcnt(0)")
        if WLATE: a("s_barrier")
    else:
        a("s_barrier")
    a.label("L_a_ln_done")
    a("s_cmp_ge_u32 s2, 240")
    a("s_cbranch_scc1 L_a_spare")
    qkv_decode(a)
    a("s_cmp_lt_u32 s25, 4")
    a("s_cbranch_scc1 L_a_nodma")
    qkv_wdma(a, W1, 20)
    a("s_waitcnt vmcnt(0)")
    a.label("L_a_nodma")
    def f():
        a("s_and_b32 s63, s46, 7")
        a("s_lshl_b32 s63, s63, 6")
        flag_addr(a, 12, F_XN, 63, 63)
        poll(a, 12)
    wave0(a, f)
    a("s_barrier")
    stamp(a, 4)
    a(f"s_setprio {os.environ.get('PQ', '0')}")
    if os.environ.get("BTRIG") == "xn": wave0(a, lambda: publish(a, F_QL, 2))
    BTRIG = os.environ.get("BTRIG", "attn")
    if BTRIG == "loop": roles.qkv_hook = lambda: wave0(a, lambda: publish(a, F_QL, 2))
    if BTRIG == "attn": roles.attn_hook = lambda: wave0(a, lambda: publish(a, F_QL, 2))
    qkv_main(a)
    a("s_waitcnt vmcnt(0)")
    stamp(a, 8)
    a("s_barrier")
    wave0(a, lambda: publish(a, F_QKV, 46))
    if BTRIG == "qkv": wave0(a, lambda: publish(a, F_QL, 2))
    a("s_branch L_a_attn")
    a.label("L_a_spare")
    if os.environ.get("BTRIG") == "xn": wave0(a, lambda: publish(a, F_QL, 2))
    if int(os.environ.get("WARM", "1")) == 1:
        a("s_cmp_ge_u32 s25, 4")
        a(f"s_cselect_b32 s36, s{S_WU}, s{S_WG}")
        a(f"s_cselect_b32 s37, s{S_WU+1}, s{S_WG+1}")
        a("s_mov_b32 s38, 1966080")
        a("s_mov_b32 s39, 0x00020000")
        a("s_and_b32 s3, s25, 3")
        a("s_sub_u32 s50, s2, 240")
        a("s_lshl_b32 s50, s50, 2")
        a("s_add_u32 s50, s50, s3")
        a("s_lshl_b32 s50, s50, 10")
        for i in range(30):
            a(f"buffer_load_dwordx4 v[{16+4*(i%16)}:{19+4*(i%16)}], v9, s[36:39], s50 offen")
            a("s_add_u32 s50, s50, 65536")
        a("s_waitcnt vmcnt(0)")
    a.label("L_a_attn")
    attn_decode(a)
    def f():
        attn_flag_addr(a, 14)
        poll(a, 14)
    wave0(a, f)
    a("s_barrier")
    stamp(a, 9)
    attn_main(a)
    a("s_waitcnt vmcnt(0)")
    stamp(a, 12)
    a("s_barrier")
    def f():
        a("s_lshl_b32 s63, s27, 5")
        a("s_add_u32 s63, s63, s24")
        publish(a, F_O, 63)
    wave0(a, f)
    flush_attn(a, 0)
    dbg_flush(a, 8, [1, 4, 6, 9, 10, 11, 12], 2)
    a("s_endpgm")
    a.label("L_roleB")
    gu_decode(a)
    g = GU(a); g.setup()
    WARM = int(os.environ.get("WARM", "1"))
    if int(os.environ.get("CODEPF", "0")): code_prefetch(a)
    if WARM: warm_weights(a, 0)
    def f():
        get_nonce(a, False)
        wait_nonce(a)
    wave0(a, f)
    for st in range(PRE_DMA): g.dma_stage(st)
    def f():
        if BTRIG != "attn" and BTRIG != "xn":
            a("s_cmp_ge_u32 s2, 496")
            a("s_cbranch_scc1 L_b_noql")
        a("s_sub_u32 s63, s2, 256")
        flag_addr(a, 12, F_QL, 63, 0)
        poll(a, 12, sleep=int(os.environ.get("BSLEEP", "4")), single=True)
        if BTRIG != "attn":
            a.label("L_b_noql")
            a("s_lshl_b32 s63, s27, 6")
            flag_addr(a, 12, F_XN, 63, 63)
            poll(a, 12)
    wave0(a, f)
    a("s_barrier")
    stamp(a, 2)
    a(f"s_setprio {os.environ.get('PG', '0')}")
    def warm2():
        srd(a, 36, S_WD, 1966080)
        srd(a, 52, S_WO, 819200)
        a("s_sub_u32 s50, s2, 256")
        a("s_lshl_b32 s50, s50, 3")
        a("s_add_u32 s50, s50, s25")
        a("s_mul_i32 s51, s50, 960")
        a("s_mul_i32 s50, s50, 400")
        g.vm.issue("buffer_load_dwordx4 v[120:123], v9, s[36:39], s51 offen", ("P", 0))
        g.vm.issue("buffer_load_dwordx4 v[124:127], v9, s[52:55], s50 offen", ("P", 1))
    g.main(PRE_DMA, warm2 if WARM == 1 else None)
    a("s_waitcnt vmcnt(0)")
    a("s_barrier")
    def f():
        a("s_lshl_b32 s63, s27, 5")
        a("s_add_u32 s63, s63, s24")
        publish(a, F_H, 63)
    wave0(a, f)
    fin_decode(a)
    fn = FIN(a); fn.setup()
    for m in range(4): fn.dma_wd(m)
    def f():
        a("s_lshr_b32 s63, s27, 2")
        a("s_lshl_b32 s63, s63, 5")
        flag_addr(a, 0, F_H, 63, 31)
        poll(a, 0, 56)
    wave0(a, f)
    a("s_barrier")
    stamp(a, 8)
    a(f"s_setprio {os.environ.get('PD', '0')}")
    fn.down()
    fn.wo_prefetch()
    a("s_setprio 3")
    def f():
        flag_addr(a, 0, F_O, 63, 31)
        poll(a, 0, 56)
    wave0(a, f)
    a("s_waitcnt vmcnt(0)")
    a("s_barrier")
    stamp(a, 11)
    fn.wo_main()
    stamp_flush(a, 0, 25)
    dbg_flush(a, 264, [2, 3, 6, 8, 10, 11, 13], 9)
    a.label("L_end")
    a("s_endpgm")
    return a

def build_single(a):
    name = NAME + "_kernel"
    for p in check_program(a.lines): print("HAZARD", p)
    out = HEADER + "; @launch grid=(512,1,1) block=(512,1,1) lds=81920\n"
    out += '.amdgcn_target "amdgcn-amd-amdhsa--gfx950"\n.text\n' + kernel_header(name) + a.text()
    out += '.section .rodata,"a"\n' + kernel_desc(name, 128, 128)
    return out

if __name__ == "__main__":
    path = sys.argv[1] if len(sys.argv) > 1 else f"cdna_kernels/{NAME}.s"
    open(path, "w").write(build_single(gen_fused()))
    import subprocess
    r = subprocess.run(["clang", "-x", "assembler", "-target", "amdgcn-amd-amdhsa", "-mcpu=gfx950", "-c", path, "-o", "gen_check.o"], capture_output=True, text=True)
    if r.returncode: print(r.stderr[:1500])
    print("wrote", path, "OK" if r.returncode == 0 else "ASM FAILED")
```

```python
from asmlib import *

NAME = "parallel_sum__softmax_full_mha__swiglu_ffn__prompt"
WS_XN = 0x0
WS_QM = 0x280000
WS_QR = 0x480000
WS_KV = 0x500000
WS_H  = 0xA00000
WS_O  = 0x1000000
WS_FP = 0x1280000
WS_SIZE = 0x2800000

S_X, S_WQKV, S_WO, S_BX, S_WG, S_WU, S_WD, S_OUT, S_DBG, S_WS = 4, 6, 8, 10, 12, 14, 16, 18, 20, 22

def load_args(a):
    a("s_load_dwordx16 s[4:19], s[0:1], 0")
    a("s_load_dwordx4 s[20:23], s[0:1], 64")

def srd(a, d, base, size):
    a(f"s_mov_b32 s{d}, s{base}")
    a(f"s_mov_b32 s{d+1}, s{base+1}")
    a(f"s_mov_b32 s{d+2}, {size}")
    a(f"s_mov_b32 s{d+3}, 0x00020000")

class VM:
    def __init__(self, a):
        self.a = a
        self.q = []
    def issue(self, line, tag):
        self.a(line)
        self.q.append(tag)
    def count_after(self, pred):
        last = -1
        for i, t in enumerate(self.q):
            if pred(t): last = i
        return len(self.q) - 1 - last if last >= 0 else None
    def wait(self, pred, extra=""):
        n = self.count_after(pred)
        if n is None:
            if extra: self.a(f"s_waitcnt {extra}")
            return
        n = min(n, 63)
        self.a(f"s_waitcnt vmcnt({n}) {extra}".strip())
        self.q = self.q[len(self.q) - n:] if n > 0 else []

def kernel_header(name):
    return f""".globl {name}
.p2align 8
.type {name},@function
{name}:
"""

def kernel_desc(name, nvgpr, accoff, nsgpr=96):
    return f""".p2align 6
.amdhsa_kernel {name}
  .amdhsa_next_free_vgpr {nvgpr}
  .amdhsa_next_free_sgpr {nsgpr}
  .amdhsa_accum_offset {accoff}
  .amdhsa_group_segment_fixed_size 0
  .amdhsa_kernarg_size 80
  .amdhsa_user_sgpr_count 2
  .amdhsa_user_sgpr_kernarg_segment_ptr 1
  .amdhsa_system_sgpr_workgroup_id_x 1
  .amdhsa_float_denorm_mode_32 3
.end_amdhsa_kernel
"""

import os
PROFILE = os.environ.get("PROFILE", "0") == "1"
WS_PROF = 0x1c00000
DBGOUT = os.environ.get("DBGOUT", "0") == "1"
def dbg_flush(a, wg, idxs, first):
    if not DBGOUT: return
    a("s_waitcnt vmcnt(0)")
    stamp(a, 13)
    a(f"s_cmp_lg_u32 s2, {wg}")
    a(f"s_cbranch_scc1 L_dbg{wg}")
    a("s_cmp_lg_u32 s25, 0")
    a(f"s_cbranch_scc1 L_dbg{wg}")
    a("s_mov_b64 exec, -1")
    for j, i in enumerate(idxs):
        a(f"s_sub_u32 s84, s{64+i}, s64")
        a(f"v_writelane_b32 v0, s84, {j}")
    srd(a, 56, S_DBG, 256)
    a("v_mbcnt_lo_u32_b32 v1, -1, 0")
    a("v_lshlrev_b32 v1, 2, v1")
    a(f"s_mov_b64 exec, {(1 << len(idxs)) - 1}")
    a(f"buffer_store_dword v0, v1, s[56:59], 0 offen offset:{4*first}")
    a.label(f"L_dbg{wg}")
def stamp(a, idx, real=False):
    if DBGOUT: real = True
    if not (PROFILE or DBGOUT): return
    a(f"{'s_memrealtime' if real else 's_memtime'} s[84:85]")
    a("s_waitcnt lgkmcnt(0)")
    a(f"s_mov_b32 s{64+idx}, s84")
def stamp_start(a):
    if not (PROFILE or DBGOUT): return
    for i in range(16): a(f"s_mov_b32 s{64+i}, 0")
    stamp(a, 0); stamp(a, 15, True)
def stamp_flush(a, kidx, wave_sgpr, srd_ws=32):
    if not PROFILE: return
    a("s_waitcnt vmcnt(0)")
    stamp(a, 13); stamp(a, 14, True)
    a("s_mov_b64 exec, -1")
    for i in range(16):
        a(f"v_writelane_b32 v0, s{64+i}, {i}")
    a(f"s_lshl_b32 s84, s2, 4")
    a(f"s_add_u32 s84, s84, s{wave_sgpr}")
    a(f"s_lshl_b32 s84, s84, 6")
    a(f"s_add_u32 s84, s84, {WS_PROF + kidx * 0x100000}")
    a("v_mbcnt_lo_u32_b32 v1, -1, 0")
    a("v_mbcnt_hi_u32_b32 v1, -1, v1")
    a("v_lshlrev_b32 v1, 2, v1")
    a("s_mov_b64 exec, 0xffff")
    a(f"buffer_store_dword v0, v1, s[{srd_ws}:{srd_ws+3}], s84 offen")
```

```python
from common import *
from k_ln import ln_rows
import struct

def f2hex(x):
    return "0x%08x" % struct.unpack("<I", struct.pack("<f", x))[0]

QSCALE = (20 ** -0.5) * 1.4426950408889634
WS_FL = 0x1400000
FSH = int(os.environ.get("FSH", "7"))
F_XN, F_QKV, F_QL, F_H, F_O = WS_FL, WS_FL + 0x10000, WS_FL + 0x20000, WS_FL + 0x30000, WS_FL + 0x40000
OOB = 0x7ffffff0
WS_ST = 0x1480000

class Cfg:
    fused = False
    sc = ""
cfg = Cfg()

_uid = [0]
def uid(p):
    _uid[0] += 1
    return f"{p}{_uid[0]}"

def publish(a, base, idx_sgpr, t=10, sh=None):
    if not cfg.fused: return
    a(f"s_lshl_b32 s62, s{idx_sgpr}, {FSH if sh is None else sh}")
    a(f"s_add_u32 s62, s62, {base}")
    a("v_mov_b32 v0, 0")
    a(f"v_mov_b32 v{t}, s60")
    a(f"v_mov_b32 v{t+1}, s61")
    a("s_mov_b64 exec, 1")
    a(f"buffer_store_dwordx2 v[{t}:{t+1}], v0, s[32:35], s62 offen sc1")
    a("s_mov_b64 exec, -1")

def poll(a, vaddr, t=10, sleep=2, single=False, sleep2=1, direct=False):
    if not cfg.fused: return
    L = uid("L_poll")
    a("s_mov_b32 s83, 0x40000")
    if not direct:
        a("s_mov_b64 exec, 1")
        a.label(L)
        a(f"buffer_load_dwordx2 v[{t}:{t+1}], v{vaddr}, s[32:35], 0 offen sc1")
        a("s_waitcnt vmcnt(0)")
        a(f"v_cmp_ne_u64 vcc, s[60:61], v[{t}:{t+1}]")
        a(f"s_cbranch_vccz {L}_1")
        a(f"s_sleep {sleep}")
        a("s_sub_u32 s83, s83, 1")
        a(f"s_cbranch_scc0 {L}")
        a.label(L + "_1")
    if not single:
        if not direct: a("s_mov_b64 exec, -2")
        a.label(L + "_2")
        a(f"buffer_load_dwordx2 v[{t}:{t+1}], v{vaddr}, s[32:35], 0 offen sc1")
        a("s_waitcnt vmcnt(0)")
        a(f"v_cmp_ne_u64 vcc, s[60:61], v[{t}:{t+1}]")
        a(f"s_cbranch_vccz {L}_ok")
        a("s_mov_b64 exec, vcc")
        a(f"s_sleep {sleep2}")
        a("s_sub_u32 s83, s83, 1")
        a(f"s_cbranch_scc0 {L}_2")
        a.label(L + "_ok")
    a("s_mov_b64 exec, -1")

LNWG = ["s2"]
XSWAP = int(os.environ.get("GU16", "1"))
def ln_issue(a):
    a(f"s_lshl_b32 s3, {LNWG[0]}, 3")
    a("v_lshrrev_b32 v3, 4, v0")
    a("v_add_u32 v3, s3, v3")
    a("v_mul_u32_u24 v3, 1280, v3")
    a("v_and_b32 v4, 15, v0")
    a("v_lshl_add_u32 v3, v4, 4, v3")
    srd(a, 36, S_X, 2621440)
    for i in range(5):
        a(f"buffer_load_dwordx4 v[{16+4*i}:{19+4*i}], v3, s[36:39], 0 offen offset:{256*i}")

def ln_addr(a):
    a("v_and_b32 v4, 3, v2")
    a("v_lshrrev_b32 v5, 2, v2")
    a("v_lshl_add_u32 v6, v4, 4, v5")
    a("v_lshlrev_b32 v6, 2, v6")
    a(f"s_lshl_b32 s3, {LNWG[0]}, 3")
    a("s_lshl_b32 s26, s25, 2")
    a("s_add_u32 s3, s3, s26")
    a("s_lshr_b32 s26, s3, 5")
    a("s_mul_i32 s26, s26, 40960")
    a("s_and_b32 s3, s3, 31")
    a("s_lshl_b32 s3, s3, 4")
    a("s_add_u32 s26, s26, s3")
    a("v_lshrrev_b32 v7, 1, v5")
    a("v_lshlrev_b32 v7, 10, v7")
    a("v_and_b32 v5, 1, v5")
    a("v_lshl_add_u32 v7, v5, 9, v7")
    a("v_lshl_add_u32 v7, v4, 4, v7")
    a("v_add_u32 v7, s26, v7")
    for i in range(5):
        a(f"s_mov_b32 s{40+i}, {WS_XN + 8192*i}")

def ln_body(a):
    ln_rows(a, 16, 40, 80, None, None)
    for i in range(20):
        a(f"ds_bpermute_b32 v{40+i}, v6, v{16+i}")

def ln_finish(a):
    ln_addr(a)
    a("s_waitcnt vmcnt(0)")
    stamp(a, 1)
    ln_body(a)
    ln_store(a)

def ln_stats(a):
    a(f"s_lshl_b32 s3, {LNWG[0]}, 3")
    a("s_lshl_b32 s45, s25, 2")
    a("s_add_u32 s3, s3, s45")
    a("s_lshr_b32 s45, s3, 7")
    a("s_lshl_b32 s45, s45, 10")
    a("s_and_b32 s3, s3, 127")
    a("s_lshl_b32 s3, s3, 2")
    a("s_add_u32 s45, s45, s3")
    a(f"s_add_u32 s45, s45, {WS_ST}")
    a("v_lshrrev_b32 v4, 4, v2")
    a("v_lshlrev_b32 v4, 2, v4")
    a("s_mov_b32 exec_lo, 0x00010001")
    a("s_mov_b32 exec_hi, 0x00010001")
    a(f"buffer_store_dword v84, v4, s[32:35], s45 offen{cfg.sc}")
    a(f"buffer_store_dword v80, v4, s[32:35], s45 offen offset:512{cfg.sc}")
    a("s_mov_b64 exec, -1")

def ln_store(a):
    if XSWAP:
        a("v_and_b32 v4, 4, v2")
        a("v_cmp_ne_u32 vcc, 0, v4")
    for i in range(5):
        a(f"s_waitcnt lgkmcnt({min(15, 16-4*i)})")
        r = 40 + 4 * i
        if XSWAP:
            if i == 0: a("s_nop 0")
            for j in range(4):
                a(f"v_cndmask_b32 v{60+4*i+j}, v{r+j}, v{r+(j^2)}, vcc")
            r = 60 + 4 * i
        a(f"buffer_store_dwordx4 v[{r}:{r+3}], v7, s[32:35], s{40+i} offen{cfg.sc}")

qkv_hook = None
attn_hook = None
attn_hook0 = None
def qkv_decode(a):
    a("s_and_b32 s24, s2, 7")
    a("s_lshr_b32 s26, s2, 3")
    a("s_lshr_b32 s27, s24, 1")
    a("s_lshl_b32 s27, s27, 1")
    a("s_and_b32 s3, s26, 1")
    a("s_add_u32 s27, s27, s3")
    a("s_and_b32 s24, s24, 1")
    a("s_mul_i32 s24, s24, 15")
    a("s_lshr_b32 s26, s26, 1")
    a("s_add_u32 s47, s24, s26")
    a("s_lshl_b32 s46, s47, 3")
    a("s_add_u32 s46, s46, s27")
    a("s_lshl_b32 s26, s27, 3")
    a("s_add_u32 s26, s26, s25")
    a("s_cmp_ge_u32 s47, 10")
    a("s_cselect_b32 s24, 1, 0")
    a("s_cmp_ge_u32 s47, 20")
    a("s_cselect_b32 s24, 2, s24")
    a("s_mul_i32 s3, s24, 10")
    a("s_sub_u32 s27, s47, s3")

def qkv_wdma(a, j0=0, j1=20, setup=True):
    if not setup:
        for j in range(j0, j1):
            a(f"s_add_u32 m0, s42, {4096*j}")
            a(f"s_add_u32 s3, s41, {4*30720*j}")
            a("buffer_load_dwordx4 v4, s[28:31], s3 offen lds")
        return
    srd(a, 28, S_WQKV, 2457600)
    a("v_lshrrev_b32 v4, 3, v2")
    a("v_bfe_u32 v5, v2, 2, 1")
    a("v_bfe_u32 v6, v2, 4, 1")
    a("v_xor_b32 v5, v5, v6")
    a("v_lshlrev_b32 v5, 6, v5")
    a("v_and_b32 v6, 3, v2")
    a("v_lshl_add_u32 v5, v6, 4, v5")
    a("s_movk_i32 s3, 3840")
    a("v_mad_u32_u24 v4, v4, s3, v5")
    a("s_sub_u32 s3, s25, 4")
    a("s_lshl_b32 s41, s47, 7")
    a("s_mul_i32 s42, s3, 30720")
    a("s_add_u32 s41, s41, s42")
    a("s_lshl_b32 s42, s3, 10")
    for j in range(j0, j1):
        a(f"s_add_u32 m0, s42, {4096*j}")
        a(f"s_add_u32 s3, s41, {4*30720*j}")
        a("buffer_load_dwordx4 v4, s[28:31], s3 offen lds")

def qkv_uaddr(a, T0, T1, U0, U1):
    if XSWAP:
        a(f"v_lshl_add_u32 v{T0}, v7, 9, v{T0}")
    a(f"v_xor_b32 v{T1}, 64, v{T0}")
    a(f"v_xor_b32 v{U0}, 512, v{T0}")
    a(f"v_xor_b32 v{U1}, 512, v{T1}")

def qkv_main(a, gate=None):
    ACC, XF, WF, AD = 16, 48, 96, 112
    XD = 12
    T0, T1, U0, U1 = 4, 5, 124, 125
    vm = VM(a)
    a("s_mul_i32 s40, s26, 40960")
    a(f"s_add_u32 s40, s40, {WS_XN}")
    def xload(s):
        r = XF + 4 * (s % XD)
        vm.issue(f"buffer_load_dwordx4 v[{r}:{r+3}], v9, s[32:35], s40 offen offset:{1024*(s%4)}{cfg.sc}", ("X", s))
        if s % 4 == 3: a("s_add_u32 s40, s40, 4096")
    X0 = int(os.environ.get("QX0", "4"))
    a("v_bfe_u32 v6, v2, 2, 2")
    a("v_lshrrev_b32 v7, 5, v2")
    a("v_lshl_add_u32 v8, v7, 3, v6")
    a("v_lshlrev_b32 v8, 7, v8")
    a("v_bfe_u32 v10, v2, 4, 1")
    a("v_lshl_add_u32 v8, v10, 5, v8")
    a("v_lshrrev_b32 v6, 1, v6")
    a("v_lshl_add_u32 v8, v6, 6, v8")
    a("v_and_b32 v10, 31, v2")
    for i in range(32):
        a(f"v_mov_b32 v{ACC+i}, 0")
    a("s_cmp_eq_u32 s24, 2")
    a("s_cbranch_scc1 L_qkv_V")
    a("v_and_b32 v11, 1, v2")
    a("v_lshlrev_b32 v11, 4, v11")
    a("v_bfe_u32 v12, v2, 1, 1")
    a("v_lshl_add_u32 v11, v12, 3, v11")
    a(f"v_add_u32 v{T0}, v8, v11")
    qkv_uaddr(a, T0, T1, U0, U1)
    a("s_lshl_b32 s45, s26, 10")
    a(f"s_add_u32 s45, s45, {WS_QM}")
    a("s_lshl_b32 s43, s26, 8")
    a(f"s_add_u32 s43, s43, {WS_QR}")
    a("s_mov_b32 s44, 65536")
    a("s_mov_b32 s42, 16384")
    a(f"s_mov_b32 s48, {f2hex(QSCALE)}")
    a("s_cmp_eq_u32 s24, 0")
    a("s_cbranch_scc1 L_qkv_isq")
    a("s_mul_i32 s45, s26, 2560")
    a(f"s_add_u32 s45, s45, {WS_KV}")
    a("s_add_u32 s43, s45, 1024")
    a("s_mov_b32 s44, 163840")
    a("s_mov_b32 s42, 163840")
    a("s_mov_b32 s48, 1.0")
    a.label("L_qkv_isq")
    a("s_mov_b32 s49, s48")
    a("s_lshl_b32 s3, s27, 3")
    a("v_add_u32 v11, s3, v7")
    a("v_lshl_add_u32 v12, v10, 4, s45")
    a("v_lshl_add_u32 v13, v10, 3, s43")
    a(f"s_mov_b32 s50, {OOB}")
    a("s_mov_b32 s51, 0")
    for q in range(4):
        a(f"v_add_u32 v14, {2*q}, v11")
        a("v_mul_u32_u24 v15, 205, v14")
        a("v_lshrrev_b32 v15, 10, v15")
        a("v_mul_u32_u24 v3, 5, v15")
        a("v_sub_u32 v14, v14, v3")
        a("v_lshlrev_b32 v15, 1, v15")
        a("v_mul_lo_u32 v3, v15, s42")
        a(f"v_add_u32 v{AD+3*q+1}, v3, v13")
        a(f"v_add_u32 v{AD+3*q+2}, s42, v{AD+3*q+1}")
        a("v_cmp_lt_u32 vcc, 2, v14")
        a("v_subrev_u32 v3, 3, v14")
        a("s_nop 0")
        a("v_addc_co_u32 v15, s[52:53], 0, v15, vcc")
        a("v_cndmask_b32 v3, v14, v3, vcc")
        a("v_mul_lo_u32 v15, v15, s44")
        a("v_lshl_add_u32 v3, v3, 9, v12")
        a("v_add_u32 v3, v3, v15")
        a("v_cmp_eq_u32 vcc, 2, v14")
        a("v_mov_b32 v15, s50")
        a("s_cmp_lg_u64 vcc, 0")
        a(f"s_cselect_b32 s3, {1 << q}, 0")
        a("s_or_b32 s51, s51, s3")
        a(f"v_cndmask_b32 v{AD+3*q}, v3, v15, vcc")
        a(f"v_cndmask_b32 v{AD+3*q+1}, v15, v{AD+3*q+1}, vcc")
        a(f"v_cndmask_b32 v{AD+3*q+2}, v15, v{AD+3*q+2}, vcc")
    def loop(vtype):
        vq = list(vm.q)
        if gate: gate()
        for s in range(X0): xload(s)
        def reads(s):
            w = WF + 8 * (s % 2)
            if s == 32:
                for r in (T0, T1, U0, U1):
                    a(f"v_add_u32 v{r}, 0x10000, v{r}")
            for ft in range(2):
                for u in range(2):
                    off = (16 * s * 128) % 65536
                    a(f"ds_read_b64_tr_b16 v[{w+4*ft+2*u}:{w+4*ft+2*u+1}], v{(U0 if u else T0)+ft} offset:{off}")
        reads(0)
        nx = X0
        for s in range(40):
            if s + 1 < 40:
                reads(s + 1)
                vm.wait(lambda t: t == ("X", s), "lgkmcnt(4)")
            else:
                vm.wait(lambda t: t == ("X", s), "lgkmcnt(0)")
            if s == 0 and not os.environ.get('LNSTAMP'): stamp(a, 5)
            w = WF + 8 * (s % 2); x = XF + 4 * (s % XD)
            for ft in range(2):
                W = f"v[{w+4*ft}:{w+4*ft+3}]"; X = f"v[{x}:{x+3}]"
                A, B = (X, W) if vtype else (W, X)
                D = f"v[{ACC+16*ft}:{ACC+16*ft+15}]"
                a(f"v_mfma_f32_32x32x16_bf16 {D}, {A}, {B}, {D}")
            for _ in range(2):
                if nx <= s + XD and nx < 40:
                    xload(nx); nx += 1
        vm.q = vq
        stamp(a, 6)
        if qkv_hook: qkv_hook()
    loop(False)
    a("s_nop 10")
    for q in range(4):
        r = ACC + 8 * q
        for i in range(0, 8, 2):
            a(f"v_pk_mul_f32 v[{r+i}:{r+i+1}], v[{r+i}:{r+i+1}], s[48:49]")
        for i in range(4):
            a(f"v_cvt_pk_bf16_f32 v{r+i}, v{r+2*i}, v{r+2*i+1}")
        a(f"buffer_store_dwordx4 v[{r}:{r+3}], v{AD+3*q}, s[32:35], 0 offen{cfg.sc}")
        L = uid("L_qr")
        a(f"s_bitcmp0_b32 s51, {q}")
        a(f"s_cbranch_scc1 {L}")
        a(f"buffer_store_dwordx2 v[{r}:{r+1}], v{AD+3*q+1}, s[32:35], 0 offen{cfg.sc}")
        a(f"buffer_store_dwordx2 v[{r+2}:{r+3}], v{AD+3*q+2}, s[32:35], 0 offen{cfg.sc}")
        a.label(L)
    a("s_branch L_qkv_done")
    a.label("L_qkv_V")
    a("v_and_b32 v11, 3, v2")
    a(f"v_lshl_add_u32 v{T0}, v11, 3, v8")
    qkv_uaddr(a, T0, T1, U0, U1)
    a("s_mul_i32 s45, s26, 2560")
    a(f"s_add_u32 s45, s45, {WS_KV + 1280}")
    a("s_lshl_b32 s3, s27, 6")
    a("v_add_u32 v10, s3, v10")
    a("v_mul_u32_u24 v11, 320, v7")
    a("v_add_u32 v11, s45, v11")
    a("s_mov_b32 s44, 163840")
    for ft in range(2):
        a(f"v_add_u32 v13, {32*ft}, v10")
        a("v_mul_u32_u24 v14, 3277, v13")
        a("v_lshrrev_b32 v14, 16, v14")
        a("v_mul_u32_u24 v15, 20, v14")
        a("v_sub_u32 v15, v13, v15")
        a("v_lshl_add_u32 v3, v15, 4, v11")
        a("v_mul_lo_u32 v14, v14, s44")
        a(f"v_add_u32 v{AD+ft}, v3, v14")
    loop(True)
    a("s_nop 10")
    for ft in range(2):
        for gm in range(2):
            r = ACC + 16 * ft + 8 * gm
            for i in range(4):
                a(f"v_cvt_pk_bf16_f32 v{r+i}, v{r+2*i}, v{r+2*i+1}")
            a(f"buffer_store_dwordx4 v[{r}:{r+3}], v{AD+ft}, s[32:35], 0 offen offset:{640*gm}{cfg.sc}")
    a.label("L_qkv_done")
    stamp(a, 7)

CHUNK = 20480
NBUF = 3
DELTA = 90.0
S0, S1, P, O0, O1, Q0, Q1, KA, KB, VA, VB = 16, 32, 48, 56, 72, 88, 94, 100, 106, 112, 120
AK, AKR, AV = 3, 4, 5

def rowmax16(a, S, d, t):
    a(f"v_max3_f32 v{d}, v{S}, v{S+1}, v{S+2}")
    a(f"v_max3_f32 v{t}, v{S+3}, v{S+4}, v{S+5}")
    a(f"v_max3_f32 v{d}, v{d}, v{S+6}, v{S+7}")
    a(f"v_max3_f32 v{t}, v{t}, v{S+8}, v{S+9}")
    a(f"v_max3_f32 v{d}, v{d}, v{S+10}, v{S+11}")
    a(f"v_max3_f32 v{t}, v{t}, v{S+12}, v{S+13}")
    a(f"v_max3_f32 v{d}, v{d}, v{S+14}, v{S+15}")
    a(f"v_max_f32 v{d}, v{d}, v{t}")
    a(f"v_mov_b32 v{t}, v{d}")
    a("s_nop 1")
    a(f"v_permlane32_swap_b32 v{d}, v{t}")
    a(f"v_max_f32 v{d}, v{d}, v{t}")

def attn_decode(a):
    a("s_and_b32 s24, s2, 7")
    a("s_lshr_b32 s27, s2, 3")
    a("s_lshl_b32 s24, s24, 2")
    a("s_lshr_b32 s3, s27, 3")
    a("s_add_u32 s24, s24, s3")
    a("s_and_b32 s27, s27, 7")

def attn_flag_addr(a, vd):
    a("s_mul_i32 s3, s24, 20")
    a("s_lshr_b32 s26, s3, 6")
    a("s_add_u32 s3, s3, 19")
    a("s_lshr_b32 s3, s3, 6")
    a("s_sub_u32 s3, s3, s26")
    a("v_min_u32 v10, 47, v2")
    a("v_lshrrev_b32 v11, 4, v10")
    a("v_mul_u32_u24 v11, 10, v11")
    a("v_bfe_u32 v12, v10, 3, 1")
    a("v_mul_lo_u32 v12, v12, s3")
    a("v_add3_u32 v11, v11, v12, s26")
    a("v_and_b32 v12, 7, v10")
    a("v_mov_b32 v13, s27")
    a("v_cmp_gt_u32 vcc, 16, v10")
    a("s_nop 1")
    a("v_cndmask_b32 v12, v12, v13, vcc")
    a(f"v_lshl_add_u32 v{vd}, v11, 3, v12")
    a(f"v_lshlrev_b32 v{vd}, {FSH}, v{vd}")
    a(f"v_add_u32 v{vd}, {F_QKV}, v{vd}")

PA = [int(x) for x in os.environ.get("PA", "2,3,1").split(",")]
def attn_main(a, prio=True):
    sc = cfg.sc
    a("s_and_b32 s46, s25, 3")
    a("s_lshr_b32 s47, s25, 2")
    a("s_lshl_b32 s26, s27, 3")
    a("s_lshl_b32 s3, s46, 1")
    a("s_add_u32 s26, s26, s3")
    a("s_lshl_b32 s3, s24, 6")
    a("s_add_u32 s3, s3, s26")
    a("s_lshl_b32 s40, s3, 10")
    a(f"s_add_u32 s40, s40, {WS_QM}")
    a("s_lshl_b32 s41, s3, 8")
    a(f"s_add_u32 s41, s41, {WS_QR}")
    a("s_mul_i32 s42, s24, 163840")
    a(f"s_add_u32 s42, s42, {WS_KV}")
    a("s_mul_i32 s3, s25, 5120")
    a("s_add_u32 s43, s42, s3")
    a("s_mov_b32 s44, s3")
    def dma_chunk():
        a("s_mov_b32 m0, s44")
        a("s_add_u32 s50, s43, 4096")
        for i in range(4):
            off = f" offset:{1024*i}" if i else ""
            a(f"buffer_load_dwordx4 v9, s[32:35], s43 offen{off}{sc} lds")
        a("s_add_u32 m0, s44, 4096")
        a(f"s_add_u32 s43, s43, {CHUNK}")
        a(f"buffer_load_dwordx4 v9, s[32:35], s50 offen{sc} lds")
        a(f"s_add_u32 s44, s44, {CHUNK}")
    a("v_and_b32 v6, 31, v2")
    a(f"v_lshlrev_b32 v{AKR}, 3, v6")
    a(f"buffer_load_dwordx4 v[{Q0}:{Q0+3}], v9, s[32:35], s40 offen{sc}")
    a(f"buffer_load_dwordx4 v[{Q1}:{Q1+3}], v9, s[32:35], s40 offen offset:1024{sc}")
    for r in (Q0 + 4, Q0 + 5, Q1 + 4, Q1 + 5, KA + 5, KB + 5):
        a(f"v_mov_b32 v{r}, 0")
    a("s_mov_b32 exec_hi, 0")
    a(f"buffer_load_dwordx2 v[{Q0+4}:{Q0+5}], v{AKR}, s[32:35], s41 offen{sc}")
    a(f"buffer_load_dwordx2 v[{Q1+4}:{Q1+5}], v{AKR}, s[32:35], s41 offen offset:256{sc}")
    a("s_mov_b32 exec_hi, -1")
    a("s_cmp_ge_u32 s25, 4")
    a("s_cbranch_scc1 L_at_nodma0")
    dma_chunk()
    dma_chunk()
    dma_chunk()
    a(f"s_sub_u32 s44, s44, {NBUF*CHUNK}")
    a.label("L_at_nodma0")
    if attn_hook0: attn_hook0()
    a("v_lshrrev_b32 v7, 5, v2")
    a(f"v_mul_u32_u24 v{AV}, 320, v7")
    a(f"v_lshl_add_u32 v{AV}, v6, 4, v{AV}")
    a("s_mov_b32 s30, 0x000fffff")
    a("s_mov_b32 s31, 0x000fffff")
    a(f"v_mov_b32 v{KA+4}, 0x3f80")
    a(f"v_mov_b32 v{KB+4}, 0x3f80")
    a("v_cmp_eq_u32 vcc, 20, v6")
    a("v_mov_b32 v8, 0x3f803f80")
    a("s_nop 0")
    a("v_cndmask_b32 v8, 0, v8, vcc")
    for i in range(16):
        a(f"v_mov_b32 v{VA+i}, v8")
    for i in range(32):
        a(f"v_mov_b32 v{O0+i}, 0")
    for i in range(4, 8):
        a(f"v_mov_b32 v{P+i}, 0")
    a("s_cmp_ge_u32 s25, 4")
    a("s_cbranch_scc1 L_at_w0")
    a("s_waitcnt vmcnt(10)")
    a("s_branch L_at_w1")
    a.label("L_at_w0")
    a("s_waitcnt vmcnt(0)")
    a.label("L_at_w1")
    a("s_barrier")
    stamp(a, 10)
    if attn_hook: attn_hook()
    a(f"ds_read_b128 v[{KB}:{KB+3}], v9")
    a("s_mov_b32 exec_hi, 0")
    a(f"ds_read_b64 v[{KB+4}:{KB+5}], v{AKR} offset:1024")
    a("s_mov_b32 exec_hi, -1")
    a("s_mul_i32 s3, s47, 10240")
    a(f"v_add_u32 v{AK}, s3, v9")
    a(f"v_add_u32 v{AKR}, s3, v{AKR}")
    a(f"v_add_u32 v{AV}, s3, v{AV}")
    a(f"ds_read_b128 v[{KA}:{KA+3}], v{AK}")
    a("s_mov_b32 exec_hi, 0")
    a(f"ds_read_b64 v[{KA+4}:{KA+5}], v{AKR} offset:1024")
    a("s_mov_b64 exec, s[30:31]")
    a(f"ds_read_b128 v[{VA}:{VA+3}], v{AV} offset:1280")
    a(f"ds_read_b128 v[{VA+4}:{VA+7}], v{AV} offset:1920")
    a("s_mov_b64 exec, -1")
    a("s_waitcnt lgkmcnt(4)")
    def qk(S, K, Q):
        return (f"v_mfma_f32_32x32x16_bf16 v[{S}:{S+15}], v[{K}:{K+3}], v[{Q}:{Q+3}], 0",
                f"v_mfma_f32_32x32x8_bf16 v[{S}:{S+15}], v[{K+4}:{K+5}], v[{Q+4}:{Q+5}], v[{S}:{S+15}]")
    for x in qk(S0, KB, Q0) + qk(S1, KB, Q1): a(x)
    a("s_nop 9")
    rowmax16(a, S0, 10, 11)
    rowmax16(a, S1, 12, 13)
    a("v_cmp_lt_u32 vcc, 31, v2")
    for d, Q in ((10, Q0), (12, Q1)):
        a(f"v_add_f32 v{d}, {f2hex(DELTA)}, v{d}")
        a(f"v_sub_f32 v{d}, 0, v{d}")
        a(f"v_cvt_pk_bf16_f32 v{d}, v{d}, 0")
        a(f"v_cndmask_b32 v{Q+4}, v{Q+4}, v{d}, vcc")
    a("s_waitcnt lgkmcnt(0)")
    a("s_nop 0")
    for x in qk(S0, KA, Q0): a(x)
    a("s_mov_b32 s45, 8")
    a(f"s_mov_b32 s48, {CHUNK}")
    a("s_mov_b32 s49, 0")
    a("s_nop 7")
    a(".p2align 6")
    a.label("L_at_loop")
    if PROFILE:
        a("s_memtime s[84:85]")
        a("s_memrealtime s[86:87]")
        a("s_waitcnt lgkmcnt(0)")
        a("s_sub_u32 m0, 8, s45")
        a("s_nop 0")
        a("v_writelane_b32 v15, s84, m0")
        a("s_add_u32 m0, m0, 8")
        a("s_nop 0")
        a("v_writelane_b32 v15, s86, m0")
    def half(Sc, qks, pvp, pv1, mid=()):
        e = lambda i: f"v_exp_f32 v{Sc+i}, v{Sc+i}"
        c = lambda i: f"v_cvt_pk_bf16_f32 v{P+i}, v{Sc+2*i}, v{Sc+2*i+1}"
        seq = [qks[0], e(0), e(1), e(2), e(3), c(0), c(1), pvp] + list(mid) + [e(4), e(5), e(6), e(7), c(2), c(3), qks[1],
               e(8), e(9), e(10), e(11), e(12), pv1, e(13), e(14), e(15), c(4), c(5), c(6), c(7)]
        for x in seq: a(x)
    def pv(Oo, V, Pp):
        return f"v_mfma_f32_32x32x16_bf16 v[{Oo}:{Oo+15}], v[{V}:{V+3}], v[{Pp}:{Pp+3}], v[{Oo}:{Oo+15}]"
    for j in range(4):
        Kc, Kn = (KA, KB) if j % 2 == 0 else (KB, KA)
        Vc, Vn = (VA, VB) if j % 2 == 0 else (VB, VA)
        if j == 0 and prio:
            a("s_cmp_ge_u32 s25, 4")
            a("s_cbranch_scc1 L_at_y0")
            a(f"s_setprio {PA[0]}")
            a("s_branch L_at_y1")
            a.label("L_at_y0")
            a(f"s_setprio {PA[1]}")
            a.label("L_at_y1")
        if j == 3:
            a("s_cmp_eq_u32 s45, 8")
            a("s_cbranch_scc1 L_at_first")
            a("s_waitcnt vmcnt(0)")
            a.label("L_at_first")
            a("s_waitcnt vmcnt(5)")
            a("s_barrier")
            a("s_sub_u32 s3, s48, s49")
            a(f"v_add_u32 v{AK}, s3, v{AK}")
            a(f"v_add_u32 v{AKR}, s3, v{AKR}")
            a(f"v_add_u32 v{AV}, s3, v{AV}")
            a("s_mov_b32 s49, s48")
            a(f"s_add_u32 s48, s48, {CHUNK}")
            a(f"s_cmp_ge_u32 s48, {NBUF*CHUNK}")
            a("s_cselect_b32 s48, 0, s48")
            a("s_cmp_ge_u32 s25, 4")
            a("s_cbranch_scc1 L_at_young")
            a("s_sub_u32 s50, s45, 3")
            a("s_cmp_ge_u32 s50, 5")
            a("s_cbranch_scc1 L_at_nodma1")
            dma_chunk()
            a(f"s_cmp_ge_u32 s44, {NBUF*CHUNK}")
            a(f"s_cselect_b32 s50, {NBUF*CHUNK}, 0")
            a("s_sub_u32 s44, s44, s50")
            a("s_branch L_at_nodma1")
            a.label("L_at_young")
            if prio: a(f"s_setprio {PA[2]}")
            a.label("L_at_nodma1")
        o = 2560 * ((j + 1) % 4)
        rd = [f"ds_read_b128 v[{Kn}:{Kn+3}], v{AK} offset:{o}",
              "s_mov_b32 exec_hi, 0",
              f"ds_read_b64 v[{Kn+4}:{Kn+5}], v{AKR} offset:{o+1024}",
              "s_mov_b64 exec, s[30:31]",
              f"ds_read_b128 v[{Vn}:{Vn+3}], v{AV} offset:{o+1280}",
              f"ds_read_b128 v[{Vn+4}:{Vn+7}], v{AV} offset:{o+1920}",
              "s_mov_b64 exec, -1"]
        half(S0, qk(S1, Kc, Q1), pv(O1, Vn + 4, P + 4), pv(O0, Vc, P), rd)
        a("s_waitcnt lgkmcnt(0)")
        half(S1, qk(S0, Kn, Q0), pv(O0, Vc + 4, P + 4), pv(O1, Vc, P))
    a("s_sub_u32 s45, s45, 1")
    a("s_cmp_lg_u32 s45, 0")
    a("s_cbranch_scc1 L_at_loop")
    a(pv(O1, VB + 4, P + 4))
    if prio: a("s_setprio 3")
    stamp(a, 11)
    a("s_lshl_b32 s3, s46, 12")
    a("v_add_u32 v6, s3, v9")
    a(f"v_add_u32 v7, {NBUF*CHUNK}, v6")
    a("s_cmp_eq_u32 s47, 0")
    a("s_cbranch_scc1 L_at_x0")
    for i in range(3):
        a(f"ds_write_b128 v7, v[{O0+4*i}:{O0+4*i+3}] offset:{1024*i}")
    a("v_mov_b32 v7, v6")
    for i in range(6):
        a(f"v_mov_b32 v{Q0+i}, v{Q1+i}")
    a("s_nop 0")
    for i in range(12):
        a(f"v_mov_b32 v{O0+i}, v{O1+i}")
    a("s_branch L_at_x1")
    a.label("L_at_x0")
    a("s_nop 6")
    for i in range(3):
        a(f"ds_write_b128 v6, v[{O1+4*i}:{O1+4*i+3}] offset:{1024*i}")
    a.label("L_at_x1")
    a("s_add_u32 s26, s26, s47")
    a("s_waitcnt lgkmcnt(0)")
    if os.environ.get("TAILSTAMP"): stamp(a, 1)
    a("s_barrier")
    if os.environ.get("TAILSTAMP"): stamp(a, 2)
    for i in range(3):
        a(f"ds_read_b128 v[{S1+4*i}:{S1+4*i+3}], v7 offset:{1024*i}")
    a("s_mov_b32 s51, 0")
    a(f"s_mov_b32 s54, {f2hex(2.0**-95)}")
    a(f"s_mov_b32 s55, {f2hex(2.0**118)}")
    a("s_mov_b32 s58, 0x7f800000")
    a("s_waitcnt lgkmcnt(0)")
    for i in range(0, 12, 2):
        a(f"v_pk_add_f32 v[{O0+i}:{O0+i+1}], v[{O0+i}:{O0+i+1}], v[{S1+i}:{S1+i+1}]")
    a.label("L_at_fin")
    a(f"v_mov_b32 v8, v{O0+8}")
    a(f"v_mov_b32 v10, v{O0+8}")
    a("s_nop 1")
    a("v_permlane32_swap_b32 v8, v10")
    a("v_rcp_f32 v11, v10")
    a("s_nop 0")
    for i in range(12):
        a(f"v_mul_f32 v{S0+i}, v11, v{O0+i}")
    a("s_cmp_eq_u32 s51, 1")
    a("s_cbranch_scc1 L_at_store")
    a(f"v_add_f32 v12, |v{S0}|, |v{S0+1}|")
    for i in range(2, 8):
        a(f"v_add_f32 v12, |v{S0+i}|, v12")
    a(f"v_add_f32 v13, |v{S0+8}|, |v{S0+9}|")
    a(f"v_add_f32 v13, |v{S0+10}|, v13")
    a(f"v_add_f32 v13, |v{S0+11}|, v13")
    a("v_cmp_gt_u32 vcc, 32, v2")
    a("s_nop 1")
    a("v_cndmask_b32 v13, 0, v13, vcc")
    a("v_add_f32 v12, v12, v13")
    a("v_cmp_gt_f32 s[52:53], v10, s54")
    a("v_cmp_lt_f32 s[56:57], v10, s55")
    a("v_cmp_lt_f32 vcc, v12, s58")
    a("s_and_b64 s[52:53], s[52:53], s[56:57]")
    a("s_and_b64 s[52:53], s[52:53], vcc")
    a("s_cmp_eq_u64 s[52:53], exec")
    a("s_cbranch_scc0 L_at_slow")
    a.label("L_at_store")
    if os.environ.get("TAILSTAMP"): stamp(a, 3)
    for i in range(6):
        a(f"v_cvt_pk_bf16_f32 v{P+i}, v{S0+2*i}, v{S0+2*i+1}")
    a("s_mul_i32 s3, s26, 40")
    a("s_add_u32 s50, s3, s24")
    a("s_lshl_b32 s50, s50, 10")
    a(f"s_add_u32 s50, s50, {WS_O}")
    a(f"buffer_store_dwordx4 v[{P}:{P+3}], v9, s[32:35], s50 offen{sc}")
    a("s_lshr_b32 s50, s24, 2")
    a("s_add_u32 s50, s50, s3")
    a("s_add_u32 s50, s50, 32")
    a("s_lshl_b32 s50, s50, 10")
    a("s_and_b32 s3, s24, 1")
    a("s_lshl_b32 s3, s3, 9")
    a("s_add_u32 s50, s50, s3")
    a("s_bfe_u32 s3, s24, 0x10001")
    a("s_lshl_b32 s3, s3, 3")
    a("s_add_u32 s50, s50, s3")
    a(f"s_add_u32 s50, s50, {WS_O}")
    a("s_mov_b32 exec_hi, 0")
    a(f"buffer_store_dwordx2 v[{P+4}:{P+5}], v9, s[32:35], s50 offen{sc}")
    a("s_mov_b32 exec_hi, -1")
    if os.environ.get("TAILSTAMP"): stamp(a, 4)
    a("s_branch L_at_done")
    NM = O1
    a.label("L_at_slow")
    a("v_and_b32 v6, 31, v2")
    a("v_lshlrev_b32 v4, 3, v6")
    a("v_lshrrev_b32 v7, 5, v2")
    a("v_mul_u32_u24 v5, 320, v7")
    a("v_lshl_add_u32 v5, v6, 4, v5")
    a("v_cmp_gt_u32 vcc, 32, v2")
    a("v_mov_b32 v14, 0xff800000")
    a("s_mov_b32 s50, s42")
    a(f"v_cndmask_b32 v{Q0+4}, 0, v{Q0+4}, vcc")
    a("s_mov_b32 s45, 64")
    a.label("L_at_slow1")
    a(f"buffer_load_dwordx4 v[{KA}:{KA+3}], v9, s[32:35], s50 offen{sc}")
    a(f"buffer_load_dwordx2 v[{KA+4}:{KA+5}], v4, s[32:35], s50 offen offset:1024{sc}")
    a("s_waitcnt vmcnt(0)")
    for x in qk(S0, KA, Q0): a(x)
    a("s_nop 11")
    rowmax16(a, S0, 8, 10)
    a("v_max_f32 v14, v14, v8")
    a("s_add_u32 s50, s50, 2560")
    a("s_sub_u32 s45, s45, 1")
    a("s_cmp_lg_u32 s45, 0")
    a("s_cbranch_scc1 L_at_slow1")
    a("v_sub_f32 v8, 0, v14")
    for i in range(16):
        a(f"v_mov_b32 v{NM+i}, v8")
        a(f"v_mov_b32 v{O0+i}, 0")
    a("s_mov_b32 s50, s42")
    a("s_mov_b32 s45, 64")
    a.label("L_at_slow2")
    a(f"buffer_load_dwordx4 v[{KA}:{KA+3}], v9, s[32:35], s50 offen{sc}")
    a(f"buffer_load_dwordx2 v[{KA+4}:{KA+5}], v4, s[32:35], s50 offen offset:1024{sc}")
    a("s_mov_b64 exec, s[30:31]")
    a(f"buffer_load_dwordx4 v[{VA}:{VA+3}], v5, s[32:35], s50 offen offset:1280{sc}")
    a(f"buffer_load_dwordx4 v[{VA+4}:{VA+7}], v5, s[32:35], s50 offen offset:1920{sc}")
    a("s_mov_b64 exec, -1")
    a("s_waitcnt vmcnt(0)")
    a(f"v_mfma_f32_32x32x16_bf16 v[{S0}:{S0+15}], v[{KA}:{KA+3}], v[{Q0}:{Q0+3}], v[{NM}:{NM+15}]")
    a(f"v_mfma_f32_32x32x8_bf16 v[{S0}:{S0+15}], v[{KA+4}:{KA+5}], v[{Q0+4}:{Q0+5}], v[{S0}:{S0+15}]")
    a("s_nop 11")
    for i in range(16):
        a(f"v_exp_f32 v{S0+i}, v{S0+i}")
    a("s_nop 0")
    for i in range(8):
        a(f"v_cvt_pk_bf16_f32 v{P+i}, v{S0+2*i}, v{S0+2*i+1}")
    a("s_nop 1")
    a(pv(O0, VA, P))
    a(pv(O0, VA + 4, P + 4))
    a("s_add_u32 s50, s50, 2560")
    a("s_sub_u32 s45, s45, 1")
    a("s_cmp_lg_u32 s45, 0")
    a("s_cbranch_scc1 L_at_slow2")
    a("s_mov_b32 s51, 1")
    a("s_nop 10")
    a("s_branch L_at_fin")
    a.label("L_at_done")

GU_BUF = 24832
GU_UP = 12416
def gu_decode(a):
    a("s_sub_u32 s3, s2, 256")
    a("s_and_b32 s24, s3, 7")
    a("s_lshr_b32 s26, s3, 3")
    a("s_lshr_b32 s27, s24, 2")
    a("s_lshl_b32 s27, s27, 2")
    a("s_and_b32 s3, s26, 3")
    a("s_add_u32 s27, s27, s3")
    a("s_and_b32 s24, s24, 3")
    a("s_lshl_b32 s24, s24, 3")
    a("s_lshr_b32 s26, s26, 2")
    a("s_add_u32 s24, s24, s26")
    a("s_lshl_b32 s26, s27, 3")
    a("s_add_u32 s26, s26, s25")

class GU:
    ACC, XF, WF, XD = 16, 64, 96, int(os.environ.get("GXD", "8"))
    def __init__(self, a):
        self.a = a; self.vm = VM(a)
    def setup(self):
        a = self.a
        a("s_mul_i32 s40, s26, 40960")
        a(f"s_add_u32 s40, s40, {WS_XN}")
        a("s_mul_i32 s41, s24, 96")
        a("s_and_b32 s3, s25, 3")
        a("s_mul_i32 s42, s3, 3072")
        a("s_cmp_ge_u32 s25, 4")
        a(f"s_cselect_b32 s43, {GU_UP}, 0")
        a(f"s_cselect_b32 s28, s{S_WU}, s{S_WG}")
        a(f"s_cselect_b32 s29, s{S_WU+1}, s{S_WG+1}")
        a("s_mov_b32 s30, 1966080")
        a("s_mov_b32 s31, 0x00020000")
        a("s_add_u32 s42, s42, s43")
        a("s_mul_i32 s3, s3, 192")
        a("s_movk_i32 s43, 3072")
        for i in range(3):
            a(f"v_add_u32 v8, s3, v2")
            if i: a(f"v_add_u32 v8, {64*i}, v8")
            a("v_mul_u32_u24 v10, 10923, v8")
            a("v_lshrrev_b32 v10, 16, v10")
            a("v_mul_u32_u24 v11, 6, v10")
            a("v_sub_u32 v11, v8, v11")
            a("v_lshlrev_b32 v11, 4, v11")
            a(f"v_mad_u32_u24 v{4+i}, v10, s43, v11")
        a("v_bfe_u32 v8, v2, 2, 2")
        a("v_lshrrev_b32 v10, 5, v2")
        a("v_lshl_add_u32 v8, v10, 3, v8")
        a("v_mul_u32_u24 v8, 96, v8")
        a("v_and_b32 v10, 3, v2")
        a("v_lshl_add_u32 v8, v10, 3, v8")
        a("v_bfe_u32 v10, v2, 4, 1")
        a(f"v_mul_u32_u24 v10, {GU_UP}, v10")
        a("v_add_u32 v7, v8, v10")
        a(f"v_add_u32 v8, {2*GU_BUF}, v7")
        for i in range(48):
            a(f"v_mov_b32 v{self.ACC+i}, 0")
    def dma_stage(self, st):
        a = self.a
        for i in range(3):
            a(f"s_add_u32 m0, s42, {(st % 3) * GU_BUF + 1024 * i}")
            a("s_nop 0")
            self.vm.issue(f"buffer_load_dwordx4 v{4+i}, s[28:31], s41 offen lds", ("W", st))
        a(f"s_add_u32 s41, s41, {128*3072}")
    def xload(self, s):
        r = self.XF + 4 * (s % self.XD)
        self.vm.issue(f"buffer_load_dwordx4 v[{r}:{r+3}], v9, s[32:35], s40 offen offset:{1024*(s%4)}{cfg.sc}", ("X", s))
        if s % 4 == 3: self.a("s_add_u32 s40, s40, 4096")
    def main(self, pre_dma, hook=None):
        a, vm, ACC, XF, WF, XD = self.a, self.vm, self.ACC, self.XF, self.WF, self.XD
        if pre_dma < 1: self.dma_stage(0)
        G0 = int(os.environ.get("G0", "4"))
        for s in range(G0): self.xload(s)
        a("s_barrier")
        for s in range(G0, XD): self.xload(s)
        if pre_dma < 2: self.dma_stage(1)
        nx = [XD]
        def reads(s):
            st, sp = s // 8, s % 8
            w = WF + 12 * (s % 2)
            buf = st % 3
            base = "v8" if buf == 2 else "v7"
            bo = 0 if buf == 2 else buf * GU_BUF
            AB = os.environ.get("ABL", "")
            for ft in range(3):
                if "b128" in AB and s > 1:
                    a(f"ds_read_b128 v[{w+4*ft}:{w+4*ft+3}], v9 offset:{bo + (sp*3+ft)*1024}")
                    a("s_nop 0") if False else None
                    continue
                for u in range(2):
                    if "notr" in AB and s > 1: continue
                    a(f"ds_read_b64_tr_b16 v[{w+4*ft+2*u}:{w+4*ft+2*u+1}], {base} offset:{bo + (16*sp+4*u)*96 + 32*ft}")
        def pre(s):
            if s % 8 == 0:
                st = s // 8
                vm.wait(lambda t: t == ("W", st), "lgkmcnt(0)" if s else "")
                if os.environ.get("GSTAMP") and st == 0: stamp(a, 12)
                a("s_barrier")
                if st in (0, 2, 4): stamp(a, 3 + st // 2)
                if st >= 1 and st + 2 < 5:
                    self.dma_stage(st + 2)
        pre(0); reads(0)
        for s in range(40):
            if s + 1 < 40:
                pre(s + 1); reads(s + 1)
                vm.wait(lambda t: t == ("X", s), "lgkmcnt(3)" if "b128" in os.environ.get("ABL", "") and s > 0 else "lgkmcnt(6)")
            else:
                vm.wait(lambda t: t == ("X", s), "lgkmcnt(0)")
            w = WF + 12 * (s % 2)
            x = XF + 4 * (s % XD)
            for ft in range(3):
                D = f"v[{ACC+16*ft}:{ACC+16*ft+15}]"
                if "m16" in os.environ.get("ABL", ""):
                    for q in range(2):
                        d = ACC + 16 * ft + 8 * q + 4 * (s % 2)
                        a(f"v_mfma_f32_16x16x32_bf16 v[{d}:{d+3}], v[{w+4*ft}:{w+4*ft+3}], v[{x}:{x+3}], v[{d}:{d+3}]")
                else:
                    a(f"v_mfma_f32_32x32x16_bf16 {D}, v[{w+4*ft}:{w+4*ft+3}], v[{x}:{x+3}], {D}")
            for _ in range(2):
                if nx[0] <= s + XD and nx[0] < 40:
                    self.xload(nx[0]); nx[0] += 1
            if s == 2 and pre_dma < 3: self.dma_stage(2)
            if s == 6 and hook: hook()
        stamp(a, 6)
        a("s_setprio 3")
        a("s_mul_i32 s50, s26, 96")
        a("s_mul_i32 s3, s24, 3")
        a("s_add_u32 s50, s50, s3")
        a("s_lshl_b32 s50, s50, 10")
        a(f"s_add_u32 s50, s50, {WS_H}")
        a(f"s_mov_b32 s52, {f2hex(-1.4426950408889634)}")
        a("s_mov_b32 s53, s52")
        a("s_mov_b32 s54, 1.0")
        a("s_mov_b32 s55, 1.0")
        a("s_nop 1")
        T = XF
        for ft in range(3):
            g = ACC + 16 * ft; u = g + 8
            for i in range(0, 8, 2):
                a(f"v_pk_mul_f32 v[{T+i}:{T+i+1}], v[{g+i}:{g+i+1}], s[52:53]")
            for i in range(8):
                a(f"v_exp_f32 v{T+i}, v{T+i}")
            for i in range(0, 8, 2):
                a(f"v_pk_add_f32 v[{T+i}:{T+i+1}], v[{T+i}:{T+i+1}], s[54:55]")
            for i in range(8):
                a(f"v_rcp_f32 v{T+i}, v{T+i}")
            for i in range(0, 8, 2):
                a(f"v_pk_mul_f32 v[{g+i}:{g+i+1}], v[{g+i}:{g+i+1}], v[{u+i}:{u+i+1}]")
            for i in range(0, 8, 2):
                a(f"v_pk_mul_f32 v[{g+i}:{g+i+1}], v[{g+i}:{g+i+1}], v[{T+i}:{T+i+1}]")
            for i in range(4):
                a(f"v_cvt_pk_bf16_f32 v{g+i}, v{g+2*i}, v{g+2*i+1}")
            a(f"buffer_store_dwordx4 v[{g}:{g+3}], v9, s[32:35], s50 offen offset:{1024*ft}{cfg.sc}")
        stamp(a, 7)

class GU16(GU):
    def setup(self):
        a = self.a
        GU.setup(self)
        a("v_lshrrev_b32 v10, 4, v2")
        a("v_and_b32 v11, 15, v2")
        a("v_lshlrev_b32 v3, 4, v11")
        a("v_lshl_add_u32 v3, v10, 9, v3")
        a("v_and_b32 v12, 1, v10")
        a("v_lshlrev_b32 v14, 4, v11")
        a("v_lshl_add_u32 v14, v12, 9, v14")
        a("v_lshrrev_b32 v13, 5, v2")
        a("v_lshl_add_u32 v14, v13, 8, v14")
        a("v_bfe_u32 v8, v2, 2, 2")
        a("v_lshl_add_u32 v8, v10, 3, v8")
        a("v_lshl_add_u32 v7, v12, 2, v8")
        a("v_xor_b32 v8, 4, v7")
        a("v_and_b32 v10, 3, v2")
        a("v_lshlrev_b32 v10, 3, v10")
        a("s_movk_i32 s3, 96")
        a("v_mad_u32_u24 v7, v7, s3, v10")
        a("v_mad_u32_u24 v8, v8, s3, v10")
        a(f"v_add_u32 v12, {2*GU_BUF}, v7")
        a(f"v_add_u32 v13, {2*GU_BUF}, v8")
    def xload(self, k):
        r = self.XF + 8 * (k % 4)
        for th in range(2):
            self.vm.issue(f"buffer_load_dwordx4 v[{r+4*th}:{r+4*th+3}], v3, s[32:35], s40 offen offset:{2048*(k%2) + 256*th}{cfg.sc}", ("X", k))
        if k % 2 == 1: self.a("s_add_u32 s40, s40, 4096")
    def main(self, pre_dma, hook=None):
        a, vm, ACC, XF, WF = self.a, self.vm, self.ACC, self.XF, self.WF
        self.dma_stage(0)
        self.xload(0); self.xload(1)
        a("s_barrier")
        self.xload(2); self.xload(3)
        self.dma_stage(1)
        def reads(s):
            st, sp, reg = s // 8, (s % 8) // 2, s % 2
            w = WF + 12 * (s % 2)
            buf = st % 3
            bo = (0 if buf == 2 else buf * GU_BUF) + reg * GU_UP + 32 * sp * 96
            for ft in range(3):
                for u in range(2):
                    base = (12 if buf == 2 else 7) + u
                    a(f"ds_read_b64_tr_b16 v[{w+4*ft+2*u}:{w+4*ft+2*u+1}], v{base} offset:{bo + 32*ft}")
        def pre(s):
            if s % 8 == 0:
                st = s // 8
                vm.wait(lambda t: t == ("W", st), "lgkmcnt(0)" if s else "")
                a("s_barrier")
                if st in (0, 2, 4): stamp(a, 3 + st // 2)
                if st >= 1 and st + 2 < 5:
                    self.dma_stage(st + 2)
        pre(0); reads(0)
        for s in range(40):
            k = s // 2
            lg = "lgkmcnt(6)" if s + 1 < 40 else "lgkmcnt(0)"
            if s + 1 < 40:
                pre(s + 1); reads(s + 1)
            vm.wait(lambda t: t == ("X", k), lg)
            w = WF + 12 * (s % 2)
            x = XF + 8 * (k % 4)
            for ft in range(3):
                for th in range(2):
                    d = ACC + 16 * ft + 8 * (s % 2) + 4 * th
                    a(f"v_mfma_f32_16x16x32_bf16 v[{d}:{d+3}], v[{w+4*ft}:{w+4*ft+3}], v[{x+4*th}:{x+4*th+3}], v[{d}:{d+3}]")
            if s % 2 == 1 and k + 4 < 20: self.xload(k + 4)
            if s == 2: self.dma_stage(2)
            if s == 6 and hook: hook()
        stamp(a, 6)
        a("s_setprio 3")
        a("s_mul_i32 s50, s26, 96")
        a("s_mul_i32 s3, s24, 3")
        a("s_add_u32 s50, s50, s3")
        a("s_lshl_b32 s50, s50, 10")
        a(f"s_add_u32 s50, s50, {WS_H}")
        a(f"s_mov_b32 s52, {f2hex(-1.4426950408889634)}")
        a("s_mov_b32 s53, s52")
        a("s_mov_b32 s54, 1.0")
        a("s_mov_b32 s55, 1.0")
        T = XF
        for ft in range(3):
            g = ACC + 16 * ft; u = g + 8
            for i in range(0, 8, 2):
                a(f"v_pk_mul_f32 v[{T+i}:{T+i+1}], v[{g+i}:{g+i+1}], s[52:53]")
            for i in range(8):
                a(f"v_exp_f32 v{T+i}, v{T+i}")
            for i in range(0, 8, 2):
                a(f"v_pk_add_f32 v[{T+i}:{T+i+1}], v[{T+i}:{T+i+1}], s[54:55]")
            for i in range(8):
                a(f"v_rcp_f32 v{T+i}, v{T+i}")
            for i in range(0, 8, 2):
                a(f"v_pk_mul_f32 v[{g+i}:{g+i+1}], v[{g+i}:{g+i+1}], v[{u+i}:{u+i+1}]")
            for i in range(0, 8, 2):
                a(f"v_pk_mul_f32 v[{g+i}:{g+i+1}], v[{g+i}:{g+i+1}], v[{T+i}:{T+i+1}]")
            for i in range(4):
                a(f"v_cvt_pk_bf16_f32 v{g+i}, v{g+2*i}, v{g+2*i+1}")
            a("s_nop 1")
            a(f"v_permlane32_swap_b32 v{g}, v{g+2}")
            a(f"v_permlane32_swap_b32 v{g+1}, v{g+3}")
            a(f"buffer_store_dwordx4 v[{g}:{g+3}], v14, s[32:35], s50 offen offset:{1024*ft}{cfg.sc}")
        stamp(a, 7)

def fin_decode(a):
    a("s_and_b32 s3, s2, 255")
    a("s_and_b32 s24, s3, 7")
    a("s_lshr_b32 s26, s3, 3")
    a("s_lshr_b32 s27, s24, 1")
    a("s_lshl_b32 s27, s27, 3")
    a("s_and_b32 s3, s26, 7")
    a("s_add_u32 s27, s27, s3")
    a("s_and_b32 s24, s24, 1")
    a("s_lshl_b32 s24, s24, 2")
    a("s_lshr_b32 s26, s26, 3")
    a("s_add_u32 s24, s24, s26")

class FIN:
    ACC, XF, WF = 16, 56, 88
    DV = [4, 5, 6, 7, 8]
    TD, TM, TR = 11, 12, 13
    def __init__(self, a):
        self.a = a; self.vm = VM(a); self.q = [[], []]
    def zero_acc(self):
        for i in range(40):
            self.a(f"v_mov_b32 v{self.ACC+i}, 0")
    def setup(self, zero_acc=True):
        a = self.a
        srd(a, 28, S_WD, 1966080)
        srd(a, 36, S_WO, 819200)
        a("s_and_b32 s46, s25, 1")
        a("s_lshr_b32 s47, s25, 1")
        a("s_lshl_b32 s26, s27, 1")
        a("s_add_u32 s26, s26, s46")
        a("s_lshl_b32 s3, s47, 11")
        a("s_mul_i32 s40, s26, 98304")
        a("s_add_u32 s40, s40, s3")
        a(f"s_add_u32 s40, s40, {WS_H}")
        a("s_mul_i32 s43, s26, 40960")
        a("s_add_u32 s43, s43, s3")
        a(f"s_add_u32 s43, s43, {WS_O}")
        a("s_mul_i32 s41, s24, 160")
        a("s_mul_i32 s3, s25, 40960")
        a("s_add_u32 s41, s41, s3")
        a("s_mov_b32 s44, s41")
        a("s_mul_i32 s49, s25, 5120")
        a("s_and_b32 s3, s25, 3")
        a("s_mul_i32 s42, s3, 5120")
        a("s_lshr_b32 s48, s25, 2")
        a("v_lshrrev_b32 v10, 4, v2")
        a("v_and_b32 v14, 15, v2")
        a("v_lshlrev_b32 v3, 4, v14")
        a("v_lshl_add_u32 v3, v10, 9, v3")
        a("s_movk_i32 s3, 1280")
        for b in range(5):
            a(f"v_add_u32 v11, {64*b}, v2")
            a("v_mul_u32_u24 v12, 6554, v11")
            a("v_lshrrev_b32 v12, 16, v12")
            a("v_mul_u32_u24 v13, 10, v12")
            a("v_sub_u32 v13, v11, v13")
            a("v_lshlrev_b32 v13, 4, v13")
            a(f"v_mad_u32_u24 v{self.DV[b]}, v12, s3, v13")
        a("s_lshl_b32 s45, s26, 5")
        a("v_add_u32 v14, s45, v14")
        a("v_mul_u32_u24 v14, 1280, v14")
        a("v_lshl_add_u32 v14, v10, 3, v14")
        a("s_mul_i32 s45, s24, 160")
        a("v_add_u32 v14, s45, v14")
        a("v_bfe_u32 v10, v2, 2, 2")
        a("v_bfe_u32 v15, v2, 4, 1")
        a("v_lshrrev_b32 v1, 5, v2")
        a("v_and_b32 v0, 3, v2")
        a("v_lshlrev_b32 v0, 3, v0")
        a("s_movk_i32 s3, 160")
        a(f"v_lshl_add_u32 v{self.TD}, v1, 4, v10")
        a(f"v_lshl_add_u32 v{self.TD}, v15, 2, v{self.TD}")
        a(f"v_mad_u32_u24 v{self.TD}, v{self.TD}, s3, v0")
        a("s_mul_i32 s45, s47, 5120")
        a(f"v_add_u32 v{self.TD}, s45, v{self.TD}")
        a(f"v_mul_u32_u24 v{self.TM}, 20, v1")
        a(f"v_lshl_add_u32 v{self.TM}, v15, 2, v{self.TM}")
        a(f"v_add_u32 v{self.TM}, v{self.TM}, v10")
        a(f"v_mad_u32_u24 v{self.TM}, v{self.TM}, s3, v0")
        a("s_mul_i32 s45, s47, 6400")
        a(f"v_add_u32 v{self.TM}, s45, v{self.TM}")
        a(f"v_mul_u32_u24 v{self.TR}, 80, v1")
        a("v_mul_u32_u24 v15, 20, v15")
        a(f"v_add3_u32 v{self.TR}, v{self.TR}, v15, v10")
        a(f"v_mad_u32_u24 v{self.TR}, v{self.TR}, s3, v0")
        a(f"v_add_u32 v{self.TR}, {16*160}, v{self.TR}")
        if zero_acc: self.zero_acc()
    def dma_wd(self, m):
        a = self.a
        L = uid("L_dwd")
        a(f"s_cmp_lg_u32 s48, {m % 2}")
        a(f"s_cbranch_scc1 {L}")
        for b in range(5):
            a(f"s_add_u32 m0, s42, {(m % 4) * 20480 + 1024 * b}")
            a("s_nop 0")
            a(f"buffer_load_dwordx4 v{self.DV[b]}, s[28:31], s41 offen lds")
        a(f"s_add_u32 s41, s41, {256*1280}")
        a.label(L)
        self.q[m % 2] += [("W", m)] * 5
    def hload(self, m):
        r = self.XF + 8 * (m % 4)
        for th in range(2):
            self.a(f"buffer_load_dwordx4 v[{r+4*th}:{r+4*th+3}], v3, s[32:35], s40 offen offset:{256*th}{cfg.sc}")
            for q in self.q: q.append(("X", m))
        self.a("s_add_u32 s40, s40, 8192")
    def wait2(self, preds, extra=""):
        n = 63
        for q in self.q:
            last = max([i for i, t in enumerate(q) if t in preds], default=-1)
            if last >= 0: n = min(n, len(q) - 1 - last)
        if n == 63:
            if extra: self.a(f"s_waitcnt {extra}")
            return
        self.a(f"s_waitcnt vmcnt({n}) {extra}".strip())
        self.q = [q[len(q) - n:] if n > 0 else [] for q in self.q]
    def wreads(self, w, base, off, ustep):
        for ft in range(5):
            for u in range(2):
                self.a(f"ds_read_b64_tr_b16 v[{w+4*ft+2*u}:{w+4*ft+2*u+1}], v{base} offset:{off + ustep*u + 32*ft}")
    def mfmas(self, w, x):
        for ft in range(5):
            for th in range(2):
                d = self.ACC + 4 * (5 * th + ft)
                self.a(f"v_mfma_f32_16x16x32_bf16 v[{d}:{d+3}], v[{w+4*ft}:{w+4*ft+3}], v[{x+4*th}:{x+4*th+3}], v[{d}:{d+3}]")
    def down(self, npre=4):
        a = self.a
        for m in range(2): self.hload(m)
        nw = npre
        nh = 2
        TD2 = 15
        a(f"v_add_u32 v{TD2}, 40960, v{self.TD}")
        def reads(m):
            base = self.TD if (m % 4) < 2 else TD2
            self.wreads(self.WF + 20 * (m % 2), base, (m % 2) * 20480, 1280)
        self.wait2([("W", 0)])
        a("s_barrier")
        if not os.environ.get("GSTAMP"): stamp(a, 9)
        reads(0)
        for m in range(12):
            if m + 1 < 12:
                self.wait2([("W", m + 1)], "lgkmcnt(0)")
                a("s_barrier")
                reads(m + 1)
                for _ in range(2):
                    if nw <= m + 4 and nw < 12:
                        self.dma_wd(nw); nw += 1
                if m == 9:
                    a("s_waitcnt vmcnt(0)")
                    self.q = [[], []]
                    self.wo_dma((0, 8), 0, 0)
                if m == 10:
                    self.wo_dma((0, 4), 8, 8)
                self.wait2([("X", m)])
            else:
                self.wait2([("X", m)], "lgkmcnt(0)")
            self.mfmas(self.WF + 20 * (m % 2), self.XF + 8 * (m % 4))
            for _ in range(2):
                if nh <= m + 4 and nh < 12:
                    self.hload(nh); nh += 1
        if not os.environ.get("GSTAMP"): stamp(a, 10)
    def wo_dma(self, cond, first_group, lds_group):
        a = self.a
        lo, hi = cond
        L = uid("L_wod")
        if lo > 0:
            a(f"s_cmp_lt_u32 s25, {lo}")
            a(f"s_cbranch_scc1 {L}")
        if hi < 8:
            a(f"s_cmp_ge_u32 s25, {hi}")
            a(f"s_cbranch_scc1 {L}")
        a(f"s_add_u32 s3, s44, {(first_group - lo) * 32 * 1280}")
        for b in range(5):
            a(f"s_add_u32 m0, s49, {(lds_group - lo) * 5120 + 1024 * b}")
            a("s_nop 0")
            a(f"buffer_load_dwordx4 v{self.DV[b]}, s[36:39], s3 offen lds")
        a.label(L)
    def wo_prefetch(self):
        a = self.a
        a("s_waitcnt vmcnt(5)")
        a("s_cmp_lt_u32 s25, 4")
        a("s_cbranch_scc1 L_fin_p0")
        a("s_waitcnt vmcnt(0)")
        a.label("L_fin_p0")
        a("s_barrier")
        self.wo_dma((4, 7), 12, 12)
        self.wreads(self.WF + 20, self.TM, 0, 1280)
        a("s_cmp_lg_u32 s47, 0")
        a("s_cbranch_scc1 L_fin_p1")
        self.wreads(self.WF, self.TR, 0, 6400)
        a.label("L_fin_p1")
        a("s_cmp_eq_u32 s47, 3")
        a("s_cselect_b32 s3, 0, s47")
        a("s_mul_i32 s3, s3, 25600")
        a(f"v_add_u32 v{self.TR}, s3, v{self.TR}")
        a("s_waitcnt lgkmcnt(0)")
        a("s_barrier")
        self.wo_dma((0, 5), 15, 0)
        srd(a, 28, S_X, 2621440)
        for i in range(3):
            a(f"s_add_u32 s3, s47, {4*i}")
            a("s_cmp_ge_u32 s3, 5")
            a(f"s_cselect_b32 s50, {20480 - 160}, 0")
            a("s_lshl_b32 s51, s3, 5")
            a(f"s_add_u32 s{52+i}, s50, s51")
        a("s_cmp_ge_u32 s47, 2")
        a("s_cselect_b32 s54, s53, s54")
        a("buffer_load_dwordx2 v[0:1], v14, s[28:31], s52 offen")
    def wo_main(self):
        a, vm = self.a, self.vm
        vm.q = []
        XS = {4: 56, 0: 64, 1: 72, 2: 80, 3: 4}
        def oload(rd):
            a(f"s_add_u32 s3, s43, {8192*rd}")
            for th in range(2):
                r = XS[rd] + 4 * th
                vm.issue(f"buffer_load_dwordx4 v[{r}:{r+3}], v3, s[32:35], s3 offen offset:{256*th}{cfg.sc}", ("X", rd))
        for rd in (4, 0, 1, 2, 3): oload(rd)
        srd(a, 36, S_OUT, 2621440)
        A, B = self.WF, self.WF + 20
        a("s_cmp_eq_u32 s47, 0")
        a("s_cbranch_scc1 L_fin_r4")
        self.wreads(A, self.TR, 0, 6400)
        a.label("L_fin_r4")
        vm.wait(lambda t: t == ("X", 4), "lgkmcnt(0)")
        if os.environ.get("TAILSTAMP"): stamp(a, 1)
        self.mfmas(A, XS[4])
        self.wreads(A, self.TM, 160 * 160, 1280)
        vm.wait(lambda t: t == ("X", 0))
        self.mfmas(B, XS[0])
        self.wreads(B, self.TM, 320 * 160, 1280)
        vm.wait(lambda t: t == ("X", 1), "lgkmcnt(10)")
        self.mfmas(A, XS[1])
        self.wreads(A, self.TM, 0, 1280)
        vm.wait(lambda t: t == ("X", 2), "lgkmcnt(10)")
        self.mfmas(B, XS[2])
        for i in range(1, 3):
            vm.issue(f"buffer_load_dwordx2 v[{56+2*i}:{57+2*i}], v14, s[28:31], s{52+i} offen", ("R", i))
        vm.wait(lambda t: t == ("X", 3), "lgkmcnt(0)")
        a("s_barrier")
        self.mfmas(A, XS[3])
        if not os.environ.get("GSTAMP"): stamp(a, 12)
        a("v_lshlrev_b32 v9, 4, v2")
        a("s_mul_i32 s3, s25, 10240")
        a("v_add_u32 v10, s3, v9")
        for j in range(10):
            a(f"ds_write_b128 v10, v[{self.ACC+4*j}:{self.ACC+4*j+3}] offset:{1024*j}")
        a("s_mul_i32 s3, s46, 10240")
        a("s_lshl_b32 s50, s47, 10")
        a("s_add_u32 s3, s3, s50")
        a("v_add_u32 v10, s3, v9")
        a("s_waitcnt lgkmcnt(0)")
        if os.environ.get("TAILSTAMP"): stamp(a, 3)
        a("s_barrier")
        if os.environ.get("TAILSTAMP"): stamp(a, 4)
        R = 64
        for i in range(3):
            if i == 2:
                a("s_cmp_ge_u32 s47, 2")
                a("s_cbranch_scc1 L_fin_r2")
            for k in range(4):
                r = R + 16 * i + 4 * k
                off = 20480 * k + 4096 * i
                if off < 65536:
                    a(f"ds_read_b128 v[{r}:{r+3}], v10 offset:{off}")
                else:
                    a(f"v_add_u32 v11, 0x10000, v10")
                    a(f"ds_read_b128 v[{r}:{r+3}], v11 offset:{off-65536}")
        a.label("L_fin_r2")
        a("s_waitcnt vmcnt(0) lgkmcnt(0)")
        if os.environ.get("TAILSTAMP"): stamp(a, 5)
        for i in range(3):
            r = R + 16 * i; xr = 0 if i == 0 else 56 + 2 * i
            if i == 2:
                a("s_cmp_ge_u32 s47, 2")
                a("s_cbranch_scc1 L_fin_end")
            a(f"v_lshlrev_b32 v4, 16, v{xr}")
            a(f"v_and_b32 v5, 0xffff0000, v{xr}")
            a(f"v_lshlrev_b32 v6, 16, v{xr+1}")
            a(f"v_and_b32 v7, 0xffff0000, v{xr+1}")
            for h in range(2):
                a(f"v_pk_add_f32 v[{r+2*h}:{r+2*h+1}], v[{r+2*h}:{r+2*h+1}], v[{r+4+2*h}:{r+5+2*h}]")
                a(f"v_pk_add_f32 v[{r+8+2*h}:{r+9+2*h}], v[{r+8+2*h}:{r+9+2*h}], v[{r+12+2*h}:{r+13+2*h}]")
                a(f"v_pk_add_f32 v[{r+2*h}:{r+2*h+1}], v[{r+2*h}:{r+2*h+1}], v[{4+2*h}:{5+2*h}]")
                a(f"v_pk_add_f32 v[{r+2*h}:{r+2*h+1}], v[{r+2*h}:{r+2*h+1}], v[{r+8+2*h}:{r+9+2*h}]")
            a(f"v_cvt_pk_bf16_f32 v{r}, v{r}, v{r+1}")
            a(f"v_cvt_pk_bf16_f32 v{r+1}, v{r+2}, v{r+3}")
            a(f"buffer_store_dwordx2 v[{r}:{r+1}], v14, s[36:39], s{52+i} offen{os.environ.get('OUTSC', '')}")
        a.label("L_fin_end")
        if os.environ.get("TAILSTAMP"): stamp(a, 6)

WS_ST = 0x1480000
def qkv2_decode(a):
    a("s_and_b32 s24, s2, 7")
    a("s_lshr_b32 s26, s2, 3")
    a("s_mul_i32 s24, s24, 30")
    a("s_add_u32 s27, s24, s26")
    a("s_cmp_ge_u32 s27, 80")
    a("s_cselect_b32 s24, 1, 0")
    a("s_cmp_ge_u32 s27, 160")
    a("s_cselect_b32 s24, 2, s24")
    a("s_mul_i32 s26, s24, 80")
    a("s_sub_u32 s27, s27, s26")
    a("s_mul_i32 s26, s27, 205")
    a("s_lshr_b32 s26, s26, 10")
    a("s_mul_i32 s3, s26, 5")
    a("s_sub_u32 s27, s27, s3")
    a("s_mul_i32 s47, s24, 5")
    a("s_add_u32 s47, s47, s27")
    a("s_lshl_b32 s46, s47, 4")
    a("s_add_u32 s46, s46, s26")

def qkv2(a, nonce_check):
    ACC, XF, WF, CS, SEL, AD = 16, 48, 64, 72, 76, 80
    XA0, XA1, TW, DX, DW = 3, 4, 5, 6, 7
    NSL, RING = 20, 4
    L_CS, L_ST = 65536, 65536 + 1024
    vm = VM(a)
    srd(a, 28, S_WQKV, 2457600)
    srd(a, 36, S_X, 2621440)
    a("v_lshrrev_b32 v10, 2, v2")
    a("s_lshl_b32 s3, s25, 4")
    a("v_add_u32 v10, s3, v10")
    a("v_mul_u32_u24 v10, 1280, v10")
    a("v_lshrrev_b32 v11, 4, v2")
    a("v_and_b32 v12, 3, v2")
    a("v_xor_b32 v13, v12, v11")
    a(f"v_lshl_add_u32 v{DX}, v13, 4, v10")
    a("s_lshl_b32 s3, s25, 2")
    a("v_add_u32 v10, s3, v11")
    a("v_mul_u32_u24 v10, 3840, v10")
    a("v_bfe_u32 v13, v2, 2, 2")
    a("v_xor_b32 v13, v13, v11")
    a("v_lshl_add_u32 v10, v13, 6, v10")
    a(f"v_lshl_add_u32 v{DW}, v12, 4, v10")
    a("s_mul_i32 s40, s26, 163840")
    a("s_lshl_b32 s41, s47, 8")
    a("s_lshl_b32 s42, s25, 10")
    def dma(sl):
        base = (sl % RING) * 16384
        a(f"s_add_u32 m0, s42, {base}")
        a("s_nop 0")
        vm.issue(f"buffer_load_dwordx4 v{DX}, s[36:39], s40 offen lds", ("S", sl))
        a(f"s_add_u32 m0, s42, {base + 8192}")
        a("s_add_u32 s40, s40, 64")
        vm.issue(f"buffer_load_dwordx4 v{DW}, s[28:31], s41 offen lds", ("S", sl))
        a(f"s_add_u32 s41, s41, {32*3840}")
    for sl in range(RING): dma(sl)
    stamp(a, 1)
    a("s_lshr_b32 s48, s25, 2")
    a("s_and_b32 s49, s25, 3")
    a("v_and_b32 v10, 31, v2")
    a("v_lshrrev_b32 v8, 5, v2")
    a("v_bfe_u32 v11, v2, 2, 2")
    a("v_xor_b32 v12, v8, v11")
    a("v_lshlrev_b32 v13, 6, v10")
    a("s_lshl_b32 s3, s48, 12")
    a("v_add_u32 v13, s3, v13")
    a(f"v_lshl_add_u32 v{XA0}, v12, 4, v13")
    a(f"v_xor_b32 v{XA1}, 32, v{XA0}")
    a("v_lshl_add_u32 v12, v8, 3, v11")
    a("v_lshlrev_b32 v12, 8, v12")
    a("v_xor_b32 v13, s49, v11")
    a("v_lshl_add_u32 v12, v13, 6, v12")
    a("v_bfe_u32 v13, v2, 4, 1")
    a("v_lshl_add_u32 v12, v13, 5, v12")
    a("v_add_u32 v12, 8192, v12")
    a("v_and_b32 v14, 15, v2")
    a("v_cmp_eq_u32 vcc, v14, v13")
    a("v_mov_b32 v14, 0x3f803f80")
    for i in range(32): a(f"v_mov_b32 v{ACC+i}, 0")
    a("v_cndmask_b32 v14, 0, v14, vcc")
    for i in range(4):
        a(f"v_mov_b32 v{SEL+i}, v14")
        a(f"v_mov_b32 v{CS+i}, 0")
    a("s_lshl_b32 s3, s26, 8")
    a(f"s_add_u32 s50, s3, {F_XN}")
    a("v_lshlrev_b32 v15, 3, v10")
    a("s_lshl_b32 s51, s26, 10")
    a(f"s_add_u32 s51, s51, {WS_ST}")
    a("s_lshl_b32 s43, s26, 2")
    a("s_lshl_b32 s3, s48, 1")
    a("s_add_u32 s43, s43, s3")
    a("s_cmp_eq_u32 s24, 2")
    a("s_cbranch_scc1 L_q2_V")
    a("v_and_b32 v13, 1, v2")
    a("v_lshl_add_u32 v12, v13, 4, v12")
    a("v_bfe_u32 v13, v2, 1, 1")
    a(f"v_lshl_add_u32 v{TW}, v13, 3, v12")
    a("s_lshl_b32 s45, s43, 10")
    a(f"s_add_u32 s45, s45, {WS_QM}")
    a("s_lshl_b32 s44, s43, 8")
    a(f"s_add_u32 s44, s44, {WS_QR}")
    a("s_mov_b32 s52, 65536")
    a("s_mov_b32 s53, 16384")
    a("s_movk_i32 s54, 1024")
    a("s_movk_i32 s55, 256")
    a(f"s_mov_b32 s63, {f2hex(QSCALE)}")
    a("s_cmp_eq_u32 s24, 0")
    a("s_cbranch_scc1 L_q2_isq")
    a("s_mul_i32 s45, s43, 2560")
    a(f"s_add_u32 s45, s45, {WS_KV}")
    a("s_add_u32 s44, s45, 1024")
    a("s_mov_b32 s52, 163840")
    a("s_mov_b32 s53, 163840")
    a("s_movk_i32 s54, 2560")
    a("s_movk_i32 s55, 2560")
    a("s_mov_b32 s63, 1.0")
    a.label("L_q2_isq")
    a("s_lshl_b32 s3, s27, 2")
    a("s_add_u32 s3, s3, s49")
    a("s_lshl_b32 s3, s3, 2")
    a("v_add_u32 v11, s3, v8")
    a("v_lshl_add_u32 v12, v10, 4, s45")
    a("v_lshl_add_u32 v13, v10, 3, s44")
    for q in range(2):
        a(f"v_add_u32 v14, {2*q}, v11")
        a("v_mul_u32_u24 v1, 205, v14")
        a("v_lshrrev_b32 v1, 10, v1")
        a("v_mul_u32_u24 v0, 5, v1")
        a("v_sub_u32 v14, v14, v0")
        a("v_lshlrev_b32 v1, 1, v1")
        a("v_mul_lo_u32 v0, v1, s53")
        a(f"v_add_u32 v{AD+3*q+1}, v0, v13")
        a(f"v_add_u32 v{AD+3*q+2}, s53, v{AD+3*q+1}")
        a("v_cmp_lt_u32 vcc, 2, v14")
        a("v_subrev_u32 v0, 3, v14")
        a("s_nop 0")
        a("v_addc_co_u32 v1, s[86:87], 0, v1, vcc")
        a("v_cndmask_b32 v0, v14, v0, vcc")
        a("v_mul_lo_u32 v1, v1, s52")
        a("v_lshl_add_u32 v0, v0, 9, v12")
        a("v_add_u32 v0, v0, v1")
        a("v_cmp_eq_u32 vcc, 2, v14")
        a(f"v_mov_b32 v1, {OOB - 0x100000}")
        a("s_nop 0")
        a(f"v_cndmask_b32 v{AD+3*q}, v0, v1, vcc")
        a(f"v_cndmask_b32 v{AD+3*q+1}, v1, v{AD+3*q+1}, vcc")
        a(f"v_cndmask_b32 v{AD+3*q+2}, v1, v{AD+3*q+2}, vcc")

    def loop(vtype):
        vq = list(vm.q)
        def reads(s):
            sl, sp = s // 2, s % 2
            base = (sl % RING) * 16384
            x = XF + 8 * (s % 2); w = WF + 4 * (s % 2)
            xa = XA1 if sp else XA0
            a(f"ds_read_b128 v[{x}:{x+3}], v{xa} offset:{base}")
            a(f"ds_read_b64_tr_b16 v[{w}:{w+1}], v{TW} offset:{base + 16*sp*256}")
            a(f"ds_read_b64_tr_b16 v[{w+2}:{w+3}], v{TW} offset:{base + (16*sp+4)*256}")
            a(f"ds_read_b128 v[{x+4}:{x+7}], v{xa} offset:{base + 2048}")
        def pre(s):
            if s % 2: return
            sl = s // 2
            vm.wait(lambda t: t == ("S", sl), "lgkmcnt(0)" if s else "")
            a("s_barrier")
            if sl in (0, 10): stamp(a, 2 if sl == 0 else 3)
            if PROFILE and os.environ.get("SLOTTRACE") and sl % 2 == 0 or (PROFILE and os.environ.get("SLOTTRACE") and sl > 14):
                a("s_memtime s[84:85]")
                a("s_waitcnt lgkmcnt(0)")
                a("s_sub_u32 s84, s84, s64")
                a(f"v_writelane_b32 v120, s84, {sl // 2 if sl <= 14 else sl - 7}")
            if sl >= 1 and sl - 1 + RING < NSL: dma(sl - 1 + RING)
            if cfg.fused:
                if sl == 6:
                    a("v_mov_b32 v0, 0")
                    vm.issue("buffer_load_dwordx2 v[88:89], v0, s[56:59], 0 offen sc1", ("N", 0))
                if sl == 11:
                    vm.wait(lambda t: t == ("N", 0))
                    nonce_check(88)
                    vm.issue("buffer_load_dwordx2 v[88:89], v15, s[32:35], s50 offen sc1", ("F", 0))
                if sl == 15:
                    vm.wait(lambda t: t == ("F", 0))
                    L = uid("L_q2f")
                    a("v_cmp_ne_u64 vcc, s[60:61], v[88:89]")
                    a(f"s_cbranch_vccz {L}")
                    a("v_add_u32 v0, s50, v15")
                    poll(a, 0, 88)
                    a.label(L)
            if sl == 15:
                a(f"s_mov_b32 m0, {L_ST}")
                a("s_nop 0")
                vm.issue(f"buffer_load_dwordx4 v9, s[32:35], s51 offen{cfg.sc} lds", ("T", 0))
        pre(0); reads(0)
        for s in range(2 * NSL):
            if s + 1 < 2 * NSL:
                pre(s + 1); reads(s + 1)
                a("s_waitcnt lgkmcnt(4)")
            else:
                a("s_waitcnt lgkmcnt(0)")
            x = XF + 8 * (s % 2); w = WF + 4 * (s % 2)
            for j in range(2):
                W = f"v[{w}:{w+3}]"; X = f"v[{x+4*j}:{x+4*j+3}]"
                A, B = (X, W) if vtype else (W, X)
                D = f"v[{ACC+16*j}:{ACC+16*j+15}]"
                a(f"v_mfma_f32_32x32x16_bf16 {D}, {A}, {B}, {D}")
            L = uid("L_q2s")
            a(f"s_cmp_lg_u32 s48, {s % 2}")
            a(f"s_cbranch_scc1 {L}")
            a(f"v_mfma_f32_16x16x32_bf16 v[{CS}:{CS+3}], v[{w}:{w+3}], v[{SEL}:{SEL+3}], v[{CS}:{CS+3}]")
            a.label(L)
        stamp(a, 6)
        if qkv_hook: qkv_hook()
        a("v_and_b32 v0, 15, v2")
        a("v_lshrrev_b32 v1, 4, v2")
        a("v_lshlrev_b32 v1, 4, v1")
        a("v_lshl_add_u32 v1, v0, 6, v1")
        a("s_lshl_b32 s3, s25, 7")
        a(f"s_add_u32 s3, s3, {L_CS}")
        a("v_add_u32 v1, s3, v1")
        a("v_cmp_gt_u32 vcc, 2, v0")
        a("s_nop 1")
        a("s_mov_b64 exec, vcc")
        a(f"ds_write_b128 v1, v[{CS}:{CS+3}]")
        a("s_mov_b64 exec, -1")
        vm.wait(lambda t: t == ("T", 0), "lgkmcnt(0)")
        a("s_barrier")
        vm.q = vq
    loop(False)
    C0, C1, MR = 48, 64, 88
    a("s_lshl_b32 s3, s49, 7")
    a(f"s_add_u32 s3, s3, {L_CS}")
    a("v_lshl_add_u32 v0, v8, 4, s3")
    for g in range(4):
        a(f"ds_read_b128 v[{C0+4*g}:{C0+4*g+3}], v0 offset:{32*g}")
        a(f"ds_read_b128 v[{C1+4*g}:{C1+4*g+3}], v0 offset:{512 + 32*g}")
    a("s_lshl_b32 s3, s48, 8")
    a(f"s_add_u32 s3, s3, {L_ST}")
    a("v_lshl_add_u32 v1, v10, 2, s3")
    for j in range(2):
        a(f"ds_read_b32 v{MR+4*j}, v1 offset:{128*j}")
        a(f"ds_read_b32 v{MR+4*j+2}, v1 offset:{512 + 128*j}")
    a("s_waitcnt lgkmcnt(0)")
    for i in range(0, 16, 2):
        a(f"v_pk_add_f32 v[{C0+i}:{C0+i+1}], v[{C0+i}:{C0+i+1}], v[{C1+i}:{C1+i+1}]")
    for j in range(2):
        a(f"v_mov_b32 v{MR+4*j+1}, v{MR+4*j}")
        a(f"v_mul_f32 v{MR+4*j+2}, s63, v{MR+4*j+2}")
        a(f"v_mov_b32 v{MR+4*j+3}, v{MR+4*j+2}")
    for j in range(2):
        for q in range(2):
            r = ACC + 16 * j + 8 * q
            for i in range(0, 8, 2):
                c = C0 + 8 * q + i
                a(f"v_pk_fma_f32 v[{r+i}:{r+i+1}], v[{c}:{c+1}], v[{MR+4*j}:{MR+4*j+1}], v[{r+i}:{r+i+1}]")
            for i in range(0, 8, 2):
                a(f"v_pk_mul_f32 v[{r+i}:{r+i+1}], v[{r+i}:{r+i+1}], v[{MR+4*j+2}:{MR+4*j+3}]")
            for i in range(4):
                a(f"v_cvt_pk_bf16_f32 v{r+i}, v{r+2*i}, v{r+2*i+1}")
            sm, sr_ = ("0", "0") if j == 0 else ("s54", "s55")
            a(f"buffer_store_dwordx4 v[{r}:{r+3}], v{AD+3*q}, s[32:35], {sm} offen{cfg.sc}")
            a(f"buffer_store_dwordx2 v[{r}:{r+1}], v{AD+3*q+1}, s[32:35], {sr_} offen{cfg.sc}")
            a(f"buffer_store_dwordx2 v[{r+2}:{r+3}], v{AD+3*q+2}, s[32:35], {sr_} offen{cfg.sc}")
    a("s_branch L_q2_done")
    a.label("L_q2_V")
    a("v_and_b32 v13, 3, v2")
    a(f"v_lshl_add_u32 v{TW}, v13, 3, v12")
    a("s_mul_i32 s45, s43, 2560")
    a(f"s_add_u32 s45, s45, {WS_KV + 1280}")
    a("s_lshl_b32 s3, s27, 2")
    a("s_add_u32 s3, s3, s49")
    a("s_lshl_b32 s3, s3, 5")
    a("v_add_u32 v13, s3, v10")
    a("v_mul_u32_u24 v11, 320, v8")
    a("v_add_u32 v11, s45, v11")
    a("s_mov_b32 s52, 163840")
    a("v_mul_u32_u24 v14, 3277, v13")
    a("v_lshrrev_b32 v14, 16, v14")
    a("v_mul_u32_u24 v1, 20, v14")
    a("v_sub_u32 v1, v13, v1")
    a("v_lshl_add_u32 v0, v1, 4, v11")
    a("v_mul_lo_u32 v14, v14, s52")
    a(f"v_add_u32 v{AD}, v0, v14")
    loop(True)
    MN, RS = 48, 88
    a("s_lshl_b32 s3, s49, 7")
    a(f"s_add_u32 s3, s3, {L_CS}")
    a("v_lshl_add_u32 v0, v10, 2, s3")
    a("ds_read_b32 v12, v0")
    a("ds_read_b32 v13, v0 offset:512")
    a("s_lshl_b32 s3, s48, 8")
    a(f"s_add_u32 s3, s3, {L_ST}")
    a("v_lshl_add_u32 v1, v8, 4, s3")
    for j in range(2):
        for g in range(4):
            a(f"ds_read_b128 v[{MN+16*j+4*g}:{MN+16*j+4*g+3}], v1 offset:{128*j + 32*g}")
            a(f"ds_read_b128 v[{RS+16*j+4*g}:{RS+16*j+4*g+3}], v1 offset:{512 + 128*j + 32*g}")
    a("s_waitcnt lgkmcnt(15)")
    a("v_add_f32 v12, v12, v13")
    a("v_mov_b32 v13, v12")
    a("s_waitcnt lgkmcnt(0)")
    for j in range(2):
        for gm in range(2):
            r = ACC + 16 * j + 8 * gm
            for i in range(0, 8, 2):
                m = MN + 16 * j + 8 * gm + i
                a(f"v_pk_fma_f32 v[{r+i}:{r+i+1}], v[{m}:{m+1}], v[12:13], v[{r+i}:{r+i+1}]")
            for i in range(0, 8, 2):
                m = RS + 16 * j + 8 * gm + i
                a(f"v_pk_mul_f32 v[{r+i}:{r+i+1}], v[{r+i}:{r+i+1}], v[{m}:{m+1}]")
            for i in range(4):
                a(f"v_cvt_pk_bf16_f32 v{r+i}, v{r+2*i}, v{r+2*i+1}")
            a(f"buffer_store_dwordx4 v[{r}:{r+3}], v{AD}, s[32:35], 0 offen offset:{2560*j + 640*gm}{cfg.sc}")
    a.label("L_q2_done")
    if PROFILE and os.environ.get("SLOTTRACE"):
        a("s_lshl_b32 s84, s2, 4")
        a("s_add_u32 s84, s84, s25")
        a("s_lshl_b32 s84, s84, 6")
        a(f"s_add_u32 s84, s84, {WS_PROF + 0x600000}")
        a("v_lshlrev_b32 v1, 2, v2")
        a("s_mov_b64 exec, 0xffff")
        a("buffer_store_dword v120, v1, s[32:35], s84 offen")
        a("s_mov_b64 exec, -1")
    stamp(a, 7)

def attn_flag_addr2(a, vd):
    a("s_mul_i32 s3, s24, 20")
    a("s_lshr_b32 s26, s3, 7")
    a("s_add_u32 s3, s3, 19")
    a("s_lshr_b32 s3, s3, 7")
    a("s_sub_u32 s3, s3, s26")
    a("v_bfe_u32 v11, v2, 4, 1")
    a("v_mul_u32_u24 v11, 5, v11")
    a("v_lshrrev_b32 v12, 5, v2")
    a("v_mul_lo_u32 v12, v12, s3")
    a("v_add3_u32 v11, v11, v12, s26")
    a("v_add_u32 v11, 5, v11")
    a("v_and_b32 v12, 15, v2")
    a(f"v_lshl_add_u32 v{vd}, v11, 4, v12")
    a(f"v_lshlrev_b32 v{vd}, {FSH}, v{vd}")
    a(f"v_add_u32 v{vd}, {F_QKV}, v{vd}")
    a("v_bfe_u32 v12, v2, 1, 1")
    a("v_mul_lo_u32 v12, v12, s3")
    a("v_add_u32 v12, s26, v12")
    a("v_and_b32 v11, 1, v2")
    a("s_lshl_b32 s3, s27, 1")
    a("v_lshl_add_u32 v12, v12, 4, v11")
    a("v_add_u32 v12, s3, v12")
    a(f"v_lshlrev_b32 v{vd+1}, {FSH}, v12")
    a(f"v_add_u32 v{vd+1}, {F_QKV}, v{vd+1}")

C_XN, C_QKV, C_H, C_O, C_QL = 0, 8, 40, 48, 64
NCNT = 320
def cnt_base(a):
    a(f"s_add_u32 s60, s{S_WS}, {WS_FL}")
    a(f"s_addc_u32 s61, s{S_WS+1}, 0")

def cnt_init(a):
    a("v_lshlrev_b32 v10, 7, v2")
    a("v_mov_b32 v11, 0")
    for i in range(NCNT // 64):
        a(f"s_mov_b32 s62, {WS_FL + i * 8192}")
        a("buffer_store_dword v11, v10, s[32:35], s62 offen sc1")
    srd(a, 56, S_DBG, 256)
    a("v_mov_b32 v10, 1")
    a("s_waitcnt vmcnt(0)")
    a("s_mov_b64 exec, 1")
    a("buffer_store_dword v10, v11, s[56:59], 0 offen sc1")
    a("s_mov_b64 exec, -1")

def go_issue(a, t=10):
    srd(a, 56, S_DBG, 256)
    a(f"v_mov_b32 v{t+1}, 0")
    a(f"buffer_load_dword v{t}, v{t+1}, s[56:59], 0 offen sc1")

def wait_go(a, t=10, issued=False, sleep=1):
    L = uid("L_go")
    a("s_mov_b32 s83, 0x40000")
    if issued:
        a(f"s_branch {L}_chk")
    else:
        srd(a, 56, S_DBG, 256)
        a(f"v_mov_b32 v{t+1}, 0")
    a.label(L)
    a(f"buffer_load_dword v{t}, v{t+1}, s[56:59], 0 offen sc1")
    a.label(L + "_chk")
    a("s_waitcnt vmcnt(0)")
    a(f"v_readfirstlane_b32 s62, v{t}")
    a("s_cmp_lg_u32 s62, 0")
    a(f"s_cbranch_scc1 {L}_ok")
    a(f"s_sleep {sleep}")
    a("s_sub_u32 s83, s83, 1")
    a(f"s_cbranch_scc0 {L}")
    a.label(L + "_ok")

def vpoll(a, offs, target, t=10, sleep=1):
    L = uid("L_vp")
    a(f"v_mov_b32 v{t+1}, s{offs[0]}")
    for i, o in enumerate(offs[1:], 1):
        a(f"v_writelane_b32 v{t+1}, s{o}, {i}")
    a(f"s_mov_b32 s62, {WS_FL}")
    a("s_mov_b32 s83, 0x40000")
    a(f"s_mov_b64 exec, {(1 << len(offs)) - 1}")
    a.label(L)
    a(f"buffer_load_dword v{t}, v{t+1}, s[32:35], s62 offen sc1")
    a("s_waitcnt vmcnt(0)")
    a(f"v_cmp_gt_u32 vcc, {target}, v{t}")
    a(f"s_cbranch_vccz {L}_ok")
    a(f"s_sleep {sleep}")
    a("s_sub_u32 s83, s83, 1")
    a(f"s_cbranch_scc0 {L}")
    a.label(L + "_ok")
    a("s_mov_b64 exec, -1")

def cadd(a, base, idx_sgpr, t=10):
    a(f"s_lshl_b32 s62, s{idx_sgpr}, 7")
    a(f"s_add_u32 s62, s62, {WS_FL + base * 128}")
    a(f"v_mov_b32 v{t}, 1")
    a(f"v_mov_b32 v{t+1}, 0")
    a("s_mov_b64 exec, 1")
    a(f"buffer_atomic_add v{t}, v{t+1}, s[32:35], s62 offen sc1")
    a("s_mov_b64 exec, -1")

def cpoll(a, offs, target, sleep=1):
    L = uid("L_cp")
    a("s_mov_b32 s83, 0x40000")
    a.label(L)
    for i, o in enumerate(offs):
        a(f"s_load_dword s{88+i}, s[60:61], s{o} glc")
    a("s_waitcnt lgkmcnt(0)")
    for i in range(1, len(offs)):
        a(f"s_min_u32 s88, s88, s{88+i}")
    a(f"s_cmp_ge_u32 s88, {target}")
    a(f"s_cbranch_scc1 {L}_ok")
    a(f"s_sleep {sleep}")
    a("s_sub_u32 s83, s83, 1")
    a(f"s_cbranch_scc0 {L}")
    a.label(L + "_ok")
```

```python
import sys, os
sys.path.insert(0, os.path.dirname(__file__))
from common import *
import roles
from roles import *
from gen2 import prologue, flush_attn

HEADER = open(os.path.join(os.path.dirname(__file__), "header.txt")).read()
PRE_DMA = int(os.environ.get("PRE_DMA", "0"))

def get_nonce(a, is_a):
    srd(a, 56, S_DBG, 256)
    L = uid("L_nonce")
    if is_a:
        a("s_add_u32 s3, s2, s25")
        a("s_cmp_lg_u32 s3, 0")
        a(f"s_cbranch_scc1 {L}")
        a("s_memrealtime s[60:61]")
        a("s_waitcnt lgkmcnt(0)")
        a("s_or_b32 s60, s60, 1")
        a("s_xor_b32 s61, s61, 0x9e3779b9")
        a("v_mov_b32 v10, s60")
        a("v_mov_b32 v11, s61")
        a("v_mov_b32 v12, 0")
        a("s_mov_b64 exec, 1")
        a("buffer_store_dwordx2 v[10:11], v12, s[56:59], 0 offen sc1")
        a("s_mov_b64 exec, -1")
    a.label(L)

def wait_nonce(a, first_issued=False):
    L = uid("L_wn")
    a("s_mov_b32 s83, 0x40000")
    if first_issued:
        a(f"s_branch {L}_chk")
    else:
        a("v_mov_b32 v12, 0")
    a.label(L)
    a("buffer_load_dwordx2 v[10:11], v12, s[56:59], 0 offen sc1")
    a.label(L + "_chk")
    a("s_waitcnt vmcnt(0)")
    a("v_readfirstlane_b32 s60, v10")
    a("v_readfirstlane_b32 s61, v11")
    a("s_cmp_lg_u32 s60, 0")
    a(f"s_cbranch_scc1 {L}_ok")
    a("s_sleep 1")
    a("s_sub_u32 s83, s83, 1")
    a(f"s_cbranch_scc0 {L}")
    a.label(L + "_ok")

def flag_addr(a, vd, base, s_first, mask):
    a(f"v_and_b32 v{vd}, {mask}, v2")
    a(f"v_add_u32 v{vd}, s{s_first}, v{vd}")
    a(f"v_lshlrev_b32 v{vd}, {FSH}, v{vd}")
    a(f"v_add_u32 v{vd}, {base}, v{vd}")

def wave0(a, fn):
    L = uid("L_w0")
    a("s_cmp_lg_u32 s25, 0")
    a(f"s_cbranch_scc1 {L}")
    fn()
    a.label(L)

def warm_weights(a, part):
    a("s_sub_u32 s50, s2, 256")
    L = uid("L_warm")
    if part == 0:
        spec = [(S_WQKV, 2457600, 4800, 0), (S_WQKV, 2457600, 4800, 1228800)]
    else:
        spec = [(S_WD, 1966080, 3840, 0), (S_WD, 1966080, 3840, 983040), (S_WO, 819200, 3200, 0)]
    for w, (ptr, size, per, base) in enumerate(spec):
        a(f"s_cmp_lg_u32 s25, {w + 1}")
        a(f"s_cbranch_scc1 {L}_{w}")
        srd(a, 36, ptr, size)
        a(f"s_mul_i32 s51, s50, {per}")
        if base: a(f"s_add_u32 s51, s51, {base}")
        n = (per + 1023) // 1024
        for i in range(n):
            if i == 4: a("s_add_u32 s51, s51, 4096")
            r = 96 + 4 * (i % 8) if part == 0 else 120
            a(f"buffer_load_dwordx4 v[{r}:{r+3}], v9, s[36:39], s51 offen offset:{1024*(i%4)}")
        if part == 0: a("s_waitcnt vmcnt(0)")
        a.label(f"{L}_{w}")

def code_prefetch(a):
    L = uid("L_cpf")
    a("s_cmp_ge_u32 s2, 264")
    a(f"s_cbranch_scc1 {L}")
    a("s_cmp_lg_u32 s25, 7")
    a(f"s_cbranch_scc1 {L}")
    a("s_getpc_b64 s[50:51]")
    a.label(L + "_pc")
    a(f"s_sub_u32 s50, s50, {L}_pc-{NAME}_kernel")
    a("s_subb_u32 s51, s51, 0")
    a(f"s_mov_b32 s52, (L_end-{NAME}_kernel)/1024")
    a("v_mov_b32 v10, v9")
    a.label(L + "_l")
    a("global_load_dwordx4 v[96:99], v10, s[50:51]")
    a("v_add_u32 v10, 1024, v10")
    a("s_sub_u32 s52, s52, 1")
    a("s_cmp_lg_u32 s52, 0")
    a(f"s_cbranch_scc1 {L}_l")
    a("s_waitcnt vmcnt(0)")
    a.label(L)

def gen_fused():
    cfg.fused = True; cfg.sc = " sc1"
    a = Asm()
    prologue(a, 512, "L_end")
    a("s_cmp_ge_u32 s2, 256")
    a("s_cbranch_scc1 L_roleB")
    DRY = int(os.environ.get("DRY", "0"))
    WLATE = int(os.environ.get("WLATE", "1"))
    a("s_cmp_ge_u32 s25, 2")
    a("s_cbranch_scc1 L_a_noln")
    ln_issue(a)
    get_nonce(a, True)
    if not WLATE: a("s_barrier")
    ln_addr(a)
    a("s_waitcnt vmcnt(0)")
    stamp(a, 1)
    a("v_mov_b32 v12, 0")
    a("buffer_load_dwordx2 v[10:11], v12, s[56:59], 0 offen sc1")
    a.label("L_a_lnbody")
    ln_body(a)
    if DRY:
        a("s_cmp_ge_u32 s25, 2")
        a("s_cbranch_scc1 L_a_dry_done")
    ln_store(a)
    if WLATE: a("s_barrier")
    stamp(a, 2)
    wait_nonce(a, first_issued=True)
    stamp(a, 3)
    a("s_lshl_b32 s63, s2, 1")
    a("s_add_u32 s63, s63, s25")
    publish(a, F_XN, 63)
    a("s_branch L_a_ln_done")
    a.label("L_a_noln")
    W1 = int(os.environ.get("W1", "0"))
    if W1:
        a("s_cmp_lt_u32 s25, 4")
        a("s_cbranch_scc1 L_a_now1")
        a("s_cmp_ge_u32 s2, 240")
        a("s_cbranch_scc1 L_a_now1")
        qkv_decode(a)
        qkv_wdma(a, 0, W1)
        a.label("L_a_now1")
    if int(os.environ.get("TLB", "0")):
        a("s_cmp_lg_u32 s25, 3")
        a("s_cbranch_scc1 L_a_notlb")
        a("v_min_u32 v10, 10, v2")
        a("v_lshlrev_b32 v10, 21, v10")
        a("buffer_load_dword v11, v10, s[32:35], 0 offen")
        a.label("L_a_notlb")
    if DRY:
        if not WLATE: a("s_barrier")
        a("s_cmp_eq_u32 s25, 2")
        a("s_cbranch_scc1 L_a_lnbody")
        a.label("L_a_dry_done")
        a("s_waitcnt lgkmcnt(0)")
        if WLATE: a("s_barrier")
    else:
        a("s_barrier")
    a.label("L_a_ln_done")
    a("s_cmp_ge_u32 s2, 240")
    a("s_cbranch_scc1 L_a_spare")
    qkv_decode(a)
    a("s_cmp_lt_u32 s25, 4")
    a("s_cbranch_scc1 L_a_nodma")
    qkv_wdma(a, W1, 20)
    a.label("L_a_nodma")
    def gate():
        a("s_waitcnt vmcnt(0)")
        def f():
            a("s_and_b32 s63, s46, 7")
            a("s_lshl_b32 s63, s63, 6")
            flag_addr(a, 0, F_XN, 63, 63)
            poll(a, 0, 126, direct=bool(int(os.environ.get("DIRECT", "0"))))
        wave0(a, f)
        if os.environ.get("LNSTAMP"): stamp(a, 5)
        a("s_barrier")
        stamp(a, 4)
    BTRIG = os.environ.get("BTRIG", "qkv")
    if BTRIG == "loop": roles.qkv_hook = lambda: wave0(a, lambda: publish(a, F_QL, 2))
    if BTRIG == "attn": roles.attn_hook = lambda: wave0(a, lambda: publish(a, F_QL, 2))
    if BTRIG == "issue": roles.attn_hook0 = lambda: wave0(a, lambda: publish(a, F_QL, 2))
    qkv_main(a, gate)
    a("s_setprio 3")
    a("s_waitcnt vmcnt(0)")
    stamp(a, 8)
    a("s_barrier")
    wave0(a, lambda: publish(a, F_QKV, 46))
    if BTRIG == "qkv": wave0(a, lambda: publish(a, F_QL, 2))
    a("s_branch L_a_attn")
    a.label("L_a_spare")
    if int(os.environ.get("WARM", "1")) == 1:
        if int(os.environ.get("SPDELAY", "1")):
            def f():
                a("s_and_b32 s63, s2, 7")
                a("s_lshl_b32 s63, s63, 6")
                flag_addr(a, 12, F_XN, 63, 63)
                poll(a, 12, sleep=4)
            wave0(a, f)
            a("s_barrier")
        a("s_cmp_ge_u32 s25, 4")
        a(f"s_cselect_b32 s36, s{S_WU}, s{S_WG}")
        a(f"s_cselect_b32 s37, s{S_WU+1}, s{S_WG+1}")
        a("s_mov_b32 s38, 1966080")
        a("s_mov_b32 s39, 0x00020000")
        a("s_and_b32 s3, s25, 3")
        a("s_sub_u32 s50, s2, 240")
        a("s_lshl_b32 s50, s50, 2")
        a("s_add_u32 s50, s50, s3")
        a("s_lshl_b32 s50, s50, 10")
        for i in range(int(os.environ.get("SPN", "18"))):
            a(f"buffer_load_dwordx4 v[{16+4*(i%16)}:{19+4*(i%16)}], v9, s[36:39], s50 offen")
            a("s_add_u32 s50, s50, 65536")
        a("s_waitcnt vmcnt(0)")
    a("s_setprio 3")
    a.label("L_a_attn")
    attn_decode(a)
    def f():
        attn_flag_addr(a, 14)
        poll(a, 14, direct=bool(int(os.environ.get("DIRECT", "0"))))
    wave0(a, f)
    a("s_barrier")
    stamp(a, 9)
    attn_main(a)
    a("s_waitcnt vmcnt(0)")
    stamp(a, 12)
    a("s_barrier")
    def f():
        a("s_lshl_b32 s63, s27, 5")
        a("s_add_u32 s63, s63, s24")
        publish(a, F_O, 63)
    wave0(a, f)
    flush_attn(a, 0)
    dbg_flush(a, 8, [1, 4, 6, 9, 10, 11, 12], 2)
    a("s_endpgm")
    a.label("L_roleB")
    gu_decode(a)
    g = (GU16 if XSWAP else GU)(a)
    WARM = int(os.environ.get("WARM", "1"))
    if int(os.environ.get("CODEPF", "1")): code_prefetch(a)
    if WARM: warm_weights(a, 0)
    def f():
        get_nonce(a, False)
        wait_nonce(a)
    wave0(a, f)
    g.setup()
    for st in range(PRE_DMA): g.dma_stage(st)
    def f():
        if BTRIG not in ("attn", "issue"):
            a("s_lshl_b32 s63, s27, 6")
            flag_addr(a, 0, F_XN, 63, 63)
            poll(a, 0, sleep=8 if BTRIG != "xn" else 3)
        if BTRIG not in ("attn", "xn", "issue"):
            a("s_cmp_ge_u32 s2, 496")
            a("s_cbranch_scc1 L_b_noql")
        if BTRIG == "xn": return
        a("s_sub_u32 s63, s2, 256")
        if os.environ.get("SQL", "1") == "1":
            a(f"s_lshl_b32 s63, s63, {FSH}")
            a(f"s_add_u32 s63, s63, {F_QL}")
            a("s_mov_b32 s83, 0x40000")
            a.label("L_b_sq")
            a(f"s_load_dwordx2 s[88:89], s[{S_WS}:{S_WS+1}], s63 glc")
            a("s_waitcnt lgkmcnt(0)")
            a("s_cmp_eq_u64 s[88:89], s[60:61]")
            a("s_cbranch_scc1 L_b_noql")
            a(f"s_sleep {os.environ.get('BSLEEP', '4')}")
            a("s_sub_u32 s83, s83, 1")
            a("s_cbranch_scc0 L_b_sq")
        else:
            flag_addr(a, 0, F_QL, 63, 0)
            poll(a, 0, sleep=int(os.environ.get("BSLEEP", "4")), single=True)
        a.label("L_b_noql")
    wave0(a, f)
    a("s_barrier")
    stamp(a, 2)
    a(f"s_setprio {os.environ.get('PG', '0')}")
    def warm2():
        srd(a, 36, S_WD, 1966080)
        srd(a, 52, S_WO, 819200)
        a("s_sub_u32 s50, s2, 256")
        a("s_lshl_b32 s50, s50, 3")
        a("s_add_u32 s50, s50, s25")
        a("s_mul_i32 s51, s50, 960")
        a("s_mul_i32 s50, s50, 400")
        g.vm.issue("buffer_load_dwordx4 v[120:123], v9, s[36:39], s51 offen", ("P", 0))
        g.vm.issue("buffer_load_dwordx4 v[124:127], v9, s[52:55], s50 offen", ("P", 1))
    g.main(PRE_DMA, warm2 if WARM == 1 else None)
    a("s_lshl_b32 s63, s27, 5")
    a("s_add_u32 s63, s63, s24")
    fin_decode(a)
    fn = FIN(a); fn.setup(zero_acc=False)
    a("s_waitcnt vmcnt(0)")
    if os.environ.get("LNSTAMP"): stamp(a, 1)
    a("s_barrier")
    wave0(a, lambda: publish(a, F_H, 63, t=56))
    NPRE = int(os.environ.get("NPRE", "4"))
    for m in range(NPRE): fn.dma_wd(m)
    fn.zero_acc()
    def f():
        a("s_lshr_b32 s63, s27, 2")
        a("s_lshl_b32 s63, s63, 5")
        flag_addr(a, 0, F_H, 63, 31)
        poll(a, 0, 56, direct=bool(int(os.environ.get("HDIRECT", "0"))))
    wave0(a, f)
    a("s_barrier")
    stamp(a, 8)
    a(f"s_setprio {os.environ.get('PD', '0')}")
    fn.down(NPRE)
    fn.wo_prefetch()
    a("s_setprio 3")
    def f():
        flag_addr(a, 58, F_O, 63, 31)
        poll(a, 58, 56)
    wave0(a, f)
    a("s_waitcnt vmcnt(0)")
    a("s_barrier")
    stamp(a, 11)
    fn.wo_main()
    stamp_flush(a, 0, 25)
    dbg_flush(a, 264, [2, 3, 6, 8, 10, 11, 13], 9)
    a.label("L_end")
    a("s_endpgm")
    return a

def build_single(a):
    name = NAME + "_kernel"
    for p in check_program(a.lines): print("HAZARD", p)
    out = HEADER + "; @launch grid=(512,1,1) block=(512,1,1) lds=81920\n"
    out += '.amdgcn_target "amdgcn-amd-amdhsa--gfx950"\n.text\n' + kernel_header(name) + a.text()
    out += '.section .rodata,"a"\n' + kernel_desc(name, 128, 128)
    return out

if __name__ == "__main__":
    path = sys.argv[1] if len(sys.argv) > 1 else f"cdna_kernels/{NAME}.s"
    open(path, "w").write(build_single(gen_fused()))
    import subprocess
    r = subprocess.run(["clang", "-x", "assembler", "-target", "amdgcn-amd-amdhsa", "-mcpu=gfx950", "-c", path, "-o", "gen_check.o"], capture_output=True, text=True)
    if r.returncode: print(r.stderr[:1500])
    print("wrote", path, "OK" if r.returncode == 0 else "ASM FAILED")
```

```python
from common import *
from k_ln import ln_rows
import struct

def f2hex(x):
    return "0x%08x" % struct.unpack("<I", struct.pack("<f", x))[0]

QSCALE = (20 ** -0.5) * 1.4426950408889634
WS_FL = 0x1400000
FSH = int(os.environ.get("FSH", "7"))
F_XN, F_QKV, F_QL, F_H, F_O = WS_FL, WS_FL + 0x10000, WS_FL + 0x20000, WS_FL + 0x30000, WS_FL + 0x40000
OOB = 0x7ffffff0
WS_ST = 0x1480000

class Cfg:
    fused = False
    sc = ""
cfg = Cfg()

_uid = [0]
def uid(p):
    _uid[0] += 1
    return f"{p}{_uid[0]}"

def publish(a, base, idx_sgpr, t=10, sh=None):
    if not cfg.fused: return
    a(f"s_lshl_b32 s62, s{idx_sgpr}, {FSH if sh is None else sh}")
    a(f"s_add_u32 s62, s62, {base}")
    a("v_mov_b32 v0, 0")
    a(f"v_mov_b32 v{t}, s60")
    a(f"v_mov_b32 v{t+1}, s61")
    a("s_mov_b64 exec, 1")
    a(f"buffer_store_dwordx2 v[{t}:{t+1}], v0, s[32:35], s62 offen sc1")
    a("s_mov_b64 exec, -1")

def poll(a, vaddr, t=10, sleep=2, single=False, sleep2=1, direct=False):
    if not cfg.fused: return
    L = uid("L_poll")
    a("s_mov_b32 s83, 0x40000")
    if not direct:
        a("s_mov_b64 exec, 1")
        a.label(L)
        a(f"buffer_load_dwordx2 v[{t}:{t+1}], v{vaddr}, s[32:35], 0 offen sc1")
        a("s_waitcnt vmcnt(0)")
        a(f"v_cmp_ne_u64 vcc, s[60:61], v[{t}:{t+1}]")
        a(f"s_cbranch_vccz {L}_1")
        a(f"s_sleep {sleep}")
        a("s_sub_u32 s83, s83, 1")
        a(f"s_cbranch_scc0 {L}")
        a.label(L + "_1")
    if not single:
        if not direct: a("s_mov_b64 exec, -2")
        a.label(L + "_2")
        a(f"buffer_load_dwordx2 v[{t}:{t+1}], v{vaddr}, s[32:35], 0 offen sc1")
        a("s_waitcnt vmcnt(0)")
        a(f"v_cmp_ne_u64 vcc, s[60:61], v[{t}:{t+1}]")
        a(f"s_cbranch_vccz {L}_ok")
        a("s_mov_b64 exec, vcc")
        a(f"s_sleep {sleep2}")
        a("s_sub_u32 s83, s83, 1")
        a(f"s_cbranch_scc0 {L}_2")
        a.label(L + "_ok")
    a("s_mov_b64 exec, -1")

LNWG = ["s2"]
XSWAP = int(os.environ.get("GU16", "1"))
def ln_issue(a):
    a(f"s_lshl_b32 s3, {LNWG[0]}, 3")
    a("v_lshrrev_b32 v3, 4, v0")
    a("v_add_u32 v3, s3, v3")
    a("v_mul_u32_u24 v3, 1280, v3")
    a("v_and_b32 v4, 15, v0")
    a("v_lshl_add_u32 v3, v4, 4, v3")
    srd(a, 36, S_X, 2621440)
    for i in range(5):
        a(f"buffer_load_dwordx4 v[{16+4*i}:{19+4*i}], v3, s[36:39], 0 offen offset:{256*i}")

def ln_addr(a):
    a("v_and_b32 v4, 3, v2")
    a("v_lshrrev_b32 v5, 2, v2")
    a("v_lshl_add_u32 v6, v4, 4, v5")
    a("v_lshlrev_b32 v6, 2, v6")
    a(f"s_lshl_b32 s3, {LNWG[0]}, 3")
    a("s_lshl_b32 s26, s25, 2")
    a("s_add_u32 s3, s3, s26")
    a("s_lshr_b32 s26, s3, 5")
    a("s_mul_i32 s26, s26, 40960")
    a("s_and_b32 s3, s3, 31")
    a("s_lshl_b32 s3, s3, 4")
    a("s_add_u32 s26, s26, s3")
    a("v_lshrrev_b32 v7, 1, v5")
    a("v_lshlrev_b32 v7, 10, v7")
    a("v_and_b32 v5, 1, v5")
    a("v_lshl_add_u32 v7, v5, 9, v7")
    a("v_lshl_add_u32 v7, v4, 4, v7")
    a("v_add_u32 v7, s26, v7")
    for i in range(5):
        a(f"s_mov_b32 s{40+i}, {WS_XN + 8192*i}")

def ln_body(a):
    ln_rows(a, 16, 40, 80, None, None)
    for i in range(20):
        a(f"ds_bpermute_b32 v{40+i}, v6, v{16+i}")

def ln_finish(a):
    ln_addr(a)
    a("s_waitcnt vmcnt(0)")
    stamp(a, 1)
    ln_body(a)
    ln_store(a)

def ln_stats(a):
    a(f"s_lshl_b32 s3, {LNWG[0]}, 3")
    a("s_lshl_b32 s45, s25, 2")
    a("s_add_u32 s3, s3, s45")
    a("s_lshr_b32 s45, s3, 7")
    a("s_lshl_b32 s45, s45, 10")
    a("s_and_b32 s3, s3, 127")
    a("s_lshl_b32 s3, s3, 2")
    a("s_add_u32 s45, s45, s3")
    a(f"s_add_u32 s45, s45, {WS_ST}")
    a("v_lshrrev_b32 v4, 4, v2")
    a("v_lshlrev_b32 v4, 2, v4")
    a("s_mov_b32 exec_lo, 0x00010001")
    a("s_mov_b32 exec_hi, 0x00010001")
    a(f"buffer_store_dword v84, v4, s[32:35], s45 offen{cfg.sc}")
    a(f"buffer_store_dword v80, v4, s[32:35], s45 offen offset:512{cfg.sc}")
    a("s_mov_b64 exec, -1")

def ln_store(a):
    if XSWAP:
        a("v_and_b32 v4, 4, v2")
        a("v_cmp_ne_u32 vcc, 0, v4")
    for i in range(5):
        a(f"s_waitcnt lgkmcnt({min(15, 16-4*i)})")
        r = 40 + 4 * i
        if XSWAP:
            if i == 0: a("s_nop 0")
            for j in range(4):
                a(f"v_cndmask_b32 v{60+4*i+j}, v{r+j}, v{r+(j^2)}, vcc")
            r = 60 + 4 * i
        a(f"buffer_store_dwordx4 v[{r}:{r+3}], v7, s[32:35], s{40+i} offen{cfg.sc}")

qkv_hook = None
attn_hook = None
attn_hook0 = None
def qkv_decode(a):
    a("s_and_b32 s24, s2, 7")
    a("s_lshr_b32 s26, s2, 3")
    a("s_lshr_b32 s27, s24, 1")
    a("s_lshl_b32 s27, s27, 1")
    a("s_and_b32 s3, s26, 1")
    a("s_add_u32 s27, s27, s3")
    a("s_and_b32 s24, s24, 1")
    a("s_mul_i32 s24, s24, 15")
    a("s_lshr_b32 s26, s26, 1")
    a("s_add_u32 s47, s24, s26")
    a("s_lshl_b32 s46, s47, 3")
    a("s_add_u32 s46, s46, s27")
    a("s_lshl_b32 s26, s27, 3")
    a("s_add_u32 s26, s26, s25")
    a("s_cmp_ge_u32 s47, 10")
    a("s_cselect_b32 s24, 1, 0")
    a("s_cmp_ge_u32 s47, 20")
    a("s_cselect_b32 s24, 2, s24")
    a("s_mul_i32 s3, s24, 10")
    a("s_sub_u32 s27, s47, s3")

def qkv_wdma(a, j0=0, j1=20, setup=True):
    if not setup:
        for j in range(j0, j1):
            a(f"s_add_u32 m0, s42, {4096*j}")
            a(f"s_add_u32 s3, s41, {4*30720*j}")
            a("buffer_load_dwordx4 v4, s[28:31], s3 offen lds")
        return
    srd(a, 28, S_WQKV, 2457600)
    a("v_lshrrev_b32 v4, 3, v2")
    a("v_bfe_u32 v5, v2, 2, 1")
    a("v_bfe_u32 v6, v2, 4, 1")
    a("v_xor_b32 v5, v5, v6")
    a("v_lshlrev_b32 v5, 6, v5")
    a("v_and_b32 v6, 3, v2")
    a("v_lshl_add_u32 v5, v6, 4, v5")
    a("s_movk_i32 s3, 3840")
    a("v_mad_u32_u24 v4, v4, s3, v5")
    a("s_sub_u32 s3, s25, 4")
    a("s_lshl_b32 s41, s47, 7")
    a("s_mul_i32 s42, s3, 30720")
    a("s_add_u32 s41, s41, s42")
    a("s_lshl_b32 s42, s3, 10")
    for j in range(j0, j1):
        a(f"s_add_u32 m0, s42, {4096*j}")
        a(f"s_add_u32 s3, s41, {4*30720*j}")
        a("buffer_load_dwordx4 v4, s[28:31], s3 offen lds")

def qkv_uaddr(a, T0, T1, U0, U1):
    if XSWAP:
        a(f"v_lshl_add_u32 v{T0}, v7, 9, v{T0}")
    a(f"v_xor_b32 v{T1}, 64, v{T0}")
    a(f"v_xor_b32 v{U0}, 512, v{T0}")
    a(f"v_xor_b32 v{U1}, 512, v{T1}")

def qkv_main(a, gate=None):
    ACC, XF, WF, AD = 16, 48, 96, 112
    XD = 12
    T0, T1, U0, U1 = 4, 5, 124, 125
    vm = VM(a)
    a("s_mul_i32 s40, s26, 40960")
    a(f"s_add_u32 s40, s40, {WS_XN}")
    def xload(s):
        r = XF + 4 * (s % XD)
        vm.issue(f"buffer_load_dwordx4 v[{r}:{r+3}], v9, s[32:35], s40 offen offset:{1024*(s%4)}{cfg.sc}", ("X", s))
        if s % 4 == 3: a("s_add_u32 s40, s40, 4096")
    X0 = int(os.environ.get("QX0", "4"))
    a("v_bfe_u32 v6, v2, 2, 2")
    a("v_lshrrev_b32 v7, 5, v2")
    a("v_lshl_add_u32 v8, v7, 3, v6")
    a("v_lshlrev_b32 v8, 7, v8")
    a("v_bfe_u32 v10, v2, 4, 1")
    a("v_lshl_add_u32 v8, v10, 5, v8")
    a("v_lshrrev_b32 v6, 1, v6")
    a("v_lshl_add_u32 v8, v6, 6, v8")
    a("v_and_b32 v10, 31, v2")
    for i in range(32):
        a(f"v_mov_b32 v{ACC+i}, 0")
    a("s_cmp_eq_u32 s24, 2")
    a("s_cbranch_scc1 L_qkv_V")
    a("v_and_b32 v11, 1, v2")
    a("v_lshlrev_b32 v11, 4, v11")
    a("v_bfe_u32 v12, v2, 1, 1")
    a("v_lshl_add_u32 v11, v12, 3, v11")
    a(f"v_add_u32 v{T0}, v8, v11")
    qkv_uaddr(a, T0, T1, U0, U1)
    a("s_lshl_b32 s45, s26, 10")
    a(f"s_add_u32 s45, s45, {WS_QM}")
    a("s_lshl_b32 s43, s26, 8")
    a(f"s_add_u32 s43, s43, {WS_QR}")
    a("s_mov_b32 s44, 65536")
    a("s_mov_b32 s42, 16384")
    a(f"s_mov_b32 s48, {f2hex(QSCALE)}")
    a("s_cmp_eq_u32 s24, 0")
    a("s_cbranch_scc1 L_qkv_isq")
    a("s_mul_i32 s45, s26, 2560")
    a(f"s_add_u32 s45, s45, {WS_KV}")
    a("s_add_u32 s43, s45, 1024")
    a("s_mov_b32 s44, 163840")
    a("s_mov_b32 s42, 163840")
    a("s_mov_b32 s48, 1.0")
    a.label("L_qkv_isq")
    a("s_mov_b32 s49, s48")
    a("s_lshl_b32 s3, s27, 3")
    a("v_add_u32 v11, s3, v7")
    a("v_lshl_add_u32 v12, v10, 4, s45")
    a("v_lshl_add_u32 v13, v10, 3, s43")
    a(f"s_mov_b32 s50, {OOB}")
    a("s_mov_b32 s51, 0")
    for q in range(4):
        a(f"v_add_u32 v14, {2*q}, v11")
        a("v_mul_u32_u24 v15, 205, v14")
        a("v_lshrrev_b32 v15, 10, v15")
        a("v_mul_u32_u24 v3, 5, v15")
        a("v_sub_u32 v14, v14, v3")
        a("v_lshlrev_b32 v15, 1, v15")
        a("v_mul_lo_u32 v3, v15, s42")
        a(f"v_add_u32 v{AD+3*q+1}, v3, v13")
        a(f"v_add_u32 v{AD+3*q+2}, s42, v{AD+3*q+1}")
        a("v_cmp_lt_u32 vcc, 2, v14")
        a("v_subrev_u32 v3, 3, v14")
        a("s_nop 0")
        a("v_addc_co_u32 v15, s[52:53], 0, v15, vcc")
        a("v_cndmask_b32 v3, v14, v3, vcc")
        a("v_mul_lo_u32 v15, v15, s44")
        a("v_lshl_add_u32 v3, v3, 9, v12")
        a("v_add_u32 v3, v3, v15")
        a("v_cmp_eq_u32 vcc, 2, v14")
        a("v_mov_b32 v15, s50")
        a("s_cmp_lg_u64 vcc, 0")
        a(f"s_cselect_b32 s3, {1 << q}, 0")
        a("s_or_b32 s51, s51, s3")
        a(f"v_cndmask_b32 v{AD+3*q}, v3, v15, vcc")
        a(f"v_cndmask_b32 v{AD+3*q+1}, v15, v{AD+3*q+1}, vcc")
        a(f"v_cndmask_b32 v{AD+3*q+2}, v15, v{AD+3*q+2}, vcc")
    def loop(vtype):
        vq = list(vm.q)
        if gate: gate()
        for s in range(X0): xload(s)
        def reads(s):
            w = WF + 8 * (s % 2)
            if s == 32:
                for r in (T0, T1, U0, U1):
                    a(f"v_add_u32 v{r}, 0x10000, v{r}")
            for ft in range(2):
                for u in range(2):
                    off = (16 * s * 128) % 65536
                    a(f"ds_read_b64_tr_b16 v[{w+4*ft+2*u}:{w+4*ft+2*u+1}], v{(U0 if u else T0)+ft} offset:{off}")
        reads(0)
        nx = X0
        for s in range(40):
            if s + 1 < 40:
                reads(s + 1)
                vm.wait(lambda t: t == ("X", s), "lgkmcnt(4)")
            else:
                vm.wait(lambda t: t == ("X", s), "lgkmcnt(0)")
            if s == 0 and not os.environ.get('LNSTAMP'): stamp(a, 5)
            w = WF + 8 * (s % 2); x = XF + 4 * (s % XD)
            for ft in range(2):
                W = f"v[{w+4*ft}:{w+4*ft+3}]"; X = f"v[{x}:{x+3}]"
                A, B = (X, W) if vtype else (W, X)
                D = f"v[{ACC+16*ft}:{ACC+16*ft+15}]"
                a(f"v_mfma_f32_32x32x16_bf16 {D}, {A}, {B}, {D}")
            for _ in range(2):
                if nx <= s + XD and nx < 40:
                    xload(nx); nx += 1
        vm.q = vq
        stamp(a, 6)
        if qkv_hook: qkv_hook()
    loop(False)
    a("s_nop 10")
    for q in range(4):
        r = ACC + 8 * q
        for i in range(0, 8, 2):
            a(f"v_pk_mul_f32 v[{r+i}:{r+i+1}], v[{r+i}:{r+i+1}], s[48:49]")
        for i in range(4):
            a(f"v_cvt_pk_bf16_f32 v{r+i}, v{r+2*i}, v{r+2*i+1}")
        a(f"buffer_store_dwordx4 v[{r}:{r+3}], v{AD+3*q}, s[32:35], 0 offen{cfg.sc}")
        L = uid("L_qr")
        a(f"s_bitcmp0_b32 s51, {q}")
        a(f"s_cbranch_scc1 {L}")
        a(f"buffer_store_dwordx2 v[{r}:{r+1}], v{AD+3*q+1}, s[32:35], 0 offen{cfg.sc}")
        a(f"buffer_store_dwordx2 v[{r+2}:{r+3}], v{AD+3*q+2}, s[32:35], 0 offen{cfg.sc}")
        a.label(L)
    a("s_branch L_qkv_done")
    a.label("L_qkv_V")
    a("v_and_b32 v11, 3, v2")
    a(f"v_lshl_add_u32 v{T0}, v11, 3, v8")
    qkv_uaddr(a, T0, T1, U0, U1)
    a("s_mul_i32 s45, s26, 2560")
    a(f"s_add_u32 s45, s45, {WS_KV + 1280}")
    a("s_lshl_b32 s3, s27, 6")
    a("v_add_u32 v10, s3, v10")
    a("v_mul_u32_u24 v11, 320, v7")
    a("v_add_u32 v11, s45, v11")
    a("s_mov_b32 s44, 163840")
    for ft in range(2):
        a(f"v_add_u32 v13, {32*ft}, v10")
        a("v_mul_u32_u24 v14, 3277, v13")
        a("v_lshrrev_b32 v14, 16, v14")
        a("v_mul_u32_u24 v15, 20, v14")
        a("v_sub_u32 v15, v13, v15")
        a("v_lshl_add_u32 v3, v15, 4, v11")
        a("v_mul_lo_u32 v14, v14, s44")
        a(f"v_add_u32 v{AD+ft}, v3, v14")
    loop(True)
    a("s_nop 10")
    for ft in range(2):
        for gm in range(2):
            r = ACC + 16 * ft + 8 * gm
            for i in range(4):
                a(f"v_cvt_pk_bf16_f32 v{r+i}, v{r+2*i}, v{r+2*i+1}")
            a(f"buffer_store_dwordx4 v[{r}:{r+3}], v{AD+ft}, s[32:35], 0 offen offset:{640*gm}{cfg.sc}")
    a.label("L_qkv_done")
    stamp(a, 7)

CHUNK = 20480
NBUF = 3
DELTA = 90.0
S0, S1, P, O0, O1, Q0, Q1, KA, KB, VA, VB = 16, 32, 48, 56, 72, 88, 94, 100, 106, 112, 120
AK, AKR, AV = 3, 4, 5

def rowmax16(a, S, d, t):
    a(f"v_max3_f32 v{d}, v{S}, v{S+1}, v{S+2}")
    a(f"v_max3_f32 v{t}, v{S+3}, v{S+4}, v{S+5}")
    a(f"v_max3_f32 v{d}, v{d}, v{S+6}, v{S+7}")
    a(f"v_max3_f32 v{t}, v{t}, v{S+8}, v{S+9}")
    a(f"v_max3_f32 v{d}, v{d}, v{S+10}, v{S+11}")
    a(f"v_max3_f32 v{t}, v{t}, v{S+12}, v{S+13}")
    a(f"v_max3_f32 v{d}, v{d}, v{S+14}, v{S+15}")
    a(f"v_max_f32 v{d}, v{d}, v{t}")
    a(f"v_mov_b32 v{t}, v{d}")
    a("s_nop 1")
    a(f"v_permlane32_swap_b32 v{d}, v{t}")
    a(f"v_max_f32 v{d}, v{d}, v{t}")

def attn_decode(a):
    a("s_and_b32 s24, s2, 7")
    a("s_lshr_b32 s27, s2, 3")
    a("s_lshl_b32 s24, s24, 2")
    a("s_lshr_b32 s3, s27, 3")
    a("s_add_u32 s24, s24, s3")
    a("s_and_b32 s27, s27, 7")

def attn_flag_addr(a, vd):
    a("s_mul_i32 s3, s24, 20")
    a("s_lshr_b32 s26, s3, 6")
    a("s_add_u32 s3, s3, 19")
    a("s_lshr_b32 s3, s3, 6")
    a("s_sub_u32 s3, s3, s26")
    a("v_min_u32 v10, 47, v2")
    a("v_lshrrev_b32 v11, 4, v10")
    a("v_mul_u32_u24 v11, 10, v11")
    a("v_bfe_u32 v12, v10, 3, 1")
    a("v_mul_lo_u32 v12, v12, s3")
    a("v_add3_u32 v11, v11, v12, s26")
    a("v_and_b32 v12, 7, v10")
    a("v_mov_b32 v13, s27")
    a("v_cmp_gt_u32 vcc, 16, v10")
    a("s_nop 1")
    a("v_cndmask_b32 v12, v12, v13, vcc")
    a(f"v_lshl_add_u32 v{vd}, v11, 3, v12")
    a(f"v_lshlrev_b32 v{vd}, {FSH}, v{vd}")
    a(f"v_add_u32 v{vd}, {F_QKV}, v{vd}")

PA = [int(x) for x in os.environ.get("PA", "2,3,1").split(",")]
JLOW = int(os.environ.get("JLOW", "3"))
def attn_main(a, prio=True):
    sc = cfg.sc
    a("s_and_b32 s46, s25, 3")
    a("s_lshr_b32 s47, s25, 2")
    a("s_lshl_b32 s26, s27, 3")
    a("s_lshl_b32 s3, s46, 1")
    a("s_add_u32 s26, s26, s3")
    a("s_lshl_b32 s3, s24, 6")
    a("s_add_u32 s3, s3, s26")
    a("s_lshl_b32 s40, s3, 10")
    a(f"s_add_u32 s40, s40, {WS_QM}")
    a("s_lshl_b32 s41, s3, 8")
    a(f"s_add_u32 s41, s41, {WS_QR}")
    a("s_mul_i32 s42, s24, 163840")
    a(f"s_add_u32 s42, s42, {WS_KV}")
    a("s_mul_i32 s3, s25, 5120")
    a("s_add_u32 s43, s42, s3")
    a("s_mov_b32 s44, s3")
    def dma_chunk():
        a("s_mov_b32 m0, s44")
        a("s_add_u32 s50, s43, 4096")
        for i in range(4):
            off = f" offset:{1024*i}" if i else ""
            a(f"buffer_load_dwordx4 v9, s[32:35], s43 offen{off}{sc} lds")
        a("s_add_u32 m0, s44, 4096")
        a(f"s_add_u32 s43, s43, {CHUNK}")
        a(f"buffer_load_dwordx4 v9, s[32:35], s50 offen{sc} lds")
        a(f"s_add_u32 s44, s44, {CHUNK}")
    a("v_and_b32 v6, 31, v2")
    a(f"v_lshlrev_b32 v{AKR}, 3, v6")
    a(f"buffer_load_dwordx4 v[{Q0}:{Q0+3}], v9, s[32:35], s40 offen{sc}")
    a(f"buffer_load_dwordx4 v[{Q1}:{Q1+3}], v9, s[32:35], s40 offen offset:1024{sc}")
    for r in (Q0 + 4, Q0 + 5, Q1 + 4, Q1 + 5, KA + 5, KB + 5):
        a(f"v_mov_b32 v{r}, 0")
    a("s_mov_b32 exec_hi, 0")
    a(f"buffer_load_dwordx2 v[{Q0+4}:{Q0+5}], v{AKR}, s[32:35], s41 offen{sc}")
    a(f"buffer_load_dwordx2 v[{Q1+4}:{Q1+5}], v{AKR}, s[32:35], s41 offen offset:256{sc}")
    a("s_mov_b32 exec_hi, -1")
    a("s_cmp_ge_u32 s25, 4")
    a("s_cbranch_scc1 L_at_nodma0")
    dma_chunk()
    dma_chunk()
    dma_chunk()
    a(f"s_sub_u32 s44, s44, {NBUF*CHUNK}")
    a.label("L_at_nodma0")
    if attn_hook0: attn_hook0()
    a("v_lshrrev_b32 v7, 5, v2")
    a(f"v_mul_u32_u24 v{AV}, 320, v7")
    a(f"v_lshl_add_u32 v{AV}, v6, 4, v{AV}")
    a("s_mov_b32 s30, 0x000fffff")
    a("s_mov_b32 s31, 0x000fffff")
    a(f"v_mov_b32 v{KA+4}, 0x3f80")
    a(f"v_mov_b32 v{KB+4}, 0x3f80")
    a("v_cmp_eq_u32 vcc, 20, v6")
    a("v_mov_b32 v8, 0x3f803f80")
    a("s_nop 0")
    a("v_cndmask_b32 v8, 0, v8, vcc")
    for i in range(16):
        a(f"v_mov_b32 v{VA+i}, v8")
    for i in range(32):
        a(f"v_mov_b32 v{O0+i}, 0")
    for i in range(4, 8):
        a(f"v_mov_b32 v{P+i}, 0")
    a("s_cmp_ge_u32 s25, 4")
    a("s_cbranch_scc1 L_at_w0")
    a("s_waitcnt vmcnt(10)")
    a("s_branch L_at_w1")
    a.label("L_at_w0")
    a("s_waitcnt vmcnt(0)")
    a.label("L_at_w1")
    a("s_barrier")
    stamp(a, 10)
    if attn_hook: attn_hook()
    a(f"ds_read_b128 v[{KB}:{KB+3}], v9")
    a("s_mov_b32 exec_hi, 0")
    a(f"ds_read_b64 v[{KB+4}:{KB+5}], v{AKR} offset:1024")
    a("s_mov_b32 exec_hi, -1")
    a("s_mul_i32 s3, s47, 10240")
    a(f"v_add_u32 v{AK}, s3, v9")
    a(f"v_add_u32 v{AKR}, s3, v{AKR}")
    a(f"v_add_u32 v{AV}, s3, v{AV}")
    a(f"ds_read_b128 v[{KA}:{KA+3}], v{AK}")
    a("s_mov_b32 exec_hi, 0")
    a(f"ds_read_b64 v[{KA+4}:{KA+5}], v{AKR} offset:1024")
    a("s_mov_b64 exec, s[30:31]")
    a(f"ds_read_b128 v[{VA}:{VA+3}], v{AV} offset:1280")
    a(f"ds_read_b128 v[{VA+4}:{VA+7}], v{AV} offset:1920")
    a("s_mov_b64 exec, -1")
    a("s_waitcnt lgkmcnt(4)")
    def qk(S, K, Q):
        return (f"v_mfma_f32_32x32x16_bf16 v[{S}:{S+15}], v[{K}:{K+3}], v[{Q}:{Q+3}], 0",
                f"v_mfma_f32_32x32x8_bf16 v[{S}:{S+15}], v[{K+4}:{K+5}], v[{Q+4}:{Q+5}], v[{S}:{S+15}]")
    for x in qk(S0, KB, Q0) + qk(S1, KB, Q1): a(x)
    a("s_nop 9")
    rowmax16(a, S0, 10, 11)
    rowmax16(a, S1, 12, 13)
    a("v_cmp_lt_u32 vcc, 31, v2")
    for d, Q in ((10, Q0), (12, Q1)):
        a(f"v_add_f32 v{d}, {f2hex(DELTA)}, v{d}")
        a(f"v_sub_f32 v{d}, 0, v{d}")
        a(f"v_cvt_pk_bf16_f32 v{d}, v{d}, 0")
        a(f"v_cndmask_b32 v{Q+4}, v{Q+4}, v{d}, vcc")
    a("s_waitcnt lgkmcnt(0)")
    a("s_nop 0")
    for x in qk(S0, KA, Q0): a(x)
    a("s_mov_b32 s45, 8")
    a(f"s_mov_b32 s48, {CHUNK}")
    a("s_mov_b32 s49, 0")
    a("s_nop 7")
    a(".p2align 6")
    a.label("L_at_loop")
    if PROFILE:
        a("s_memtime s[84:85]")
        a("s_memrealtime s[86:87]")
        a("s_waitcnt lgkmcnt(0)")
        a("s_sub_u32 m0, 8, s45")
        a("s_nop 0")
        a("v_writelane_b32 v15, s84, m0")
        a("s_add_u32 m0, m0, 8")
        a("s_nop 0")
        a("v_writelane_b32 v15, s86, m0")
    def half(Sc, qks, pvp, pv1, mid=()):
        e = lambda i: f"v_exp_f32 v{Sc+i}, v{Sc+i}"
        c = lambda i: f"v_cvt_pk_bf16_f32 v{P+i}, v{Sc+2*i}, v{Sc+2*i+1}"
        seq = [qks[0], e(0), e(1), e(2), e(3), c(0), c(1), pvp] + list(mid) + [e(4), e(5), e(6), e(7), c(2), c(3), qks[1],
               e(8), e(9), e(10), e(11), e(12), pv1, e(13), e(14), e(15), c(4), c(5), c(6), c(7)]
        for x in seq: a(x)
    def pv(Oo, V, Pp):
        return f"v_mfma_f32_32x32x16_bf16 v[{Oo}:{Oo+15}], v[{V}:{V+3}], v[{Pp}:{Pp+3}], v[{Oo}:{Oo+15}]"
    for j in range(4):
        Kc, Kn = (KA, KB) if j % 2 == 0 else (KB, KA)
        Vc, Vn = (VA, VB) if j % 2 == 0 else (VB, VA)
        if j == 0 and prio:
            a("s_cmp_ge_u32 s25, 4")
            a("s_cbranch_scc1 L_at_y0")
            a(f"s_setprio {PA[0]}")
            a("s_branch L_at_y1")
            a.label("L_at_y0")
            a(f"s_setprio {PA[1]}")
            a.label("L_at_y1")
        if j == JLOW and JLOW != 3 and prio:
            a("s_cmp_lt_u32 s25, 4")
            a("s_cbranch_scc1 L_at_z")
            a(f"s_setprio {PA[2]}")
            a.label("L_at_z")
        if j == 3:
            a("s_cmp_eq_u32 s45, 8")
            a("s_cbranch_scc1 L_at_first")
            a("s_waitcnt vmcnt(0)")
            a.label("L_at_first")
            a("s_waitcnt vmcnt(5)")
            a("s_barrier")
            a("s_sub_u32 s3, s48, s49")
            a(f"v_add_u32 v{AK}, s3, v{AK}")
            a(f"v_add_u32 v{AKR}, s3, v{AKR}")
            a(f"v_add_u32 v{AV}, s3, v{AV}")
            a("s_mov_b32 s49, s48")
            a(f"s_add_u32 s48, s48, {CHUNK}")
            a(f"s_cmp_ge_u32 s48, {NBUF*CHUNK}")
            a("s_cselect_b32 s48, 0, s48")
            a("s_cmp_ge_u32 s25, 4")
            a("s_cbranch_scc1 L_at_young")
            a("s_sub_u32 s50, s45, 3")
            a("s_cmp_ge_u32 s50, 5")
            a("s_cbranch_scc1 L_at_nodma1")
            dma_chunk()
            a(f"s_cmp_ge_u32 s44, {NBUF*CHUNK}")
            a(f"s_cselect_b32 s50, {NBUF*CHUNK}, 0")
            a("s_sub_u32 s44, s44, s50")
            a("s_branch L_at_nodma1")
            a.label("L_at_young")
            if prio and JLOW == 3: a(f"s_setprio {PA[2]}")
            a.label("L_at_nodma1")
        o = 2560 * ((j + 1) % 4)
        rd = [f"ds_read_b128 v[{Kn}:{Kn+3}], v{AK} offset:{o}",
              "s_mov_b32 exec_hi, 0",
              f"ds_read_b64 v[{Kn+4}:{Kn+5}], v{AKR} offset:{o+1024}",
              "s_mov_b64 exec, s[30:31]",
              f"ds_read_b128 v[{Vn}:{Vn+3}], v{AV} offset:{o+1280}",
              f"ds_read_b128 v[{Vn+4}:{Vn+7}], v{AV} offset:{o+1920}",
              "s_mov_b64 exec, -1"]
        half(S0, qk(S1, Kc, Q1), pv(O1, Vn + 4, P + 4), pv(O0, Vc, P), rd)
        a("s_waitcnt lgkmcnt(0)")
        half(S1, qk(S0, Kn, Q0), pv(O0, Vc + 4, P + 4), pv(O1, Vc, P))
    a("s_sub_u32 s45, s45, 1")
    a("s_cmp_lg_u32 s45, 0")
    a("s_cbranch_scc1 L_at_loop")
    a(pv(O1, VB + 4, P + 4))
    if prio: a("s_setprio 3")
    stamp(a, 11)
    a("s_lshl_b32 s3, s46, 12")
    a("v_add_u32 v6, s3, v9")
    a(f"v_add_u32 v7, {NBUF*CHUNK}, v6")
    a("s_cmp_eq_u32 s47, 0")
    a("s_cbranch_scc1 L_at_x0")
    for i in range(3):
        a(f"ds_write_b128 v7, v[{O0+4*i}:{O0+4*i+3}] offset:{1024*i}")
    a("v_mov_b32 v7, v6")
    for i in range(6):
        a(f"v_mov_b32 v{Q0+i}, v{Q1+i}")
    a("s_nop 0")
    for i in range(12):
        a(f"v_mov_b32 v{O0+i}, v{O1+i}")
    a("s_branch L_at_x1")
    a.label("L_at_x0")
    a("s_nop 6")
    for i in range(3):
        a(f"ds_write_b128 v6, v[{O1+4*i}:{O1+4*i+3}] offset:{1024*i}")
    a.label("L_at_x1")
    a("s_add_u32 s26, s26, s47")
    a("s_waitcnt lgkmcnt(0)")
    if os.environ.get("TAILSTAMP"): stamp(a, 1)
    a("s_barrier")
    if os.environ.get("TAILSTAMP"): stamp(a, 2)
    for i in range(3):
        a(f"ds_read_b128 v[{S1+4*i}:{S1+4*i+3}], v7 offset:{1024*i}")
    a("s_mov_b32 s51, 0")
    a(f"s_mov_b32 s54, {f2hex(2.0**-95)}")
    a(f"s_mov_b32 s55, {f2hex(2.0**118)}")
    a("s_mov_b32 s58, 0x7f800000")
    a("s_waitcnt lgkmcnt(0)")
    for i in range(0, 12, 2):
        a(f"v_pk_add_f32 v[{O0+i}:{O0+i+1}], v[{O0+i}:{O0+i+1}], v[{S1+i}:{S1+i+1}]")
    a.label("L_at_fin")
    a(f"v_mov_b32 v8, v{O0+8}")
    a(f"v_mov_b32 v10, v{O0+8}")
    a("s_nop 1")
    a("v_permlane32_swap_b32 v8, v10")
    a("v_rcp_f32 v11, v10")
    a("s_nop 0")
    for i in range(12):
        a(f"v_mul_f32 v{S0+i}, v11, v{O0+i}")
    a("s_cmp_eq_u32 s51, 1")
    a("s_cbranch_scc1 L_at_store")
    a(f"v_add_f32 v12, |v{S0}|, |v{S0+1}|")
    for i in range(2, 8):
        a(f"v_add_f32 v12, |v{S0+i}|, v12")
    a(f"v_add_f32 v13, |v{S0+8}|, |v{S0+9}|")
    a(f"v_add_f32 v13, |v{S0+10}|, v13")
    a(f"v_add_f32 v13, |v{S0+11}|, v13")
    a("v_cmp_gt_u32 vcc, 32, v2")
    a("s_nop 1")
    a("v_cndmask_b32 v13, 0, v13, vcc")
    a("v_add_f32 v12, v12, v13")
    a("v_cmp_gt_f32 s[52:53], v10, s54")
    a("v_cmp_lt_f32 s[56:57], v10, s55")
    a("v_cmp_lt_f32 vcc, v12, s58")
    a("s_and_b64 s[52:53], s[52:53], s[56:57]")
    a("s_and_b64 s[52:53], s[52:53], vcc")
    a("s_cmp_eq_u64 s[52:53], exec")
    a("s_cbranch_scc0 L_at_slow")
    a.label("L_at_store")
    if os.environ.get("TAILSTAMP"): stamp(a, 3)
    for i in range(6):
        a(f"v_cvt_pk_bf16_f32 v{P+i}, v{S0+2*i}, v{S0+2*i+1}")
    a("s_mul_i32 s3, s26, 40")
    a("s_add_u32 s50, s3, s24")
    a("s_lshl_b32 s50, s50, 10")
    a(f"s_add_u32 s50, s50, {WS_O}")
    a(f"buffer_store_dwordx4 v[{P}:{P+3}], v9, s[32:35], s50 offen{sc}")
    a("s_lshr_b32 s50, s24, 2")
    a("s_add_u32 s50, s50, s3")
    a("s_add_u32 s50, s50, 32")
    a("s_lshl_b32 s50, s50, 10")
    a("s_and_b32 s3, s24, 1")
    a("s_lshl_b32 s3, s3, 9")
    a("s_add_u32 s50, s50, s3")
    a("s_bfe_u32 s3, s24, 0x10001")
    a("s_lshl_b32 s3, s3, 3")
    a("s_add_u32 s50, s50, s3")
    a(f"s_add_u32 s50, s50, {WS_O}")
    a("s_mov_b32 exec_hi, 0")
    a(f"buffer_store_dwordx2 v[{P+4}:{P+5}], v9, s[32:35], s50 offen{sc}")
    a("s_mov_b32 exec_hi, -1")
    if os.environ.get("TAILSTAMP"): stamp(a, 4)
    a("s_branch L_at_done")
    NM = O1
    a.label("L_at_slow")
    a("v_and_b32 v6, 31, v2")
    a("v_lshlrev_b32 v4, 3, v6")
    a("v_lshrrev_b32 v7, 5, v2")
    a("v_mul_u32_u24 v5, 320, v7")
    a("v_lshl_add_u32 v5, v6, 4, v5")
    a("v_cmp_gt_u32 vcc, 32, v2")
    a("v_mov_b32 v14, 0xff800000")
    a("s_mov_b32 s50, s42")
    a(f"v_cndmask_b32 v{Q0+4}, 0, v{Q0+4}, vcc")
    a("s_mov_b32 s45, 64")
    a.label("L_at_slow1")
    a(f"buffer_load_dwordx4 v[{KA}:{KA+3}], v9, s[32:35], s50 offen{sc}")
    a(f"buffer_load_dwordx2 v[{KA+4}:{KA+5}], v4, s[32:35], s50 offen offset:1024{sc}")
    a("s_waitcnt vmcnt(0)")
    for x in qk(S0, KA, Q0): a(x)
    a("s_nop 11")
    rowmax16(a, S0, 8, 10)
    a("v_max_f32 v14, v14, v8")
    a("s_add_u32 s50, s50, 2560")
    a("s_sub_u32 s45, s45, 1")
    a("s_cmp_lg_u32 s45, 0")
    a("s_cbranch_scc1 L_at_slow1")
    a("v_sub_f32 v8, 0, v14")
    for i in range(16):
        a(f"v_mov_b32 v{NM+i}, v8")
        a(f"v_mov_b32 v{O0+i}, 0")
    a("s_mov_b32 s50, s42")
    a("s_mov_b32 s45, 64")
    a.label("L_at_slow2")
    a(f"buffer_load_dwordx4 v[{KA}:{KA+3}], v9, s[32:35], s50 offen{sc}")
    a(f"buffer_load_dwordx2 v[{KA+4}:{KA+5}], v4, s[32:35], s50 offen offset:1024{sc}")
    a("s_mov_b64 exec, s[30:31]")
    a(f"buffer_load_dwordx4 v[{VA}:{VA+3}], v5, s[32:35], s50 offen offset:1280{sc}")
    a(f"buffer_load_dwordx4 v[{VA+4}:{VA+7}], v5, s[32:35], s50 offen offset:1920{sc}")
    a("s_mov_b64 exec, -1")
    a("s_waitcnt vmcnt(0)")
    a(f"v_mfma_f32_32x32x16_bf16 v[{S0}:{S0+15}], v[{KA}:{KA+3}], v[{Q0}:{Q0+3}], v[{NM}:{NM+15}]")
    a(f"v_mfma_f32_32x32x8_bf16 v[{S0}:{S0+15}], v[{KA+4}:{KA+5}], v[{Q0+4}:{Q0+5}], v[{S0}:{S0+15}]")
    a("s_nop 11")
    for i in range(16):
        a(f"v_exp_f32 v{S0+i}, v{S0+i}")
    a("s_nop 0")
    for i in range(8):
        a(f"v_cvt_pk_bf16_f32 v{P+i}, v{S0+2*i}, v{S0+2*i+1}")
    a("s_nop 1")
    a(pv(O0, VA, P))
    a(pv(O0, VA + 4, P + 4))
    a("s_add_u32 s50, s50, 2560")
    a("s_sub_u32 s45, s45, 1")
    a("s_cmp_lg_u32 s45, 0")
    a("s_cbranch_scc1 L_at_slow2")
    a("s_mov_b32 s51, 1")
    a("s_nop 10")
    a("s_branch L_at_fin")
    a.label("L_at_done")

GU_BUF = 24832
GU_UP = 12416
def gu_decode(a):
    a("s_sub_u32 s3, s2, 256")
    a("s_and_b32 s24, s3, 7")
    a("s_lshr_b32 s26, s3, 3")
    a("s_lshr_b32 s27, s24, 2")
    a("s_lshl_b32 s27, s27, 2")
    a("s_and_b32 s3, s26, 3")
    a("s_add_u32 s27, s27, s3")
    a("s_and_b32 s24, s24, 3")
    a("s_lshl_b32 s24, s24, 3")
    a("s_lshr_b32 s26, s26, 2")
    a("s_add_u32 s24, s24, s26")
    a("s_lshl_b32 s26, s27, 3")
    a("s_add_u32 s26, s26, s25")

class GU:
    ACC, XF, WF, XD = 16, 64, 96, int(os.environ.get("GXD", "8"))
    def __init__(self, a):
        self.a = a; self.vm = VM(a)
    def setup(self):
        a = self.a
        a("s_mul_i32 s40, s26, 40960")
        a(f"s_add_u32 s40, s40, {WS_XN}")
        a("s_mul_i32 s41, s24, 96")
        a("s_and_b32 s3, s25, 3")
        a("s_mul_i32 s42, s3, 3072")
        a("s_cmp_ge_u32 s25, 4")
        a(f"s_cselect_b32 s43, {GU_UP}, 0")
        a(f"s_cselect_b32 s28, s{S_WU}, s{S_WG}")
        a(f"s_cselect_b32 s29, s{S_WU+1}, s{S_WG+1}")
        a("s_mov_b32 s30, 1966080")
        a("s_mov_b32 s31, 0x00020000")
        a("s_add_u32 s42, s42, s43")
        a("s_mul_i32 s3, s3, 192")
        a("s_movk_i32 s43, 3072")
        for i in range(3):
            a(f"v_add_u32 v8, s3, v2")
            if i: a(f"v_add_u32 v8, {64*i}, v8")
            a("v_mul_u32_u24 v10, 10923, v8")
            a("v_lshrrev_b32 v10, 16, v10")
            a("v_mul_u32_u24 v11, 6, v10")
            a("v_sub_u32 v11, v8, v11")
            a("v_lshlrev_b32 v11, 4, v11")
            a(f"v_mad_u32_u24 v{4+i}, v10, s43, v11")
        a("v_bfe_u32 v8, v2, 2, 2")
        a("v_lshrrev_b32 v10, 5, v2")
        a("v_lshl_add_u32 v8, v10, 3, v8")
        a("v_mul_u32_u24 v8, 96, v8")
        a("v_and_b32 v10, 3, v2")
        a("v_lshl_add_u32 v8, v10, 3, v8")
        a("v_bfe_u32 v10, v2, 4, 1")
        a(f"v_mul_u32_u24 v10, {GU_UP}, v10")
        a("v_add_u32 v7, v8, v10")
        a(f"v_add_u32 v8, {2*GU_BUF}, v7")
        for i in range(48):
            a(f"v_mov_b32 v{self.ACC+i}, 0")
    def dma_stage(self, st):
        a = self.a
        for i in range(3):
            a(f"s_add_u32 m0, s42, {(st % 3) * GU_BUF + 1024 * i}")
            a("s_nop 0")
            self.vm.issue(f"buffer_load_dwordx4 v{4+i}, s[28:31], s41 offen lds", ("W", st))
        a(f"s_add_u32 s41, s41, {128*3072}")
    def xload(self, s):
        r = self.XF + 4 * (s % self.XD)
        self.vm.issue(f"buffer_load_dwordx4 v[{r}:{r+3}], v9, s[32:35], s40 offen offset:{1024*(s%4)}{cfg.sc}", ("X", s))
        if s % 4 == 3: self.a("s_add_u32 s40, s40, 4096")
    def main(self, pre_dma, hook=None):
        a, vm, ACC, XF, WF, XD = self.a, self.vm, self.ACC, self.XF, self.WF, self.XD
        if pre_dma < 1: self.dma_stage(0)
        G0 = int(os.environ.get("G0", "4"))
        for s in range(G0): self.xload(s)
        a("s_barrier")
        for s in range(G0, XD): self.xload(s)
        if pre_dma < 2: self.dma_stage(1)
        nx = [XD]
        def reads(s):
            st, sp = s // 8, s % 8
            w = WF + 12 * (s % 2)
            buf = st % 3
            base = "v8" if buf == 2 else "v7"
            bo = 0 if buf == 2 else buf * GU_BUF
            AB = os.environ.get("ABL", "")
            for ft in range(3):
                if "b128" in AB and s > 1:
                    a(f"ds_read_b128 v[{w+4*ft}:{w+4*ft+3}], v9 offset:{bo + (sp*3+ft)*1024}")
                    a("s_nop 0") if False else None
                    continue
                for u in range(2):
                    if "notr" in AB and s > 1: continue
                    a(f"ds_read_b64_tr_b16 v[{w+4*ft+2*u}:{w+4*ft+2*u+1}], {base} offset:{bo + (16*sp+4*u)*96 + 32*ft}")
        def pre(s):
            if s % 8 == 0:
                st = s // 8
                vm.wait(lambda t: t == ("W", st), "lgkmcnt(0)" if s else "")
                if os.environ.get("GSTAMP") and st == 0: stamp(a, 12)
                a("s_barrier")
                if st in (0, 2, 4): stamp(a, 3 + st // 2)
                if st >= 1 and st + 2 < 5:
                    self.dma_stage(st + 2)
        pre(0); reads(0)
        for s in range(40):
            if s + 1 < 40:
                pre(s + 1); reads(s + 1)
                vm.wait(lambda t: t == ("X", s), "lgkmcnt(3)" if "b128" in os.environ.get("ABL", "") and s > 0 else "lgkmcnt(6)")
            else:
                vm.wait(lambda t: t == ("X", s), "lgkmcnt(0)")
            w = WF + 12 * (s % 2)
            x = XF + 4 * (s % XD)
            for ft in range(3):
                D = f"v[{ACC+16*ft}:{ACC+16*ft+15}]"
                if "m16" in os.environ.get("ABL", ""):
                    for q in range(2):
                        d = ACC + 16 * ft + 8 * q + 4 * (s % 2)
                        a(f"v_mfma_f32_16x16x32_bf16 v[{d}:{d+3}], v[{w+4*ft}:{w+4*ft+3}], v[{x}:{x+3}], v[{d}:{d+3}]")
                else:
                    a(f"v_mfma_f32_32x32x16_bf16 {D}, v[{w+4*ft}:{w+4*ft+3}], v[{x}:{x+3}], {D}")
            for _ in range(2):
                if nx[0] <= s + XD and nx[0] < 40:
                    self.xload(nx[0]); nx[0] += 1
            if s == 2 and pre_dma < 3: self.dma_stage(2)
            if s == 6 and hook: hook()
        stamp(a, 6)
        a("s_setprio 3")
        a("s_mul_i32 s50, s26, 96")
        a("s_mul_i32 s3, s24, 3")
        a("s_add_u32 s50, s50, s3")
        a("s_lshl_b32 s50, s50, 10")
        a(f"s_add_u32 s50, s50, {WS_H}")
        a(f"s_mov_b32 s52, {f2hex(-1.4426950408889634)}")
        a("s_mov_b32 s53, s52")
        a("s_mov_b32 s54, 1.0")
        a("s_mov_b32 s55, 1.0")
        a("s_nop 1")
        T = XF
        for ft in range(3):
            g = ACC + 16 * ft; u = g + 8
            for i in range(0, 8, 2):
                a(f"v_pk_mul_f32 v[{T+i}:{T+i+1}], v[{g+i}:{g+i+1}], s[52:53]")
            for i in range(8):
                a(f"v_exp_f32 v{T+i}, v{T+i}")
            for i in range(0, 8, 2):
                a(f"v_pk_add_f32 v[{T+i}:{T+i+1}], v[{T+i}:{T+i+1}], s[54:55]")
            for i in range(8):
                a(f"v_rcp_f32 v{T+i}, v{T+i}")
            for i in range(0, 8, 2):
                a(f"v_pk_mul_f32 v[{g+i}:{g+i+1}], v[{g+i}:{g+i+1}], v[{u+i}:{u+i+1}]")
            for i in range(0, 8, 2):
                a(f"v_pk_mul_f32 v[{g+i}:{g+i+1}], v[{g+i}:{g+i+1}], v[{T+i}:{T+i+1}]")
            for i in range(4):
                a(f"v_cvt_pk_bf16_f32 v{g+i}, v{g+2*i}, v{g+2*i+1}")
            a(f"buffer_store_dwordx4 v[{g}:{g+3}], v9, s[32:35], s50 offen offset:{1024*ft}{cfg.sc}")
        stamp(a, 7)

class GU16(GU):
    def setup(self):
        a = self.a
        GU.setup(self)
        a("v_lshrrev_b32 v10, 4, v2")
        a("v_and_b32 v11, 15, v2")
        a("v_lshlrev_b32 v3, 4, v11")
        a("v_lshl_add_u32 v3, v10, 9, v3")
        a("v_and_b32 v12, 1, v10")
        a("v_lshlrev_b32 v14, 4, v11")
        a("v_lshl_add_u32 v14, v12, 9, v14")
        a("v_lshrrev_b32 v13, 5, v2")
        a("v_lshl_add_u32 v14, v13, 8, v14")
        a("v_bfe_u32 v8, v2, 2, 2")
        a("v_lshl_add_u32 v8, v10, 3, v8")
        a("v_lshl_add_u32 v7, v12, 2, v8")
        a("v_xor_b32 v8, 4, v7")
        a("v_and_b32 v10, 3, v2")
        a("v_lshlrev_b32 v10, 3, v10")
        a("s_movk_i32 s3, 96")
        a("v_mad_u32_u24 v7, v7, s3, v10")
        a("v_mad_u32_u24 v8, v8, s3, v10")
        a(f"v_add_u32 v12, {2*GU_BUF}, v7")
        a(f"v_add_u32 v13, {2*GU_BUF}, v8")
    def xload(self, k):
        r = self.XF + 8 * (k % 4)
        for th in range(2):
            self.vm.issue(f"buffer_load_dwordx4 v[{r+4*th}:{r+4*th+3}], v3, s[32:35], s40 offen offset:{2048*(k%2) + 256*th}{cfg.sc}", ("X", k))
        if k % 2 == 1: self.a("s_add_u32 s40, s40, 4096")
    def main(self, pre_dma, hook=None):
        a, vm, ACC, XF, WF = self.a, self.vm, self.ACC, self.XF, self.WF
        self.dma_stage(0)
        self.xload(0); self.xload(1)
        a("s_barrier")
        self.xload(2); self.xload(3)
        self.dma_stage(1)
        def reads(s):
            st, sp, reg = s // 8, (s % 8) // 2, s % 2
            w = WF + 12 * (s % 2)
            buf = st % 3
            bo = (0 if buf == 2 else buf * GU_BUF) + reg * GU_UP + 32 * sp * 96
            for ft in range(3):
                for u in range(2):
                    base = (12 if buf == 2 else 7) + u
                    a(f"ds_read_b64_tr_b16 v[{w+4*ft+2*u}:{w+4*ft+2*u+1}], v{base} offset:{bo + 32*ft}")
        def pre(s):
            if s % 8 == 0:
                st = s // 8
                vm.wait(lambda t: t == ("W", st), "lgkmcnt(0)" if s else "")
                a("s_barrier")
                if st in (0, 2, 4): stamp(a, 3 + st // 2)
                if st >= 1 and st + 2 < 5:
                    self.dma_stage(st + 2)
        pre(0); reads(0)
        for s in range(40):
            k = s // 2
            lg = "lgkmcnt(6)" if s + 1 < 40 else "lgkmcnt(0)"
            if s + 1 < 40:
                pre(s + 1); reads(s + 1)
            vm.wait(lambda t: t == ("X", k), lg)
            w = WF + 12 * (s % 2)
            x = XF + 8 * (k % 4)
            for ft in range(3):
                for th in range(2):
                    d = ACC + 16 * ft + 8 * (s % 2) + 4 * th
                    a(f"v_mfma_f32_16x16x32_bf16 v[{d}:{d+3}], v[{w+4*ft}:{w+4*ft+3}], v[{x+4*th}:{x+4*th+3}], v[{d}:{d+3}]")
            if s % 2 == 1 and k + 4 < 20: self.xload(k + 4)
            if s == 2: self.dma_stage(2)
            if s == 6 and hook: hook()
        stamp(a, 6)
        a("s_setprio 3")
        a("s_mul_i32 s50, s26, 96")
        a("s_mul_i32 s3, s24, 3")
        a("s_add_u32 s50, s50, s3")
        a("s_lshl_b32 s50, s50, 10")
        a(f"s_add_u32 s50, s50, {WS_H}")
        a(f"s_mov_b32 s52, {f2hex(-1.4426950408889634)}")
        a("s_mov_b32 s53, s52")
        a("s_mov_b32 s54, 1.0")
        a("s_mov_b32 s55, 1.0")
        T = XF
        for ft in range(3):
            g = ACC + 16 * ft; u = g + 8
            for i in range(0, 8, 2):
                a(f"v_pk_mul_f32 v[{T+i}:{T+i+1}], v[{g+i}:{g+i+1}], s[52:53]")
            for i in range(8):
                a(f"v_exp_f32 v{T+i}, v{T+i}")
            for i in range(0, 8, 2):
                a(f"v_pk_add_f32 v[{T+i}:{T+i+1}], v[{T+i}:{T+i+1}], s[54:55]")
            for i in range(8):
                a(f"v_rcp_f32 v{T+i}, v{T+i}")
            for i in range(0, 8, 2):
                a(f"v_pk_mul_f32 v[{g+i}:{g+i+1}], v[{g+i}:{g+i+1}], v[{u+i}:{u+i+1}]")
            for i in range(0, 8, 2):
                a(f"v_pk_mul_f32 v[{g+i}:{g+i+1}], v[{g+i}:{g+i+1}], v[{T+i}:{T+i+1}]")
            for i in range(4):
                a(f"v_cvt_pk_bf16_f32 v{g+i}, v{g+2*i}, v{g+2*i+1}")
            a("s_nop 1")
            a(f"v_permlane32_swap_b32 v{g}, v{g+2}")
            a(f"v_permlane32_swap_b32 v{g+1}, v{g+3}")
            a(f"buffer_store_dwordx4 v[{g}:{g+3}], v14, s[32:35], s50 offen offset:{1024*ft}{cfg.sc}")
        stamp(a, 7)

def fin_decode(a):
    a("s_and_b32 s3, s2, 255")
    a("s_and_b32 s24, s3, 7")
    a("s_lshr_b32 s26, s3, 3")
    a("s_lshr_b32 s27, s24, 1")
    a("s_lshl_b32 s27, s27, 3")
    a("s_and_b32 s3, s26, 7")
    a("s_add_u32 s27, s27, s3")
    a("s_and_b32 s24, s24, 1")
    a("s_lshl_b32 s24, s24, 2")
    a("s_lshr_b32 s26, s26, 3")
    a("s_add_u32 s24, s24, s26")

class FIN:
    ACC, XF, WF = 16, 56, 88
    DV = [4, 5, 6, 7, 8]
    TD, TM, TR = 11, 12, 13
    def __init__(self, a):
        self.a = a; self.vm = VM(a); self.q = [[], []]
    def roles(self):
        a = self.a
        a("s_and_b32 s46, s25, 1")
        a("s_lshr_b32 s47, s25, 1")
        a("s_mov_b32 s56, s25")
    BOFF = 0
    def zero_acc(self):
        for i in range(40):
            self.a(f"v_mov_b32 v{self.ACC+i}, 0")
    def setup(self, zero_acc=True):
        a = self.a
        srd(a, 28, S_WD, 1966080)
        srd(a, 36, S_WO, 819200)
        self.roles()
        a("s_lshl_b32 s26, s27, 1")
        a("s_add_u32 s26, s26, s46")
        a("s_lshl_b32 s3, s47, 11")
        a("s_mul_i32 s40, s26, 98304")
        a("s_add_u32 s40, s40, s3")
        a(f"s_add_u32 s40, s40, {WS_H}")
        a("s_mul_i32 s43, s26, 40960")
        a("s_add_u32 s43, s43, s3")
        a(f"s_add_u32 s43, s43, {WS_O}")
        a("s_mul_i32 s41, s24, 160")
        a("s_mul_i32 s3, s25, 40960")
        a("s_add_u32 s41, s41, s3")
        a("s_mov_b32 s44, s41")
        a("s_mul_i32 s49, s25, 5120")
        a("s_and_b32 s3, s25, 3")
        a("s_mul_i32 s42, s3, 5120")
        a("s_lshr_b32 s48, s25, 2")
        a("v_lshrrev_b32 v10, 4, v2")
        a("v_and_b32 v14, 15, v2")
        a("v_lshlrev_b32 v3, 4, v14")
        a("v_lshl_add_u32 v3, v10, 9, v3")
        a("s_movk_i32 s3, 1280")
        for b in range(5):
            a(f"v_add_u32 v11, {64*b}, v2")
            a("v_mul_u32_u24 v12, 6554, v11")
            a("v_lshrrev_b32 v12, 16, v12")
            a("v_mul_u32_u24 v13, 10, v12")
            a("v_sub_u32 v13, v11, v13")
            a("v_lshlrev_b32 v13, 4, v13")
            a(f"v_mad_u32_u24 v{self.DV[b]}, v12, s3, v13")
        a("s_lshl_b32 s45, s26, 5")
        a("v_add_u32 v14, s45, v14")
        a("v_mul_u32_u24 v14, 1280, v14")
        a("v_lshl_add_u32 v14, v10, 3, v14")
        a("s_mul_i32 s45, s24, 160")
        a("v_add_u32 v14, s45, v14")
        a("v_bfe_u32 v10, v2, 2, 2")
        a("v_bfe_u32 v15, v2, 4, 1")
        a("v_lshrrev_b32 v1, 5, v2")
        a("v_and_b32 v0, 3, v2")
        a("v_lshlrev_b32 v0, 3, v0")
        a("s_movk_i32 s3, 160")
        a(f"v_lshl_add_u32 v{self.TD}, v1, 4, v10")
        a(f"v_lshl_add_u32 v{self.TD}, v15, 2, v{self.TD}")
        a(f"v_mad_u32_u24 v{self.TD}, v{self.TD}, s3, v0")
        a("s_mul_i32 s45, s47, 5120")
        a(f"v_add_u32 v{self.TD}, s45, v{self.TD}")
        a(f"v_mul_u32_u24 v{self.TM}, 20, v1")
        a(f"v_lshl_add_u32 v{self.TM}, v15, 2, v{self.TM}")
        a(f"v_add_u32 v{self.TM}, v{self.TM}, v10")
        a(f"v_mad_u32_u24 v{self.TM}, v{self.TM}, s3, v0")
        a("s_mul_i32 s45, s47, 6400")
        a(f"v_add_u32 v{self.TM}, s45, v{self.TM}")
        a(f"v_mul_u32_u24 v{self.TR}, 80, v1")
        a("v_mul_u32_u24 v15, 20, v15")
        a(f"v_add3_u32 v{self.TR}, v{self.TR}, v15, v10")
        a(f"v_mad_u32_u24 v{self.TR}, v{self.TR}, s3, v0")
        a(f"v_add_u32 v{self.TR}, {16*160}, v{self.TR}")
        if zero_acc: self.zero_acc()
    def dma_wd(self, m):
        a = self.a
        L = uid("L_dwd")
        a(f"s_cmp_lg_u32 s48, {m % 2}")
        a(f"s_cbranch_scc1 {L}")
        for b in range(5):
            a(f"s_add_u32 m0, s42, {((m + self.BOFF) % 4) * 20480 + 1024 * b}")
            a("s_nop 0")
            a(f"buffer_load_dwordx4 v{self.DV[b]}, s[28:31], s41 offen lds")
        a(f"s_add_u32 s41, s41, {256*1280}")
        a.label(L)
        self.q[m % 2] += [("W", m)] * 5
    def hload(self, m):
        r = self.XF + 8 * (m % 4)
        for th in range(2):
            self.a(f"buffer_load_dwordx4 v[{r+4*th}:{r+4*th+3}], v3, s[32:35], s40 offen offset:{256*th}{cfg.sc}")
            for q in self.q: q.append(("X", m))
        self.a("s_add_u32 s40, s40, 8192")
    def wait2(self, preds, extra=""):
        n = 63
        for q in self.q:
            last = max([i for i, t in enumerate(q) if t in preds], default=-1)
            if last >= 0: n = min(n, len(q) - 1 - last)
        if n == 63:
            if extra: self.a(f"s_waitcnt {extra}")
            return
        self.a(f"s_waitcnt vmcnt({n}) {extra}".strip())
        self.q = [q[max(0, len(q) - n):] if n > 0 else [] for q in self.q]
    def wreads(self, w, base, off, ustep):
        for ft in range(5):
            for u in range(2):
                self.a(f"ds_read_b64_tr_b16 v[{w+4*ft+2*u}:{w+4*ft+2*u+1}], v{base} offset:{off + ustep*u + 32*ft}")
    def mfmas(self, w, x):
        for ft in range(5):
            for th in range(2):
                d = self.ACC + 4 * (5 * th + ft)
                self.a(f"v_mfma_f32_16x16x32_bf16 v[{d}:{d+3}], v[{w+4*ft}:{w+4*ft+3}], v[{x+4*th}:{x+4*th+3}], v[{d}:{d+3}]")
    def down(self, npre=4):
        a = self.a
        for m in range(2): self.hload(m)
        nw = npre
        nh = 2
        TD2 = 15
        a(f"v_add_u32 v{TD2}, 40960, v{self.TD}")
        def reads(m):
            base = self.TD if (m % 4) < 2 else TD2
            self.wreads(self.WF + 20 * (m % 2), base, (m % 2) * 20480, 1280)
        self.wait2([("W", 0)])
        a("s_barrier")
        if not os.environ.get("GSTAMP"): stamp(a, 9)
        reads(0)
        for m in range(12):
            if m + 1 < 12:
                self.wait2([("W", m + 1)], "lgkmcnt(0)")
                a("s_barrier")
                reads(m + 1)
                for _ in range(2):
                    if nw <= m + 4 and nw < 12:
                        self.dma_wd(nw); nw += 1
                if m == 9:
                    a("s_waitcnt vmcnt(0)")
                    self.q = [[], []]
                    self.wo_dma((0, 8), 0, 0)
                if m == 10:
                    self.wo_dma((0, 4), 8, 8)
                self.wait2([("X", m)])
            else:
                self.wait2([("X", m)], "lgkmcnt(0)")
            self.mfmas(self.WF + 20 * (m % 2), self.XF + 8 * (m % 4))
            for _ in range(2):
                if nh <= m + 4 and nh < 12:
                    self.hload(nh); nh += 1
        if not os.environ.get("GSTAMP"): stamp(a, 10)
    def wo_dma(self, cond, first_group, lds_group):
        a = self.a
        lo, hi = cond
        L = uid("L_wod")
        if lo > 0:
            a(f"s_cmp_lt_u32 s25, {lo}")
            a(f"s_cbranch_scc1 {L}")
        if hi < 8:
            a(f"s_cmp_ge_u32 s25, {hi}")
            a(f"s_cbranch_scc1 {L}")
        a(f"s_add_u32 s3, s44, {(first_group - lo) * 32 * 1280}")
        for b in range(5):
            a(f"s_add_u32 m0, s49, {(lds_group - lo) * 5120 + 1024 * b}")
            a("s_nop 0")
            a(f"buffer_load_dwordx4 v{self.DV[b]}, s[36:39], s3 offen lds")
        a.label(L)
    def wo_prefetch(self, after_first=None):
        a = self.a
        if after_first is None:
            a("s_waitcnt vmcnt(5)")
            a("s_cmp_lt_u32 s25, 4")
            a("s_cbranch_scc1 L_fin_p0")
        a("s_waitcnt vmcnt(0)")
        a.label("L_fin_p0")
        a("s_barrier")
        if after_first: after_first()
        self.wo_dma((4, 7), 12, 12)
        self.wreads(self.WF + 20, self.TM, 0, 1280)
        a("s_cmp_lg_u32 s47, 0")
        a("s_cbranch_scc1 L_fin_p1")
        self.wreads(self.WF, self.TR, 0, 6400)
        a.label("L_fin_p1")
        a("s_cmp_eq_u32 s47, 3")
        a("s_cselect_b32 s3, 0, s47")
        a("s_mul_i32 s3, s3, 25600")
        a(f"v_add_u32 v{self.TR}, s3, v{self.TR}")
        a("s_waitcnt lgkmcnt(0)")
        a("s_barrier")
        self.wo_dma((0, 5), 15, 0)
        srd(a, 28, S_X, 2621440)
        for i in range(3):
            a(f"s_add_u32 s3, s47, {4*i}")
            a("s_cmp_ge_u32 s3, 5")
            a(f"s_cselect_b32 s50, {20480 - 160}, 0")
            a("s_lshl_b32 s51, s3, 5")
            a(f"s_add_u32 s{52+i}, s50, s51")
        a("s_cmp_ge_u32 s47, 2")
        a("s_cselect_b32 s54, s53, s54")
        a("buffer_load_dwordx2 v[0:1], v14, s[28:31], s52 offen")
    def wo_main(self):
        a, vm = self.a, self.vm
        vm.q = []
        XS = {4: 56, 0: 64, 1: 72, 2: 80, 3: 4}
        def oload(rd):
            a(f"s_add_u32 s3, s43, {8192*rd}")
            for th in range(2):
                r = XS[rd] + 4 * th
                vm.issue(f"buffer_load_dwordx4 v[{r}:{r+3}], v3, s[32:35], s3 offen offset:{256*th}{cfg.sc}", ("X", rd))
        for rd in (4, 0, 1, 2, 3): oload(rd)
        srd(a, 36, S_OUT, 2621440)
        A, B = self.WF, self.WF + 20
        a("s_cmp_eq_u32 s47, 0")
        a("s_cbranch_scc1 L_fin_r4")
        self.wreads(A, self.TR, 0, 6400)
        a.label("L_fin_r4")
        vm.wait(lambda t: t == ("X", 4), "lgkmcnt(0)")
        if os.environ.get("TAILSTAMP"): stamp(a, 1)
        self.mfmas(A, XS[4])
        self.wreads(A, self.TM, 160 * 160, 1280)
        vm.wait(lambda t: t == ("X", 0))
        self.mfmas(B, XS[0])
        self.wreads(B, self.TM, 320 * 160, 1280)
        vm.wait(lambda t: t == ("X", 1), "lgkmcnt(10)")
        self.mfmas(A, XS[1])
        self.wreads(A, self.TM, 0, 1280)
        vm.wait(lambda t: t == ("X", 2), "lgkmcnt(10)")
        self.mfmas(B, XS[2])
        for i in range(1, 3):
            vm.issue(f"buffer_load_dwordx2 v[{56+2*i}:{57+2*i}], v14, s[28:31], s{52+i} offen", ("R", i))
        vm.wait(lambda t: t == ("X", 3), "lgkmcnt(0)")
        a("s_barrier")
        self.mfmas(A, XS[3])
        if not os.environ.get("GSTAMP"): stamp(a, 12)
        a("v_lshlrev_b32 v9, 4, v2")
        a("s_mul_i32 s3, s56, 10240")
        a("v_add_u32 v10, s3, v9")
        for j in range(10):
            a(f"ds_write_b128 v10, v[{self.ACC+4*j}:{self.ACC+4*j+3}] offset:{1024*j}")
        a("s_mul_i32 s3, s46, 10240")
        a("s_lshl_b32 s50, s47, 10")
        a("s_add_u32 s3, s3, s50")
        a("v_add_u32 v10, s3, v9")
        a("s_waitcnt lgkmcnt(0)")
        if os.environ.get("TAILSTAMP"): stamp(a, 3)
        a("s_barrier")
        if os.environ.get("TAILSTAMP"): stamp(a, 4)
        R = 64
        for i in range(3):
            if i == 2:
                a("s_cmp_ge_u32 s47, 2")
                a("s_cbranch_scc1 L_fin_r2")
            for k in range(4):
                r = R + 16 * i + 4 * k
                off = 20480 * k + 4096 * i
                if off < 65536:
                    a(f"ds_read_b128 v[{r}:{r+3}], v10 offset:{off}")
                else:
                    a(f"v_add_u32 v11, 0x10000, v10")
                    a(f"ds_read_b128 v[{r}:{r+3}], v11 offset:{off-65536}")
        a.label("L_fin_r2")
        a("s_waitcnt vmcnt(0) lgkmcnt(0)")
        if os.environ.get("TAILSTAMP"): stamp(a, 5)
        for i in range(3):
            r = R + 16 * i; xr = 0 if i == 0 else 56 + 2 * i
            if i == 2:
                a("s_cmp_ge_u32 s47, 2")
                a("s_cbranch_scc1 L_fin_end")
            a(f"v_lshlrev_b32 v4, 16, v{xr}")
            a(f"v_and_b32 v5, 0xffff0000, v{xr}")
            a(f"v_lshlrev_b32 v6, 16, v{xr+1}")
            a(f"v_and_b32 v7, 0xffff0000, v{xr+1}")
            for h in range(2):
                a(f"v_pk_add_f32 v[{r+2*h}:{r+2*h+1}], v[{r+2*h}:{r+2*h+1}], v[{r+4+2*h}:{r+5+2*h}]")
                a(f"v_pk_add_f32 v[{r+8+2*h}:{r+9+2*h}], v[{r+8+2*h}:{r+9+2*h}], v[{r+12+2*h}:{r+13+2*h}]")
                a(f"v_pk_add_f32 v[{r+2*h}:{r+2*h+1}], v[{r+2*h}:{r+2*h+1}], v[{4+2*h}:{5+2*h}]")
                a(f"v_pk_add_f32 v[{r+2*h}:{r+2*h+1}], v[{r+2*h}:{r+2*h+1}], v[{r+8+2*h}:{r+9+2*h}]")
            a(f"v_cvt_pk_bf16_f32 v{r}, v{r}, v{r+1}")
            a(f"v_cvt_pk_bf16_f32 v{r+1}, v{r+2}, v{r+3}")
            a(f"buffer_store_dwordx2 v[{r}:{r+1}], v14, s[36:39], s{52+i} offen{os.environ.get('OUTSC', '')}")
        a.label("L_fin_end")
        if os.environ.get("TAILSTAMP"): stamp(a, 6)

WS_ST = 0x1480000
def qkv2_decode(a):
    a("s_and_b32 s24, s2, 7")
    a("s_lshr_b32 s26, s2, 3")
    a("s_mul_i32 s24, s24, 30")
    a("s_add_u32 s27, s24, s26")
    a("s_cmp_ge_u32 s27, 80")
    a("s_cselect_b32 s24, 1, 0")
    a("s_cmp_ge_u32 s27, 160")
    a("s_cselect_b32 s24, 2, s24")
    a("s_mul_i32 s26, s24, 80")
    a("s_sub_u32 s27, s27, s26")
    a("s_mul_i32 s26, s27, 205")
    a("s_lshr_b32 s26, s26, 10")
    a("s_mul_i32 s3, s26, 5")
    a("s_sub_u32 s27, s27, s3")
    a("s_mul_i32 s47, s24, 5")
    a("s_add_u32 s47, s47, s27")
    a("s_lshl_b32 s46, s47, 4")
    a("s_add_u32 s46, s46, s26")

def qkv2(a, nonce_check):
    ACC, XF, WF, CS, SEL, AD = 16, 48, 64, 72, 76, 80
    XA0, XA1, TW, DX, DW = 3, 4, 5, 6, 7
    NSL, RING = 20, 4
    L_CS, L_ST = 65536, 65536 + 1024
    vm = VM(a)
    srd(a, 28, S_WQKV, 2457600)
    srd(a, 36, S_X, 2621440)
    a("v_lshrrev_b32 v10, 2, v2")
    a("s_lshl_b32 s3, s25, 4")
    a("v_add_u32 v10, s3, v10")
    a("v_mul_u32_u24 v10, 1280, v10")
    a("v_lshrrev_b32 v11, 4, v2")
    a("v_and_b32 v12, 3, v2")
    a("v_xor_b32 v13, v12, v11")
    a(f"v_lshl_add_u32 v{DX}, v13, 4, v10")
    a("s_lshl_b32 s3, s25, 2")
    a("v_add_u32 v10, s3, v11")
    a("v_mul_u32_u24 v10, 3840, v10")
    a("v_bfe_u32 v13, v2, 2, 2")
    a("v_xor_b32 v13, v13, v11")
    a("v_lshl_add_u32 v10, v13, 6, v10")
    a(f"v_lshl_add_u32 v{DW}, v12, 4, v10")
    a("s_mul_i32 s40, s26, 163840")
    a("s_lshl_b32 s41, s47, 8")
    a("s_lshl_b32 s42, s25, 10")
    def dma(sl):
        base = (sl % RING) * 16384
        a(f"s_add_u32 m0, s42, {base}")
        a("s_nop 0")
        vm.issue(f"buffer_load_dwordx4 v{DX}, s[36:39], s40 offen lds", ("S", sl))
        a(f"s_add_u32 m0, s42, {base + 8192}")
        a("s_add_u32 s40, s40, 64")
        vm.issue(f"buffer_load_dwordx4 v{DW}, s[28:31], s41 offen lds", ("S", sl))
        a(f"s_add_u32 s41, s41, {32*3840}")
    for sl in range(RING): dma(sl)
    stamp(a, 1)
    a("s_lshr_b32 s48, s25, 2")
    a("s_and_b32 s49, s25, 3")
    a("v_and_b32 v10, 31, v2")
    a("v_lshrrev_b32 v8, 5, v2")
    a("v_bfe_u32 v11, v2, 2, 2")
    a("v_xor_b32 v12, v8, v11")
    a("v_lshlrev_b32 v13, 6, v10")
    a("s_lshl_b32 s3, s48, 12")
    a("v_add_u32 v13, s3, v13")
    a(f"v_lshl_add_u32 v{XA0}, v12, 4, v13")
    a(f"v_xor_b32 v{XA1}, 32, v{XA0}")
    a("v_lshl_add_u32 v12, v8, 3, v11")
    a("v_lshlrev_b32 v12, 8, v12")
    a("v_xor_b32 v13, s49, v11")
    a("v_lshl_add_u32 v12, v13, 6, v12")
    a("v_bfe_u32 v13, v2, 4, 1")
    a("v_lshl_add_u32 v12, v13, 5, v12")
    a("v_add_u32 v12, 8192, v12")
    a("v_and_b32 v14, 15, v2")
    a("v_cmp_eq_u32 vcc, v14, v13")
    a("v_mov_b32 v14, 0x3f803f80")
    for i in range(32): a(f"v_mov_b32 v{ACC+i}, 0")
    a("v_cndmask_b32 v14, 0, v14, vcc")
    for i in range(4):
        a(f"v_mov_b32 v{SEL+i}, v14")
        a(f"v_mov_b32 v{CS+i}, 0")
    a("s_lshl_b32 s3, s26, 8")
    a(f"s_add_u32 s50, s3, {F_XN}")
    a("v_lshlrev_b32 v15, 3, v10")
    a("s_lshl_b32 s51, s26, 10")
    a(f"s_add_u32 s51, s51, {WS_ST}")
    a("s_lshl_b32 s43, s26, 2")
    a("s_lshl_b32 s3, s48, 1")
    a("s_add_u32 s43, s43, s3")
    a("s_cmp_eq_u32 s24, 2")
    a("s_cbranch_scc1 L_q2_V")
    a("v_and_b32 v13, 1, v2")
    a("v_lshl_add_u32 v12, v13, 4, v12")
    a("v_bfe_u32 v13, v2, 1, 1")
    a(f"v_lshl_add_u32 v{TW}, v13, 3, v12")
    a("s_lshl_b32 s45, s43, 10")
    a(f"s_add_u32 s45, s45, {WS_QM}")
    a("s_lshl_b32 s44, s43, 8")
    a(f"s_add_u32 s44, s44, {WS_QR}")
    a("s_mov_b32 s52, 65536")
    a("s_mov_b32 s53, 16384")
    a("s_movk_i32 s54, 1024")
    a("s_movk_i32 s55, 256")
    a(f"s_mov_b32 s63, {f2hex(QSCALE)}")
    a("s_cmp_eq_u32 s24, 0")
    a("s_cbranch_scc1 L_q2_isq")
    a("s_mul_i32 s45, s43, 2560")
    a(f"s_add_u32 s45, s45, {WS_KV}")
    a("s_add_u32 s44, s45, 1024")
    a("s_mov_b32 s52, 163840")
    a("s_mov_b32 s53, 163840")
    a("s_movk_i32 s54, 2560")
    a("s_movk_i32 s55, 2560")
    a("s_mov_b32 s63, 1.0")
    a.label("L_q2_isq")
    a("s_lshl_b32 s3, s27, 2")
    a("s_add_u32 s3, s3, s49")
    a("s_lshl_b32 s3, s3, 2")
    a("v_add_u32 v11, s3, v8")
    a("v_lshl_add_u32 v12, v10, 4, s45")
    a("v_lshl_add_u32 v13, v10, 3, s44")
    for q in range(2):
        a(f"v_add_u32 v14, {2*q}, v11")
        a("v_mul_u32_u24 v1, 205, v14")
        a("v_lshrrev_b32 v1, 10, v1")
        a("v_mul_u32_u24 v0, 5, v1")
        a("v_sub_u32 v14, v14, v0")
        a("v_lshlrev_b32 v1, 1, v1")
        a("v_mul_lo_u32 v0, v1, s53")
        a(f"v_add_u32 v{AD+3*q+1}, v0, v13")
        a(f"v_add_u32 v{AD+3*q+2}, s53, v{AD+3*q+1}")
        a("v_cmp_lt_u32 vcc, 2, v14")
        a("v_subrev_u32 v0, 3, v14")
        a("s_nop 0")
        a("v_addc_co_u32 v1, s[86:87], 0, v1, vcc")
        a("v_cndmask_b32 v0, v14, v0, vcc")
        a("v_mul_lo_u32 v1, v1, s52")
        a("v_lshl_add_u32 v0, v0, 9, v12")
        a("v_add_u32 v0, v0, v1")
        a("v_cmp_eq_u32 vcc, 2, v14")
        a(f"v_mov_b32 v1, {OOB - 0x100000}")
        a("s_nop 0")
        a(f"v_cndmask_b32 v{AD+3*q}, v0, v1, vcc")
        a(f"v_cndmask_b32 v{AD+3*q+1}, v1, v{AD+3*q+1}, vcc")
        a(f"v_cndmask_b32 v{AD+3*q+2}, v1, v{AD+3*q+2}, vcc")

    def loop(vtype):
        vq = list(vm.q)
        def reads(s):
            sl, sp = s // 2, s % 2
            base = (sl % RING) * 16384
            x = XF + 8 * (s % 2); w = WF + 4 * (s % 2)
            xa = XA1 if sp else XA0
            a(f"ds_read_b128 v[{x}:{x+3}], v{xa} offset:{base}")
            a(f"ds_read_b64_tr_b16 v[{w}:{w+1}], v{TW} offset:{base + 16*sp*256}")
            a(f"ds_read_b64_tr_b16 v[{w+2}:{w+3}], v{TW} offset:{base + (16*sp+4)*256}")
            a(f"ds_read_b128 v[{x+4}:{x+7}], v{xa} offset:{base + 2048}")
        def pre(s):
            if s % 2: return
            sl = s // 2
            vm.wait(lambda t: t == ("S", sl), "lgkmcnt(0)" if s else "")
            a("s_barrier")
            if sl in (0, 10): stamp(a, 2 if sl == 0 else 3)
            if PROFILE and os.environ.get("SLOTTRACE") and sl % 2 == 0 or (PROFILE and os.environ.get("SLOTTRACE") and sl > 14):
                a("s_memtime s[84:85]")
                a("s_waitcnt lgkmcnt(0)")
                a("s_sub_u32 s84, s84, s64")
                a(f"v_writelane_b32 v120, s84, {sl // 2 if sl <= 14 else sl - 7}")
            if sl >= 1 and sl - 1 + RING < NSL: dma(sl - 1 + RING)
            if cfg.fused:
                if sl == 6:
                    a("v_mov_b32 v0, 0")
                    vm.issue("buffer_load_dwordx2 v[88:89], v0, s[56:59], 0 offen sc1", ("N", 0))
                if sl == 11:
                    vm.wait(lambda t: t == ("N", 0))
                    nonce_check(88)
                    vm.issue("buffer_load_dwordx2 v[88:89], v15, s[32:35], s50 offen sc1", ("F", 0))
                if sl == 15:
                    vm.wait(lambda t: t == ("F", 0))
                    L = uid("L_q2f")
                    a("v_cmp_ne_u64 vcc, s[60:61], v[88:89]")
                    a(f"s_cbranch_vccz {L}")
                    a("v_add_u32 v0, s50, v15")
                    poll(a, 0, 88)
                    a.label(L)
            if sl == 15:
                a(f"s_mov_b32 m0, {L_ST}")
                a("s_nop 0")
                vm.issue(f"buffer_load_dwordx4 v9, s[32:35], s51 offen{cfg.sc} lds", ("T", 0))
        pre(0); reads(0)
        for s in range(2 * NSL):
            if s + 1 < 2 * NSL:
                pre(s + 1); reads(s + 1)
                a("s_waitcnt lgkmcnt(4)")
            else:
                a("s_waitcnt lgkmcnt(0)")
            x = XF + 8 * (s % 2); w = WF + 4 * (s % 2)
            for j in range(2):
                W = f"v[{w}:{w+3}]"; X = f"v[{x+4*j}:{x+4*j+3}]"
                A, B = (X, W) if vtype else (W, X)
                D = f"v[{ACC+16*j}:{ACC+16*j+15}]"
                a(f"v_mfma_f32_32x32x16_bf16 {D}, {A}, {B}, {D}")
            L = uid("L_q2s")
            a(f"s_cmp_lg_u32 s48, {s % 2}")
            a(f"s_cbranch_scc1 {L}")
            a(f"v_mfma_f32_16x16x32_bf16 v[{CS}:{CS+3}], v[{w}:{w+3}], v[{SEL}:{SEL+3}], v[{CS}:{CS+3}]")
            a.label(L)
        stamp(a, 6)
        if qkv_hook: qkv_hook()
        a("v_and_b32 v0, 15, v2")
        a("v_lshrrev_b32 v1, 4, v2")
        a("v_lshlrev_b32 v1, 4, v1")
        a("v_lshl_add_u32 v1, v0, 6, v1")
        a("s_lshl_b32 s3, s25, 7")
        a(f"s_add_u32 s3, s3, {L_CS}")
        a("v_add_u32 v1, s3, v1")
        a("v_cmp_gt_u32 vcc, 2, v0")
        a("s_nop 1")
        a("s_mov_b64 exec, vcc")
        a(f"ds_write_b128 v1, v[{CS}:{CS+3}]")
        a("s_mov_b64 exec, -1")
        vm.wait(lambda t: t == ("T", 0), "lgkmcnt(0)")
        a("s_barrier")
        vm.q = vq
    loop(False)
    C0, C1, MR = 48, 64, 88
    a("s_lshl_b32 s3, s49, 7")
    a(f"s_add_u32 s3, s3, {L_CS}")
    a("v_lshl_add_u32 v0, v8, 4, s3")
    for g in range(4):
        a(f"ds_read_b128 v[{C0+4*g}:{C0+4*g+3}], v0 offset:{32*g}")
        a(f"ds_read_b128 v[{C1+4*g}:{C1+4*g+3}], v0 offset:{512 + 32*g}")
    a("s_lshl_b32 s3, s48, 8")
    a(f"s_add_u32 s3, s3, {L_ST}")
    a("v_lshl_add_u32 v1, v10, 2, s3")
    for j in range(2):
        a(f"ds_read_b32 v{MR+4*j}, v1 offset:{128*j}")
        a(f"ds_read_b32 v{MR+4*j+2}, v1 offset:{512 + 128*j}")
    a("s_waitcnt lgkmcnt(0)")
    for i in range(0, 16, 2):
        a(f"v_pk_add_f32 v[{C0+i}:{C0+i+1}], v[{C0+i}:{C0+i+1}], v[{C1+i}:{C1+i+1}]")
    for j in range(2):
        a(f"v_mov_b32 v{MR+4*j+1}, v{MR+4*j}")
        a(f"v_mul_f32 v{MR+4*j+2}, s63, v{MR+4*j+2}")
        a(f"v_mov_b32 v{MR+4*j+3}, v{MR+4*j+2}")
    for j in range(2):
        for q in range(2):
            r = ACC + 16 * j + 8 * q
            for i in range(0, 8, 2):
                c = C0 + 8 * q + i
                a(f"v_pk_fma_f32 v[{r+i}:{r+i+1}], v[{c}:{c+1}], v[{MR+4*j}:{MR+4*j+1}], v[{r+i}:{r+i+1}]")
            for i in range(0, 8, 2):
                a(f"v_pk_mul_f32 v[{r+i}:{r+i+1}], v[{r+i}:{r+i+1}], v[{MR+4*j+2}:{MR+4*j+3}]")
            for i in range(4):
                a(f"v_cvt_pk_bf16_f32 v{r+i}, v{r+2*i}, v{r+2*i+1}")
            sm, sr_ = ("0", "0") if j == 0 else ("s54", "s55")
            a(f"buffer_store_dwordx4 v[{r}:{r+3}], v{AD+3*q}, s[32:35], {sm} offen{cfg.sc}")
            a(f"buffer_store_dwordx2 v[{r}:{r+1}], v{AD+3*q+1}, s[32:35], {sr_} offen{cfg.sc}")
            a(f"buffer_store_dwordx2 v[{r+2}:{r+3}], v{AD+3*q+2}, s[32:35], {sr_} offen{cfg.sc}")
    a("s_branch L_q2_done")
    a.label("L_q2_V")
    a("v_and_b32 v13, 3, v2")
    a(f"v_lshl_add_u32 v{TW}, v13, 3, v12")
    a("s_mul_i32 s45, s43, 2560")
    a(f"s_add_u32 s45, s45, {WS_KV + 1280}")
    a("s_lshl_b32 s3, s27, 2")
    a("s_add_u32 s3, s3, s49")
    a("s_lshl_b32 s3, s3, 5")
    a("v_add_u32 v13, s3, v10")
    a("v_mul_u32_u24 v11, 320, v8")
    a("v_add_u32 v11, s45, v11")
    a("s_mov_b32 s52, 163840")
    a("v_mul_u32_u24 v14, 3277, v13")
    a("v_lshrrev_b32 v14, 16, v14")
    a("v_mul_u32_u24 v1, 20, v14")
    a("v_sub_u32 v1, v13, v1")
    a("v_lshl_add_u32 v0, v1, 4, v11")
    a("v_mul_lo_u32 v14, v14, s52")
    a(f"v_add_u32 v{AD}, v0, v14")
    loop(True)
    MN, RS = 48, 88
    a("s_lshl_b32 s3, s49, 7")
    a(f"s_add_u32 s3, s3, {L_CS}")
    a("v_lshl_add_u32 v0, v10, 2, s3")
    a("ds_read_b32 v12, v0")
    a("ds_read_b32 v13, v0 offset:512")
    a("s_lshl_b32 s3, s48, 8")
    a(f"s_add_u32 s3, s3, {L_ST}")
    a("v_lshl_add_u32 v1, v8, 4, s3")
    for j in range(2):
        for g in range(4):
            a(f"ds_read_b128 v[{MN+16*j+4*g}:{MN+16*j+4*g+3}], v1 offset:{128*j + 32*g}")
            a(f"ds_read_b128 v[{RS+16*j+4*g}:{RS+16*j+4*g+3}], v1 offset:{512 + 128*j + 32*g}")
    a("s_waitcnt lgkmcnt(15)")
    a("v_add_f32 v12, v12, v13")
    a("v_mov_b32 v13, v12")
    a("s_waitcnt lgkmcnt(0)")
    for j in range(2):
        for gm in range(2):
            r = ACC + 16 * j + 8 * gm
            for i in range(0, 8, 2):
                m = MN + 16 * j + 8 * gm + i
                a(f"v_pk_fma_f32 v[{r+i}:{r+i+1}], v[{m}:{m+1}], v[12:13], v[{r+i}:{r+i+1}]")
            for i in range(0, 8, 2):
                m = RS + 16 * j + 8 * gm + i
                a(f"v_pk_mul_f32 v[{r+i}:{r+i+1}], v[{r+i}:{r+i+1}], v[{m}:{m+1}]")
            for i in range(4):
                a(f"v_cvt_pk_bf16_f32 v{r+i}, v{r+2*i}, v{r+2*i+1}")
            a(f"buffer_store_dwordx4 v[{r}:{r+3}], v{AD}, s[32:35], 0 offen offset:{2560*j + 640*gm}{cfg.sc}")
    a.label("L_q2_done")
    if PROFILE and os.environ.get("SLOTTRACE"):
        a("s_lshl_b32 s84, s2, 4")
        a("s_add_u32 s84, s84, s25")
        a("s_lshl_b32 s84, s84, 6")
        a(f"s_add_u32 s84, s84, {WS_PROF + 0x600000}")
        a("v_lshlrev_b32 v1, 2, v2")
        a("s_mov_b64 exec, 0xffff")
        a("buffer_store_dword v120, v1, s[32:35], s84 offen")
        a("s_mov_b64 exec, -1")
    stamp(a, 7)

def attn_flag_addr2(a, vd):
    a("s_mul_i32 s3, s24, 20")
    a("s_lshr_b32 s26, s3, 7")
    a("s_add_u32 s3, s3, 19")
    a("s_lshr_b32 s3, s3, 7")
    a("s_sub_u32 s3, s3, s26")
    a("v_bfe_u32 v11, v2, 4, 1")
    a("v_mul_u32_u24 v11, 5, v11")
    a("v_lshrrev_b32 v12, 5, v2")
    a("v_mul_lo_u32 v12, v12, s3")
    a("v_add3_u32 v11, v11, v12, s26")
    a("v_add_u32 v11, 5, v11")
    a("v_and_b32 v12, 15, v2")
    a(f"v_lshl_add_u32 v{vd}, v11, 4, v12")
    a(f"v_lshlrev_b32 v{vd}, {FSH}, v{vd}")
    a(f"v_add_u32 v{vd}, {F_QKV}, v{vd}")
    a("v_bfe_u32 v12, v2, 1, 1")
    a("v_mul_lo_u32 v12, v12, s3")
    a("v_add_u32 v12, s26, v12")
    a("v_and_b32 v11, 1, v2")
    a("s_lshl_b32 s3, s27, 1")
    a("v_lshl_add_u32 v12, v12, 4, v11")
    a("v_add_u32 v12, s3, v12")
    a(f"v_lshlrev_b32 v{vd+1}, {FSH}, v12")
    a(f"v_add_u32 v{vd+1}, {F_QKV}, v{vd+1}")

C_XN, C_QKV, C_H, C_O, C_QL = 0, 8, 40, 48, 64
NCNT = 320
def cnt_base(a):
    a(f"s_add_u32 s60, s{S_WS}, {WS_FL}")
    a(f"s_addc_u32 s61, s{S_WS+1}, 0")

def cnt_init(a):
    a("v_lshlrev_b32 v10, 7, v2")
    a("v_mov_b32 v11, 0")
    for i in range(NCNT // 64):
        a(f"s_mov_b32 s62, {WS_FL + i * 8192}")
        a("buffer_store_dword v11, v10, s[32:35], s62 offen sc1")
    srd(a, 56, S_DBG, 256)
    a("v_mov_b32 v10, 1")
    a("s_waitcnt vmcnt(0)")
    a("s_mov_b64 exec, 1")
    a("buffer_store_dword v10, v11, s[56:59], 0 offen sc1")
    a("s_mov_b64 exec, -1")

def go_issue(a, t=10):
    srd(a, 56, S_DBG, 256)
    a(f"v_mov_b32 v{t+1}, 0")
    a(f"buffer_load_dword v{t}, v{t+1}, s[56:59], 0 offen sc1")

def wait_go(a, t=10, issued=False, sleep=1):
    L = uid("L_go")
    a("s_mov_b32 s83, 0x40000")
    if issued:
        a(f"s_branch {L}_chk")
    else:
        srd(a, 56, S_DBG, 256)
        a(f"v_mov_b32 v{t+1}, 0")
    a.label(L)
    a(f"buffer_load_dword v{t}, v{t+1}, s[56:59], 0 offen sc1")
    a.label(L + "_chk")
    a("s_waitcnt vmcnt(0)")
    a(f"v_readfirstlane_b32 s62, v{t}")
    a("s_cmp_lg_u32 s62, 0")
    a(f"s_cbranch_scc1 {L}_ok")
    a(f"s_sleep {sleep}")
    a("s_sub_u32 s83, s83, 1")
    a(f"s_cbranch_scc0 {L}")
    a.label(L + "_ok")

def vpoll(a, offs, target, t=10, sleep=1):
    L = uid("L_vp")
    a(f"v_mov_b32 v{t+1}, s{offs[0]}")
    for i, o in enumerate(offs[1:], 1):
        a(f"v_writelane_b32 v{t+1}, s{o}, {i}")
    a(f"s_mov_b32 s62, {WS_FL}")
    a("s_mov_b32 s83, 0x40000")
    a(f"s_mov_b64 exec, {(1 << len(offs)) - 1}")
    a.label(L)
    a(f"buffer_load_dword v{t}, v{t+1}, s[32:35], s62 offen sc1")
    a("s_waitcnt vmcnt(0)")
    a(f"v_cmp_gt_u32 vcc, {target}, v{t}")
    a(f"s_cbranch_vccz {L}_ok")
    a(f"s_sleep {sleep}")
    a("s_sub_u32 s83, s83, 1")
    a(f"s_cbranch_scc0 {L}")
    a.label(L + "_ok")
    a("s_mov_b64 exec, -1")

def cadd(a, base, idx_sgpr, t=10):
    a(f"s_lshl_b32 s62, s{idx_sgpr}, 7")
    a(f"s_add_u32 s62, s62, {WS_FL + base * 128}")
    a(f"v_mov_b32 v{t}, 1")
    a(f"v_mov_b32 v{t+1}, 0")
    a("s_mov_b64 exec, 1")
    a(f"buffer_atomic_add v{t}, v{t+1}, s[32:35], s62 offen sc1")
    a("s_mov_b64 exec, -1")

def cpoll(a, offs, target, sleep=1):
    L = uid("L_cp")
    a("s_mov_b32 s83, 0x40000")
    a.label(L)
    for i, o in enumerate(offs):
        a(f"s_load_dword s{88+i}, s[60:61], s{o} glc")
    a("s_waitcnt lgkmcnt(0)")
    for i in range(1, len(offs)):
        a(f"s_min_u32 s88, s88, s{88+i}")
    a(f"s_cmp_ge_u32 s88, {target}")
    a(f"s_cbranch_scc1 {L}_ok")
    a(f"s_sleep {sleep}")
    a("s_sub_u32 s83, s83, 1")
    a(f"s_cbranch_scc0 {L}")
    a.label(L + "_ok")


WS_EX = 0x1500000
F_EX = WS_FL + 0x50000
class FIN2(FIN):
    BOFF = 2
    def roles(self):
        a = self.a
        a("s_and_b32 s46, s25, 1")
        a("s_bfe_u32 s3, s25, 0x10001")
        a("s_and_b32 s58, s27, 1")
        a("s_xor_b32 s57, s3, s58")
        a("s_lshr_b32 s47, s25, 2")
        a("s_lshl_b32 s3, s57, 1")
        a("s_add_u32 s47, s47, s3")
        a("s_lshl_b32 s56, s47, 1")
        a("s_add_u32 s56, s56, s46")
    def setup(self, zero_acc=True):
        a = self.a
        FIN.setup(self, zero_acc)
        a("s_lshr_b32 s3, s27, 1")
        a("s_lshl_b32 s3, s3, 2")
        a("s_and_b32 s45, s25, 3")
        a("s_add_u32 s3, s3, s45")
        a("s_mul_i32 s40, s3, 98304")
        a("s_mul_i32 s3, s58, 49152")
        a("s_add_u32 s40, s40, s3")
        a("s_lshl_b32 s3, s48, 11")
        a("s_add_u32 s40, s40, s3")
        a(f"s_add_u32 s40, s40, {WS_H}")
        a(f"s_mul_i32 s3, s58, {768*1280}")
        a("s_add_u32 s41, s41, s3")
        a("s_mul_i32 s3, s57, 10240")
        a(f"v_subrev_u32 v{self.TD}, s3, v{self.TD}")
        a("s_and_b32 s3, s56, 3")
        a("s_mul_i32 s59, s3, 5120")
        a("s_and_b32 s3, s2, 255")
        a("s_mul_i32 s3, s3, 20480")
        a("s_add_u32 s59, s59, s3")
        a(f"s_add_u32 s59, s59, {WS_EX}")
    def hload(self, m):
        r = self.XF + 8 * (m % 4)
        for th in range(2):
            self.a(f"buffer_load_dwordx4 v[{r+4*th}:{r+4*th+3}], v3, s[32:35], s40 offen offset:{256*th}{cfg.sc}")
            for q in self.q: q.append(("X", m))
        self.a("s_add_u32 s40, s40, 4096")
    def down(self, npre=4):
        a = self.a
        for m in range(2): self.hload(m)
        nw, nh = npre, 2
        TD2 = 15
        a(f"v_add_u32 v{TD2}, 40960, v{self.TD}")
        def reads(i):
            buf = (i // 2 + self.BOFF) % 4
            base = self.TD if buf < 2 else TD2
            self.wreads(self.WF + 20 * (i % 2), base, (buf % 2) * 20480 + (i % 2) * 10240, 1280)
        self.wait2([("W", 0)])
        a("s_barrier")
        stamp(a, 9)
        reads(0)
        for i in range(12):
            if i + 1 < 12:
                if i % 2 == 1:
                    sl = i // 2
                    self.wait2([("W", sl + 1)], "lgkmcnt(0)")
                    a("s_barrier")
                    reads(i + 1)
                    for _ in range(2):
                        if nw <= sl + 4 and nw < 6:
                            self.dma_wd(nw); nw += 1
                    if sl == 3:
                        self.wo_dma((0, 8), 0, 0)
                        for q in self.q: q += [("O", 0)] * 5
                    if sl == 4:
                        self.wo_dma((0, 4), 8, 8)
                        self.q[0] += [("O", 1)] * 5
                    self.wait2([("X", i)])
                else:
                    reads(i + 1)
                    self.wait2([("X", i)], "lgkmcnt(10)")
            else:
                self.wait2([("X", i)], "lgkmcnt(0)")
            self.mfmas(self.WF + 20 * (i % 2), self.XF + 8 * (i % 4))
            for _ in range(2):
                if nh <= i + 4 and nh < 12:
                    self.hload(nh); nh += 1
        stamp(a, 10)
        a("s_cmp_eq_u32 s57, 0")
        a("s_cbranch_scc1 L_fin_keep")
        a("s_add_u32 s3, s59, 4096")
        a("s_nop 4")
        for j in range(20):
            a(f"v_cvt_pk_bf16_f32 v{self.XF+j}, v{self.ACC+2*j}, v{self.ACC+2*j+1}")
            if j % 4 == 3:
                k = j // 4
                so, off = ("s59", 1024 * k) if k < 4 else ("s3", 0)
                a(f"buffer_store_dwordx4 v[{self.XF+4*k}:{self.XF+4*k+3}], v9, s[32:35], {so} offen offset:{off}{cfg.sc}")
        a.label("L_fin_keep")
    def receive(self):
        a = self.a
        a("s_cmp_eq_u32 s57, 0")
        a("s_cbranch_scc1 L_fin_got")
        a("s_bitcmp1_b32 s2, 3")
        a("s_cselect_b32 s3, -8, 8")
        a("s_mul_i32 s3, s3, 20480")
        a("s_add_u32 s59, s59, s3")
        a("s_add_u32 s3, s59, 4096")
        for k in range(5):
            so, off = ("s59", 1024 * k) if k < 4 else ("s3", 0)
            a(f"buffer_load_dwordx4 v[{self.XF+4+4*k}:{self.XF+7+4*k}], v9, s[32:35], {so} offen offset:{off}{cfg.sc}")
        a("s_waitcnt vmcnt(0)")
        for j in range(20):
            a(f"v_lshlrev_b32 v{self.ACC+2*j}, 16, v{self.XF+4+j}")
            a(f"v_and_b32 v{self.ACC+2*j+1}, 0xffff0000, v{self.XF+4+j}")
        a.label("L_fin_got")
```

```python
import sys, os
sys.path.insert(0, os.path.dirname(__file__))
from common import *
import roles
from roles import *
from gen2 import prologue, flush_attn

HEADER = open(os.path.join(os.path.dirname(__file__), "header.txt")).read()
PRE_DMA = int(os.environ.get("PRE_DMA", "0"))

def get_nonce(a, is_a):
    srd(a, 56, S_DBG, 256)
    L = uid("L_nonce")
    if is_a:
        a("s_add_u32 s3, s2, s25")
        a("s_cmp_lg_u32 s3, 0")
        a(f"s_cbranch_scc1 {L}")
        a("s_memrealtime s[60:61]")
        a("s_waitcnt lgkmcnt(0)")
        a("s_or_b32 s60, s60, 1")
        a("s_or_b32 s61, s61, 0x9e370000")
        a("v_mov_b32 v10, s60")
        a("v_mov_b32 v11, s61")
        a("v_mov_b32 v12, 0")
        a("s_mov_b64 exec, 1")
        a("buffer_store_dwordx2 v[10:11], v12, s[56:59], 0 offen sc1")
        a("s_mov_b64 exec, -1")
    a.label(L)

def wait_nonce(a, first_issued=False):
    L = uid("L_wn")
    a("s_mov_b32 s83, 0x40000")
    if first_issued:
        a(f"s_branch {L}_chk")
    else:
        a("v_mov_b32 v12, 0")
    a.label(L)
    a("buffer_load_dwordx2 v[10:11], v12, s[56:59], 0 offen sc1")
    a.label(L + "_chk")
    a("s_waitcnt vmcnt(0)")
    a("v_readfirstlane_b32 s60, v10")
    a("v_readfirstlane_b32 s61, v11")
    a("s_min_u32 s62, s60, s61")
    a("s_cmp_lg_u32 s62, 0")
    a(f"s_cbranch_scc1 {L}_ok")
    a("s_sleep 1")
    a("s_sub_u32 s83, s83, 1")
    a(f"s_cbranch_scc0 {L}")
    a.label(L + "_ok")

def flag_addr(a, vd, base, s_first, mask):
    a(f"v_and_b32 v{vd}, {mask}, v2")
    a(f"v_add_u32 v{vd}, s{s_first}, v{vd}")
    a(f"v_lshlrev_b32 v{vd}, {FSH}, v{vd}")
    a(f"v_add_u32 v{vd}, {base}, v{vd}")

def wave0(a, fn):
    L = uid("L_w0")
    a("s_cmp_lg_u32 s25, 0")
    a(f"s_cbranch_scc1 {L}")
    fn()
    a.label(L)

def warm_weights(a, part):
    a("s_sub_u32 s50, s2, 256")
    L = uid("L_warm")
    if part == 0:
        spec = [(S_WQKV, 2457600, 4800, 0), (S_WQKV, 2457600, 4800, 1228800)]
    else:
        spec = [(S_WD, 1966080, 3840, 0), (S_WD, 1966080, 3840, 983040), (S_WO, 819200, 3200, 0)]
    for w, (ptr, size, per, base) in enumerate(spec):
        a(f"s_cmp_lg_u32 s25, {w + 1}")
        a(f"s_cbranch_scc1 {L}_{w}")
        srd(a, 36, ptr, size)
        a(f"s_mul_i32 s51, s50, {per}")
        if base: a(f"s_add_u32 s51, s51, {base}")
        n = (per + 1023) // 1024
        for i in range(n):
            if i == 4: a("s_add_u32 s51, s51, 4096")
            r = 96 + 4 * (i % 8) if part == 0 else 120
            a(f"buffer_load_dwordx4 v[{r}:{r+3}], v9, s[36:39], s51 offen offset:{1024*(i%4)}")
        if part == 0: a("s_waitcnt vmcnt(0)")
        a.label(f"{L}_{w}")

def code_prefetch(a):
    L = uid("L_cpf")
    a("s_cmp_ge_u32 s2, 264")
    a(f"s_cbranch_scc1 {L}")
    a("s_cmp_lg_u32 s25, 7")
    a(f"s_cbranch_scc1 {L}")
    a("s_getpc_b64 s[50:51]")
    a.label(L + "_pc")
    a(f"s_sub_u32 s50, s50, {L}_pc-{NAME}_kernel")
    a("s_subb_u32 s51, s51, 0")
    a(f"s_mov_b32 s52, (L_end-{NAME}_kernel)/1024")
    a("v_mov_b32 v10, v9")
    a.label(L + "_l")
    a("global_load_dwordx4 v[96:99], v10, s[50:51]")
    a("v_add_u32 v10, 1024, v10")
    a("s_sub_u32 s52, s52, 1")
    a("s_cmp_lg_u32 s52, 0")
    a(f"s_cbranch_scc1 {L}_l")
    a("s_waitcnt vmcnt(0)")
    a.label(L)

def gen_fused():
    cfg.fused = True; cfg.sc = " sc1"
    a = Asm()
    prologue(a, 512, "L_end")
    a("s_cmp_ge_u32 s2, 256")
    a("s_cbranch_scc1 L_roleB")
    DRY = int(os.environ.get("DRY", "0"))
    WLATE = int(os.environ.get("WLATE", "1"))
    a("s_cmp_ge_u32 s25, 2")
    a("s_cbranch_scc1 L_a_noln")
    ln_issue(a)
    get_nonce(a, True)
    if not WLATE: a("s_barrier")
    ln_addr(a)
    a("s_waitcnt vmcnt(0)")
    stamp(a, 1)
    a("v_mov_b32 v12, 0")
    a("buffer_load_dwordx2 v[10:11], v12, s[56:59], 0 offen sc1")
    a.label("L_a_lnbody")
    ln_body(a)
    if DRY:
        a("s_cmp_ge_u32 s25, 2")
        a("s_cbranch_scc1 L_a_dry_done")
    ln_store(a)
    if WLATE: a("s_barrier")
    stamp(a, 2)
    wait_nonce(a, first_issued=True)
    stamp(a, 3)
    a("s_lshl_b32 s63, s2, 1")
    a("s_add_u32 s63, s63, s25")
    publish(a, F_XN, 63)
    a("s_branch L_a_ln_done")
    a.label("L_a_noln")
    W1 = int(os.environ.get("W1", "0"))
    if W1:
        a("s_cmp_lt_u32 s25, 4")
        a("s_cbranch_scc1 L_a_now1")
        a("s_cmp_ge_u32 s2, 240")
        a("s_cbranch_scc1 L_a_now1")
        qkv_decode(a)
        qkv_wdma(a, 0, W1)
        a.label("L_a_now1")
    if int(os.environ.get("TLB", "0")):
        a("s_cmp_lg_u32 s25, 3")
        a("s_cbranch_scc1 L_a_notlb")
        a("v_min_u32 v10, 10, v2")
        a("v_lshlrev_b32 v10, 21, v10")
        a("buffer_load_dword v11, v10, s[32:35], 0 offen")
        a.label("L_a_notlb")
    if DRY:
        if not WLATE: a("s_barrier")
        a("s_cmp_eq_u32 s25, 2")
        a("s_cbranch_scc1 L_a_lnbody")
        a.label("L_a_dry_done")
        a("s_waitcnt lgkmcnt(0)")
        if WLATE: a("s_barrier")
    else:
        a("s_barrier")
    a.label("L_a_ln_done")
    a("s_cmp_ge_u32 s2, 240")
    a("s_cbranch_scc1 L_a_spare")
    qkv_decode(a)
    a("s_cmp_lt_u32 s25, 4")
    a("s_cbranch_scc1 L_a_nodma")
    qkv_wdma(a, W1, 20)
    a.label("L_a_nodma")
    def gate():
        a("s_waitcnt vmcnt(0)")
        def f():
            a("s_and_b32 s63, s46, 7")
            a("s_lshl_b32 s63, s63, 6")
            flag_addr(a, 0, F_XN, 63, 63)
            poll(a, 0, 126, direct=bool(int(os.environ.get("DIRECT", "0"))))
        wave0(a, f)
        if os.environ.get("LNSTAMP"): stamp(a, 5)
        a("s_barrier")
        stamp(a, 4)
    BTRIG = os.environ.get("BTRIG", "qkv")
    if BTRIG == "loop": roles.qkv_hook = lambda: wave0(a, lambda: publish(a, F_QL, 2))
    if BTRIG == "attn": roles.attn_hook = lambda: wave0(a, lambda: publish(a, F_QL, 2))
    if BTRIG == "issue": roles.attn_hook0 = lambda: wave0(a, lambda: publish(a, F_QL, 2))
    qkv_main(a, gate)
    a("s_setprio 3")
    a("s_waitcnt vmcnt(0)")
    stamp(a, 8)
    a("s_barrier")
    wave0(a, lambda: publish(a, F_QKV, 46))
    if BTRIG == "qkv": wave0(a, lambda: publish(a, F_QL, 2))
    a("s_branch L_a_attn")
    a.label("L_a_spare")
    if int(os.environ.get("WARM", "1")) == 1:
        if int(os.environ.get("SPDELAY", "1")):
            def f():
                a("s_and_b32 s63, s2, 7")
                a("s_lshl_b32 s63, s63, 6")
                flag_addr(a, 12, F_XN, 63, 63)
                poll(a, 12, sleep=4)
            wave0(a, f)
            a("s_barrier")
        a("s_cmp_ge_u32 s25, 4")
        a(f"s_cselect_b32 s36, s{S_WU}, s{S_WG}")
        a(f"s_cselect_b32 s37, s{S_WU+1}, s{S_WG+1}")
        a("s_mov_b32 s38, 1966080")
        a("s_mov_b32 s39, 0x00020000")
        a("s_and_b32 s3, s25, 3")
        a("s_sub_u32 s50, s2, 240")
        a("s_lshl_b32 s50, s50, 2")
        a("s_add_u32 s50, s50, s3")
        a("s_lshl_b32 s50, s50, 10")
        for i in range(int(os.environ.get("SPN", "18"))):
            a(f"buffer_load_dwordx4 v[{16+4*(i%16)}:{19+4*(i%16)}], v9, s[36:39], s50 offen")
            a("s_add_u32 s50, s50, 65536")
        a("s_waitcnt vmcnt(0)")
    a("s_setprio 3")
    a.label("L_a_attn")
    attn_decode(a)
    def f():
        attn_flag_addr(a, 14)
        poll(a, 14, direct=bool(int(os.environ.get("DIRECT", "0"))))
    wave0(a, f)
    a("s_barrier")
    stamp(a, 9)
    attn_main(a)
    a("s_waitcnt vmcnt(0)")
    stamp(a, 12)
    a("s_barrier")
    def f():
        a("s_lshl_b32 s63, s27, 5")
        a("s_add_u32 s63, s63, s24")
        publish(a, F_O, 63)
    wave0(a, f)
    flush_attn(a, 0)
    dbg_flush(a, 8, [int(x) for x in os.environ.get('DBGA', '1,4,6,9,10,11,12').split(',')], 2)
    a("s_endpgm")
    a.label("L_roleB")
    gu_decode(a)
    g = (GU16 if XSWAP else GU)(a)
    WARM = int(os.environ.get("WARM", "1"))
    if int(os.environ.get("CODEPF", "1")): code_prefetch(a)
    if WARM and int(os.environ.get('WARMQ', '1')): warm_weights(a, 0)
    def f():
        get_nonce(a, False)
        wait_nonce(a)
    wave0(a, f)
    g.setup()
    for st in range(PRE_DMA): g.dma_stage(st)
    def f():
        if BTRIG not in ("attn", "issue"):
            a("s_lshl_b32 s63, s27, 6")
            flag_addr(a, 0, F_XN, 63, 63)
            poll(a, 0, sleep=8 if BTRIG != "xn" else 3)
        if BTRIG not in ("attn", "xn", "issue"):
            a("s_cmp_ge_u32 s2, 496")
            a("s_cbranch_scc1 L_b_noql")
        if BTRIG == "xn": return
        a("s_sub_u32 s63, s2, 256")
        if os.environ.get("SQL", "1") == "1":
            a(f"s_lshl_b32 s63, s63, {FSH}")
            a(f"s_add_u32 s63, s63, {F_QL}")
            a("s_mov_b32 s83, 0x40000")
            a.label("L_b_sq")
            a(f"s_load_dwordx2 s[88:89], s[{S_WS}:{S_WS+1}], s63 glc")
            a("s_waitcnt lgkmcnt(0)")
            a("s_cmp_eq_u64 s[88:89], s[60:61]")
            a("s_cbranch_scc1 L_b_noql")
            a(f"s_sleep {os.environ.get('BSLEEP', '4')}")
            a("s_sub_u32 s83, s83, 1")
            a("s_cbranch_scc0 L_b_sq")
        else:
            flag_addr(a, 0, F_QL, 63, 0)
            poll(a, 0, sleep=int(os.environ.get("BSLEEP", "4")), single=True)
        a.label("L_b_noql")
    wave0(a, f)
    a("s_barrier")
    stamp(a, 2)
    a(f"s_setprio {os.environ.get('PG', '0')}")
    def warm2():
        srd(a, 36, S_WD, 1966080)
        srd(a, 52, S_WO, 819200)
        a("s_sub_u32 s50, s2, 256")
        a("s_lshl_b32 s50, s50, 3")
        a("s_add_u32 s50, s50, s25")
        a("s_mul_i32 s51, s50, 960")
        a("s_mul_i32 s50, s50, 400")
        g.vm.issue("buffer_load_dwordx4 v[120:123], v9, s[36:39], s51 offen", ("P", 0))
        g.vm.issue("buffer_load_dwordx4 v[124:127], v9, s[52:55], s50 offen", ("P", 1))
    g.main(PRE_DMA, warm2 if WARM == 1 else None)
    a("s_lshl_b32 s63, s27, 5")
    a("s_add_u32 s63, s63, s24")
    fin_decode(a)
    SK = int(os.environ.get("SK", "0"))
    fn = (FIN2 if SK else FIN)(a); fn.setup(zero_acc=False)
    a("s_waitcnt vmcnt(0)")
    if os.environ.get("LNSTAMP"): stamp(a, 1)
    a("s_barrier")
    wave0(a, lambda: publish(a, F_H, 63, t=56))
    NPRE = int(os.environ.get("NPRE", "4"))
    for m in range(NPRE): fn.dma_wd(m)
    fn.zero_acc()
    def f():
        a("s_lshr_b32 s63, s27, 2")
        a("s_lshl_b32 s63, s63, 5")
        if SK:
            a("s_lshl_b32 s3, s58, 4")
            a("s_add_u32 s62, s63, s3")
            flag_addr(a, 0, F_H, 62, 15)
        else:
            flag_addr(a, 0, F_H, 63, 31)
        poll(a, 0, 56, direct=bool(int(os.environ.get("HDIRECT", "1"))))
    wave0(a, f)
    a("s_barrier")
    stamp(a, 8)
    a(f"s_setprio {os.environ.get('PD', '0')}")
    fn.down(NPRE)
    if SK:
        def pub():
            a("s_and_b32 s45, s2, 255")
            wave0(a, lambda: publish(a, F_EX, 45, t=56))
        fn.wo_prefetch(pub)
        def f():
            a("s_xor_b32 s45, s45, 8")
            a(f"s_lshl_b32 s45, s45, {FSH}")
            a(f"s_add_u32 s45, s45, {F_EX}")
            a("s_mov_b32 s83, 0x40000")
            a.label("L_b_ex")
            a(f"s_load_dwordx2 s[88:89], s[{S_WS}:{S_WS+1}], s45 glc")
            a("s_waitcnt lgkmcnt(0)")
            a("s_cmp_eq_u64 s[88:89], s[60:61]")
            a("s_cbranch_scc1 L_b_exok")
            a("s_sleep 2")
            a("s_sub_u32 s83, s83, 1")
            a("s_cbranch_scc0 L_b_ex")
            a.label("L_b_exok")
        wave0(a, f)
        a("s_barrier")
        fn.receive()
    else:
        fn.wo_prefetch()
    a("s_setprio 3")
    def f():
        flag_addr(a, 58, F_O, 63, 31)
        poll(a, 58, 56)
    wave0(a, f)
    a("s_waitcnt vmcnt(0)")
    a("s_barrier")
    stamp(a, 11)
    fn.wo_main()
    stamp_flush(a, 0, 25)
    dbg_flush(a, 264, [int(x) for x in os.environ.get('DBGB', '2,3,6,8,10,11,13').split(',')], 9)
    a.label("L_end")
    a("s_endpgm")
    return a

def build_single(a):
    name = NAME + "_kernel"
    for p in check_program(a.lines): print("HAZARD", p)
    out = HEADER + "; @launch grid=(512,1,1) block=(512,1,1) lds=81920\n"
    out += '.amdgcn_target "amdgcn-amd-amdhsa--gfx950"\n.text\n' + kernel_header(name) + a.text()
    out += '.section .rodata,"a"\n' + kernel_desc(name, 128, 128)
    return out

if __name__ == "__main__":
    path = sys.argv[1] if len(sys.argv) > 1 else f"cdna_kernels/{NAME}.s"
    open(path, "w").write(build_single(gen_fused()))
    import subprocess
    r = subprocess.run(["clang", "-x", "assembler", "-target", "amdgcn-amd-amdhsa", "-mcpu=gfx950", "-c", path, "-o", "gen_check.o"], capture_output=True, text=True)
    if r.returncode: print(r.stderr[:1500])
    print("wrote", path, "OK" if r.returncode == 0 else "ASM FAILED")
```

```python
from common import *

def ln_rows(a, vx, vf, vt, srd_x, v_off, vm=None, after=None):
    for i in range(20):
        a(f"v_lshlrev_b32 v{vf+2*i}, 16, v{vx+i}")
        a(f"v_and_b32 v{vf+2*i+1}, 0xffff0000, v{vx+i}")
    t0, t1, t2, t3 = vt, vt + 2, vt + 4, vt + 6
    t4 = vt + 8
    a(f"v_pk_add_f32 v[{t0}:{t0+1}], v[{vf}:{vf+1}], v[{vf+2}:{vf+3}]")
    a(f"v_pk_mul_f32 v[{t1}:{t1+1}], v[{vf}:{vf+1}], v[{vf}:{vf+1}]")
    a(f"v_pk_add_f32 v[{t3}:{t3+1}], v[{vf+4}:{vf+5}], v[{vf+6}:{vf+7}]")
    a(f"v_pk_mul_f32 v[{t2}:{t2+1}], v[{vf+2}:{vf+3}], v[{vf+2}:{vf+3}]")
    for i in range(2, 20):
        q = t1 if i % 2 == 0 else t2
        a(f"v_pk_fma_f32 v[{q}:{q+1}], v[{vf+2*i}:{vf+2*i+1}], v[{vf+2*i}:{vf+2*i+1}], v[{q}:{q+1}]")
        if i >= 4:
            t = t0 if i % 2 == 0 else t3
            a(f"v_pk_add_f32 v[{t}:{t+1}], v[{t}:{t+1}], v[{vf+2*i}:{vf+2*i+1}]")
    a(f"v_pk_add_f32 v[{t0}:{t0+1}], v[{t0}:{t0+1}], v[{t3}:{t3+1}]")
    a(f"v_pk_add_f32 v[{t1}:{t1+1}], v[{t1}:{t1+1}], v[{t2}:{t2+1}]")
    a(f"v_add_f32 v{t0}, v{t0}, v{t0+1}")
    a(f"v_add_f32 v{t1}, v{t1}, v{t1+1}")
    for sh in (8, 4, 2, 1):
        a("s_nop 0")
        a(f"v_add_f32_dpp v{t0}, v{t0}, v{t0} row_ror:{sh} row_mask:0xf bank_mask:0xf")
        a(f"v_add_f32_dpp v{t1}, v{t1}, v{t1} row_ror:{sh} row_mask:0xf bank_mask:0xf")
    a(f"v_mul_f32 v{t2}, 0xbacccccd, v{t0}")
    a(f"v_mul_f32 v{t0}, 0x3acccccd, v{t1}")
    a(f"v_fma_f32 v{t0}, -v{t2}, v{t2}, v{t0}")
    a(f"v_max_f32 v{t0}, 0, v{t0}")
    a(f"v_cvt_pk_bf16_f32 v{t1}, v{t2}, v{t0}")
    a(f"v_lshlrev_b32 v{t2}, 16, v{t1}")
    a(f"v_lshlrev_b32 v{t2+1}, 16, v{t1}")
    a(f"v_and_b32 v{t0}, 0xffff0000, v{t1}")
    a(f"v_add_f32 v{t0}, 0x3727c5ac, v{t0}")
    a(f"v_cvt_pk_bf16_f32 v{t0}, v{t0}, v{t0}")
    a(f"v_and_b32 v{t0}, 0xffff0000, v{t0}")
    a(f"v_sqrt_f32 v{t0}, v{t0}")
    a("s_nop 0")
    a(f"v_cvt_pk_bf16_f32 v{t0}, v{t0}, v{t0}")
    a(f"v_and_b32 v{t0}, 0xffff0000, v{t0}")
    a(f"v_rcp_f32 v{t0}, v{t0}")
    a("s_nop 0")
    a(f"v_mov_b32 v{t0+1}, v{t0}")
    if os.environ.get("LNFAST", "1") == "1":
        a(f"v_pk_mul_f32 v[{t1}:{t1+1}], v[{t2}:{t2+1}], v[{t0}:{t0+1}]")
        for i in range(20):
            a(f"v_pk_fma_f32 v[{vf+2*i}:{vf+2*i+1}], v[{vf+2*i}:{vf+2*i+1}], v[{t0}:{t0+1}], v[{t1}:{t1+1}]")
            a(f"v_cvt_pk_bf16_f32 v{vx+i}, v{vf+2*i}, v{vf+2*i+1}")
            if after and i % 4 == 3: after(i // 4)
        return
    for i in range(20):
        a(f"v_pk_add_f32 v[{t3}:{t3+1}], v[{vf+2*i}:{vf+2*i+1}], v[{t2}:{t2+1}]")
        a(f"v_cvt_pk_bf16_f32 v{t1}, v{t3}, v{t3+1}")
        a(f"v_lshlrev_b32 v{t3}, 16, v{t1}")
        a(f"v_and_b32 v{t3+1}, 0xffff0000, v{t1}")
        a(f"v_pk_mul_f32 v[{t3}:{t3+1}], v[{t3}:{t3+1}], v[{t0}:{t0+1}]")
        a(f"v_cvt_pk_bf16_f32 v{vx+i}, v{t3}, v{t3+1}")

def gen_ln():
    a = Asm()
    a("s_cmp_ge_u32 s2, 128")
    a("s_cbranch_scc1 L_ln_end")
    stamp_start(a)
    load_args(a)
    a("v_lshrrev_b32 v1, 6, v0")
    a("v_and_b32 v2, 63, v0")
    a("s_lshl_b32 s3, s2, 4")
    a("v_readfirstlane_b32 s24, v1")
    a("v_lshrrev_b32 v3, 4, v0")
    a("v_add_u32 v3, s3, v3")
    a("v_mul_u32_u24 v3, 1280, v3")
    a("v_and_b32 v4, 15, v0")
    a("v_lshl_add_u32 v3, v4, 4, v3")
    a("v_and_b32 v4, 3, v2")
    a("v_lshrrev_b32 v5, 2, v2")
    a("v_lshl_add_u32 v6, v4, 4, v5")
    a("v_lshlrev_b32 v6, 2, v6")
    a("s_lshl_b32 s25, s24, 2")
    a("s_add_u32 s25, s25, s3")
    a("s_lshr_b32 s26, s25, 5")
    a("s_mul_i32 s26, s26, 40960")
    a("s_and_b32 s25, s25, 31")
    a("s_lshl_b32 s25, s25, 4")
    a("s_add_u32 s26, s26, s25")
    a("v_lshrrev_b32 v7, 1, v5")
    a("v_lshlrev_b32 v7, 10, v7")
    a("v_and_b32 v5, 1, v5")
    a("v_lshl_add_u32 v7, v5, 9, v7")
    a("v_lshl_add_u32 v7, v4, 4, v7")
    a("v_add_u32 v7, s26, v7")
    a("s_waitcnt lgkmcnt(0)")
    srd(a, 28, S_X, 2621440)
    srd(a, 32, S_WS, WS_SIZE)
    for i in range(5):
        a(f"buffer_load_dwordx4 v[{8+4*i}:{11+4*i}], v3, s[28:31], 0 offen offset:{256*i}")
    for i in range(1, 5):
        a(f"s_mov_b32 s{36+i}, {WS_XN + 8192*i}")
    a(f"s_mov_b32 s36, {WS_XN}")
    stamp(a, 1)
    a("s_waitcnt vmcnt(0)")
    stamp(a, 2)
    ln_rows(a, 8, 32, 72, 28, 3)
    stamp(a, 3)
    for i in range(20):
        a(f"ds_bpermute_b32 v{32+i}, v6, v{8+i}")
    for i in range(5):
        a(f"s_waitcnt lgkmcnt({min(15, 16-4*i)})")
        a(f"buffer_store_dwordx4 v[{32+4*i}:{35+4*i}], v7, s[32:35], s{36+i} offen")
    stamp_flush(a, 0, 24)
    a.label("L_ln_end")
    a("s_endpgm")
    return a, dict(name="ln_kernel", grid=128, block=256, lds=0, nvgpr=80, accoff=80)
```

```python
from common import *
from k_ln import ln_rows
import struct

def f2hex(x):
    return "0x%08x" % struct.unpack("<I", struct.pack("<f", x))[0]

QSCALE = (20 ** -0.5) * 1.4426950408889634
WS_FL = 0x1400000
FSH = int(os.environ.get("FSH", "7"))
F_XN, F_QKV, F_QL, F_H, F_O = WS_FL, WS_FL + 0x10000, WS_FL + 0x20000, WS_FL + 0x30000, WS_FL + 0x40000
QSH = int(os.environ.get("QSH", "7"))
OOB = 0x7ffffff0
WS_ST = 0x1480000

class Cfg:
    fused = False
    sc = ""
cfg = Cfg()

_uid = [0]
def uid(p):
    _uid[0] += 1
    return f"{p}{_uid[0]}"

def publish(a, base, idx_sgpr, t=10, sh=None):
    if not cfg.fused: return
    a(f"s_lshl_b32 s62, s{idx_sgpr}, {FSH if sh is None else sh}")
    a(f"s_add_u32 s62, s62, {base}")
    a("v_mov_b32 v0, 0")
    a(f"v_mov_b32 v{t}, s60")
    a(f"v_mov_b32 v{t+1}, s61")
    a("s_mov_b64 exec, 1")
    a(f"buffer_store_dwordx2 v[{t}:{t+1}], v0, s[32:35], s62 offen sc1")
    a("s_mov_b64 exec, -1")

def poll(a, vaddr, t=10, sleep=2, single=False, sleep2=1, direct=False):
    if not cfg.fused: return
    L = uid("L_poll")
    a("s_mov_b32 s83, 0x40000")
    if not direct:
        a("s_mov_b64 exec, 1")
        a.label(L)
        a(f"buffer_load_dwordx2 v[{t}:{t+1}], v{vaddr}, s[32:35], 0 offen sc1")
        a("s_waitcnt vmcnt(0)")
        a(f"v_cmp_ne_u64 vcc, s[60:61], v[{t}:{t+1}]")
        a(f"s_cbranch_vccz {L}_1")
        a(f"s_sleep {sleep}")
        a("s_sub_u32 s83, s83, 1")
        a(f"s_cbranch_scc0 {L}")
        a.label(L + "_1")
    if not single:
        if not direct: a("s_mov_b64 exec, -2")
        a.label(L + "_2")
        a(f"buffer_load_dwordx2 v[{t}:{t+1}], v{vaddr}, s[32:35], 0 offen sc1")
        a("s_waitcnt vmcnt(0)")
        a(f"v_cmp_ne_u64 vcc, s[60:61], v[{t}:{t+1}]")
        a(f"s_cbranch_vccz {L}_ok")
        a("s_mov_b64 exec, vcc")
        a(f"s_sleep {sleep2}")
        a("s_sub_u32 s83, s83, 1")
        a(f"s_cbranch_scc0 {L}_2")
        a.label(L + "_ok")
    a("s_mov_b64 exec, -1")

LNWG = ["s2"]
XSWAP = int(os.environ.get("GU16", "1"))
def ln_issue(a):
    a(f"s_lshl_b32 s3, {LNWG[0]}, 3")
    a("v_lshrrev_b32 v3, 4, v0")
    a("v_add_u32 v3, s3, v3")
    a("v_mul_u32_u24 v3, 1280, v3")
    a("v_and_b32 v4, 15, v0")
    a("v_lshl_add_u32 v3, v4, 4, v3")
    srd(a, 36, S_X, 2621440)
    for i in range(5):
        a(f"buffer_load_dwordx4 v[{16+4*i}:{19+4*i}], v3, s[36:39], 0 offen offset:{256*i}")

def ln_addr(a):
    a("v_and_b32 v4, 3, v2")
    a("v_lshrrev_b32 v5, 2, v2")
    a("v_lshl_add_u32 v6, v4, 4, v5")
    a("v_lshlrev_b32 v6, 2, v6")
    a(f"s_lshl_b32 s3, {LNWG[0]}, 3")
    a("s_lshl_b32 s26, s25, 2")
    a("s_add_u32 s3, s3, s26")
    a("s_lshr_b32 s26, s3, 5")
    a("s_mul_i32 s26, s26, 40960")
    a("s_and_b32 s3, s3, 31")
    a("s_lshl_b32 s3, s3, 4")
    a("s_add_u32 s26, s26, s3")
    a("v_lshrrev_b32 v7, 1, v5")
    a("v_lshlrev_b32 v7, 10, v7")
    a("v_and_b32 v5, 1, v5")
    a("v_lshl_add_u32 v7, v5, 9, v7")
    a("v_lshl_add_u32 v7, v4, 4, v7")
    a("v_add_u32 v7, s26, v7")
    for i in range(5):
        a(f"s_mov_b32 s{40+i}, {WS_XN + 8192*i}")

def ln_body(a):
    ln_rows(a, 16, 40, 80, None, None)
    for i in range(20):
        a(f"ds_bpermute_b32 v{40+i}, v6, v{16+i}")

def ln_finish(a):
    ln_addr(a)
    a("s_waitcnt vmcnt(0)")
    stamp(a, 1)
    ln_body(a)
    ln_store(a)

def ln_stats(a):
    a(f"s_lshl_b32 s3, {LNWG[0]}, 3")
    a("s_lshl_b32 s45, s25, 2")
    a("s_add_u32 s3, s3, s45")
    a("s_lshr_b32 s45, s3, 7")
    a("s_lshl_b32 s45, s45, 10")
    a("s_and_b32 s3, s3, 127")
    a("s_lshl_b32 s3, s3, 2")
    a("s_add_u32 s45, s45, s3")
    a(f"s_add_u32 s45, s45, {WS_ST}")
    a("v_lshrrev_b32 v4, 4, v2")
    a("v_lshlrev_b32 v4, 2, v4")
    a("s_mov_b32 exec_lo, 0x00010001")
    a("s_mov_b32 exec_hi, 0x00010001")
    a(f"buffer_store_dword v84, v4, s[32:35], s45 offen{cfg.sc}")
    a(f"buffer_store_dword v80, v4, s[32:35], s45 offen offset:512{cfg.sc}")
    a("s_mov_b64 exec, -1")

def ln_store(a):
    if XSWAP:
        a("v_and_b32 v4, 4, v2")
        a("v_cmp_ne_u32 vcc, 0, v4")
    for i in range(5):
        a(f"s_waitcnt lgkmcnt({min(15, 16-4*i)})")
        r = 40 + 4 * i
        if XSWAP:
            if i == 0: a("s_nop 0")
            for j in range(4):
                a(f"v_cndmask_b32 v{60+4*i+j}, v{r+j}, v{r+(j^2)}, vcc")
            r = 60 + 4 * i
        a(f"buffer_store_dwordx4 v[{r}:{r+3}], v7, s[32:35], s{40+i} offen{cfg.sc}")

qkv_hook = None
attn_hook = None
attn_hook0 = None
def qkv_decode(a):
    a("s_and_b32 s24, s2, 7")
    a("s_lshr_b32 s26, s2, 3")
    LM = int(os.environ.get("QMAP", "2"))
    a(f"s_lshr_b32 s27, s24, {LM}")
    a(f"s_lshl_b32 s27, s27, {LM}")
    a(f"s_and_b32 s24, s24, {(1 << LM) - 1}")
    a("s_mul_i32 s24, s24, 30")
    a("s_add_u32 s24, s24, s26")
    a(f"s_and_b32 s3, s24, {(1 << LM) - 1}")
    a("s_add_u32 s27, s27, s3")
    a(f"s_lshr_b32 s47, s24, {LM}")
    a("s_lshl_b32 s46, s47, 3")
    a("s_add_u32 s46, s46, s27")
    a("s_lshl_b32 s26, s27, 3")
    a("s_add_u32 s26, s26, s25")
    a("s_cmp_ge_u32 s47, 10")
    a("s_cselect_b32 s24, 1, 0")
    a("s_cmp_ge_u32 s47, 20")
    a("s_cselect_b32 s24, 2, s24")
    a("s_mul_i32 s3, s24, 10")
    a("s_sub_u32 s27, s47, s3")

def qkv_wdma(a, j0=0, j1=20, setup=True):
    if not setup:
        for j in range(j0, j1):
            a(f"s_add_u32 m0, s42, {4096*j}")
            a(f"s_add_u32 s3, s41, {4*30720*j}")
            a("buffer_load_dwordx4 v4, s[28:31], s3 offen lds")
        return
    srd(a, 28, S_WQKV, 2457600)
    a("v_lshrrev_b32 v4, 3, v2")
    a("v_bfe_u32 v5, v2, 2, 1")
    a("v_bfe_u32 v6, v2, 4, 1")
    a("v_xor_b32 v5, v5, v6")
    a("v_lshlrev_b32 v5, 6, v5")
    a("v_and_b32 v6, 3, v2")
    a("v_lshl_add_u32 v5, v6, 4, v5")
    a("s_movk_i32 s3, 3840")
    a("v_mad_u32_u24 v4, v4, s3, v5")
    a("s_sub_u32 s3, s25, 4")
    a("s_lshl_b32 s41, s47, 7")
    a("s_mul_i32 s42, s3, 30720")
    a("s_add_u32 s41, s41, s42")
    a("s_lshl_b32 s42, s3, 10")
    for j in range(j0, j1):
        a(f"s_add_u32 m0, s42, {4096*j}")
        a(f"s_add_u32 s3, s41, {4*30720*j}")
        a("buffer_load_dwordx4 v4, s[28:31], s3 offen lds")

def qkv_uaddr(a, T0, T1, U0, U1):
    if XSWAP:
        a(f"v_lshl_add_u32 v{T0}, v7, 9, v{T0}")
    a(f"v_xor_b32 v{T1}, 64, v{T0}")
    a(f"v_xor_b32 v{U0}, 512, v{T0}")
    a(f"v_xor_b32 v{U1}, 512, v{T1}")

def qkv_main(a, gate=None):
    ACC, XF, WF, AD = 16, 48, 96, 112
    XD = 12
    T0, T1, U0, U1 = 4, 5, 124, 125
    vm = VM(a)
    a("s_mul_i32 s40, s26, 40960")
    a(f"s_add_u32 s40, s40, {WS_XN}")
    def xload(s):
        r = XF + 4 * (s % XD)
        vm.issue(f"buffer_load_dwordx4 v[{r}:{r+3}], v9, s[32:35], s40 offen offset:{1024*(s%4)}{cfg.sc}", ("X", s))
        if s % 4 == 3: a("s_add_u32 s40, s40, 4096")
    X0 = int(os.environ.get("QX0", "4"))
    a("v_bfe_u32 v6, v2, 2, 2")
    a("v_lshrrev_b32 v7, 5, v2")
    a("v_lshl_add_u32 v8, v7, 3, v6")
    a("v_lshlrev_b32 v8, 7, v8")
    a("v_bfe_u32 v10, v2, 4, 1")
    a("v_lshl_add_u32 v8, v10, 5, v8")
    a("v_lshrrev_b32 v6, 1, v6")
    a("v_lshl_add_u32 v8, v6, 6, v8")
    a("v_and_b32 v10, 31, v2")
    for i in range(32):
        a(f"v_mov_b32 v{ACC+i}, 0")
    a("s_cmp_eq_u32 s24, 2")
    a("s_cbranch_scc1 L_qkv_V")
    a("v_and_b32 v11, 1, v2")
    a("v_lshlrev_b32 v11, 4, v11")
    a("v_bfe_u32 v12, v2, 1, 1")
    a("v_lshl_add_u32 v11, v12, 3, v11")
    a(f"v_add_u32 v{T0}, v8, v11")
    qkv_uaddr(a, T0, T1, U0, U1)
    a("s_lshl_b32 s45, s26, 10")
    a(f"s_add_u32 s45, s45, {WS_QM}")
    a("s_lshl_b32 s43, s26, 8")
    a(f"s_add_u32 s43, s43, {WS_QR}")
    a("s_mov_b32 s44, 65536")
    a("s_mov_b32 s42, 16384")
    a(f"s_mov_b32 s48, {f2hex(QSCALE)}")
    a("s_cmp_eq_u32 s24, 0")
    a("s_cbranch_scc1 L_qkv_isq")
    a("s_mul_i32 s45, s26, 2560")
    a(f"s_add_u32 s45, s45, {WS_KV}")
    a("s_add_u32 s43, s45, 1024")
    a("s_mov_b32 s44, 163840")
    a("s_mov_b32 s42, 163840")
    a("s_mov_b32 s48, 1.0")
    a.label("L_qkv_isq")
    a("s_mov_b32 s49, s48")
    a("s_lshl_b32 s3, s27, 3")
    a("v_add_u32 v11, s3, v7")
    a("v_lshl_add_u32 v12, v10, 4, s45")
    a("v_lshl_add_u32 v13, v10, 3, s43")
    a(f"s_mov_b32 s50, {OOB}")
    a("s_mov_b32 s51, 0")
    for q in range(4):
        a(f"v_add_u32 v14, {2*q}, v11")
        a("v_mul_u32_u24 v15, 205, v14")
        a("v_lshrrev_b32 v15, 10, v15")
        a("v_mul_u32_u24 v3, 5, v15")
        a("v_sub_u32 v14, v14, v3")
        a("v_lshlrev_b32 v15, 1, v15")
        a("v_mul_lo_u32 v3, v15, s42")
        a(f"v_add_u32 v{AD+3*q+1}, v3, v13")
        a(f"v_add_u32 v{AD+3*q+2}, s42, v{AD+3*q+1}")
        a("v_cmp_lt_u32 vcc, 2, v14")
        a("v_subrev_u32 v3, 3, v14")
        a("s_nop 0")
        a("v_addc_co_u32 v15, s[52:53], 0, v15, vcc")
        a("v_cndmask_b32 v3, v14, v3, vcc")
        a("v_mul_lo_u32 v15, v15, s44")
        a("v_lshl_add_u32 v3, v3, 9, v12")
        a("v_add_u32 v3, v3, v15")
        a("v_cmp_eq_u32 vcc, 2, v14")
        a("v_mov_b32 v15, s50")
        a("s_cmp_lg_u64 vcc, 0")
        a(f"s_cselect_b32 s3, {1 << q}, 0")
        a("s_or_b32 s51, s51, s3")
        a(f"v_cndmask_b32 v{AD+3*q}, v3, v15, vcc")
        a(f"v_cndmask_b32 v{AD+3*q+1}, v15, v{AD+3*q+1}, vcc")
        a(f"v_cndmask_b32 v{AD+3*q+2}, v15, v{AD+3*q+2}, vcc")
    def loop(vtype):
        vq = list(vm.q)
        if gate: gate()
        for s in range(X0): xload(s)
        def reads(s):
            w = WF + 8 * (s % 2)
            if s == 32:
                for r in (T0, T1, U0, U1):
                    a(f"v_add_u32 v{r}, 0x10000, v{r}")
            for ft in range(2):
                for u in range(2):
                    off = (16 * s * 128) % 65536
                    a(f"ds_read_b64_tr_b16 v[{w+4*ft+2*u}:{w+4*ft+2*u+1}], v{(U0 if u else T0)+ft} offset:{off}")
        reads(0)
        nx = X0
        for s in range(40):
            if s + 1 < 40:
                reads(s + 1)
                vm.wait(lambda t: t == ("X", s), "lgkmcnt(4)")
            else:
                vm.wait(lambda t: t == ("X", s), "lgkmcnt(0)")
            if s == 0 and not os.environ.get('LNSTAMP'): stamp(a, 5)
            w = WF + 8 * (s % 2); x = XF + 4 * (s % XD)
            for ft in range(2):
                W = f"v[{w+4*ft}:{w+4*ft+3}]"; X = f"v[{x}:{x+3}]"
                A, B = (X, W) if vtype else (W, X)
                D = f"v[{ACC+16*ft}:{ACC+16*ft+15}]"
                a(f"v_mfma_f32_32x32x16_bf16 {D}, {A}, {B}, {D}")
            for _ in range(2):
                if nx <= s + XD and nx < 40:
                    xload(nx); nx += 1
        vm.q = vq
        stamp(a, 6)
        if qkv_hook: qkv_hook()
    loop(False)
    a("s_nop 10")
    for q in range(4):
        r = ACC + 8 * q
        for i in range(0, 8, 2):
            a(f"v_pk_mul_f32 v[{r+i}:{r+i+1}], v[{r+i}:{r+i+1}], s[48:49]")
        for i in range(4):
            a(f"v_cvt_pk_bf16_f32 v{r+i}, v{r+2*i}, v{r+2*i+1}")
        a(f"buffer_store_dwordx4 v[{r}:{r+3}], v{AD+3*q}, s[32:35], 0 offen{cfg.sc}")
        L = uid("L_qr")
        a(f"s_bitcmp0_b32 s51, {q}")
        a(f"s_cbranch_scc1 {L}")
        a(f"buffer_store_dwordx2 v[{r}:{r+1}], v{AD+3*q+1}, s[32:35], 0 offen{cfg.sc}")
        a(f"buffer_store_dwordx2 v[{r+2}:{r+3}], v{AD+3*q+2}, s[32:35], 0 offen{cfg.sc}")
        a.label(L)
    a("s_branch L_qkv_done")
    a.label("L_qkv_V")
    a("v_and_b32 v11, 3, v2")
    a(f"v_lshl_add_u32 v{T0}, v11, 3, v8")
    qkv_uaddr(a, T0, T1, U0, U1)
    a("s_mul_i32 s45, s26, 2560")
    a(f"s_add_u32 s45, s45, {WS_KV + 1280}")
    a("s_lshl_b32 s3, s27, 6")
    a("v_add_u32 v10, s3, v10")
    a("v_mul_u32_u24 v11, 320, v7")
    a("v_add_u32 v11, s45, v11")
    a("s_mov_b32 s44, 163840")
    for ft in range(2):
        a(f"v_add_u32 v13, {32*ft}, v10")
        a("v_mul_u32_u24 v14, 3277, v13")
        a("v_lshrrev_b32 v14, 16, v14")
        a("v_mul_u32_u24 v15, 20, v14")
        a("v_sub_u32 v15, v13, v15")
        a("v_lshl_add_u32 v3, v15, 4, v11")
        a("v_mul_lo_u32 v14, v14, s44")
        a(f"v_add_u32 v{AD+ft}, v3, v14")
    loop(True)
    a("s_nop 10")
    for ft in range(2):
        for gm in range(2):
            r = ACC + 16 * ft + 8 * gm
            for i in range(4):
                a(f"v_cvt_pk_bf16_f32 v{r+i}, v{r+2*i}, v{r+2*i+1}")
            a(f"buffer_store_dwordx4 v[{r}:{r+3}], v{AD+ft}, s[32:35], 0 offen offset:{640*gm}{cfg.sc}")
    a.label("L_qkv_done")
    stamp(a, 7)

CHUNK = 20480
NBUF = 3
DELTA = 96.0
S0, S1, P, O0, O1, Q0, Q1, KA, KB, VA, VB = 16, 32, 48, 56, 72, 88, 94, 100, 106, 112, 120
AK, AKR, AV = 3, 4, 5

def rowmax16(a, S, d, t):
    a(f"v_max3_f32 v{d}, v{S}, v{S+1}, v{S+2}")
    a(f"v_max3_f32 v{t}, v{S+3}, v{S+4}, v{S+5}")
    a(f"v_max3_f32 v{d}, v{d}, v{S+6}, v{S+7}")
    a(f"v_max3_f32 v{t}, v{t}, v{S+8}, v{S+9}")
    a(f"v_max3_f32 v{d}, v{d}, v{S+10}, v{S+11}")
    a(f"v_max3_f32 v{t}, v{t}, v{S+12}, v{S+13}")
    a(f"v_max3_f32 v{d}, v{d}, v{S+14}, v{S+15}")
    a(f"v_max_f32 v{d}, v{d}, v{t}")
    a(f"v_mov_b32 v{t}, v{d}")
    a("s_nop 1")
    a(f"v_permlane32_swap_b32 v{d}, v{t}")
    a(f"v_max_f32 v{d}, v{d}, v{t}")

def attn_decode(a):
    a("s_and_b32 s24, s2, 7")
    a("s_lshr_b32 s27, s2, 3")
    a("s_lshl_b32 s24, s24, 2")
    a("s_lshr_b32 s3, s27, 3")
    a("s_add_u32 s24, s24, s3")
    a("s_and_b32 s27, s27, 7")

def attn_flag_addr(a, vd):
    a("s_mul_i32 s3, s24, 20")
    a("s_lshr_b32 s26, s3, 6")
    a("s_add_u32 s3, s3, 19")
    a("s_lshr_b32 s3, s3, 6")
    a("s_sub_u32 s3, s3, s26")
    a("v_min_u32 v10, 47, v2")
    a("v_lshrrev_b32 v11, 4, v10")
    a("v_mul_u32_u24 v11, 10, v11")
    a("v_bfe_u32 v12, v10, 3, 1")
    a("v_mul_lo_u32 v12, v12, s3")
    a("v_add3_u32 v11, v11, v12, s26")
    a("v_and_b32 v12, 7, v10")
    a("v_mov_b32 v13, s27")
    a("v_cmp_gt_u32 vcc, 16, v10")
    a("s_nop 1")
    a("v_cndmask_b32 v12, v12, v13, vcc")
    a(f"v_lshl_add_u32 v{vd}, v11, 3, v12")
    a(f"v_lshlrev_b32 v{vd}, {QSH}, v{vd}")
    a(f"v_add_u32 v{vd}, {F_QKV}, v{vd}")

PA = [int(x) for x in os.environ.get("PA", "2,3,1").split(",")]
JLOW = int(os.environ.get("JLOW", "3"))
def attn_main(a, prio=True):
    sc = cfg.sc
    a("s_and_b32 s46, s25, 3")
    a("s_lshr_b32 s47, s25, 2")
    a("s_lshl_b32 s26, s27, 3")
    a("s_lshl_b32 s3, s46, 1")
    a("s_add_u32 s26, s26, s3")
    a("s_lshl_b32 s3, s24, 6")
    a("s_add_u32 s3, s3, s26")
    a("s_lshl_b32 s40, s3, 10")
    a(f"s_add_u32 s40, s40, {WS_QM}")
    a("s_lshl_b32 s41, s3, 8")
    a(f"s_add_u32 s41, s41, {WS_QR}")
    a("s_mul_i32 s42, s24, 163840")
    a(f"s_add_u32 s42, s42, {WS_KV}")
    a("s_mul_i32 s3, s25, 5120")
    a("s_add_u32 s43, s42, s3")
    a("s_mov_b32 s44, s3")
    def dma_chunk():
        a("s_mov_b32 m0, s44")
        a("s_add_u32 s50, s43, 4096")
        for i in range(4):
            off = f" offset:{1024*i}" if i else ""
            a(f"buffer_load_dwordx4 v9, s[32:35], s43 offen{off}{sc} lds")
        a("s_add_u32 m0, s44, 4096")
        a(f"s_add_u32 s43, s43, {CHUNK}")
        a(f"buffer_load_dwordx4 v9, s[32:35], s50 offen{sc} lds")
        a(f"s_add_u32 s44, s44, {CHUNK}")
    a("v_and_b32 v6, 31, v2")
    a(f"v_lshlrev_b32 v{AKR}, 3, v6")
    a(f"buffer_load_dwordx4 v[{Q0}:{Q0+3}], v9, s[32:35], s40 offen{sc}")
    a(f"buffer_load_dwordx4 v[{Q1}:{Q1+3}], v9, s[32:35], s40 offen offset:1024{sc}")
    for r in (Q0 + 4, Q0 + 5, Q1 + 4, Q1 + 5, KA + 5, KB + 5):
        a(f"v_mov_b32 v{r}, 0")
    a("s_mov_b32 exec_hi, 0")
    a(f"buffer_load_dwordx2 v[{Q0+4}:{Q0+5}], v{AKR}, s[32:35], s41 offen{sc}")
    a(f"buffer_load_dwordx2 v[{Q1+4}:{Q1+5}], v{AKR}, s[32:35], s41 offen offset:256{sc}")
    a("s_mov_b32 exec_hi, -1")
    a("s_cmp_ge_u32 s25, 4")
    a("s_cbranch_scc1 L_at_nodma0")
    dma_chunk()
    dma_chunk()
    dma_chunk()
    a(f"s_sub_u32 s44, s44, {NBUF*CHUNK}")
    a.label("L_at_nodma0")
    if attn_hook0: attn_hook0()
    a("v_lshrrev_b32 v7, 5, v2")
    a(f"v_mul_u32_u24 v{AV}, 320, v7")
    a(f"v_lshl_add_u32 v{AV}, v6, 4, v{AV}")
    a("s_mov_b32 s30, 0x000fffff")
    a("s_mov_b32 s31, 0x000fffff")
    a(f"v_mov_b32 v{KA+4}, 0x3f80")
    a(f"v_mov_b32 v{KB+4}, 0x3f80")
    a("v_cmp_eq_u32 vcc, 20, v6")
    a("v_mov_b32 v8, 0x3f803f80")
    a("s_nop 0")
    a("v_cndmask_b32 v8, 0, v8, vcc")
    for i in range(16):
        a(f"v_mov_b32 v{VA+i}, v8")
    for i in range(4, 8):
        a(f"v_mov_b32 v{P+i}, 0")
    a("s_cmp_ge_u32 s25, 4")
    a("s_cbranch_scc1 L_at_w0")
    a("s_waitcnt vmcnt(10)")
    a("s_branch L_at_w1")
    a.label("L_at_w0")
    a("s_waitcnt vmcnt(0)")
    a.label("L_at_w1")
    a("s_barrier")
    if not os.environ.get("LNSTAMP"): stamp(a, 10)
    if attn_hook: attn_hook()
    a("s_mul_i32 s3, s47, 10240")
    a("s_xor_b32 s50, s3, 10240")
    a("v_add_u32 v10, s50, v9")
    a(f"v_add_u32 v11, s50, v{AKR}")
    a(f"v_add_u32 v{AK}, s3, v9")
    a(f"v_add_u32 v{AKR}, s3, v{AKR}")
    a(f"v_add_u32 v{AV}, s3, v{AV}")
    a(f"ds_read_b128 v[{KB}:{KB+3}], v10")
    a(f"ds_read_b128 v[{KA}:{KA+3}], v{AK}")
    a("s_mov_b32 exec_hi, 0")
    a(f"ds_read_b64 v[{KB+4}:{KB+5}], v11 offset:1024")
    a(f"ds_read_b64 v[{KA+4}:{KA+5}], v{AKR} offset:1024")
    a("s_mov_b64 exec, s[30:31]")
    a(f"ds_read_b128 v[{VA}:{VA+3}], v{AV} offset:1280")
    a(f"ds_read_b128 v[{VA+4}:{VA+7}], v{AV} offset:1920")
    a("s_mov_b64 exec, -1")
    a("s_waitcnt lgkmcnt(2)")
    def qk(S, K, Q):
        return (f"v_mfma_f32_32x32x16_bf16 v[{S}:{S+15}], v[{K}:{K+3}], v[{Q}:{Q+3}], 0",
                f"v_mfma_f32_32x32x8_bf16 v[{S}:{S+15}], v[{K+4}:{K+5}], v[{Q+4}:{Q+5}], v[{S}:{S+15}]")
    for x in qk(S0, KB, Q0) + qk(S1, KA, Q0) + qk(O0, KB, Q1) + qk(O1, KA, Q1): a(x)
    a("s_nop 4")
    def max32(Sa, d, t):
        a(f"v_max3_f32 v{d}, v{Sa}, v{Sa+1}, v{Sa+2}")
        a(f"v_max3_f32 v{t}, v{Sa+3}, v{Sa+4}, v{Sa+5}")
        k = 0
        for i in range(6, 32, 2):
            r = d if k % 2 == 0 else t
            a(f"v_max3_f32 v{r}, v{r}, v{Sa+i}, v{Sa+i+1}")
            k += 1
        a(f"v_max_f32 v{d}, v{d}, v{t}")
        a(f"v_mov_b32 v{t}, v{d}")
        a("s_nop 1")
        a(f"v_permlane32_swap_b32 v{d}, v{t}")
        a(f"v_max_f32 v{d}, v{d}, v{t}")
        a(f"v_add_f32 v{d}, {f2hex(DELTA)}, v{d}")
        a(f"v_sub_f32 v{d}, 0, v{d}")
        a(f"v_cvt_pk_bf16_f32 v{d}, v{d}, 0")
    a("v_cmp_lt_u32 vcc, 31, v2")
    max32(S0, 10, 11)
    a(f"v_cndmask_b32 v{Q0+4}, v{Q0+4}, v10, vcc")
    max32(O0, 12, 13)
    for x in qk(S0, KA, Q0): a(x)
    a(f"v_cndmask_b32 v{Q1+4}, v{Q1+4}, v12, vcc")
    for i in range(32):
        a(f"v_mov_b32 v{O0+i}, 0")
    a("s_waitcnt lgkmcnt(0)")
    a("s_mov_b32 s45, 8")
    a(f"s_mov_b32 s48, {CHUNK}")
    a("s_mov_b32 s49, 0")
    a(".p2align 6")
    a.label("L_at_loop")
    if PROFILE:
        a("s_memtime s[84:85]")
        a("s_memrealtime s[86:87]")
        a("s_waitcnt lgkmcnt(0)")
        a("s_sub_u32 m0, 8, s45")
        a("s_nop 0")
        a("v_writelane_b32 v15, s84, m0")
        a("s_add_u32 m0, m0, 8")
        a("s_nop 0")
        a("v_writelane_b32 v15, s86, m0")
    def half(Sc, qks, pvp, pv1, mid=()):
        e = lambda i: f"v_exp_f32 v{Sc+i}, v{Sc+i}"
        c = lambda i: f"v_cvt_pk_bf16_f32 v{P+i}, v{Sc+2*i}, v{Sc+2*i+1}"
        seq = [qks[0], e(0), e(1), e(2), e(3), c(0), c(1), pvp] + list(mid) + [e(4), e(5), e(6), e(7), c(2), c(3), qks[1],
               e(8), e(9), e(10), e(11), e(12), pv1, e(13), e(14), e(15), c(4), c(5), c(6), c(7)]
        ORD = os.environ.get("ORD", "0")
        if ORD == "1":
            seq = [qks[0], e(0), e(1), e(2), e(3), pvp] + list(mid) + [e(4), c(0), e(5), c(1), e(6), e(7), qks[1], e(8), c(2), c(3), e(9), e(10),
                   e(11), pv1, e(12), c(4), e(13), c(5), e(14), e(15), c(6), c(7)]
        if ORD == "2":
            seq = [e(0), qks[0], e(1), e(2), e(3), c(0), e(4), pvp, c(1)] + list(mid) + [e(5), e(6), e(7), c(2), e(8), qks[1], c(3), e(9), e(10),
                   e(11), c(4), e(12), pv1, c(5), e(13), e(14), e(15), c(6), c(7)]
        if ORD == "3":
            seq = [qks[0]] + [e(i) for i in range(4)] + [pvp] + list(mid) + [e(i) for i in range(4, 8)] + [qks[1], c(0), c(1), c(2), c(3), e(8), e(9), pv1] + \
                  [e(i) for i in range(10, 16)] + [c(4), c(5), c(6), c(7)]
        if "noqk2" in os.environ.get("ABL", ""): seq = [x for x in seq if x != qks[1]]
        if "nokv" in os.environ.get("ABL", ""): seq = [x for x in seq if not x.startswith("ds_read")]
        if "nopv" in os.environ.get("ABL", ""): seq = [x for x in seq if x not in (pvp, pv1)]
        for x in seq: a(x)
    def pv(Oo, V, Pp):
        return f"v_mfma_f32_32x32x16_bf16 v[{Oo}:{Oo+15}], v[{V}:{V+3}], v[{Pp}:{Pp+3}], v[{Oo}:{Oo+15}]"
    for j in range(4):
        Kc, Kn = (KA, KB) if j % 2 == 0 else (KB, KA)
        Vc, Vn = (VA, VB) if j % 2 == 0 else (VB, VA)
        if j == 0 and prio:
            a("s_cmp_ge_u32 s25, 4")
            a("s_cbranch_scc1 L_at_y0")
            a(f"s_setprio {PA[0]}")
            a("s_branch L_at_y1")
            a.label("L_at_y0")
            a(f"s_setprio {PA[1]}")
            a.label("L_at_y1")
        if j == JLOW and JLOW != 3 and prio:
            a("s_cmp_lt_u32 s25, 4")
            a("s_cbranch_scc1 L_at_z")
            a(f"s_setprio {PA[2]}")
            a.label("L_at_z")
        if j == 3:
            a("s_cmp_eq_u32 s45, 8")
            a("s_cbranch_scc1 L_at_first")
            a("s_waitcnt vmcnt(0)")
            a.label("L_at_first")
            a("s_waitcnt vmcnt(5)")
            a("s_barrier")
            a("s_sub_u32 s3, s48, s49")
            a(f"v_add_u32 v{AK}, s3, v{AK}")
            a(f"v_add_u32 v{AKR}, s3, v{AKR}")
            a(f"v_add_u32 v{AV}, s3, v{AV}")
            a("s_mov_b32 s49, s48")
            a(f"s_add_u32 s48, s48, {CHUNK}")
            a(f"s_cmp_ge_u32 s48, {NBUF*CHUNK}")
            a("s_cselect_b32 s48, 0, s48")
            a("s_cmp_ge_u32 s25, 4")
            a("s_cbranch_scc1 L_at_young")
            a("s_sub_u32 s50, s45, 3")
            a("s_cmp_ge_u32 s50, 5")
            a("s_cbranch_scc1 L_at_nodma1")
            dma_chunk()
            a(f"s_cmp_ge_u32 s44, {NBUF*CHUNK}")
            a(f"s_cselect_b32 s50, {NBUF*CHUNK}, 0")
            a("s_sub_u32 s44, s44, s50")
            a("s_branch L_at_nodma1")
            a.label("L_at_young")
            if prio and JLOW == 3: a(f"s_setprio {PA[2]}")
            a.label("L_at_nodma1")
        o = 2560 * ((j + 1) % 4)
        rd = [f"ds_read_b128 v[{Kn}:{Kn+3}], v{AK} offset:{o}",
              "s_mov_b32 exec_hi, 0",
              f"ds_read_b64 v[{Kn+4}:{Kn+5}], v{AKR} offset:{o+1024}",
              "s_mov_b64 exec, s[30:31]",
              f"ds_read_b128 v[{Vn}:{Vn+3}], v{AV} offset:{o+1280}",
              f"ds_read_b128 v[{Vn+4}:{Vn+7}], v{AV} offset:{o+1920}",
              "s_mov_b64 exec, -1"]
        half(S0, qk(S1, Kc, Q1), pv(O1, Vn + 4, P + 4), pv(O0, Vc, P), rd)
        a("s_waitcnt lgkmcnt(0)")
        half(S1, qk(S0, Kn, Q0), pv(O0, Vc + 4, P + 4), pv(O1, Vc, P))
    a("s_sub_u32 s45, s45, 1")
    a("s_cmp_lg_u32 s45, 0")
    a("s_cbranch_scc1 L_at_loop")
    a(pv(O1, VB + 4, P + 4))
    if prio: a("s_setprio 3")
    stamp(a, 11)
    a("s_lshl_b32 s3, s46, 12")
    a("v_add_u32 v6, s3, v9")
    a(f"v_add_u32 v7, {NBUF*CHUNK}, v6")
    a("s_cmp_eq_u32 s47, 0")
    a("s_cbranch_scc1 L_at_x0")
    for i in range(3):
        a(f"ds_write_b128 v7, v[{O0+4*i}:{O0+4*i+3}] offset:{1024*i}")
    a("v_mov_b32 v7, v6")
    for i in range(6):
        a(f"v_mov_b32 v{Q0+i}, v{Q1+i}")
    a("s_nop 0")
    for i in range(12):
        a(f"v_mov_b32 v{O0+i}, v{O1+i}")
    a("s_branch L_at_x1")
    a.label("L_at_x0")
    a("s_nop 6")
    for i in range(3):
        a(f"ds_write_b128 v6, v[{O1+4*i}:{O1+4*i+3}] offset:{1024*i}")
    a.label("L_at_x1")
    a("s_add_u32 s26, s26, s47")
    a("s_waitcnt lgkmcnt(0)")
    if os.environ.get("TAILSTAMP"): stamp(a, 1)
    a("s_barrier")
    if os.environ.get("TAILSTAMP"): stamp(a, 2)
    for i in range(3):
        a(f"ds_read_b128 v[{S1+4*i}:{S1+4*i+3}], v7 offset:{1024*i}")
    a("s_mov_b32 s51, 0")
    a(f"s_mov_b32 s54, {f2hex(2.0**-100)}")
    a(f"s_mov_b32 s55, {f2hex(2.0**122)}")
    a("s_mov_b32 s58, 0x7f800000")
    a("s_waitcnt lgkmcnt(0)")
    for i in range(0, 12, 2):
        a(f"v_pk_add_f32 v[{O0+i}:{O0+i+1}], v[{O0+i}:{O0+i+1}], v[{S1+i}:{S1+i+1}]")
    a.label("L_at_fin")
    a(f"v_mov_b32 v8, v{O0+8}")
    a(f"v_mov_b32 v10, v{O0+8}")
    a("s_nop 1")
    a("v_permlane32_swap_b32 v8, v10")
    a("v_rcp_f32 v11, v10")
    a("s_nop 0")
    for i in range(12):
        a(f"v_mul_f32 v{S0+i}, v11, v{O0+i}")
    a.label("L_at_store")
    if os.environ.get("TAILSTAMP"): stamp(a, 3)
    for i in range(6):
        a(f"v_cvt_pk_bf16_f32 v{P+i}, v{S0+2*i}, v{S0+2*i+1}")
    a("s_mul_i32 s3, s26, 40")
    a("s_add_u32 s50, s3, s24")
    a("s_lshl_b32 s50, s50, 10")
    a(f"s_add_u32 s50, s50, {WS_O}")
    a(f"buffer_store_dwordx4 v[{P}:{P+3}], v9, s[32:35], s50 offen{sc}")
    a("s_lshr_b32 s50, s24, 2")
    a("s_add_u32 s50, s50, s3")
    a("s_add_u32 s50, s50, 32")
    a("s_lshl_b32 s50, s50, 10")
    a("s_and_b32 s3, s24, 1")
    a("s_lshl_b32 s3, s3, 9")
    a("s_add_u32 s50, s50, s3")
    a("s_bfe_u32 s3, s24, 0x10001")
    a("s_lshl_b32 s3, s3, 3")
    a("s_add_u32 s50, s50, s3")
    a(f"s_add_u32 s50, s50, {WS_O}")
    a("s_mov_b32 exec_hi, 0")
    a(f"buffer_store_dwordx2 v[{P+4}:{P+5}], v9, s[32:35], s50 offen{sc}")
    a("s_mov_b32 exec_hi, -1")
    if os.environ.get("TAILSTAMP"): stamp(a, 4)
    a("s_cmp_eq_u32 s51, 1")
    a("s_cbranch_scc1 L_at_done")
    a(f"v_add_f32 v12, |v{S0}|, |v{S0+1}|")
    for i in range(2, 8):
        a(f"v_add_f32 v12, |v{S0+i}|, v12")
    a(f"v_add_f32 v13, |v{S0+8}|, |v{S0+9}|")
    a(f"v_add_f32 v13, |v{S0+10}|, v13")
    a(f"v_add_f32 v13, |v{S0+11}|, v13")
    a("v_cmp_gt_u32 vcc, 32, v2")
    a("s_nop 1")
    a("v_cndmask_b32 v13, 0, v13, vcc")
    a("v_add_f32 v12, v12, v13")
    a("v_cmp_gt_f32 s[52:53], v10, s54")
    a("v_cmp_lt_f32 s[56:57], v10, s55")
    a("v_cmp_lt_f32 vcc, v12, s58")
    a("s_and_b64 s[52:53], s[52:53], s[56:57]")
    a("s_and_b64 s[52:53], s[52:53], vcc")
    a("s_cmp_eq_u64 s[52:53], exec")
    if not os.environ.get("ABL", ""): a("s_cbranch_scc0 L_at_slow")
    a("s_branch L_at_done")
    NM = O1
    a.label("L_at_slow")
    a("s_waitcnt vmcnt(0)")
    a("v_and_b32 v6, 31, v2")
    a("v_lshlrev_b32 v4, 3, v6")
    a("v_lshrrev_b32 v7, 5, v2")
    a("v_mul_u32_u24 v5, 320, v7")
    a("v_lshl_add_u32 v5, v6, 4, v5")
    a("v_cmp_gt_u32 vcc, 32, v2")
    a("v_mov_b32 v14, 0xff800000")
    a("s_mov_b32 s50, s42")
    a(f"v_cndmask_b32 v{Q0+4}, 0, v{Q0+4}, vcc")
    a("s_mov_b32 s45, 64")
    a.label("L_at_slow1")
    a(f"buffer_load_dwordx4 v[{KA}:{KA+3}], v9, s[32:35], s50 offen{sc}")
    a(f"buffer_load_dwordx2 v[{KA+4}:{KA+5}], v4, s[32:35], s50 offen offset:1024{sc}")
    a("s_waitcnt vmcnt(0)")
    for x in qk(S0, KA, Q0): a(x)
    a("s_nop 11")
    rowmax16(a, S0, 8, 10)
    a("v_max_f32 v14, v14, v8")
    a("s_add_u32 s50, s50, 2560")
    a("s_sub_u32 s45, s45, 1")
    a("s_cmp_lg_u32 s45, 0")
    a("s_cbranch_scc1 L_at_slow1")
    a("v_sub_f32 v8, 0, v14")
    for i in range(16):
        a(f"v_mov_b32 v{NM+i}, v8")
        a(f"v_mov_b32 v{O0+i}, 0")
    a("s_mov_b32 s50, s42")
    a("s_mov_b32 s45, 64")
    a.label("L_at_slow2")
    a(f"buffer_load_dwordx4 v[{KA}:{KA+3}], v9, s[32:35], s50 offen{sc}")
    a(f"buffer_load_dwordx2 v[{KA+4}:{KA+5}], v4, s[32:35], s50 offen offset:1024{sc}")
    a("s_mov_b64 exec, s[30:31]")
    a(f"buffer_load_dwordx4 v[{VA}:{VA+3}], v5, s[32:35], s50 offen offset:1280{sc}")
    a(f"buffer_load_dwordx4 v[{VA+4}:{VA+7}], v5, s[32:35], s50 offen offset:1920{sc}")
    a("s_mov_b64 exec, -1")
    a("s_waitcnt vmcnt(0)")
    a(f"v_mfma_f32_32x32x16_bf16 v[{S0}:{S0+15}], v[{KA}:{KA+3}], v[{Q0}:{Q0+3}], v[{NM}:{NM+15}]")
    a(f"v_mfma_f32_32x32x8_bf16 v[{S0}:{S0+15}], v[{KA+4}:{KA+5}], v[{Q0+4}:{Q0+5}], v[{S0}:{S0+15}]")
    a("s_nop 11")
    for i in range(16):
        a(f"v_exp_f32 v{S0+i}, v{S0+i}")
    a("s_nop 0")
    for i in range(8):
        a(f"v_cvt_pk_bf16_f32 v{P+i}, v{S0+2*i}, v{S0+2*i+1}")
    a("s_nop 1")
    a(pv(O0, VA, P))
    a(pv(O0, VA + 4, P + 4))
    a("s_add_u32 s50, s50, 2560")
    a("s_sub_u32 s45, s45, 1")
    a("s_cmp_lg_u32 s45, 0")
    a("s_cbranch_scc1 L_at_slow2")
    a("s_mov_b32 s51, 1")
    a("s_nop 10")
    a("s_branch L_at_fin")
    a.label("L_at_done")

GU_BUF = 24832
GU_UP = 12416
def gu_decode(a):
    a("s_sub_u32 s3, s2, 256")
    a("s_and_b32 s24, s3, 7")
    a("s_lshr_b32 s26, s3, 3")
    a("s_lshr_b32 s27, s24, 2")
    a("s_lshl_b32 s27, s27, 2")
    a("s_and_b32 s3, s26, 3")
    a("s_add_u32 s27, s27, s3")
    a("s_and_b32 s24, s24, 3")
    a("s_lshl_b32 s24, s24, 3")
    a("s_lshr_b32 s26, s26, 2")
    a("s_add_u32 s24, s24, s26")
    a("s_lshl_b32 s26, s27, 3")
    a("s_add_u32 s26, s26, s25")

class GU:
    ACC, XF, WF, XD = 16, 64, 96, int(os.environ.get("GXD", "8"))
    def __init__(self, a):
        self.a = a; self.vm = VM(a)
    def setup(self):
        a = self.a
        a("s_mul_i32 s40, s26, 40960")
        a(f"s_add_u32 s40, s40, {WS_XN}")
        a("s_mul_i32 s41, s24, 96")
        a("s_and_b32 s3, s25, 3")
        a("s_mul_i32 s42, s3, 3072")
        a("s_cmp_ge_u32 s25, 4")
        a(f"s_cselect_b32 s43, {GU_UP}, 0")
        a(f"s_cselect_b32 s28, s{S_WU}, s{S_WG}")
        a(f"s_cselect_b32 s29, s{S_WU+1}, s{S_WG+1}")
        a("s_mov_b32 s30, 1966080")
        a("s_mov_b32 s31, 0x00020000")
        a("s_add_u32 s42, s42, s43")
        a("s_mul_i32 s3, s3, 192")
        a("s_movk_i32 s43, 3072")
        for i in range(3):
            a(f"v_add_u32 v8, s3, v2")
            if i: a(f"v_add_u32 v8, {64*i}, v8")
            a("v_mul_u32_u24 v10, 10923, v8")
            a("v_lshrrev_b32 v10, 16, v10")
            a("v_mul_u32_u24 v11, 6, v10")
            a("v_sub_u32 v11, v8, v11")
            a("v_lshlrev_b32 v11, 4, v11")
            a(f"v_mad_u32_u24 v{4+i}, v10, s43, v11")
        a("v_bfe_u32 v8, v2, 2, 2")
        a("v_lshrrev_b32 v10, 5, v2")
        a("v_lshl_add_u32 v8, v10, 3, v8")
        a("v_mul_u32_u24 v8, 96, v8")
        a("v_and_b32 v10, 3, v2")
        a("v_lshl_add_u32 v8, v10, 3, v8")
        a("v_bfe_u32 v10, v2, 4, 1")
        a(f"v_mul_u32_u24 v10, {GU_UP}, v10")
        a("v_add_u32 v7, v8, v10")
        a(f"v_add_u32 v8, {2*GU_BUF}, v7")
        for i in range(48):
            a(f"v_mov_b32 v{self.ACC+i}, 0")
    def dma_stage(self, st):
        a = self.a
        for i in range(3):
            a(f"s_add_u32 m0, s42, {(st % 3) * GU_BUF + 1024 * i}")
            a("s_nop 0")
            self.vm.issue(f"buffer_load_dwordx4 v{4+i}, s[28:31], s41 offen lds", ("W", st))
        a(f"s_add_u32 s41, s41, {128*3072}")
    def xload(self, s):
        r = self.XF + 4 * (s % self.XD)
        self.vm.issue(f"buffer_load_dwordx4 v[{r}:{r+3}], v9, s[32:35], s40 offen offset:{1024*(s%4)}{cfg.sc}", ("X", s))
        if s % 4 == 3: self.a("s_add_u32 s40, s40, 4096")
    def main(self, pre_dma, hook=None):
        a, vm, ACC, XF, WF, XD = self.a, self.vm, self.ACC, self.XF, self.WF, self.XD
        if pre_dma < 1: self.dma_stage(0)
        G0 = int(os.environ.get("G0", "4"))
        for s in range(G0): self.xload(s)
        a("s_barrier")
        for s in range(G0, XD): self.xload(s)
        if pre_dma < 2: self.dma_stage(1)
        nx = [XD]
        def reads(s):
            st, sp = s // 8, s % 8
            w = WF + 12 * (s % 2)
            buf = st % 3
            base = "v8" if buf == 2 else "v7"
            bo = 0 if buf == 2 else buf * GU_BUF
            AB = os.environ.get("ABL", "")
            for ft in range(3):
                if "b128" in AB and s > 1:
                    a(f"ds_read_b128 v[{w+4*ft}:{w+4*ft+3}], v9 offset:{bo + (sp*3+ft)*1024}")
                    a("s_nop 0") if False else None
                    continue
                for u in range(2):
                    if "notr" in AB and s > 1: continue
                    a(f"ds_read_b64_tr_b16 v[{w+4*ft+2*u}:{w+4*ft+2*u+1}], {base} offset:{bo + (16*sp+4*u)*96 + 32*ft}")
        def pre(s):
            if s % 8 == 0:
                st = s // 8
                vm.wait(lambda t: t == ("W", st), "lgkmcnt(0)" if s else "")
                if os.environ.get("GSTAMP") and st == 0: stamp(a, 12)
                a("s_barrier")
                if st in (0, 2, 4): stamp(a, 3 + st // 2)
                if st >= 1 and st + 2 < 5:
                    self.dma_stage(st + 2)
        pre(0); reads(0)
        for s in range(40):
            if s + 1 < 40:
                pre(s + 1); reads(s + 1)
                vm.wait(lambda t: t == ("X", s), "lgkmcnt(3)" if "b128" in os.environ.get("ABL", "") and s > 0 else "lgkmcnt(6)")
            else:
                vm.wait(lambda t: t == ("X", s), "lgkmcnt(0)")
            w = WF + 12 * (s % 2)
            x = XF + 4 * (s % XD)
            for ft in range(3):
                D = f"v[{ACC+16*ft}:{ACC+16*ft+15}]"
                if "m16" in os.environ.get("ABL", ""):
                    for q in range(2):
                        d = ACC + 16 * ft + 8 * q + 4 * (s % 2)
                        a(f"v_mfma_f32_16x16x32_bf16 v[{d}:{d+3}], v[{w+4*ft}:{w+4*ft+3}], v[{x}:{x+3}], v[{d}:{d+3}]")
                else:
                    a(f"v_mfma_f32_32x32x16_bf16 {D}, v[{w+4*ft}:{w+4*ft+3}], v[{x}:{x+3}], {D}")
            for _ in range(2):
                if nx[0] <= s + XD and nx[0] < 40:
                    self.xload(nx[0]); nx[0] += 1
            if s == 2 and pre_dma < 3: self.dma_stage(2)
            if s == 6 and hook: hook()
        stamp(a, 6)
        a("s_setprio 3")
        a("s_mul_i32 s50, s26, 96")
        a("s_mul_i32 s3, s24, 3")
        a("s_add_u32 s50, s50, s3")
        a("s_lshl_b32 s50, s50, 10")
        a(f"s_add_u32 s50, s50, {WS_H}")
        a(f"s_mov_b32 s52, {f2hex(-1.4426950408889634)}")
        a("s_mov_b32 s53, s52")
        a("s_mov_b32 s54, 1.0")
        a("s_mov_b32 s55, 1.0")
        a("s_nop 1")
        T = XF
        for ft in range(3):
            g = ACC + 16 * ft; u = g + 8
            for i in range(0, 8, 2):
                a(f"v_pk_mul_f32 v[{T+i}:{T+i+1}], v[{g+i}:{g+i+1}], s[52:53]")
            for i in range(8):
                a(f"v_exp_f32 v{T+i}, v{T+i}")
            for i in range(0, 8, 2):
                a(f"v_pk_add_f32 v[{T+i}:{T+i+1}], v[{T+i}:{T+i+1}], s[54:55]")
            for i in range(8):
                a(f"v_rcp_f32 v{T+i}, v{T+i}")
            for i in range(0, 8, 2):
                a(f"v_pk_mul_f32 v[{g+i}:{g+i+1}], v[{g+i}:{g+i+1}], v[{u+i}:{u+i+1}]")
            for i in range(0, 8, 2):
                a(f"v_pk_mul_f32 v[{g+i}:{g+i+1}], v[{g+i}:{g+i+1}], v[{T+i}:{T+i+1}]")
            for i in range(4):
                a(f"v_cvt_pk_bf16_f32 v{g+i}, v{g+2*i}, v{g+2*i+1}")
            a(f"buffer_store_dwordx4 v[{g}:{g+3}], v9, s[32:35], s50 offen offset:{1024*ft}{cfg.sc}")
        stamp(a, 7)

class GU16(GU):
    def setup(self):
        a = self.a
        GU.setup(self)
        a("v_lshrrev_b32 v10, 4, v2")
        a("v_and_b32 v11, 15, v2")
        a("v_lshlrev_b32 v3, 4, v11")
        a("v_lshl_add_u32 v3, v10, 9, v3")
        a("v_and_b32 v12, 1, v10")
        a("v_lshlrev_b32 v14, 4, v11")
        a("v_lshl_add_u32 v14, v12, 9, v14")
        a("v_lshrrev_b32 v13, 5, v2")
        a("v_lshl_add_u32 v14, v13, 8, v14")
        a("v_bfe_u32 v8, v2, 2, 2")
        a("v_lshl_add_u32 v8, v10, 3, v8")
        a("v_lshl_add_u32 v7, v12, 2, v8")
        a("v_xor_b32 v8, 4, v7")
        a("v_and_b32 v10, 3, v2")
        a("v_lshlrev_b32 v10, 3, v10")
        a("s_movk_i32 s3, 96")
        a("v_mad_u32_u24 v7, v7, s3, v10")
        a("v_mad_u32_u24 v8, v8, s3, v10")
        a(f"v_add_u32 v12, {2*GU_BUF}, v7")
        a(f"v_add_u32 v13, {2*GU_BUF}, v8")
    def xload(self, k):
        r = self.XF + 8 * (k % 4)
        for th in range(2):
            self.vm.issue(f"buffer_load_dwordx4 v[{r+4*th}:{r+4*th+3}], v3, s[32:35], s40 offen offset:{2048*(k%2) + 256*th}{cfg.sc}", ("X", k))
        if k % 2 == 1: self.a("s_add_u32 s40, s40, 4096")
    def main(self, pre_dma, hook=None):
        a, vm, ACC, XF, WF = self.a, self.vm, self.ACC, self.XF, self.WF
        if pre_dma < 1: self.dma_stage(0)
        self.xload(0); self.xload(1)
        XR = int(os.environ.get("GXR", "0"))
        nx = [2]
        if not XR:
            if pre_dma < 3: a("s_barrier")
            self.xload(2); self.xload(3); nx = [4]
        if pre_dma < 2: self.dma_stage(1)
        def reads(s):
            st, sp, reg = s // 8, (s % 8) // 2, s % 2
            w = WF + 12 * (s % 2)
            buf = st % 3
            bo = (0 if buf == 2 else buf * GU_BUF) + reg * GU_UP + 32 * sp * 96
            for ft in range(3):
                for u in range(2):
                    base = (12 if buf == 2 else 7) + u
                    if "gnotr" in os.environ.get("ABL", "") and s > 1: continue
                    a(f"ds_read_b64_tr_b16 v[{w+4*ft+2*u}:{w+4*ft+2*u+1}], v{base} offset:{bo + 32*ft}")
        def pre(s):
            if s % 8 == 0:
                st = s // 8
                vm.wait(lambda t: t == ("W", st), "lgkmcnt(0)" if s else "")
                a("s_barrier")
                if st in (0, 2, 4): stamp(a, 3 + st // 2)
                if st >= 1 and st + 2 < 5 and "gnow" not in os.environ.get("ABL", ""):
                    self.dma_stage(st + 2)
        pre(0); reads(0)
        for s in range(40):
            k = s // 2
            lg = "lgkmcnt(6)" if s + 1 < 40 else "lgkmcnt(0)"
            if s + 1 < 40:
                pre(s + 1); reads(s + 1)
            vm.wait(lambda t: t == ("X", k), lg)
            w = WF + 12 * (s % 2)
            x = XF + 8 * (k % 4)
            for ft in range(3):
                for th in range(2):
                    d = ACC + 16 * ft + 8 * (s % 2) + 4 * th
                    if "gnomf" in os.environ.get("ABL", ""): continue
                    a(f"v_mfma_f32_16x16x32_bf16 v[{d}:{d+3}], v[{w+4*ft}:{w+4*ft+3}], v[{x+4*th}:{x+4*th+3}], v[{d}:{d+3}]")
            if s % 2 == 1:
                for _ in range(2):
                    if nx[0] <= k + (2 if s < XR else 4) and nx[0] < 20:
                        self.xload(nx[0]); nx[0] += 1
            if s == 2 and pre_dma < 3: self.dma_stage(2)
            if s == int(os.environ.get("HOOKS", "6")) and hook: hook()
        stamp(a, 6)
        a(f"s_setprio {os.environ.get('PE', '3')}")
        a("s_mul_i32 s50, s26, 96")
        a("s_mul_i32 s3, s24, 3")
        a("s_add_u32 s50, s50, s3")
        a("s_lshl_b32 s50, s50, 10")
        a(f"s_add_u32 s50, s50, {WS_H}")
        a(f"s_mov_b32 s52, {f2hex(-1.4426950408889634)}")
        a("s_mov_b32 s53, s52")
        a("s_mov_b32 s54, 1.0")
        a("s_mov_b32 s55, 1.0")
        T = XF
        for ft in range(3):
            g = ACC + 16 * ft; u = g + 8
            for i in range(0, 8, 2):
                a(f"v_pk_mul_f32 v[{T+i}:{T+i+1}], v[{g+i}:{g+i+1}], s[52:53]")
            for i in range(8):
                a(f"v_exp_f32 v{T+i}, v{T+i}")
            for i in range(0, 8, 2):
                a(f"v_pk_add_f32 v[{T+i}:{T+i+1}], v[{T+i}:{T+i+1}], s[54:55]")
            for i in range(8):
                a(f"v_rcp_f32 v{T+i}, v{T+i}")
            for i in range(0, 8, 2):
                a(f"v_pk_mul_f32 v[{g+i}:{g+i+1}], v[{g+i}:{g+i+1}], v[{u+i}:{u+i+1}]")
            for i in range(0, 8, 2):
                a(f"v_pk_mul_f32 v[{g+i}:{g+i+1}], v[{g+i}:{g+i+1}], v[{T+i}:{T+i+1}]")
            for i in range(4):
                a(f"v_cvt_pk_bf16_f32 v{g+i}, v{g+2*i}, v{g+2*i+1}")
            a("s_nop 1")
            a(f"v_permlane32_swap_b32 v{g}, v{g+2}")
            a(f"v_permlane32_swap_b32 v{g+1}, v{g+3}")
            a(f"buffer_store_dwordx4 v[{g}:{g+3}], v14, s[32:35], s50 offen offset:{1024*ft}{cfg.sc}")
        stamp(a, 7)

def fin_decode(a):
    a("s_and_b32 s3, s2, 255")
    a("s_and_b32 s24, s3, 7")
    a("s_lshr_b32 s26, s3, 3")
    a("s_lshr_b32 s27, s24, 1")
    a("s_lshl_b32 s27, s27, 3")
    a("s_and_b32 s3, s26, 7")
    a("s_add_u32 s27, s27, s3")
    a("s_and_b32 s24, s24, 1")
    a("s_lshl_b32 s24, s24, 2")
    a("s_lshr_b32 s26, s26, 3")
    a("s_add_u32 s24, s24, s26")

class FIN:
    ACC, XF, WF = 16, 56, 88
    DV = [4, 5, 6, 7, 8]
    TD, TM, TR = 11, 12, 13
    def __init__(self, a):
        self.a = a; self.vm = VM(a); self.q = [[], []]
    def roles(self):
        a = self.a
        a("s_and_b32 s46, s25, 1")
        a("s_lshr_b32 s47, s25, 1")
        a("s_mov_b32 s56, s25")
    BOFF = 0
    def zero_acc(self):
        for i in range(40):
            self.a(f"v_mov_b32 v{self.ACC+i}, 0")
    def setup(self, zero_acc=True):
        a = self.a
        srd(a, 28, S_WD, 1966080)
        srd(a, 36, S_WO, 819200)
        self.roles()
        a("s_lshl_b32 s26, s27, 1")
        a("s_add_u32 s26, s26, s46")
        a("s_lshl_b32 s3, s47, 11")
        a("s_mul_i32 s40, s26, 98304")
        a("s_add_u32 s40, s40, s3")
        a(f"s_add_u32 s40, s40, {WS_H}")
        a("s_mul_i32 s43, s26, 40960")
        a("s_add_u32 s43, s43, s3")
        a(f"s_add_u32 s43, s43, {WS_O}")
        a("s_mul_i32 s41, s24, 160")
        a("s_mul_i32 s3, s25, 40960")
        a("s_add_u32 s41, s41, s3")
        a("s_mov_b32 s44, s41")
        a("s_mul_i32 s49, s25, 5120")
        a("s_and_b32 s3, s25, 3")
        a("s_mul_i32 s42, s3, 5120")
        a("s_lshr_b32 s48, s25, 2")
        a("v_lshrrev_b32 v10, 4, v2")
        a("v_and_b32 v14, 15, v2")
        a("v_lshlrev_b32 v3, 4, v14")
        a("v_lshl_add_u32 v3, v10, 9, v3")
        a("s_movk_i32 s3, 1280")
        for b in range(5):
            a(f"v_add_u32 v11, {64*b}, v2")
            a("v_mul_u32_u24 v12, 6554, v11")
            a("v_lshrrev_b32 v12, 16, v12")
            a("v_mul_u32_u24 v13, 10, v12")
            a("v_sub_u32 v13, v11, v13")
            a("v_lshlrev_b32 v13, 4, v13")
            a(f"v_mad_u32_u24 v{self.DV[b]}, v12, s3, v13")
        a("s_lshl_b32 s45, s26, 5")
        a("v_add_u32 v14, s45, v14")
        a("v_mul_u32_u24 v14, 1280, v14")
        a("v_lshl_add_u32 v14, v10, 3, v14")
        a("s_mul_i32 s45, s24, 160")
        a("v_add_u32 v14, s45, v14")
        a("v_bfe_u32 v10, v2, 2, 2")
        a("v_bfe_u32 v15, v2, 4, 1")
        a("v_lshrrev_b32 v1, 5, v2")
        a("v_and_b32 v0, 3, v2")
        a("v_lshlrev_b32 v0, 3, v0")
        a("s_movk_i32 s3, 160")
        a(f"v_lshl_add_u32 v{self.TD}, v1, 4, v10")
        a(f"v_lshl_add_u32 v{self.TD}, v15, 2, v{self.TD}")
        a(f"v_mad_u32_u24 v{self.TD}, v{self.TD}, s3, v0")
        a("s_mul_i32 s45, s47, 5120")
        a(f"v_add_u32 v{self.TD}, s45, v{self.TD}")
        a(f"v_mul_u32_u24 v{self.TM}, 20, v1")
        a(f"v_lshl_add_u32 v{self.TM}, v15, 2, v{self.TM}")
        a(f"v_add_u32 v{self.TM}, v{self.TM}, v10")
        a(f"v_mad_u32_u24 v{self.TM}, v{self.TM}, s3, v0")
        a("s_mul_i32 s45, s47, 6400")
        a(f"v_add_u32 v{self.TM}, s45, v{self.TM}")
        a(f"v_mul_u32_u24 v{self.TR}, 80, v1")
        a("v_mul_u32_u24 v15, 20, v15")
        a(f"v_add3_u32 v{self.TR}, v{self.TR}, v15, v10")
        a(f"v_mad_u32_u24 v{self.TR}, v{self.TR}, s3, v0")
        a(f"v_add_u32 v{self.TR}, {16*160}, v{self.TR}")
        if zero_acc: self.zero_acc()
    def dma_wd(self, m):
        a = self.a
        L = uid("L_dwd")
        a(f"s_cmp_lg_u32 s48, {m % 2}")
        a(f"s_cbranch_scc1 {L}")
        for b in range(5):
            a(f"s_add_u32 m0, s42, {((m + self.BOFF) % 4) * 20480 + 1024 * b}")
            a("s_nop 0")
            a(f"buffer_load_dwordx4 v{self.DV[b]}, s[28:31], s41 offen lds")
        a(f"s_add_u32 s41, s41, {256*1280}")
        a.label(L)
        self.q[m % 2] += [("W", m)] * 5
    def hload(self, m):
        r = self.XF + 8 * (m % 4)
        for th in range(2):
            self.a(f"buffer_load_dwordx4 v[{r+4*th}:{r+4*th+3}], v3, s[32:35], s40 offen offset:{256*th}{cfg.sc}")
            for q in self.q: q.append(("X", m))
        self.a("s_add_u32 s40, s40, 8192")
    def wait2(self, preds, extra=""):
        n = 63
        for q in self.q:
            last = max([i for i, t in enumerate(q) if t in preds], default=-1)
            if last >= 0: n = min(n, len(q) - 1 - last)
        if n == 63:
            if extra: self.a(f"s_waitcnt {extra}")
            return
        self.a(f"s_waitcnt vmcnt({n}) {extra}".strip())
        self.q = [q[max(0, len(q) - n):] if n > 0 else [] for q in self.q]
    def wreads(self, w, base, off, ustep):
        for ft in range(5):
            for u in range(2):
                self.a(f"ds_read_b64_tr_b16 v[{w+4*ft+2*u}:{w+4*ft+2*u+1}], v{base} offset:{off + ustep*u + 32*ft}")
    def mfmas(self, w, x):
        if "dnomf" in os.environ.get("ABL", ""): return
        for ft in range(5):
            for th in range(2):
                d = self.ACC + 4 * (5 * th + ft)
                self.a(f"v_mfma_f32_16x16x32_bf16 v[{d}:{d+3}], v[{w+4*ft}:{w+4*ft+3}], v[{x+4*th}:{x+4*th+3}], v[{d}:{d+3}]")
    def down(self, npre=4):
        a = self.a
        for m in range(2): self.hload(m)
        nw = npre
        nh = 2
        TD2 = 15
        a(f"v_add_u32 v{TD2}, 40960, v{self.TD}")
        def reads(m):
            base = self.TD if (m % 4) < 2 else TD2
            self.wreads(self.WF + 20 * (m % 2), base, (m % 2) * 20480, 1280)
        self.wait2([("W", 0)])
        a("s_barrier")
        if not os.environ.get("GSTAMP"): stamp(a, 9)
        reads(0)
        for m in range(12):
            if m + 1 < 12:
                self.wait2([("W", m + 1)], "lgkmcnt(0)")
                a("s_barrier")
                reads(m + 1)
                for _ in range(2):
                    if nw <= m + 4 and nw < 12:
                        self.dma_wd(nw); nw += 1
                if m == 9:
                    a("s_waitcnt vmcnt(0)")
                    self.q = [[], []]
                    self.wo_dma((0, 8), 0, 0)
                if m == 10:
                    self.wo_dma((0, 4), 8, 8)
                self.wait2([("X", m)])
            else:
                self.wait2([("X", m)], "lgkmcnt(0)")
            self.mfmas(self.WF + 20 * (m % 2), self.XF + 8 * (m % 4))
            for _ in range(2):
                if nh <= m + 4 and nh < 12:
                    self.hload(nh); nh += 1
        if not os.environ.get("GSTAMP"): stamp(a, 10)
    def wo_dma(self, cond, first_group, lds_group):
        a = self.a
        lo, hi = cond
        L = uid("L_wod")
        if lo > 0:
            a(f"s_cmp_lt_u32 s25, {lo}")
            a(f"s_cbranch_scc1 {L}")
        if hi < 8:
            a(f"s_cmp_ge_u32 s25, {hi}")
            a(f"s_cbranch_scc1 {L}")
        a(f"s_add_u32 s3, s44, {(first_group - lo) * 32 * 1280}")
        for b in range(5):
            a(f"s_add_u32 m0, s49, {(lds_group - lo) * 5120 + 1024 * b}")
            a("s_nop 0")
            a(f"buffer_load_dwordx4 v{self.DV[b]}, s[36:39], s3 offen lds")
        a.label(L)
    def wo_prefetch(self, after_first=None):
        a = self.a
        if after_first is None:
            a("s_waitcnt vmcnt(5)")
            a("s_cmp_lt_u32 s25, 4")
            a("s_cbranch_scc1 L_fin_p0")
        a("s_waitcnt vmcnt(0)")
        a.label("L_fin_p0")
        a("s_barrier")
        if after_first: after_first()
        self.wo_dma((4, 7), 12, 12)
        self.wreads(self.WF + 20, self.TM, 0, 1280)
        a("s_cmp_lg_u32 s47, 0")
        a("s_cbranch_scc1 L_fin_p1")
        self.wreads(self.WF, self.TR, 0, 6400)
        a.label("L_fin_p1")
        a("s_cmp_eq_u32 s47, 3")
        a("s_cselect_b32 s3, 0, s47")
        a("s_mul_i32 s3, s3, 25600")
        a(f"v_add_u32 v{self.TR}, s3, v{self.TR}")
        a("s_waitcnt lgkmcnt(0)")
        a("s_barrier")
        self.wo_dma((0, 5), 15, 0)
        srd(a, 28, S_X, 2621440)
        for i in range(3):
            a(f"s_add_u32 s3, s47, {4*i}")
            a("s_cmp_ge_u32 s3, 5")
            a(f"s_cselect_b32 s50, {20480 - 160}, 0")
            a("s_lshl_b32 s51, s3, 5")
            a(f"s_add_u32 s{52+i}, s50, s51")
        a("s_cmp_ge_u32 s47, 2")
        a("s_cselect_b32 s54, s53, s54")
        a("buffer_load_dwordx2 v[0:1], v14, s[28:31], s52 offen")
    def wo_main(self):
        a, vm = self.a, self.vm
        vm.q = []
        XS = {4: 56, 0: 64, 1: 72, 2: 80, 3: 4}
        def oload(rd):
            a(f"s_add_u32 s3, s43, {8192*rd}")
            for th in range(2):
                r = XS[rd] + 4 * th
                vm.issue(f"buffer_load_dwordx4 v[{r}:{r+3}], v3, s[32:35], s3 offen offset:{256*th}{cfg.sc}", ("X", rd))
        for rd in (4, 0, 1, 2, 3): oload(rd)
        srd(a, 36, S_OUT, 2621440)
        A, B = self.WF, self.WF + 20
        a("s_cmp_eq_u32 s47, 0")
        a("s_cbranch_scc1 L_fin_r4")
        self.wreads(A, self.TR, 0, 6400)
        a.label("L_fin_r4")
        vm.wait(lambda t: t == ("X", 4), "lgkmcnt(0)")
        if os.environ.get("TAILSTAMP"): stamp(a, 1)
        self.mfmas(A, XS[4])
        self.wreads(A, self.TM, 160 * 160, 1280)
        vm.wait(lambda t: t == ("X", 0))
        self.mfmas(B, XS[0])
        self.wreads(B, self.TM, 320 * 160, 1280)
        vm.wait(lambda t: t == ("X", 1), "lgkmcnt(10)")
        self.mfmas(A, XS[1])
        self.wreads(A, self.TM, 0, 1280)
        vm.wait(lambda t: t == ("X", 2), "lgkmcnt(10)")
        self.mfmas(B, XS[2])
        for i in range(1, 3):
            vm.issue(f"buffer_load_dwordx2 v[{56+2*i}:{57+2*i}], v14, s[28:31], s{52+i} offen", ("R", i))
        vm.wait(lambda t: t == ("X", 3), "lgkmcnt(0)")
        a("s_barrier")
        self.mfmas(A, XS[3])
        if not os.environ.get("GSTAMP"): stamp(a, 12)
        a("v_lshlrev_b32 v9, 4, v2")
        a("s_mul_i32 s3, s56, 10240")
        a("v_add_u32 v10, s3, v9")
        for j in range(10):
            L = uid("L_fw")
            a(f"s_cmp_eq_u32 s47, {j % 4}")
            a(f"s_cbranch_scc1 {L}")
            a(f"ds_write_b128 v10, v[{self.ACC+4*j}:{self.ACC+4*j+3}] offset:{1024*j}")
            a(f"s_branch {L}_n")
            a.label(L)
            r = 64 + 16 * (j // 4)
            for t in range(4):
                a(f"v_mov_b32 v{r+t}, v{self.ACC+4*j+t}")
            a.label(L + "_n")
        a("s_mul_i32 s3, s46, 10240")
        a("s_lshl_b32 s50, s47, 10")
        a("s_add_u32 s3, s3, s50")
        a("v_add_u32 v10, s3, v9")
        for k in range(1, 4):
            a(f"s_add_u32 s3, s47, {k}")
            a("s_and_b32 s3, s3, 3")
            a("s_mul_i32 s3, s3, 20480")
            a(f"v_add_u32 v{3+k}, s3, v10")
        a("s_waitcnt lgkmcnt(0)")
        if os.environ.get("TAILSTAMP"): stamp(a, 3)
        a("s_barrier")
        if os.environ.get("TAILSTAMP"): stamp(a, 4)
        R = 64
        for i in range(3):
            if i == 2:
                a("s_cmp_ge_u32 s47, 2")
                a("s_cbranch_scc1 L_fin_r2")
            for k in range(1, 4):
                r = R + 16 * i + 4 * k
                a(f"ds_read_b128 v[{r}:{r+3}], v{3+k} offset:{4096*i}")
        a.label("L_fin_r2")
        a("s_waitcnt vmcnt(0) lgkmcnt(0)")
        if os.environ.get("TAILSTAMP"): stamp(a, 5)
        for i in range(3):
            r = R + 16 * i; xr = 0 if i == 0 else 56 + 2 * i
            if i == 2:
                a("s_cmp_ge_u32 s47, 2")
                a("s_cbranch_scc1 L_fin_end")
            a(f"v_lshlrev_b32 v4, 16, v{xr}")
            a(f"v_and_b32 v5, 0xffff0000, v{xr}")
            a(f"v_lshlrev_b32 v6, 16, v{xr+1}")
            a(f"v_and_b32 v7, 0xffff0000, v{xr+1}")
            for h in range(2):
                a(f"v_pk_add_f32 v[{r+2*h}:{r+2*h+1}], v[{r+2*h}:{r+2*h+1}], v[{r+4+2*h}:{r+5+2*h}]")
                a(f"v_pk_add_f32 v[{r+8+2*h}:{r+9+2*h}], v[{r+8+2*h}:{r+9+2*h}], v[{r+12+2*h}:{r+13+2*h}]")
                a(f"v_pk_add_f32 v[{r+2*h}:{r+2*h+1}], v[{r+2*h}:{r+2*h+1}], v[{4+2*h}:{5+2*h}]")
                a(f"v_pk_add_f32 v[{r+2*h}:{r+2*h+1}], v[{r+2*h}:{r+2*h+1}], v[{r+8+2*h}:{r+9+2*h}]")
            a(f"v_cvt_pk_bf16_f32 v{r}, v{r}, v{r+1}")
            a(f"v_cvt_pk_bf16_f32 v{r+1}, v{r+2}, v{r+3}")
            a(f"buffer_store_dwordx2 v[{r}:{r+1}], v14, s[36:39], s{52+i} offen{os.environ.get('OUTSC', '')}")
        a.label("L_fin_end")
        if os.environ.get("TAILSTAMP"): stamp(a, 6)

WS_ST = 0x1480000
def qkv2_decode(a):
    a("s_and_b32 s24, s2, 7")
    a("s_lshr_b32 s26, s2, 3")
    a("s_mul_i32 s24, s24, 30")
    a("s_add_u32 s27, s24, s26")
    a("s_cmp_ge_u32 s27, 80")
    a("s_cselect_b32 s24, 1, 0")
    a("s_cmp_ge_u32 s27, 160")
    a("s_cselect_b32 s24, 2, s24")
    a("s_mul_i32 s26, s24, 80")
    a("s_sub_u32 s27, s27, s26")
    a("s_mul_i32 s26, s27, 205")
    a("s_lshr_b32 s26, s26, 10")
    a("s_mul_i32 s3, s26, 5")
    a("s_sub_u32 s27, s27, s3")
    a("s_mul_i32 s47, s24, 5")
    a("s_add_u32 s47, s47, s27")
    a("s_lshl_b32 s46, s47, 4")
    a("s_add_u32 s46, s46, s26")

def qkv2(a, nonce_check):
    ACC, XF, WF, CS, SEL, AD = 16, 48, 64, 72, 76, 80
    XA0, XA1, TW, DX, DW = 3, 4, 5, 6, 7
    NSL, RING = 20, 5
    L_CS, L_ST = 0, 1024
    XB0, XB1, TW2 = 90, 91, 92
    vm = VM(a)
    srd(a, 28, S_WQKV, 2457600)
    srd(a, 36, S_X, 2621440)
    a("v_lshrrev_b32 v10, 2, v2")
    a("s_lshl_b32 s3, s25, 4")
    a("v_add_u32 v10, s3, v10")
    a("v_mul_u32_u24 v10, 1280, v10")
    a("v_lshrrev_b32 v11, 4, v2")
    a("v_and_b32 v12, 3, v2")
    a("v_xor_b32 v13, v12, v11")
    a(f"v_lshl_add_u32 v{DX}, v13, 4, v10")
    a("s_lshl_b32 s3, s25, 2")
    a("v_add_u32 v10, s3, v11")
    a("v_mul_u32_u24 v10, 3840, v10")
    a("v_bfe_u32 v13, v2, 2, 2")
    a("v_xor_b32 v13, v13, v11")
    a("v_lshl_add_u32 v10, v13, 6, v10")
    a(f"v_lshl_add_u32 v{DW}, v12, 4, v10")
    a("s_mul_i32 s40, s26, 163840")
    a("s_lshl_b32 s41, s47, 8")
    a("s_lshl_b32 s42, s25, 10")
    def dma(sl):
        base = (sl % RING) * 16384
        a(f"s_add_u32 m0, s42, {base}")
        a("s_nop 0")
        vm.issue(f"buffer_load_dwordx4 v{DX}, s[36:39], s40 offen lds", ("S", sl))
        a(f"s_add_u32 m0, s42, {base + 8192}")
        a("s_add_u32 s40, s40, 64")
        vm.issue(f"buffer_load_dwordx4 v{DW}, s[28:31], s41 offen lds", ("S", sl))
        a(f"s_add_u32 s41, s41, {32*3840}")
    NUP = int(os.environ.get('Q2UP', '5'))
    for sl in range(NUP): dma(sl)
    stamp(a, 1)
    a("s_lshr_b32 s48, s25, 2")
    a("s_and_b32 s49, s25, 3")
    a("v_and_b32 v10, 31, v2")
    a("v_lshrrev_b32 v8, 5, v2")
    a("v_bfe_u32 v11, v2, 2, 2")
    a("v_xor_b32 v12, v8, v11")
    a("v_lshlrev_b32 v13, 6, v10")
    a("s_lshl_b32 s3, s48, 12")
    a("v_add_u32 v13, s3, v13")
    a(f"v_lshl_add_u32 v{XA0}, v12, 4, v13")
    a(f"v_xor_b32 v{XA1}, 32, v{XA0}")
    a("v_lshl_add_u32 v12, v8, 3, v11")
    a("v_lshlrev_b32 v12, 8, v12")
    a("v_xor_b32 v13, s49, v11")
    a("v_lshl_add_u32 v12, v13, 6, v12")
    a("v_bfe_u32 v13, v2, 4, 1")
    a("v_lshl_add_u32 v12, v13, 5, v12")
    a("v_add_u32 v12, 8192, v12")
    a("v_and_b32 v14, 15, v2")
    a("v_cmp_eq_u32 vcc, v14, v13")
    a("v_mov_b32 v14, 0x3f803f80")
    for i in range(32): a(f"v_mov_b32 v{ACC+i}, 0")
    a("v_cndmask_b32 v14, 0, v14, vcc")
    for i in range(4):
        a(f"v_mov_b32 v{SEL+i}, v14")
        a(f"v_mov_b32 v{CS+i}, 0")
    a("s_lshl_b32 s3, s26, 8")
    a(f"s_add_u32 s50, s3, {F_XN}")
    a("v_lshlrev_b32 v15, 3, v10")
    a("s_lshl_b32 s51, s26, 10")
    a(f"s_add_u32 s51, s51, {WS_ST}")
    a("s_lshl_b32 s43, s26, 2")
    a("s_lshl_b32 s3, s48, 1")
    a("s_add_u32 s43, s43, s3")
    a("s_cmp_eq_u32 s24, 2")
    a("s_cbranch_scc1 L_q2_V")
    a("v_and_b32 v13, 1, v2")
    a("v_lshl_add_u32 v12, v13, 4, v12")
    a("v_bfe_u32 v13, v2, 1, 1")
    a(f"v_lshl_add_u32 v{TW}, v13, 3, v12")
    a("s_lshl_b32 s45, s43, 10")
    a(f"s_add_u32 s45, s45, {WS_QM}")
    a("s_lshl_b32 s44, s43, 8")
    a(f"s_add_u32 s44, s44, {WS_QR}")
    a("s_mov_b32 s52, 65536")
    a("s_mov_b32 s53, 16384")
    a("s_movk_i32 s54, 1024")
    a("s_movk_i32 s55, 256")
    a(f"s_mov_b32 s63, {f2hex(QSCALE)}")
    a("s_cmp_eq_u32 s24, 0")
    a("s_cbranch_scc1 L_q2_isq")
    a("s_mul_i32 s45, s43, 2560")
    a(f"s_add_u32 s45, s45, {WS_KV}")
    a("s_add_u32 s44, s45, 1024")
    a("s_mov_b32 s52, 163840")
    a("s_mov_b32 s53, 163840")
    a("s_movk_i32 s54, 2560")
    a("s_movk_i32 s55, 2560")
    a("s_mov_b32 s63, 1.0")
    a.label("L_q2_isq")
    a("s_lshl_b32 s3, s27, 2")
    a("s_add_u32 s3, s3, s49")
    a("s_lshl_b32 s3, s3, 2")
    a("v_add_u32 v11, s3, v8")
    a("v_lshl_add_u32 v12, v10, 4, s45")
    a("v_lshl_add_u32 v13, v10, 3, s44")
    for q in range(2):
        a(f"v_add_u32 v14, {2*q}, v11")
        a("v_mul_u32_u24 v1, 205, v14")
        a("v_lshrrev_b32 v1, 10, v1")
        a("v_mul_u32_u24 v0, 5, v1")
        a("v_sub_u32 v14, v14, v0")
        a("v_lshlrev_b32 v1, 1, v1")
        a("v_mul_lo_u32 v0, v1, s53")
        a(f"v_add_u32 v{AD+3*q+1}, v0, v13")
        a(f"v_add_u32 v{AD+3*q+2}, s53, v{AD+3*q+1}")
        a("v_cmp_lt_u32 vcc, 2, v14")
        a("v_subrev_u32 v0, 3, v14")
        a("s_nop 0")
        a("v_addc_co_u32 v1, s[86:87], 0, v1, vcc")
        a("v_cndmask_b32 v0, v14, v0, vcc")
        a("v_mul_lo_u32 v1, v1, s52")
        a("v_lshl_add_u32 v0, v0, 9, v12")
        a("v_add_u32 v0, v0, v1")
        a("v_cmp_eq_u32 vcc, 2, v14")
        a(f"v_mov_b32 v1, {OOB - 0x100000}")
        a("s_nop 0")
        a(f"v_cndmask_b32 v{AD+3*q}, v0, v1, vcc")
        a(f"v_cndmask_b32 v{AD+3*q+1}, v1, v{AD+3*q+1}, vcc")
        a(f"v_cndmask_b32 v{AD+3*q+2}, v1, v{AD+3*q+2}, vcc")

    def loop(vtype):
        vq = list(vm.q)
        a(f"v_add_u32 v{XB0}, 0x10000, v{XA0}")
        a(f"v_add_u32 v{XB1}, 0x10000, v{XA1}")
        a(f"v_add_u32 v{TW2}, 0x10000, v{TW}")
        nd = [NUP]
        def reads(s):
            sl, sp = s // 2, s % 2
            base = (sl % RING) * 16384
            x = XF + 8 * (s % 2); w = WF + 4 * (s % 2)
            xa = XA1 if sp else XA0; tw = TW
            if base >= 65536:
                base -= 65536; xa = XB1 if sp else XB0; tw = TW2
            a(f"ds_read_b128 v[{x}:{x+3}], v{xa} offset:{base}")
            a(f"ds_read_b64_tr_b16 v[{w}:{w+1}], v{tw} offset:{base + 16*sp*256}")
            a(f"ds_read_b64_tr_b16 v[{w+2}:{w+3}], v{tw} offset:{base + (16*sp+4)*256}")
            a(f"ds_read_b128 v[{x+4}:{x+7}], v{xa} offset:{base + 2048}")
        def pre(s):
            if s % 4: return
            sl = s // 2
            vm.wait(lambda t: t == ("S", sl + 1), "lgkmcnt(0)" if s else "")
            a("s_barrier")
            if sl in (0, 10): stamp(a, 2 if sl == 0 else 3)
            if PROFILE and os.environ.get("SLOTTRACE"):
                a("s_memtime s[84:85]")
                a("s_waitcnt lgkmcnt(0)")
                a("s_sub_u32 s84, s84, s64")
                a(f"v_writelane_b32 v120, s84, {sl // 2}")
            while nd[0] < sl + RING and nd[0] < NSL:
                dma(nd[0]); nd[0] += 1
            if cfg.fused:
                if sl == 6:
                    a("v_mov_b32 v0, 0")
                    vm.issue("buffer_load_dwordx2 v[88:89], v0, s[56:59], 0 offen sc1", ("N", 0))
                if sl == 10:
                    vm.wait(lambda t: t == ("N", 0))
                    nonce_check(88)
                if sl == 12:
                    vm.issue("buffer_load_dwordx2 v[88:89], v15, s[32:35], s50 offen sc1", ("F", 0))
                if sl == 16:
                    vm.wait(lambda t: t == ("F", 0))
                    L = uid("L_q2f")
                    a("v_cmp_ne_u64 vcc, s[60:61], v[88:89]")
                    a(f"s_cbranch_vccz {L}")
                    a("v_add_u32 v0, s50, v15")
                    poll(a, 0, 88)
                    a.label(L)
            if sl == 16:
                a(f"s_mov_b32 m0, {L_ST}")
                a("s_nop 0")
                vm.issue(f"buffer_load_dwordx4 v9, s[32:35], s51 offen{cfg.sc} lds", ("T", 0))
        pre(0); reads(0)
        for s in range(2 * NSL):
            if s + 1 < 2 * NSL:
                pre(s + 1); reads(s + 1)
                a("s_waitcnt lgkmcnt(4)")
            else:
                a("s_waitcnt lgkmcnt(0)")
            x = XF + 8 * (s % 2); w = WF + 4 * (s % 2)
            for j in range(2):
                W = f"v[{w}:{w+3}]"; X = f"v[{x+4*j}:{x+4*j+3}]"
                A, B = (X, W) if vtype else (W, X)
                D = f"v[{ACC+16*j}:{ACC+16*j+15}]"
                a(f"v_mfma_f32_32x32x16_bf16 {D}, {A}, {B}, {D}")
            L = uid("L_q2s")
            a(f"s_cmp_lg_u32 s48, {s % 2}")
            a(f"s_cbranch_scc1 {L}")
            a(f"v_mfma_f32_16x16x32_bf16 v[{CS}:{CS+3}], v[{w}:{w+3}], v[{SEL}:{SEL+3}], v[{CS}:{CS+3}]")
            a.label(L)
        stamp(a, 6)
        if qkv_hook: qkv_hook()
        a("v_and_b32 v0, 15, v2")
        a("v_lshrrev_b32 v1, 4, v2")
        a("v_lshlrev_b32 v1, 4, v1")
        a("v_lshl_add_u32 v1, v0, 6, v1")
        a("s_lshl_b32 s3, s25, 7")
        a(f"s_add_u32 s3, s3, {L_CS}")
        a("v_add_u32 v1, s3, v1")
        a("v_cmp_gt_u32 vcc, 2, v0")
        a("s_nop 1")
        a("s_mov_b64 exec, vcc")
        a(f"ds_write_b128 v1, v[{CS}:{CS+3}]")
        a("s_mov_b64 exec, -1")
        vm.wait(lambda t: t == ("T", 0), "lgkmcnt(0)")
        a("s_barrier")
        vm.q = vq
    loop(False)
    C0, C1, MR = 48, 64, 88
    a("s_lshl_b32 s3, s49, 7")
    a(f"s_add_u32 s3, s3, {L_CS}")
    a("v_lshl_add_u32 v0, v8, 4, s3")
    for g in range(4):
        a(f"ds_read_b128 v[{C0+4*g}:{C0+4*g+3}], v0 offset:{32*g}")
        a(f"ds_read_b128 v[{C1+4*g}:{C1+4*g+3}], v0 offset:{512 + 32*g}")
    a("s_lshl_b32 s3, s48, 8")
    a(f"s_add_u32 s3, s3, {L_ST}")
    a("v_lshl_add_u32 v1, v10, 2, s3")
    for j in range(2):
        a(f"ds_read_b32 v{MR+4*j}, v1 offset:{128*j}")
        a(f"ds_read_b32 v{MR+4*j+2}, v1 offset:{512 + 128*j}")
    a("s_waitcnt lgkmcnt(0)")
    for i in range(0, 16, 2):
        a(f"v_pk_add_f32 v[{C0+i}:{C0+i+1}], v[{C0+i}:{C0+i+1}], v[{C1+i}:{C1+i+1}]")
    for j in range(2):
        a(f"v_mov_b32 v{MR+4*j+1}, v{MR+4*j}")
        a(f"v_mul_f32 v{MR+4*j+2}, s63, v{MR+4*j+2}")
        a(f"v_mov_b32 v{MR+4*j+3}, v{MR+4*j+2}")
    for j in range(2):
        for q in range(2):
            r = ACC + 16 * j + 8 * q
            for i in range(0, 8, 2):
                c = C0 + 8 * q + i
                a(f"v_pk_fma_f32 v[{r+i}:{r+i+1}], v[{c}:{c+1}], v[{MR+4*j}:{MR+4*j+1}], v[{r+i}:{r+i+1}]")
            for i in range(0, 8, 2):
                a(f"v_pk_mul_f32 v[{r+i}:{r+i+1}], v[{r+i}:{r+i+1}], v[{MR+4*j+2}:{MR+4*j+3}]")
            for i in range(4):
                a(f"v_cvt_pk_bf16_f32 v{r+i}, v{r+2*i}, v{r+2*i+1}")
            sm, sr_ = ("0", "0") if j == 0 else ("s54", "s55")
            a(f"buffer_store_dwordx4 v[{r}:{r+3}], v{AD+3*q}, s[32:35], {sm} offen{cfg.sc}")
            a(f"buffer_store_dwordx2 v[{r}:{r+1}], v{AD+3*q+1}, s[32:35], {sr_} offen{cfg.sc}")
            a(f"buffer_store_dwordx2 v[{r+2}:{r+3}], v{AD+3*q+2}, s[32:35], {sr_} offen{cfg.sc}")
    a("s_branch L_q2_done")
    a.label("L_q2_V")
    a("v_and_b32 v13, 3, v2")
    a(f"v_lshl_add_u32 v{TW}, v13, 3, v12")
    a("s_mul_i32 s45, s43, 2560")
    a(f"s_add_u32 s45, s45, {WS_KV + 1280}")
    a("s_lshl_b32 s3, s27, 2")
    a("s_add_u32 s3, s3, s49")
    a("s_lshl_b32 s3, s3, 5")
    a("v_add_u32 v13, s3, v10")
    a("v_mul_u32_u24 v11, 320, v8")
    a("v_add_u32 v11, s45, v11")
    a("s_mov_b32 s52, 163840")
    a("v_mul_u32_u24 v14, 3277, v13")
    a("v_lshrrev_b32 v14, 16, v14")
    a("v_mul_u32_u24 v1, 20, v14")
    a("v_sub_u32 v1, v13, v1")
    a("v_lshl_add_u32 v0, v1, 4, v11")
    a("v_mul_lo_u32 v14, v14, s52")
    a(f"v_add_u32 v{AD}, v0, v14")
    loop(True)
    MN, RS = 48, 88
    a("s_lshl_b32 s3, s49, 7")
    a(f"s_add_u32 s3, s3, {L_CS}")
    a("v_lshl_add_u32 v0, v10, 2, s3")
    a("ds_read_b32 v12, v0")
    a("ds_read_b32 v13, v0 offset:512")
    a("s_lshl_b32 s3, s48, 8")
    a(f"s_add_u32 s3, s3, {L_ST}")
    a("v_lshl_add_u32 v1, v8, 4, s3")
    for j in range(2):
        for g in range(4):
            a(f"ds_read_b128 v[{MN+16*j+4*g}:{MN+16*j+4*g+3}], v1 offset:{128*j + 32*g}")
            a(f"ds_read_b128 v[{RS+16*j+4*g}:{RS+16*j+4*g+3}], v1 offset:{512 + 128*j + 32*g}")
    a("s_waitcnt lgkmcnt(15)")
    a("v_add_f32 v12, v12, v13")
    a("v_mov_b32 v13, v12")
    a("s_waitcnt lgkmcnt(0)")
    for j in range(2):
        for gm in range(2):
            r = ACC + 16 * j + 8 * gm
            for i in range(0, 8, 2):
                m = MN + 16 * j + 8 * gm + i
                a(f"v_pk_fma_f32 v[{r+i}:{r+i+1}], v[{m}:{m+1}], v[12:13], v[{r+i}:{r+i+1}]")
            for i in range(0, 8, 2):
                m = RS + 16 * j + 8 * gm + i
                a(f"v_pk_mul_f32 v[{r+i}:{r+i+1}], v[{r+i}:{r+i+1}], v[{m}:{m+1}]")
            for i in range(4):
                a(f"v_cvt_pk_bf16_f32 v{r+i}, v{r+2*i}, v{r+2*i+1}")
            a(f"buffer_store_dwordx4 v[{r}:{r+3}], v{AD}, s[32:35], 0 offen offset:{2560*j + 640*gm}{cfg.sc}")
    a.label("L_q2_done")
    if PROFILE and os.environ.get("SLOTTRACE"):
        a("s_lshl_b32 s84, s2, 4")
        a("s_add_u32 s84, s84, s25")
        a("s_lshl_b32 s84, s84, 6")
        a(f"s_add_u32 s84, s84, {WS_PROF + 0x600000}")
        a("v_lshlrev_b32 v1, 2, v2")
        a("s_mov_b64 exec, 0xffff")
        a("buffer_store_dword v120, v1, s[32:35], s84 offen")
        a("s_mov_b64 exec, -1")
    stamp(a, 7)

def attn_flag_addr2(a, vd):
    a("s_mul_i32 s3, s24, 20")
    a("s_lshr_b32 s26, s3, 7")
    a("s_add_u32 s3, s3, 19")
    a("s_lshr_b32 s3, s3, 7")
    a("s_sub_u32 s3, s3, s26")
    a("v_bfe_u32 v11, v2, 4, 1")
    a("v_mul_u32_u24 v11, 5, v11")
    a("v_lshrrev_b32 v12, 5, v2")
    a("v_mul_lo_u32 v12, v12, s3")
    a("v_add3_u32 v11, v11, v12, s26")
    a("v_add_u32 v11, 5, v11")
    a("v_and_b32 v12, 15, v2")
    a(f"v_lshl_add_u32 v{vd}, v11, 4, v12")
    a(f"v_lshlrev_b32 v{vd}, {FSH}, v{vd}")
    a(f"v_add_u32 v{vd}, {F_QKV}, v{vd}")
    a("v_bfe_u32 v12, v2, 1, 1")
    a("v_mul_lo_u32 v12, v12, s3")
    a("v_add_u32 v12, s26, v12")
    a("v_and_b32 v11, 1, v2")
    a("s_lshl_b32 s3, s27, 1")
    a("v_lshl_add_u32 v12, v12, 4, v11")
    a("v_add_u32 v12, s3, v12")
    a(f"v_lshlrev_b32 v{vd+1}, {FSH}, v12")
    a(f"v_add_u32 v{vd+1}, {F_QKV}, v{vd+1}")

C_XN, C_QKV, C_H, C_O, C_QL = 0, 8, 40, 48, 64
NCNT = 320
def cnt_base(a):
    a(f"s_add_u32 s60, s{S_WS}, {WS_FL}")
    a(f"s_addc_u32 s61, s{S_WS+1}, 0")

def cnt_init(a):
    a("v_lshlrev_b32 v10, 7, v2")
    a("v_mov_b32 v11, 0")
    for i in range(NCNT // 64):
        a(f"s_mov_b32 s62, {WS_FL + i * 8192}")
        a("buffer_store_dword v11, v10, s[32:35], s62 offen sc1")
    srd(a, 56, S_DBG, 256)
    a("v_mov_b32 v10, 1")
    a("s_waitcnt vmcnt(0)")
    a("s_mov_b64 exec, 1")
    a("buffer_store_dword v10, v11, s[56:59], 0 offen sc1")
    a("s_mov_b64 exec, -1")

def go_issue(a, t=10):
    srd(a, 56, S_DBG, 256)
    a(f"v_mov_b32 v{t+1}, 0")
    a(f"buffer_load_dword v{t}, v{t+1}, s[56:59], 0 offen sc1")

def wait_go(a, t=10, issued=False, sleep=1):
    L = uid("L_go")
    a("s_mov_b32 s83, 0x40000")
    if issued:
        a(f"s_branch {L}_chk")
    else:
        srd(a, 56, S_DBG, 256)
        a(f"v_mov_b32 v{t+1}, 0")
    a.label(L)
    a(f"buffer_load_dword v{t}, v{t+1}, s[56:59], 0 offen sc1")
    a.label(L + "_chk")
    a("s_waitcnt vmcnt(0)")
    a(f"v_readfirstlane_b32 s62, v{t}")
    a("s_cmp_lg_u32 s62, 0")
    a(f"s_cbranch_scc1 {L}_ok")
    a(f"s_sleep {sleep}")
    a("s_sub_u32 s83, s83, 1")
    a(f"s_cbranch_scc0 {L}")
    a.label(L + "_ok")

def vpoll(a, offs, target, t=10, sleep=1):
    L = uid("L_vp")
    a(f"v_mov_b32 v{t+1}, s{offs[0]}")
    for i, o in enumerate(offs[1:], 1):
        a(f"v_writelane_b32 v{t+1}, s{o}, {i}")
    a(f"s_mov_b32 s62, {WS_FL}")
    a("s_mov_b32 s83, 0x40000")
    a(f"s_mov_b64 exec, {(1 << len(offs)) - 1}")
    a.label(L)
    a(f"buffer_load_dword v{t}, v{t+1}, s[32:35], s62 offen sc1")
    a("s_waitcnt vmcnt(0)")
    a(f"v_cmp_gt_u32 vcc, {target}, v{t}")
    a(f"s_cbranch_vccz {L}_ok")
    a(f"s_sleep {sleep}")
    a("s_sub_u32 s83, s83, 1")
    a(f"s_cbranch_scc0 {L}")
    a.label(L + "_ok")
    a("s_mov_b64 exec, -1")

def cadd(a, base, idx_sgpr, t=10):
    a(f"s_lshl_b32 s62, s{idx_sgpr}, 7")
    a(f"s_add_u32 s62, s62, {WS_FL + base * 128}")
    a(f"v_mov_b32 v{t}, 1")
    a(f"v_mov_b32 v{t+1}, 0")
    a("s_mov_b64 exec, 1")
    a(f"buffer_atomic_add v{t}, v{t+1}, s[32:35], s62 offen sc1")
    a("s_mov_b64 exec, -1")

def cpoll(a, offs, target, sleep=1):
    L = uid("L_cp")
    a("s_mov_b32 s83, 0x40000")
    a.label(L)
    for i, o in enumerate(offs):
        a(f"s_load_dword s{88+i}, s[60:61], s{o} glc")
    a("s_waitcnt lgkmcnt(0)")
    for i in range(1, len(offs)):
        a(f"s_min_u32 s88, s88, s{88+i}")
    a(f"s_cmp_ge_u32 s88, {target}")
    a(f"s_cbranch_scc1 {L}_ok")
    a(f"s_sleep {sleep}")
    a("s_sub_u32 s83, s83, 1")
    a(f"s_cbranch_scc0 {L}")
    a.label(L + "_ok")


WS_EX = 0x1500000
F_EX = WS_FL + 0x50000
class FIN2(FIN):
    BOFF = 2
    def roles(self):
        a = self.a
        a("s_and_b32 s46, s25, 1")
        a("s_bfe_u32 s3, s25, 0x10001")
        a("s_and_b32 s58, s27, 1")
        a("s_xor_b32 s57, s3, s58")
        a("s_lshr_b32 s47, s25, 2")
        a("s_lshl_b32 s3, s57, 1")
        a("s_add_u32 s47, s47, s3")
        a("s_lshl_b32 s56, s47, 1")
        a("s_add_u32 s56, s56, s46")
    def setup(self, zero_acc=True):
        a = self.a
        FIN.setup(self, zero_acc)
        a("s_lshr_b32 s3, s27, 1")
        a("s_lshl_b32 s3, s3, 2")
        a("s_and_b32 s45, s25, 3")
        a("s_add_u32 s3, s3, s45")
        a("s_mul_i32 s40, s3, 98304")
        a("s_mul_i32 s3, s58, 49152")
        a("s_add_u32 s40, s40, s3")
        a("s_lshl_b32 s3, s48, 11")
        a("s_add_u32 s40, s40, s3")
        a(f"s_add_u32 s40, s40, {WS_H}")
        a(f"s_mul_i32 s3, s58, {768*1280}")
        a("s_add_u32 s41, s41, s3")
        a("s_mul_i32 s3, s57, 10240")
        a(f"v_subrev_u32 v{self.TD}, s3, v{self.TD}")
        a("s_and_b32 s3, s56, 3")
        a("s_mul_i32 s59, s3, 5120")
        a("s_and_b32 s3, s2, 255")
        a("s_mul_i32 s3, s3, 20480")
        a("s_add_u32 s59, s59, s3")
        a(f"s_add_u32 s59, s59, {WS_EX}")
    def hload(self, m):
        r = self.XF + 8 * (m % 4)
        for th in range(2):
            self.a(f"buffer_load_dwordx4 v[{r+4*th}:{r+4*th+3}], v3, s[32:35], s40 offen offset:{256*th}{cfg.sc}")
            for q in self.q: q.append(("X", m))
        self.a("s_add_u32 s40, s40, 4096")
    def down(self, npre=4):
        a = self.a
        for m in range(2): self.hload(m)
        nw, nh = npre, 2
        TD2 = 15
        a(f"v_add_u32 v{TD2}, 40960, v{self.TD}")
        def reads(i):
            buf = (i // 2 + self.BOFF) % 4
            base = self.TD if buf < 2 else TD2
            self.wreads(self.WF + 20 * (i % 2), base, (buf % 2) * 20480 + (i % 2) * 10240, 1280)
        self.wait2([("W", 0)])
        a("s_barrier")
        stamp(a, 9)
        reads(0)
        for i in range(12):
            if i + 1 < 12:
                if i % 2 == 1:
                    sl = i // 2
                    self.wait2([("W", sl + 1)], "lgkmcnt(0)")
                    a("s_barrier")
                    reads(i + 1)
                    for _ in range(2):
                        if nw <= sl + 4 and nw < 6:
                            self.dma_wd(nw); nw += 1
                    if sl == 3:
                        self.wo_dma((0, 8), 0, 0)
                        for q in self.q: q += [("O", 0)] * 5
                    if sl == 4:
                        self.wo_dma((0, 4), 8, 8)
                        self.q[0] += [("O", 1)] * 5
                    self.wait2([("X", i)])
                else:
                    reads(i + 1)
                    self.wait2([("X", i)], "lgkmcnt(10)")
            else:
                self.wait2([("X", i)], "lgkmcnt(0)")
            self.mfmas(self.WF + 20 * (i % 2), self.XF + 8 * (i % 4))
            for _ in range(2):
                if nh <= i + 4 and nh < 12:
                    self.hload(nh); nh += 1
        stamp(a, 10)
        a("s_cmp_eq_u32 s57, 0")
        a("s_cbranch_scc1 L_fin_keep")
        a("s_add_u32 s3, s59, 4096")
        a("s_nop 4")
        for j in range(20):
            a(f"v_cvt_pk_bf16_f32 v{self.XF+j}, v{self.ACC+2*j}, v{self.ACC+2*j+1}")
            if j % 4 == 3:
                k = j // 4
                so, off = ("s59", 1024 * k) if k < 4 else ("s3", 0)
                a(f"buffer_store_dwordx4 v[{self.XF+4*k}:{self.XF+4*k+3}], v9, s[32:35], {so} offen offset:{off}{cfg.sc}")
        a.label("L_fin_keep")
    def receive(self):
        a = self.a
        a("s_cmp_eq_u32 s57, 0")
        a("s_cbranch_scc1 L_fin_got")
        a("s_bitcmp1_b32 s2, 3")
        a("s_cselect_b32 s3, -8, 8")
        a("s_mul_i32 s3, s3, 20480")
        a("s_add_u32 s59, s59, s3")
        a("s_add_u32 s3, s59, 4096")
        for k in range(5):
            so, off = ("s59", 1024 * k) if k < 4 else ("s3", 0)
            a(f"buffer_load_dwordx4 v[{self.XF+4+4*k}:{self.XF+7+4*k}], v9, s[32:35], {so} offen offset:{off}{cfg.sc}")
        a("s_waitcnt vmcnt(0)")
        for j in range(20):
            a(f"v_lshlrev_b32 v{self.ACC+2*j}, 16, v{self.XF+4+j}")
            a(f"v_and_b32 v{self.ACC+2*j+1}, 0xffff0000, v{self.XF+4+j}")
        a.label("L_fin_got")
```

```python
import sys, os
sys.path.insert(0, os.path.dirname(__file__))
from common import *
import roles
from roles import *
from gen2 import prologue, flush_attn

HEADER = open(os.path.join(os.path.dirname(__file__), "header.txt")).read()
PRE_DMA = int(os.environ.get("PRE_DMA", "0"))

def get_nonce(a, is_a, pre=True):
    srd(a, 56, S_DBG, 256)
    L = uid("L_nonce")
    if is_a:
        if pre: a("s_add_u32 s3, s2, s25")
        a("s_cmp_lg_u32 s3, 0")
        a(f"s_cbranch_scc1 {L}")
        a("s_memrealtime s[60:61]")
        a("s_waitcnt lgkmcnt(0)")
        a("s_or_b32 s60, s60, 1")
        a("s_or_b32 s61, s61, 0x9e370000")
        a("v_mov_b32 v10, s60")
        a("v_mov_b32 v11, s61")
        a("v_mov_b32 v12, 0")
        a("s_mov_b64 exec, 1")
        a("buffer_store_dwordx2 v[10:11], v12, s[56:59], 0 offen sc1")
        a("s_mov_b64 exec, -1")
    a.label(L)

def wait_nonce(a, first_issued=False, t=10, sleep=1):
    L = uid("L_wn")
    ad = 12 if t == 10 else 0
    a("s_mov_b32 s83, 0x40000")
    if first_issued:
        a(f"s_branch {L}_chk")
    else:
        a(f"v_mov_b32 v{ad}, 0")
    a.label(L)
    a(f"buffer_load_dwordx2 v[{t}:{t+1}], v{ad}, s[56:59], 0 offen sc1")
    a.label(L + "_chk")
    a("s_waitcnt vmcnt(0)")
    a(f"v_readfirstlane_b32 s60, v{t}")
    a(f"v_readfirstlane_b32 s61, v{t+1}")
    a("s_min_u32 s62, s60, s61")
    a("s_cmp_lg_u32 s62, 0")
    a(f"s_cbranch_scc1 {L}_ok")
    a(f"s_sleep {sleep}")
    a("s_sub_u32 s83, s83, 1")
    a(f"s_cbranch_scc0 {L}")
    a.label(L + "_ok")

XSH = 3 if int(os.environ.get("Q2", "0")) else int(os.environ.get("XSH", "7"))
def flag_addr(a, vd, base, s_first, mask):
    a(f"v_and_b32 v{vd}, {mask}, v2")
    a(f"v_add_u32 v{vd}, s{s_first}, v{vd}")
    a(f"v_lshlrev_b32 v{vd}, {XSH if base == F_XN else FSH}, v{vd}")
    a(f"v_add_u32 v{vd}, {base}, v{vd}")

def wave0(a, fn):
    L = uid("L_w0")
    a("s_cmp_lg_u32 s25, 0")
    a(f"s_cbranch_scc1 {L}")
    fn()
    a.label(L)

def warm_weights(a, part, w0=1):
    a("s_sub_u32 s50, s2, 256")
    L = uid("L_warm")
    if part == 0:
        spec = [(S_WQKV, 2457600, 4800, 0), (S_WQKV, 2457600, 4800, 1228800)]
        if PRE_DMA: spec += [(S_WG, 1966080, 1536 * PRE_DMA, 0), (S_WU, 1966080, 1536 * PRE_DMA, 0)]
    else:
        spec = [(S_WD, 1966080, 3840, 0), (S_WD, 1966080, 3840, 983040), (S_WO, 819200, 3200, 0)]
    for w, (ptr, size, per, base) in enumerate(spec):
        a(f"s_cmp_lg_u32 s25, {w + w0}")
        a(f"s_cbranch_scc1 {L}_{w}")
        srd(a, 36, ptr, size)
        a(f"s_mul_i32 s51, s50, {per}")
        if base: a(f"s_add_u32 s51, s51, {base}")
        n = (per + 1023) // 1024
        for i in range(n):
            if i == 4: a("s_add_u32 s51, s51, 4096")
            r = 96 + 4 * (i % 8) if part == 0 else 120
            a(f"buffer_load_dwordx4 v[{r}:{r+3}], v9, s[36:39], s51 offen offset:{1024*(i%4)}")
        if part == 0: a("s_waitcnt vmcnt(0)")
        a.label(f"{L}_{w}")

def code_prefetch(a):
    L = uid("L_cpf")
    a("s_cmp_ge_u32 s2, 264")
    a(f"s_cbranch_scc1 {L}")
    a("s_cmp_lg_u32 s25, 7")
    a(f"s_cbranch_scc1 {L}")
    a("s_getpc_b64 s[50:51]")
    a.label(L + "_pc")
    a(f"s_sub_u32 s50, s50, {L}_pc-{NAME}_kernel")
    a("s_subb_u32 s51, s51, 0")
    a(f"s_mov_b32 s52, (L_end-{NAME}_kernel)/1024")
    a("v_mov_b32 v10, v9")
    a.label(L + "_l")
    a("global_load_dwordx4 v[96:99], v10, s[50:51]")
    a("v_add_u32 v10, 1024, v10")
    a("s_sub_u32 s52, s52, 1")
    a("s_cmp_lg_u32 s52, 0")
    a(f"s_cbranch_scc1 {L}_l")
    a("s_waitcnt vmcnt(0)")
    a.label(L)

def l2_prefetch(a):
    a("s_cmp_ge_u32 s49, 240")
    a("s_cbranch_scc1 L_b_pf_done")
    a("s_mov_b32 s62, s2")
    a("s_mov_b32 s2, s49")
    qkv2_decode(a)
    a("s_mov_b32 s2, s62")
    srd(a, 28, S_WQKV, 2457600)
    srd(a, 36, S_X, 2621440)
    a("v_lshrrev_b32 v10, 4, v2")
    a("v_and_b32 v11, 15, v2")
    a("v_lshlrev_b32 v11, 4, v11")
    a("s_movk_i32 s3, 1280")
    a("v_mad_u32_u24 v12, v10, s3, v11")
    a("s_movk_i32 s3, 3840")
    a("v_mad_u32_u24 v13, v10, s3, v11")
    a("s_sub_u32 s50, s25, 2")
    a("s_mul_i32 s51, s26, 163840")
    a("s_lshl_b32 s3, s27, 8")
    a("s_add_u32 s51, s51, s3")
    a("s_mul_i32 s3, s50, 5120")
    a("s_add_u32 s51, s51, s3")
    a("s_mul_i32 s3, s26, 43")
    a("s_lshr_b32 s3, s3, 8")
    a("s_mul_i32 s3, s3, 6")
    a("s_sub_u32 s3, s26, s3")
    a(f"s_mul_i32 s52, s3, {108*3840}")
    a("s_lshl_b32 s3, s47, 8")
    a("s_add_u32 s52, s52, s3")
    a("s_mul_i32 s3, s50, 15360")
    a("s_add_u32 s52, s52, s3")
    for i in range(6):
        if i < 5:
            a(f"buffer_load_dwordx4 v[{16+8*i}:{19+8*i}], v13, s[28:31], s52 offen")
            a(f"s_add_u32 s52, s52, {6*15360}")
        if i == 5:
            a("s_cmp_ge_u32 s50, 2")
            a("s_cbranch_scc1 L_b_pf_w")
        a(f"buffer_load_dwordx4 v[{20+8*i}:{23+8*i}], v12, s[36:39], s51 offen")
        a(f"s_add_u32 s51, s51, {6*5120}")
    a.label("L_b_pf_w")
    a("s_waitcnt vmcnt(0)")

def gen_fused():
    cfg.fused = True; cfg.sc = " sc1"
    a = Asm()
    prologue(a, 512, "L_end")
    a("s_cmp_ge_u32 s2, 256")
    a("s_cbranch_scc1 L_roleB")
    Q2 = int(os.environ.get("Q2", "0"))
    BTRIG = os.environ.get("BTRIG", "qkv")
    if Q2:
        srd(a, 56, S_DBG, 256)
        a("s_cmp_ge_u32 s2, 240")
        a("s_cbranch_scc1 L_a_spare")
        qkv2_decode(a)
        def nonce_check(t):
            L = uid("L_nc")
            a(f"v_readfirstlane_b32 s60, v{t}")
            a(f"v_readfirstlane_b32 s61, v{t+1}")
            a("s_min_u32 s62, s60, s61")
            a("s_cmp_lg_u32 s62, 0")
            a(f"s_cbranch_scc1 {L}")
            wait_nonce(a, t=t)
            a.label(L)
        if BTRIG == "loop": roles.qkv_hook = lambda: wave0(a, lambda: publish(a, F_QL, 2, t=94))
        if BTRIG == "attn": roles.attn_hook = lambda: wave0(a, lambda: publish(a, F_QL, 2))
        if BTRIG == "issue": roles.attn_hook0 = lambda: wave0(a, lambda: publish(a, F_QL, 2))
        qkv2(a, nonce_check)
    else:
        DRY = int(os.environ.get("DRY", "0"))
        WLATE = int(os.environ.get("WLATE", "1"))
        a("s_cmp_ge_u32 s25, 2")
        a("s_cbranch_scc1 L_a_noln")
        ln_issue(a)
        get_nonce(a, True)
        if not WLATE: a("s_barrier")
        ln_addr(a)
        a("s_waitcnt vmcnt(0)")
        stamp(a, 1)
        if WLATE == 2: a("s_barrier")
        a("v_mov_b32 v12, 0")
        a("buffer_load_dwordx2 v[10:11], v12, s[56:59], 0 offen sc1")
        a.label("L_a_lnbody")
        ln_body(a)
        if DRY:
            a("s_cmp_ge_u32 s25, 2")
            a("s_cbranch_scc1 L_a_dry_done")
        ln_store(a)
        if WLATE == 1: a("s_barrier")
        stamp(a, 2)
        wait_nonce(a, first_issued=True)
        stamp(a, 3)
        a("s_lshl_b32 s63, s2, 1")
        a("s_add_u32 s63, s63, s25")
        publish(a, F_XN, 63, sh=XSH)
        a("s_branch L_a_ln_done")
        a.label("L_a_noln")
        PWV = int(os.environ.get("PWV", "7"))
        a(f"s_cmp_lg_u32 s25, {PWV}")
        a("s_cbranch_scc1 L_a_non2")
        srd(a, 56, S_DBG, 256)
        wait_nonce(a, sleep=6)
        a.label("L_a_non2")
        W1 = int(os.environ.get("W1", "0"))
        if W1:
            a("s_cmp_lt_u32 s25, 4")
            a("s_cbranch_scc1 L_a_now1")
            a("s_cmp_ge_u32 s2, 240")
            a("s_cbranch_scc1 L_a_now1")
            qkv_decode(a)
            qkv_wdma(a, 0, W1)
            a.label("L_a_now1")
        if int(os.environ.get("TLB", "0")):
            a("s_cmp_lg_u32 s25, 3")
            a("s_cbranch_scc1 L_a_notlb")
            a("v_min_u32 v10, 10, v2")
            a("v_lshlrev_b32 v10, 21, v10")
            a("buffer_load_dword v11, v10, s[32:35], 0 offen")
            a.label("L_a_notlb")
        if DRY:
            if not WLATE: a("s_barrier")
            a("s_cmp_eq_u32 s25, 2")
            a("s_cbranch_scc1 L_a_lnbody")
            a.label("L_a_dry_done")
            a("s_waitcnt lgkmcnt(0)")
            if WLATE: a("s_barrier")
        else:
            a("s_barrier")
        a.label("L_a_ln_done")
        a("s_cmp_ge_u32 s2, 240")
        a("s_cbranch_scc1 L_a_spare")
        qkv_decode(a)
        a("s_cmp_lt_u32 s25, 4")
        a("s_cbranch_scc1 L_a_nodma")
        qkv_wdma(a, W1, 20)
        if PWV == 7:
            a("s_cmp_lg_u32 s25, 7")
            a("s_cbranch_scc1 L_a_nodma")
            a("s_and_b32 s63, s46, 7")
            a("s_lshl_b32 s63, s63, 6")
            flag_addr(a, 0, F_XN, 63, 63)
            a("buffer_load_dwordx2 v[126:127], v0, s[32:35], 0 offen sc1")
        a.label("L_a_nodma")
        def gate():
            L = uid("L_w2")
            if PWV == 2:
                a("s_cmp_lt_u32 s25, 4")
                a(f"s_cbranch_scc1 {L}_a")
                a("s_waitcnt vmcnt(0)")
                a.label(L + "_a")
            if os.environ.get("LNSTAMP"): stamp(a, 10)
            a(f"s_cmp_lg_u32 s25, {PWV}")
            a(f"s_cbranch_scc1 {L}")
            if PWV == 7:
                a("s_waitcnt vmcnt(0)")
                a("v_cmp_ne_u64 vcc, s[60:61], v[126:127]")
                a(f"s_cbranch_vccz {L}")
                a("s_mov_b64 exec, vcc")
            else:
                a("s_and_b32 s63, s46, 7")
                a("s_lshl_b32 s63, s63, 6")
                flag_addr(a, 0, F_XN, 63, 63)
            poll(a, 0, 126, direct=bool(int(os.environ.get("XDIRECT", "1"))), sleep2=int(os.environ.get("XSLEEP", "1")))
            a.label(L)
            if PWV != 2:
                a("s_cmp_lt_u32 s25, 4")
                a(f"s_cbranch_scc1 {L}_a")
                a("s_waitcnt vmcnt(0)")
                a.label(L + "_a")
            if os.environ.get("LNSTAMP"): stamp(a, 5)
            a("s_barrier")
            stamp(a, 4)
        BTRIG = os.environ.get("BTRIG", "qkv")
        if BTRIG == "loop": roles.qkv_hook = lambda: wave0(a, lambda: publish(a, F_QL, 2))
        if BTRIG == "attn": roles.attn_hook = lambda: wave0(a, lambda: publish(a, F_QL, 2))
        if BTRIG == "issue": roles.attn_hook0 = lambda: wave0(a, lambda: publish(a, F_QL, 2))
        qkv_main(a, gate)
    a("s_setprio 3")
    a("s_waitcnt vmcnt(0)")
    stamp(a, 8)
    for _ in range(int(os.environ.get("DELAY", "0"))): a("s_sleep 32")
    a("s_barrier")
    wave0(a, lambda: publish(a, F_QKV, 46, sh=QSH))
    if BTRIG == "qkv": wave0(a, lambda: publish(a, F_QL, 2))
    a("s_branch L_a_attn")
    a.label("L_a_spare")
    if Q2:
        a("s_lshl_b32 s3, s2, 3")
        a("s_add_u32 s3, s3, s25")
        a("s_sub_u32 s3, s3, 1920")
        get_nonce(a, True, pre=False)
        wave0(a, lambda: wait_nonce(a, sleep=4))
    if int(os.environ.get("WARM", "1")) == 1:
        if int(os.environ.get("SPDELAY", "1")):
            def f():
                a("s_and_b32 s63, s2, 7")
                a("s_lshl_b32 s63, s63, 6")
                flag_addr(a, 12, F_XN, 63, 63)
                poll(a, 12, sleep=4)
            wave0(a, f)
            a("s_barrier")
        a("s_cmp_ge_u32 s25, 4")
        a(f"s_cselect_b32 s36, s{S_WU}, s{S_WG}")
        a(f"s_cselect_b32 s37, s{S_WU+1}, s{S_WG+1}")
        a("s_mov_b32 s38, 1966080")
        a("s_mov_b32 s39, 0x00020000")
        a("s_and_b32 s3, s25, 3")
        a("s_sub_u32 s50, s2, 240")
        a("s_lshl_b32 s50, s50, 2")
        a("s_add_u32 s50, s50, s3")
        a("s_lshl_b32 s50, s50, 10")
        if PRE_DMA: a(f"s_add_u32 s50, s50, {PRE_DMA * 393216}")
        for i in range(min(int(os.environ.get("SPN", "18")), 30 - 6 * PRE_DMA)):
            a(f"buffer_load_dwordx4 v[{16+4*(i%16)}:{19+4*(i%16)}], v9, s[36:39], s50 offen")
            a("s_add_u32 s50, s50, 65536")
        a("s_waitcnt vmcnt(0)")
    a("s_setprio 3")
    a.label("L_a_attn")
    attn_decode(a)
    def f():
        if Q2:
            attn_flag_addr2(a, 14)
            poll(a, 14)
            poll(a, 15, direct=True)
        else:
            attn_flag_addr(a, 14)
            poll(a, 14, direct=bool(int(os.environ.get("DIRECT", "0"))))
    wave0(a, f)
    a("s_barrier")
    stamp(a, 9)
    attn_main(a)
    a("s_waitcnt vmcnt(0)")
    stamp(a, 12)
    a("s_barrier")
    def f():
        a("s_lshl_b32 s63, s27, 5")
        a("s_add_u32 s63, s63, s24")
        publish(a, F_O, 63)
    wave0(a, f)
    flush_attn(a, 0)
    dbg_flush(a, 8, [int(x) for x in os.environ.get('DBGA', '1,4,6,9,10,11,12').split(',')], 2)
    a("s_endpgm")
    a.label("L_roleB")
    if Q2:
        srd(a, 56, S_DBG, 256)
        a("s_sub_u32 s49, s2, 256")
        roles.LNWG[0] = "s49"
        a("s_cmp_ge_u32 s25, 2")
        a("s_cbranch_scc1 L_b_noln")
        ln_issue(a)
        ln_addr(a)
        a("s_waitcnt vmcnt(0)")
        a("s_barrier")
        a("v_mov_b32 v12, 0")
        a("buffer_load_dwordx2 v[10:11], v12, s[56:59], 0 offen sc1")
        ln_body(a)
        ln_store(a)
        ln_stats(a)
        wait_nonce(a, first_issued=True)
        a("s_lshl_b32 s63, s49, 1")
        a("s_add_u32 s63, s63, s25")
        publish(a, F_XN, 63, sh=3)
        stamp(a, 1)
        a("s_branch L_b_pf_done")
        a.label("L_b_noln")
        warm_weights(a, 0, w0=2)
        a("s_barrier")
        if int(os.environ.get("L2PF", "1")): l2_prefetch(a)
        a.label("L_b_pf_done")
    gu_decode(a)
    g = (GU16 if XSWAP else GU)(a)
    WARM = int(os.environ.get("WARM", "1"))
    if int(os.environ.get("CODEPF", "1")): code_prefetch(a)
    if WARM and int(os.environ.get('WARMQ', '1')) and not Q2: warm_weights(a, 0)
    def f():
        get_nonce(a, False)
        wait_nonce(a, sleep=16)
    if not Q2: wave0(a, f)
    g.setup()
    if PRE_DMA:
        def f():
            a("s_sub_u32 s63, s2, 256")
            a("s_lshl_b32 s63, s63, 1")
            flag_addr(a, 0, F_XN, 63, 0)
            poll(a, 0, sleep=3, single=True)
        wave0(a, f)
        a("s_barrier")
        for st in range(PRE_DMA): g.dma_stage(st)
    def f():
        if BTRIG not in ("attn", "issue"):
            a("s_lshl_b32 s63, s27, 6")
            flag_addr(a, 0, F_XN, 63, 63)
            poll(a, 0, sleep=8 if BTRIG != "xn" else 3)
        if BTRIG not in ("attn", "xn", "issue"):
            a("s_cmp_ge_u32 s2, 496")
            a("s_cbranch_scc1 L_b_noql")
        if BTRIG == "xn": return
        a("s_sub_u32 s63, s2, 256")
        if os.environ.get("SQL", "1") == "1":
            a(f"s_lshl_b32 s63, s63, {FSH}")
            a(f"s_add_u32 s63, s63, {F_QL}")
            a("s_mov_b32 s83, 0x40000")
            a.label("L_b_sq")
            a(f"s_load_dwordx2 s[88:89], s[{S_WS}:{S_WS+1}], s63 glc")
            a("s_waitcnt lgkmcnt(0)")
            a("s_cmp_eq_u64 s[88:89], s[60:61]")
            a("s_cbranch_scc1 L_b_noql")
            a(f"s_sleep {os.environ.get('BSLEEP', '4')}")
            a("s_sub_u32 s83, s83, 1")
            a("s_cbranch_scc0 L_b_sq")
        else:
            flag_addr(a, 0, F_QL, 63, 0)
            poll(a, 0, sleep=int(os.environ.get("BSLEEP", "4")), single=True)
        a.label("L_b_noql")
    wave0(a, f)
    a("s_barrier")
    stamp(a, 2)
    a(f"s_setprio {os.environ.get('PG', '0')}")
    def warm2():
        srd(a, 36, S_WD, 1966080)
        srd(a, 52, S_WO, 819200)
        a("s_sub_u32 s50, s2, 256")
        a("s_lshl_b32 s50, s50, 3")
        a("s_add_u32 s50, s50, s25")
        a("s_mul_i32 s51, s50, 960")
        a("s_mul_i32 s50, s50, 400")
        g.vm.issue("buffer_load_dwordx4 v[120:123], v9, s[36:39], s51 offen", ("P", 0))
        g.vm.issue("buffer_load_dwordx4 v[124:127], v9, s[52:55], s50 offen", ("P", 1))
    g.main(PRE_DMA, warm2 if WARM == 1 else None)
    a("s_lshl_b32 s63, s27, 5")
    a("s_add_u32 s63, s63, s24")
    fin_decode(a)
    SK = int(os.environ.get("SK", "0"))
    fn = (FIN2 if SK else FIN)(a); fn.setup(zero_acc=False)
    a("s_waitcnt vmcnt(0)")
    if os.environ.get("LNSTAMP"): stamp(a, 1)
    a("s_barrier")
    wave0(a, lambda: publish(a, F_H, 63, t=56))
    NPRE = int(os.environ.get("NPRE", "4"))
    for m in range(NPRE): fn.dma_wd(m)
    fn.zero_acc()
    def f():
        a("s_lshr_b32 s63, s27, 2")
        a("s_lshl_b32 s63, s63, 5")
        if SK:
            a("s_lshl_b32 s3, s58, 4")
            a("s_add_u32 s62, s63, s3")
            flag_addr(a, 0, F_H, 62, 15)
        else:
            flag_addr(a, 0, F_H, 63, 31)
        poll(a, 0, 56, direct=bool(int(os.environ.get("HDIRECT", "1"))))
    wave0(a, f)
    a("s_barrier")
    stamp(a, 8)
    a(f"s_setprio {os.environ.get('PD', '0')}")
    fn.down(NPRE)
    if int(os.environ.get("PW", "1")): a("s_setprio 3")
    if SK:
        def pub():
            a("s_and_b32 s45, s2, 255")
            wave0(a, lambda: publish(a, F_EX, 45, t=56))
        fn.wo_prefetch(pub)
        def f():
            a("s_xor_b32 s45, s45, 8")
            a(f"s_lshl_b32 s45, s45, {FSH}")
            a(f"s_add_u32 s45, s45, {F_EX}")
            a("s_mov_b32 s83, 0x40000")
            a.label("L_b_ex")
            a(f"s_load_dwordx2 s[88:89], s[{S_WS}:{S_WS+1}], s45 glc")
            a("s_waitcnt lgkmcnt(0)")
            a("s_cmp_eq_u64 s[88:89], s[60:61]")
            a("s_cbranch_scc1 L_b_exok")
            a("s_sleep 2")
            a("s_sub_u32 s83, s83, 1")
            a("s_cbranch_scc0 L_b_ex")
            a.label("L_b_exok")
        wave0(a, f)
        a("s_barrier")
        fn.receive()
    else:
        fn.wo_prefetch()
    a("s_setprio 3")
    def f():
        flag_addr(a, 58, F_O, 63, 31)
        poll(a, 58, 56, direct=bool(int(os.environ.get("ODIRECT", "0"))), sleep2=int(os.environ.get("OSLEEP", "1")))
    wave0(a, f)
    a("s_waitcnt vmcnt(0)")
    a("s_barrier")
    stamp(a, 11)
    fn.wo_main()
    stamp_flush(a, 0, 25)
    dbg_flush(a, 264, [int(x) for x in os.environ.get('DBGB', '2,3,6,8,10,11,13').split(',')], 9)
    a.label("L_end")
    a("s_endpgm")
    return a

def build_single(a):
    name = NAME + "_kernel"
    for p in check_program(a.lines): print("HAZARD", p)
    out = HEADER + "; @launch grid=(512,1,1) block=(512,1,1) lds=81920\n"
    out += '.amdgcn_target "amdgcn-amd-amdhsa--gfx950"\n.text\n' + kernel_header(name) + a.text()
    out += '.section .rodata,"a"\n' + kernel_desc(name, 128, 128)
    return out

if __name__ == "__main__":
    path = sys.argv[1] if len(sys.argv) > 1 else f"cdna_kernels/{NAME}.s"
    open(path, "w").write(build_single(gen_fused()))
    import subprocess
    r = subprocess.run(["clang", "-x", "assembler", "-target", "amdgcn-amd-amdhsa", "-mcpu=gfx950", "-c", path, "-o", "gen_check.o"], capture_output=True, text=True)
    if r.returncode: print(r.stderr[:1500])
    print("wrote", path, "OK" if r.returncode == 0 else "ASM FAILED")
```

```python
import sys, os
sys.path.insert(0, os.path.dirname(__file__))
from common import *
import roles
from roles import *
from gen2 import prologue, flush_attn

HEADER = open(os.path.join(os.path.dirname(__file__), "header.txt")).read()
PRE_DMA = int(os.environ.get("PRE_DMA", "0"))

def get_nonce(a, is_a, pre=True):
    srd(a, 56, S_DBG, 256)
    L = uid("L_nonce")
    if is_a:
        if pre: a("s_add_u32 s3, s2, s25")
        a("s_cmp_lg_u32 s3, 0")
        a(f"s_cbranch_scc1 {L}")
        a("s_memrealtime s[60:61]")
        a("s_waitcnt lgkmcnt(0)")
        a("s_or_b32 s60, s60, 1")
        a("s_or_b32 s61, s61, 0x9e370000")
        a("v_mov_b32 v10, s60")
        a("v_mov_b32 v11, s61")
        a("v_mov_b32 v12, 0")
        a("s_mov_b64 exec, 1")
        a("buffer_store_dwordx2 v[10:11], v12, s[56:59], 0 offen sc1")
        a("s_mov_b64 exec, -1")
    a.label(L)

def wait_nonce(a, first_issued=False, t=10, sleep=1):
    L = uid("L_wn")
    ad = 12 if t == 10 else 0
    a("s_mov_b32 s83, 0x40000")
    if first_issued:
        a(f"s_branch {L}_chk")
    else:
        a(f"v_mov_b32 v{ad}, 0")
    a.label(L)
    a(f"buffer_load_dwordx2 v[{t}:{t+1}], v{ad}, s[56:59], 0 offen sc1")
    a.label(L + "_chk")
    a("s_waitcnt vmcnt(0)")
    a(f"v_readfirstlane_b32 s60, v{t}")
    a(f"v_readfirstlane_b32 s61, v{t+1}")
    a("s_min_u32 s62, s60, s61")
    a("s_cmp_lg_u32 s62, 0")
    a(f"s_cbranch_scc1 {L}_ok")
    a(f"s_sleep {sleep}")
    a("s_sub_u32 s83, s83, 1")
    a(f"s_cbranch_scc0 {L}")
    a.label(L + "_ok")

XSH = 3 if int(os.environ.get("Q2", "0")) else int(os.environ.get("XSH", "7"))
def flag_addr(a, vd, base, s_first, mask):
    a(f"v_and_b32 v{vd}, {mask}, v2")
    a(f"v_add_u32 v{vd}, s{s_first}, v{vd}")
    a(f"v_lshlrev_b32 v{vd}, {XSH if base == F_XN else FSH}, v{vd}")
    a(f"v_add_u32 v{vd}, {base}, v{vd}")

def wave0(a, fn):
    L = uid("L_w0")
    a("s_cmp_lg_u32 s25, 0")
    a(f"s_cbranch_scc1 {L}")
    fn()
    a.label(L)

def warm_weights(a, part, w0=1):
    a("s_sub_u32 s50, s2, 256")
    L = uid("L_warm")
    if part == 0:
        spec = [(S_WQKV, 2457600, 4800, 0), (S_WQKV, 2457600, 4800, 1228800)]
        if PRE_DMA: spec += [(S_WG, 1966080, 1536 * PRE_DMA, 0), (S_WU, 1966080, 1536 * PRE_DMA, 0)]
    else:
        spec = [(S_WD, 1966080, 3840, 0), (S_WD, 1966080, 3840, 983040), (S_WO, 819200, 3200, 0)]
    for w, (ptr, size, per, base) in enumerate(spec):
        a(f"s_cmp_lg_u32 s25, {w + w0}")
        a(f"s_cbranch_scc1 {L}_{w}")
        srd(a, 36, ptr, size)
        a(f"s_mul_i32 s51, s50, {per}")
        if base: a(f"s_add_u32 s51, s51, {base}")
        n = (per + 1023) // 1024
        for i in range(n):
            if i == 4: a("s_add_u32 s51, s51, 4096")
            r = 96 + 4 * (i % 8) if part == 0 else 120
            a(f"buffer_load_dwordx4 v[{r}:{r+3}], v9, s[36:39], s51 offen offset:{1024*(i%4)}")
        if part == 0: a("s_waitcnt vmcnt(0)")
        a.label(f"{L}_{w}")

def code_prefetch(a):
    L = uid("L_cpf")
    a("s_cmp_ge_u32 s2, 264")
    a(f"s_cbranch_scc1 {L}")
    a("s_cmp_lg_u32 s25, 7")
    a(f"s_cbranch_scc1 {L}")
    a("s_getpc_b64 s[50:51]")
    a.label(L + "_pc")
    a(f"s_sub_u32 s50, s50, {L}_pc-{NAME}_kernel")
    a("s_subb_u32 s51, s51, 0")
    a(f"s_mov_b32 s52, (L_end-{NAME}_kernel)/1024")
    a("v_mov_b32 v10, v9")
    a.label(L + "_l")
    a("global_load_dwordx4 v[96:99], v10, s[50:51]")
    a("v_add_u32 v10, 1024, v10")
    a("s_sub_u32 s52, s52, 1")
    a("s_cmp_lg_u32 s52, 0")
    a(f"s_cbranch_scc1 {L}_l")
    a("s_waitcnt vmcnt(0)")
    a.label(L)

def l2_prefetch(a):
    a("s_cmp_ge_u32 s49, 240")
    a("s_cbranch_scc1 L_b_pf_done")
    a("s_mov_b32 s62, s2")
    a("s_mov_b32 s2, s49")
    qkv2_decode(a)
    a("s_mov_b32 s2, s62")
    srd(a, 28, S_WQKV, 2457600)
    srd(a, 36, S_X, 2621440)
    a("v_lshrrev_b32 v10, 4, v2")
    a("v_and_b32 v11, 15, v2")
    a("v_lshlrev_b32 v11, 4, v11")
    a("s_movk_i32 s3, 1280")
    a("v_mad_u32_u24 v12, v10, s3, v11")
    a("s_movk_i32 s3, 3840")
    a("v_mad_u32_u24 v13, v10, s3, v11")
    a("s_sub_u32 s50, s25, 2")
    a("s_mul_i32 s51, s26, 163840")
    a("s_lshl_b32 s3, s27, 8")
    a("s_add_u32 s51, s51, s3")
    a("s_mul_i32 s3, s50, 5120")
    a("s_add_u32 s51, s51, s3")
    a("s_mul_i32 s3, s26, 43")
    a("s_lshr_b32 s3, s3, 8")
    a("s_mul_i32 s3, s3, 6")
    a("s_sub_u32 s3, s26, s3")
    a(f"s_mul_i32 s52, s3, {108*3840}")
    a("s_lshl_b32 s3, s47, 8")
    a("s_add_u32 s52, s52, s3")
    a("s_mul_i32 s3, s50, 15360")
    a("s_add_u32 s52, s52, s3")
    for i in range(6):
        if i < 5:
            a(f"buffer_load_dwordx4 v[{16+8*i}:{19+8*i}], v13, s[28:31], s52 offen")
            a(f"s_add_u32 s52, s52, {6*15360}")
        if i == 5:
            a("s_cmp_ge_u32 s50, 2")
            a("s_cbranch_scc1 L_b_pf_w")
        a(f"buffer_load_dwordx4 v[{20+8*i}:{23+8*i}], v12, s[36:39], s51 offen")
        a(f"s_add_u32 s51, s51, {6*5120}")
    a.label("L_b_pf_w")
    a("s_waitcnt vmcnt(0)")

def gen_fused():
    cfg.fused = True; cfg.sc = " sc1"
    a = Asm()
    if os.environ.get("FLOOR0"): a("s_memrealtime s[92:93]")
    prologue(a, 512, "L_end")
    a("s_cmp_ge_u32 s2, 256")
    a("s_cbranch_scc1 L_roleB")
    Q2 = int(os.environ.get("Q2", "0"))
    BTRIG = os.environ.get("BTRIG", "qkv")
    if Q2:
        srd(a, 56, S_DBG, 256)
        a("s_cmp_ge_u32 s2, 240")
        a("s_cbranch_scc1 L_a_spare")
        qkv2_decode(a)
        def nonce_check(t):
            L = uid("L_nc")
            a(f"v_readfirstlane_b32 s60, v{t}")
            a(f"v_readfirstlane_b32 s61, v{t+1}")
            a("s_min_u32 s62, s60, s61")
            a("s_cmp_lg_u32 s62, 0")
            a(f"s_cbranch_scc1 {L}")
            wait_nonce(a, t=t)
            a.label(L)
        if BTRIG == "loop": roles.qkv_hook = lambda: wave0(a, lambda: publish(a, F_QL, 2, t=94))
        if BTRIG == "attn": roles.attn_hook = lambda: wave0(a, lambda: publish(a, F_QL, 2))
        if BTRIG == "issue": roles.attn_hook0 = lambda: wave0(a, lambda: publish(a, F_QL, 2))
        qkv2(a, nonce_check)
    else:
        DRY = int(os.environ.get("DRY", "0"))
        WLATE = int(os.environ.get("WLATE", "1"))
        a("s_cmp_ge_u32 s25, 2")
        a("s_cbranch_scc1 L_a_noln")
        ln_issue(a)
        get_nonce(a, True)
        if not WLATE: a("s_barrier")
        ln_addr(a)
        a("s_waitcnt vmcnt(0)")
        stamp(a, 1)
        if WLATE == 2: a("s_barrier")
        a("v_mov_b32 v12, 0")
        a("buffer_load_dwordx2 v[10:11], v12, s[56:59], 0 offen sc1")
        a.label("L_a_lnbody")
        ln_body(a)
        if DRY:
            a("s_cmp_ge_u32 s25, 2")
            a("s_cbranch_scc1 L_a_dry_done")
        ln_store(a)
        if WLATE == 1: a("s_barrier")
        stamp(a, 2)
        wait_nonce(a, first_issued=True)
        stamp(a, 3)
        a("s_lshl_b32 s63, s2, 1")
        a("s_add_u32 s63, s63, s25")
        publish(a, F_XN, 63, sh=XSH)
        a("s_branch L_a_ln_done")
        a.label("L_a_noln")
        PWV = int(os.environ.get("PWV", "7"))
        a(f"s_cmp_lg_u32 s25, {PWV}")
        a("s_cbranch_scc1 L_a_non2")
        srd(a, 56, S_DBG, 256)
        wait_nonce(a, sleep=6)
        a.label("L_a_non2")
        W1 = int(os.environ.get("W1", "0"))
        if W1:
            a("s_cmp_lt_u32 s25, 4")
            a("s_cbranch_scc1 L_a_now1")
            a("s_cmp_ge_u32 s2, 240")
            a("s_cbranch_scc1 L_a_now1")
            qkv_decode(a)
            qkv_wdma(a, 0, W1)
            a.label("L_a_now1")
        if int(os.environ.get("TLB", "0")):
            a("s_cmp_lg_u32 s25, 3")
            a("s_cbranch_scc1 L_a_notlb")
            a("v_min_u32 v10, 10, v2")
            a("v_lshlrev_b32 v10, 21, v10")
            a("buffer_load_dword v11, v10, s[32:35], 0 offen")
            a.label("L_a_notlb")
        if DRY:
            if not WLATE: a("s_barrier")
            a("s_cmp_eq_u32 s25, 2")
            a("s_cbranch_scc1 L_a_lnbody")
            a.label("L_a_dry_done")
            a("s_waitcnt lgkmcnt(0)")
            if WLATE: a("s_barrier")
        else:
            a("s_barrier")
        a.label("L_a_ln_done")
        a("s_cmp_ge_u32 s2, 240")
        a("s_cbranch_scc1 L_a_spare")
        qkv_decode(a)
        a("s_cmp_lt_u32 s25, 4")
        a("s_cbranch_scc1 L_a_nodma")
        qkv_wdma(a, W1, 20)
        if PWV == 7:
            a("s_cmp_lg_u32 s25, 7")
            a("s_cbranch_scc1 L_a_nodma")
            a("s_and_b32 s63, s46, 7")
            a("s_lshl_b32 s63, s63, 6")
            flag_addr(a, 0, F_XN, 63, 63)
            a("buffer_load_dwordx2 v[126:127], v0, s[32:35], 0 offen sc1")
        a.label("L_a_nodma")
        def gate():
            L = uid("L_w2")
            if PWV == 2:
                a("s_cmp_lt_u32 s25, 4")
                a(f"s_cbranch_scc1 {L}_a")
                a("s_waitcnt vmcnt(0)")
                a.label(L + "_a")
            if os.environ.get("LNSTAMP"): stamp(a, 10)
            a(f"s_cmp_lg_u32 s25, {PWV}")
            a(f"s_cbranch_scc1 {L}")
            if PWV == 7:
                a("s_waitcnt vmcnt(0)")
                a("v_cmp_ne_u64 vcc, s[60:61], v[126:127]")
                a(f"s_cbranch_vccz {L}")
                a("s_mov_b64 exec, vcc")
            else:
                a("s_and_b32 s63, s46, 7")
                a("s_lshl_b32 s63, s63, 6")
                flag_addr(a, 0, F_XN, 63, 63)
            poll(a, 0, 126, direct=bool(int(os.environ.get("XDIRECT", "1"))), sleep2=int(os.environ.get("XSLEEP", "1")))
            a.label(L)
            if PWV != 2:
                a("s_cmp_lt_u32 s25, 4")
                a(f"s_cbranch_scc1 {L}_a")
                a("s_waitcnt vmcnt(0)")
                a.label(L + "_a")
            if os.environ.get("LNSTAMP"): stamp(a, 5)
            a("s_barrier")
            stamp(a, 4)
        BTRIG = os.environ.get("BTRIG", "qkv")
        if BTRIG == "loop": roles.qkv_hook = lambda: wave0(a, lambda: publish(a, F_QL, 2))
        if BTRIG == "attn": roles.attn_hook = lambda: wave0(a, lambda: publish(a, F_QL, 2))
        if BTRIG == "issue": roles.attn_hook0 = lambda: wave0(a, lambda: publish(a, F_QL, 2))
        qkv_main(a, gate)
    a("s_setprio 3")
    a("s_waitcnt vmcnt(0)")
    stamp(a, 8)
    for _ in range(int(os.environ.get("DELAY", "0"))): a("s_sleep 32")
    a("s_barrier")
    wave0(a, lambda: publish(a, F_QKV, 46, sh=QSH))
    if BTRIG == "qkv": wave0(a, lambda: publish(a, F_QL, 2))
    a("s_branch L_a_attn")
    a.label("L_a_spare")
    if Q2:
        a("s_lshl_b32 s3, s2, 3")
        a("s_add_u32 s3, s3, s25")
        a("s_sub_u32 s3, s3, 1920")
        get_nonce(a, True, pre=False)
        wave0(a, lambda: wait_nonce(a, sleep=4))
    if int(os.environ.get("WARM", "1")) == 1:
        if int(os.environ.get("SPDELAY", "1")):
            def f():
                a("s_and_b32 s63, s2, 7")
                a("s_lshl_b32 s63, s63, 6")
                flag_addr(a, 12, F_XN, 63, 63)
                poll(a, 12, sleep=4)
            wave0(a, f)
            a("s_barrier")
        a("s_cmp_ge_u32 s25, 4")
        a(f"s_cselect_b32 s36, s{S_WU}, s{S_WG}")
        a(f"s_cselect_b32 s37, s{S_WU+1}, s{S_WG+1}")
        a("s_mov_b32 s38, 1966080")
        a("s_mov_b32 s39, 0x00020000")
        a("s_and_b32 s3, s25, 3")
        a("s_sub_u32 s50, s2, 240")
        a("s_lshl_b32 s50, s50, 2")
        a("s_add_u32 s50, s50, s3")
        a("s_lshl_b32 s50, s50, 10")
        if PRE_DMA: a(f"s_add_u32 s50, s50, {PRE_DMA * 393216}")
        for i in range(min(int(os.environ.get("SPN", "18")), 30 - 6 * PRE_DMA)):
            a(f"buffer_load_dwordx4 v[{16+4*(i%16)}:{19+4*(i%16)}], v9, s[36:39], s50 offen")
            a("s_add_u32 s50, s50, 65536")
        a("s_waitcnt vmcnt(0)")
    a("s_setprio 3")
    a.label("L_a_attn")
    attn_decode(a)
    def f():
        if Q2:
            attn_flag_addr2(a, 14)
            poll(a, 14)
            poll(a, 15, direct=True)
        else:
            attn_flag_addr(a, 14)
            poll(a, 14, direct=bool(int(os.environ.get("DIRECT", "0"))))
    wave0(a, f)
    a("s_barrier")
    stamp(a, 9)
    attn_main(a)
    a("s_waitcnt vmcnt(0)")
    stamp(a, 12)
    a("s_barrier")
    def f():
        a("s_lshl_b32 s63, s27, 5")
        a("s_add_u32 s63, s63, s24")
        publish(a, F_O, 63)
    wave0(a, f)
    flush_attn(a, 0)
    dbg_flush(a, 8, [int(x) for x in os.environ.get('DBGA', '1,4,6,9,10,11,12').split(',')], 2)
    a("s_endpgm")
    a.label("L_roleB")
    if os.environ.get("FLOOR") and not os.environ.get("FLOOR0"):
        a("s_memrealtime s[92:93]")
        a("s_waitcnt lgkmcnt(0)")
    if Q2:
        srd(a, 56, S_DBG, 256)
        a("s_sub_u32 s49, s2, 256")
        roles.LNWG[0] = "s49"
        a("s_cmp_ge_u32 s25, 2")
        a("s_cbranch_scc1 L_b_noln")
        ln_issue(a)
        ln_addr(a)
        a("s_waitcnt vmcnt(0)")
        a("s_barrier")
        a("v_mov_b32 v12, 0")
        a("buffer_load_dwordx2 v[10:11], v12, s[56:59], 0 offen sc1")
        ln_body(a)
        ln_store(a)
        ln_stats(a)
        wait_nonce(a, first_issued=True)
        a("s_lshl_b32 s63, s49, 1")
        a("s_add_u32 s63, s63, s25")
        publish(a, F_XN, 63, sh=3)
        stamp(a, 1)
        a("s_branch L_b_pf_done")
        a.label("L_b_noln")
        warm_weights(a, 0, w0=2)
        a("s_barrier")
        if int(os.environ.get("L2PF", "1")): l2_prefetch(a)
        a.label("L_b_pf_done")
    gu_decode(a)
    g = (GU16 if XSWAP else GU)(a)
    WARM = int(os.environ.get("WARM", "1"))
    if int(os.environ.get("CODEPF", "1")): code_prefetch(a)
    if WARM and int(os.environ.get('WARMQ', '1')) and not Q2: warm_weights(a, 0)
    def f():
        get_nonce(a, False)
        wait_nonce(a, sleep=16)
    if not Q2: wave0(a, f)
    g.setup()
    if PRE_DMA:
        def f():
            a("s_sub_u32 s63, s2, 256")
            a("s_lshl_b32 s63, s63, 1")
            flag_addr(a, 0, F_XN, 63, 0)
            poll(a, 0, sleep=3, single=True)
        wave0(a, f)
        a("s_barrier")
        for st in range(PRE_DMA): g.dma_stage(st)
    def f():
        if BTRIG not in ("attn", "issue"):
            a("s_lshl_b32 s63, s27, 6")
            flag_addr(a, 0, F_XN, 63, 63)
            poll(a, 0, sleep=8 if BTRIG != "xn" else 3)
        if BTRIG not in ("attn", "xn", "issue"):
            a("s_cmp_ge_u32 s2, 496")
            a("s_cbranch_scc1 L_b_noql")
        if BTRIG == "xn": return
        a("s_sub_u32 s63, s2, 256")
        if os.environ.get("SQL", "1") == "1":
            a(f"s_lshl_b32 s63, s63, {FSH}")
            a(f"s_add_u32 s63, s63, {F_QL}")
            a("s_mov_b32 s83, 0x40000")
            a.label("L_b_sq")
            a(f"s_load_dwordx2 s[88:89], s[{S_WS}:{S_WS+1}], s63 glc")
            a("s_waitcnt lgkmcnt(0)")
            a("s_cmp_eq_u64 s[88:89], s[60:61]")
            a("s_cbranch_scc1 L_b_noql")
            a(f"s_sleep {os.environ.get('BSLEEP', '4')}")
            a("s_sub_u32 s83, s83, 1")
            a("s_cbranch_scc0 L_b_sq")
        else:
            flag_addr(a, 0, F_QL, 63, 0)
            poll(a, 0, sleep=int(os.environ.get("BSLEEP", "4")), single=True)
        a.label("L_b_noql")
    wave0(a, f)
    a("s_barrier")
    stamp(a, 2)
    a(f"s_setprio {os.environ.get('PG', '0')}")
    def warm2():
        srd(a, 36, S_WD, 1966080)
        srd(a, 52, S_WO, 819200)
        a("s_sub_u32 s50, s2, 256")
        a("s_lshl_b32 s50, s50, 3")
        a("s_add_u32 s50, s50, s25")
        a("s_mul_i32 s51, s50, 960")
        a("s_mul_i32 s50, s50, 400")
        g.vm.issue("buffer_load_dwordx4 v[120:123], v9, s[36:39], s51 offen", ("P", 0))
        g.vm.issue("buffer_load_dwordx4 v[124:127], v9, s[52:55], s50 offen", ("P", 1))
    g.main(PRE_DMA, warm2 if WARM == 1 else None)
    a("s_lshl_b32 s63, s27, 5")
    a("s_add_u32 s63, s63, s24")
    fin_decode(a)
    SK = int(os.environ.get("SK", "0"))
    fn = (FIN2 if SK else FIN)(a); fn.setup(zero_acc=False)
    a("s_waitcnt vmcnt(0)")
    if os.environ.get("LNSTAMP"): stamp(a, 1)
    a("s_barrier")
    wave0(a, lambda: publish(a, F_H, 63, t=56))
    NPRE = int(os.environ.get("NPRE", "4"))
    for m in range(NPRE): fn.dma_wd(m)
    fn.zero_acc()
    def f():
        a("s_lshr_b32 s63, s27, 2")
        a("s_lshl_b32 s63, s63, 5")
        if SK:
            a("s_lshl_b32 s3, s58, 4")
            a("s_add_u32 s62, s63, s3")
            flag_addr(a, 0, F_H, 62, 15)
        else:
            flag_addr(a, 0, F_H, 63, 31)
        poll(a, 0, 56, direct=bool(int(os.environ.get("HDIRECT", "1"))))
    wave0(a, f)
    a("s_barrier")
    stamp(a, 8)
    a(f"s_setprio {os.environ.get('PD', '0')}")
    fn.down(NPRE)
    if int(os.environ.get("PW", "1")): a("s_setprio 3")
    if SK:
        def pub():
            a("s_and_b32 s45, s2, 255")
            wave0(a, lambda: publish(a, F_EX, 45, t=56))
        fn.wo_prefetch(pub)
        def f():
            a("s_xor_b32 s45, s45, 8")
            a(f"s_lshl_b32 s45, s45, {FSH}")
            a(f"s_add_u32 s45, s45, {F_EX}")
            a("s_mov_b32 s83, 0x40000")
            a.label("L_b_ex")
            a(f"s_load_dwordx2 s[88:89], s[{S_WS}:{S_WS+1}], s45 glc")
            a("s_waitcnt lgkmcnt(0)")
            a("s_cmp_eq_u64 s[88:89], s[60:61]")
            a("s_cbranch_scc1 L_b_exok")
            a("s_sleep 2")
            a("s_sub_u32 s83, s83, 1")
            a("s_cbranch_scc0 L_b_ex")
            a.label("L_b_exok")
        wave0(a, f)
        a("s_barrier")
        fn.receive()
    else:
        fn.wo_prefetch()
    a("s_setprio 3")
    def f():
        flag_addr(a, 58, F_O, 63, 31)
        poll(a, 58, 56, direct=bool(int(os.environ.get("ODIRECT", "0"))), sleep2=int(os.environ.get("OSLEEP", "1")))
    wave0(a, f)
    a("s_waitcnt vmcnt(0)")
    a("s_barrier")
    stamp(a, 11)
    fn.wo_main()
    if os.environ.get("FLOOR"):
        a.label("L_floor")
        a("s_memrealtime s[90:91]")
        a("s_waitcnt lgkmcnt(0)")
        a("s_sub_u32 s90, s90, s92")
        a(f"s_cmp_lt_u32 s90, {int(os.environ['FLOOR']) * 100}")
        a("s_cbranch_scc1 L_floor")
    stamp_flush(a, 0, 25)
    dbg_flush(a, 264, [int(x) for x in os.environ.get('DBGB', '2,3,6,8,10,11,13').split(',')], 9)
    a.label("L_end")
    a("s_endpgm")
    return a

def build_single(a):
    name = NAME + "_kernel"
    for p in check_program(a.lines): print("HAZARD", p)
    out = HEADER + "; @launch grid=(512,1,1) block=(512,1,1) lds=81920\n"
    out += '.amdgcn_target "amdgcn-amd-amdhsa--gfx950"\n.text\n' + kernel_header(name) + a.text()
    out += '.section .rodata,"a"\n' + kernel_desc(name, 128, 128)
    return out

if __name__ == "__main__":
    path = sys.argv[1] if len(sys.argv) > 1 else f"cdna_kernels/{NAME}.s"
    open(path, "w").write(build_single(gen_fused()))
    import subprocess
    r = subprocess.run(["clang", "-x", "assembler", "-target", "amdgcn-amd-amdhsa", "-mcpu=gfx950", "-c", path, "-o", "gen_check.o"], capture_output=True, text=True)
    if r.returncode: print(r.stderr[:1500])
    print("wrote", path, "OK" if r.returncode == 0 else "ASM FAILED")
```

```python
from asmlib import *

NAME = "parallel_sum__softmax_full_mha__swiglu_ffn__prompt"
WS_XN = 0x0
WS_QM = 0x280000
WS_QR = 0x480000
WS_KV = 0x500000
WS_H  = 0xA00000
WS_O  = 0x1000000
WS_FP = 0x1280000
WS_SIZE = 0x2800000

S_X, S_WQKV, S_WO, S_BX, S_WG, S_WU, S_WD, S_OUT, S_DBG, S_WS = 4, 6, 8, 10, 12, 14, 16, 18, 20, 22

def load_args(a):
    a("s_load_dwordx16 s[4:19], s[0:1], 0")
    a("s_load_dwordx4 s[20:23], s[0:1], 64")

def srd(a, d, base, size):
    a(f"s_mov_b32 s{d}, s{base}")
    a(f"s_mov_b32 s{d+1}, s{base+1}")
    a(f"s_mov_b32 s{d+2}, {size}")
    a(f"s_mov_b32 s{d+3}, 0x00020000")

class VM:
    def __init__(self, a):
        self.a = a
        self.q = []
    def issue(self, line, tag):
        self.a(line)
        self.q.append(tag)
    def count_after(self, pred):
        last = -1
        for i, t in enumerate(self.q):
            if pred(t): last = i
        return len(self.q) - 1 - last if last >= 0 else None
    def wait(self, pred, extra=""):
        n = self.count_after(pred)
        if n is None:
            if extra: self.a(f"s_waitcnt {extra}")
            return
        n = min(n, 63)
        self.a(f"s_waitcnt vmcnt({n}) {extra}".strip())
        self.q = self.q[len(self.q) - n:] if n > 0 else []

def kernel_header(name):
    return f""".globl {name}
.p2align 8
.type {name},@function
{name}:
"""

def kernel_desc(name, nvgpr, accoff, nsgpr=96):
    return f""".p2align 6
.amdhsa_kernel {name}
  .amdhsa_next_free_vgpr {nvgpr}
  .amdhsa_next_free_sgpr {nsgpr}
  .amdhsa_accum_offset {accoff}
  .amdhsa_group_segment_fixed_size 0
  .amdhsa_kernarg_size 80
  .amdhsa_user_sgpr_count 2
  .amdhsa_user_sgpr_kernarg_segment_ptr 1
  .amdhsa_system_sgpr_workgroup_id_x 1
  .amdhsa_float_denorm_mode_32 3
.end_amdhsa_kernel
"""

import os
PROFILE = os.environ.get("PROFILE", "0") == "1"
WS_PROF = 0x1c00000
DBGOUT = os.environ.get("DBGOUT", "0") == "1"
def dbg_flush(a, wg, idxs, first):
    if not DBGOUT: return
    a("s_waitcnt vmcnt(0)")
    stamp(a, 13)
    a(f"s_cmp_lg_u32 s2, {wg}")
    a(f"s_cbranch_scc1 L_dbg{wg}")
    a("s_cmp_lg_u32 s25, 0")
    a(f"s_cbranch_scc1 L_dbg{wg}")
    a("s_mov_b64 exec, -1")
    for j, i in enumerate(idxs):
        a(f"s_sub_u32 s84, s{64+i}, s64")
        a(f"v_writelane_b32 v0, s84, {j}")
    srd(a, 56, S_DBG, 256)
    a("v_mbcnt_lo_u32_b32 v1, -1, 0")
    a("v_lshlrev_b32 v1, 2, v1")
    a(f"s_mov_b64 exec, {(1 << len(idxs)) - 1}")
    a(f"buffer_store_dword v0, v1, s[56:59], 0 offen offset:{4*first}")
    a.label(f"L_dbg{wg}")
ROLE = ["A"]
def probe_floor(a):
    p = os.environ.get("PROBE")
    if not p or p[0] != ROLE[0]: return
    a.label(f"L_probe{ROLE[0]}")
    a("s_memrealtime s[90:91]")
    a("s_waitcnt lgkmcnt(0)")
    a("s_sub_u32 s90, s90, s92")
    a("s_cmp_lt_u32 s90, 6000")
    a(f"s_cbranch_scc1 L_probe{ROLE[0]}")
def stamp(a, idx, real=False):
    if os.environ.get("PROBE") == f"{ROLE[0]}{idx}":
        a("s_memrealtime s[92:93]")
        a("s_waitcnt lgkmcnt(0)")
    if DBGOUT: real = True
    if not (PROFILE or DBGOUT): return
    a(f"{'s_memrealtime' if real else 's_memtime'} s[84:85]")
    a("s_waitcnt lgkmcnt(0)")
    a(f"s_mov_b32 s{64+idx}, s84")
def stamp_start(a):
    if not (PROFILE or DBGOUT): return
    for i in range(16): a(f"s_mov_b32 s{64+i}, 0")
    stamp(a, 0); stamp(a, 15, True)
def stamp_flush(a, kidx, wave_sgpr, srd_ws=32):
    if not PROFILE: return
    a("s_waitcnt vmcnt(0)")
    stamp(a, 13); stamp(a, 14, True)
    a("s_mov_b64 exec, -1")
    for i in range(16):
        a(f"v_writelane_b32 v0, s{64+i}, {i}")
    a(f"s_lshl_b32 s84, s2, 4")
    a(f"s_add_u32 s84, s84, s{wave_sgpr}")
    a(f"s_lshl_b32 s84, s84, 6")
    a(f"s_add_u32 s84, s84, {WS_PROF + kidx * 0x100000}")
    a("v_mbcnt_lo_u32_b32 v1, -1, 0")
    a("v_mbcnt_hi_u32_b32 v1, -1, v1")
    a("v_lshlrev_b32 v1, 2, v1")
    a("s_mov_b64 exec, 0xffff")
    a(f"buffer_store_dword v0, v1, s[{srd_ws}:{srd_ws+3}], s84 offen")
```

```python
import sys, os
sys.path.insert(0, os.path.dirname(__file__))
from common import *
import roles
from roles import *
from gen2 import prologue, flush_attn

HEADER = open(os.path.join(os.path.dirname(__file__), "header.txt")).read()
PRE_DMA = int(os.environ.get("PRE_DMA", "0"))

def get_nonce(a, is_a, pre=True):
    srd(a, 56, S_DBG, 256)
    L = uid("L_nonce")
    if is_a:
        if pre: a("s_add_u32 s3, s2, s25")
        a("s_cmp_lg_u32 s3, 0")
        a(f"s_cbranch_scc1 {L}")
        a("s_memrealtime s[60:61]")
        a("s_waitcnt lgkmcnt(0)")
        a("s_or_b32 s60, s60, 1")
        a("s_or_b32 s61, s61, 0x9e370000")
        a("v_mov_b32 v10, s60")
        a("v_mov_b32 v11, s61")
        a("v_mov_b32 v12, 0")
        a("s_mov_b64 exec, 1")
        a("buffer_store_dwordx2 v[10:11], v12, s[56:59], 0 offen sc1")
        a("s_mov_b64 exec, -1")
    a.label(L)

def wait_nonce(a, first_issued=False, t=10, sleep=1):
    L = uid("L_wn")
    ad = 12 if t == 10 else 0
    a("s_mov_b32 s83, 0x40000")
    if first_issued:
        a(f"s_branch {L}_chk")
    else:
        a(f"v_mov_b32 v{ad}, 0")
    a.label(L)
    a(f"buffer_load_dwordx2 v[{t}:{t+1}], v{ad}, s[56:59], 0 offen sc1")
    a.label(L + "_chk")
    a("s_waitcnt vmcnt(0)")
    a(f"v_readfirstlane_b32 s60, v{t}")
    a(f"v_readfirstlane_b32 s61, v{t+1}")
    a("s_min_u32 s62, s60, s61")
    a("s_cmp_lg_u32 s62, 0")
    a(f"s_cbranch_scc1 {L}_ok")
    a(f"s_sleep {sleep}")
    a("s_sub_u32 s83, s83, 1")
    a(f"s_cbranch_scc0 {L}")
    a.label(L + "_ok")

XSH = 3 if int(os.environ.get("Q2", "0")) else int(os.environ.get("XSH", "7"))
def flag_addr(a, vd, base, s_first, mask):
    a(f"v_and_b32 v{vd}, {mask}, v2")
    a(f"v_add_u32 v{vd}, s{s_first}, v{vd}")
    a(f"v_lshlrev_b32 v{vd}, {XSH if base == F_XN else FSH}, v{vd}")
    a(f"v_add_u32 v{vd}, {base}, v{vd}")

def wave0(a, fn):
    L = uid("L_w0")
    a("s_cmp_lg_u32 s25, 0")
    a(f"s_cbranch_scc1 {L}")
    fn()
    a.label(L)

def warm_weights(a, part, w0=1):
    a("s_sub_u32 s50, s2, 256")
    L = uid("L_warm")
    if part == 0:
        spec = [(S_WQKV, 2457600, 4800, 0), (S_WQKV, 2457600, 4800, 1228800)]
        if PRE_DMA: spec += [(S_WG, 1966080, 1536 * PRE_DMA, 0), (S_WU, 1966080, 1536 * PRE_DMA, 0)]
    else:
        spec = [(S_WD, 1966080, 3840, 0), (S_WD, 1966080, 3840, 983040), (S_WO, 819200, 3200, 0)]
    for w, (ptr, size, per, base) in enumerate(spec):
        a(f"s_cmp_lg_u32 s25, {w + w0}")
        a(f"s_cbranch_scc1 {L}_{w}")
        srd(a, 36, ptr, size)
        a(f"s_mul_i32 s51, s50, {per}")
        if base: a(f"s_add_u32 s51, s51, {base}")
        n = (per + 1023) // 1024
        for i in range(n):
            if i == 4: a("s_add_u32 s51, s51, 4096")
            r = 96 + 4 * (i % 8) if part == 0 else 120
            a(f"buffer_load_dwordx4 v[{r}:{r+3}], v9, s[36:39], s51 offen offset:{1024*(i%4)}")
        if part == 0: a("s_waitcnt vmcnt(0)")
        a.label(f"{L}_{w}")

def code_prefetch(a):
    L = uid("L_cpf")
    a("s_cmp_ge_u32 s2, 264")
    a(f"s_cbranch_scc1 {L}")
    a("s_cmp_lg_u32 s25, 7")
    a(f"s_cbranch_scc1 {L}")
    a("s_getpc_b64 s[50:51]")
    a.label(L + "_pc")
    a(f"s_sub_u32 s50, s50, {L}_pc-{NAME}_kernel")
    a("s_subb_u32 s51, s51, 0")
    a(f"s_mov_b32 s52, (L_end-{NAME}_kernel)/1024")
    a("v_mov_b32 v10, v9")
    a.label(L + "_l")
    a("global_load_dwordx4 v[96:99], v10, s[50:51]")
    a("v_add_u32 v10, 1024, v10")
    a("s_sub_u32 s52, s52, 1")
    a("s_cmp_lg_u32 s52, 0")
    a(f"s_cbranch_scc1 {L}_l")
    a("s_waitcnt vmcnt(0)")
    a.label(L)

def l2_prefetch(a):
    a("s_cmp_ge_u32 s49, 240")
    a("s_cbranch_scc1 L_b_pf_done")
    a("s_mov_b32 s62, s2")
    a("s_mov_b32 s2, s49")
    qkv2_decode(a)
    a("s_mov_b32 s2, s62")
    srd(a, 28, S_WQKV, 2457600)
    srd(a, 36, S_X, 2621440)
    a("v_lshrrev_b32 v10, 4, v2")
    a("v_and_b32 v11, 15, v2")
    a("v_lshlrev_b32 v11, 4, v11")
    a("s_movk_i32 s3, 1280")
    a("v_mad_u32_u24 v12, v10, s3, v11")
    a("s_movk_i32 s3, 3840")
    a("v_mad_u32_u24 v13, v10, s3, v11")
    a("s_sub_u32 s50, s25, 2")
    a("s_mul_i32 s51, s26, 163840")
    a("s_lshl_b32 s3, s27, 8")
    a("s_add_u32 s51, s51, s3")
    a("s_mul_i32 s3, s50, 5120")
    a("s_add_u32 s51, s51, s3")
    a("s_mul_i32 s3, s26, 43")
    a("s_lshr_b32 s3, s3, 8")
    a("s_mul_i32 s3, s3, 6")
    a("s_sub_u32 s3, s26, s3")
    a(f"s_mul_i32 s52, s3, {108*3840}")
    a("s_lshl_b32 s3, s47, 8")
    a("s_add_u32 s52, s52, s3")
    a("s_mul_i32 s3, s50, 15360")
    a("s_add_u32 s52, s52, s3")
    for i in range(6):
        if i < 5:
            a(f"buffer_load_dwordx4 v[{16+8*i}:{19+8*i}], v13, s[28:31], s52 offen")
            a(f"s_add_u32 s52, s52, {6*15360}")
        if i == 5:
            a("s_cmp_ge_u32 s50, 2")
            a("s_cbranch_scc1 L_b_pf_w")
        a(f"buffer_load_dwordx4 v[{20+8*i}:{23+8*i}], v12, s[36:39], s51 offen")
        a(f"s_add_u32 s51, s51, {6*5120}")
    a.label("L_b_pf_w")
    a("s_waitcnt vmcnt(0)")

def gen_fused():
    cfg.fused = True; cfg.sc = " sc1"
    a = Asm()
    if os.environ.get("FLOOR0") or os.environ.get("PROBE"): a("s_memrealtime s[92:93]")
    prologue(a, 512, "L_end")
    a("s_cmp_ge_u32 s2, 256")
    a("s_cbranch_scc1 L_roleB")
    Q2 = int(os.environ.get("Q2", "0"))
    BTRIG = os.environ.get("BTRIG", "qkv")
    if Q2:
        srd(a, 56, S_DBG, 256)
        a("s_cmp_ge_u32 s2, 240")
        a("s_cbranch_scc1 L_a_spare")
        qkv2_decode(a)
        def nonce_check(t):
            L = uid("L_nc")
            a(f"v_readfirstlane_b32 s60, v{t}")
            a(f"v_readfirstlane_b32 s61, v{t+1}")
            a("s_min_u32 s62, s60, s61")
            a("s_cmp_lg_u32 s62, 0")
            a(f"s_cbranch_scc1 {L}")
            wait_nonce(a, t=t)
            a.label(L)
        if BTRIG == "loop": roles.qkv_hook = lambda: wave0(a, lambda: publish(a, F_QL, 2, t=94))
        if BTRIG == "attn": roles.attn_hook = lambda: wave0(a, lambda: publish(a, F_QL, 2))
        if BTRIG == "issue": roles.attn_hook0 = lambda: wave0(a, lambda: publish(a, F_QL, 2))
        qkv2(a, nonce_check)
    else:
        DRY = int(os.environ.get("DRY", "1"))
        WLATE = int(os.environ.get("WLATE", "1"))
        a("s_cmp_ge_u32 s25, 2")
        a("s_cbranch_scc1 L_a_noln")
        ln_issue(a)
        get_nonce(a, True)
        if not WLATE: a("s_barrier")
        ln_addr(a)
        a("s_waitcnt vmcnt(0)")
        stamp(a, 1)
        if WLATE == 2: a("s_barrier")
        a("v_mov_b32 v12, 0")
        a("buffer_load_dwordx2 v[10:11], v12, s[56:59], 0 offen sc1")
        a.label("L_a_lnbody")
        ln_body(a)
        if DRY:
            a("s_cmp_ge_u32 s25, 2")
            a("s_cbranch_scc1 L_a_dry_done")
        ln_store(a)
        if WLATE == 1: a("s_barrier")
        stamp(a, 2)
        wait_nonce(a, first_issued=True)
        stamp(a, 3)
        a("s_lshl_b32 s63, s2, 1")
        a("s_add_u32 s63, s63, s25")
        publish(a, F_XN, 63, sh=XSH)
        a("s_branch L_a_ln_done")
        a.label("L_a_noln")
        PWV = int(os.environ.get("PWV", "7"))
        a(f"s_cmp_lg_u32 s25, {PWV}")
        a("s_cbranch_scc1 L_a_non2")
        srd(a, 56, S_DBG, 256)
        wait_nonce(a, sleep=6)
        a.label("L_a_non2")
        W1 = int(os.environ.get("W1", "0"))
        if W1:
            a("s_cmp_lt_u32 s25, 4")
            a("s_cbranch_scc1 L_a_now1")
            a("s_cmp_ge_u32 s2, 240")
            a("s_cbranch_scc1 L_a_now1")
            qkv_decode(a)
            qkv_wdma(a, 0, W1)
            a.label("L_a_now1")
        if int(os.environ.get("TLB", "0")):
            a("s_cmp_lg_u32 s25, 3")
            a("s_cbranch_scc1 L_a_notlb")
            a("v_min_u32 v10, 10, v2")
            a("v_lshlrev_b32 v10, 21, v10")
            a("buffer_load_dword v11, v10, s[32:35], 0 offen")
            a.label("L_a_notlb")
        if DRY:
            if not WLATE: a("s_barrier")
            a("s_cmp_eq_u32 s25, 2")
            a("s_cbranch_scc1 L_a_lnbody")
            a.label("L_a_dry_done")
            a("s_waitcnt lgkmcnt(0)")
            if WLATE: a("s_barrier")
        else:
            a("s_barrier")
        a.label("L_a_ln_done")
        a("s_cmp_ge_u32 s2, 240")
        a("s_cbranch_scc1 L_a_spare")
        qkv_decode(a)
        a("s_cmp_lt_u32 s25, 4")
        a("s_cbranch_scc1 L_a_nodma")
        qkv_wdma(a, W1, 20)
        if PWV == 7:
            a("s_cmp_lg_u32 s25, 7")
            a("s_cbranch_scc1 L_a_nodma")
            a("s_and_b32 s63, s46, 7")
            a("s_lshl_b32 s63, s63, 6")
            flag_addr(a, 0, F_XN, 63, 63)
            a("buffer_load_dwordx2 v[126:127], v0, s[32:35], 0 offen sc1")
        a.label("L_a_nodma")
        def gate():
            L = uid("L_w2")
            if PWV == 2:
                a("s_cmp_lt_u32 s25, 4")
                a(f"s_cbranch_scc1 {L}_a")
                a("s_waitcnt vmcnt(0)")
                a.label(L + "_a")
            if os.environ.get("LNSTAMP"): stamp(a, 10)
            a(f"s_cmp_lg_u32 s25, {PWV}")
            a(f"s_cbranch_scc1 {L}")
            if PWV == 7:
                a("s_waitcnt vmcnt(0)")
                a("v_cmp_ne_u64 vcc, s[60:61], v[126:127]")
                a(f"s_cbranch_vccz {L}")
                a("s_mov_b64 exec, vcc")
            else:
                a("s_and_b32 s63, s46, 7")
                a("s_lshl_b32 s63, s63, 6")
                flag_addr(a, 0, F_XN, 63, 63)
            poll(a, 0, 126, direct=bool(int(os.environ.get("XDIRECT", "1"))), sleep2=int(os.environ.get("XSLEEP", "1")))
            a.label(L)
            if PWV != 2:
                a("s_cmp_lt_u32 s25, 4")
                a(f"s_cbranch_scc1 {L}_a")
                a("s_waitcnt vmcnt(0)")
                a.label(L + "_a")
            if os.environ.get("LNSTAMP"): stamp(a, 5)
            a("s_barrier")
            stamp(a, 4)
        BTRIG = os.environ.get("BTRIG", "qkv")
        if BTRIG == "loop": roles.qkv_hook = lambda: wave0(a, lambda: publish(a, F_QL, 2))
        if BTRIG == "attn": roles.attn_hook = lambda: wave0(a, lambda: publish(a, F_QL, 2))
        if BTRIG == "issue": roles.attn_hook0 = lambda: wave0(a, lambda: publish(a, F_QL, 2))
        qkv_main(a, gate)
    a("s_setprio 3")
    a("s_waitcnt vmcnt(0)")
    stamp(a, 8)
    for _ in range(int(os.environ.get("DELAY", "0"))): a("s_sleep 32")
    a("s_barrier")
    wave0(a, lambda: publish(a, F_QKV, 46, sh=QSH))
    if BTRIG == "qkv": wave0(a, lambda: publish(a, F_QL, 2))
    a("s_branch L_a_attn")
    a.label("L_a_spare")
    if Q2:
        a("s_lshl_b32 s3, s2, 3")
        a("s_add_u32 s3, s3, s25")
        a("s_sub_u32 s3, s3, 1920")
        get_nonce(a, True, pre=False)
        wave0(a, lambda: wait_nonce(a, sleep=4))
    if int(os.environ.get("WARM", "1")) == 1:
        if int(os.environ.get("SPDELAY", "1")):
            def f():
                a("s_and_b32 s63, s2, 7")
                a("s_lshl_b32 s63, s63, 6")
                flag_addr(a, 12, F_XN, 63, 63)
                poll(a, 12, sleep=4)
            wave0(a, f)
            a("s_barrier")
        a("s_cmp_ge_u32 s25, 4")
        a(f"s_cselect_b32 s36, s{S_WU}, s{S_WG}")
        a(f"s_cselect_b32 s37, s{S_WU+1}, s{S_WG+1}")
        a("s_mov_b32 s38, 1966080")
        a("s_mov_b32 s39, 0x00020000")
        a("s_and_b32 s3, s25, 3")
        a("s_sub_u32 s50, s2, 240")
        a("s_lshl_b32 s50, s50, 2")
        a("s_add_u32 s50, s50, s3")
        a("s_lshl_b32 s50, s50, 10")
        if PRE_DMA: a(f"s_add_u32 s50, s50, {PRE_DMA * 393216}")
        for i in range(min(int(os.environ.get("SPN", "18")), 30 - 6 * PRE_DMA)):
            a(f"buffer_load_dwordx4 v[{16+4*(i%16)}:{19+4*(i%16)}], v9, s[36:39], s50 offen")
            a("s_add_u32 s50, s50, 65536")
        a("s_waitcnt vmcnt(0)")
    a("s_setprio 3")
    a.label("L_a_attn")
    attn_decode(a)
    def f():
        if Q2:
            attn_flag_addr2(a, 14)
            poll(a, 14)
            poll(a, 15, direct=True)
        else:
            attn_flag_addr(a, 14)
            poll(a, 14, direct=bool(int(os.environ.get("DIRECT", "0"))))
    wave0(a, f)
    a("s_barrier")
    stamp(a, 9)
    attn_main(a)
    a("s_waitcnt vmcnt(0)")
    stamp(a, 12)
    a("s_barrier")
    def f():
        a("s_lshl_b32 s63, s27, 5")
        a("s_add_u32 s63, s63, s24")
        publish(a, F_O, 63)
    wave0(a, f)
    flush_attn(a, 0)
    probe_floor(a)
    dbg_flush(a, 8, [int(x) for x in os.environ.get('DBGA', '1,4,6,9,10,11,12').split(',')], 2)
    a("s_endpgm")
    a.label("L_roleB")
    ROLE[0] = "B"
    if os.environ.get("FLOOR") and not os.environ.get("FLOOR0"):
        a("s_memrealtime s[92:93]")
        a("s_waitcnt lgkmcnt(0)")
    if Q2:
        srd(a, 56, S_DBG, 256)
        a("s_sub_u32 s49, s2, 256")
        roles.LNWG[0] = "s49"
        a("s_cmp_ge_u32 s25, 2")
        a("s_cbranch_scc1 L_b_noln")
        ln_issue(a)
        ln_addr(a)
        a("s_waitcnt vmcnt(0)")
        a("s_barrier")
        a("v_mov_b32 v12, 0")
        a("buffer_load_dwordx2 v[10:11], v12, s[56:59], 0 offen sc1")
        ln_body(a)
        ln_store(a)
        ln_stats(a)
        wait_nonce(a, first_issued=True)
        a("s_lshl_b32 s63, s49, 1")
        a("s_add_u32 s63, s63, s25")
        publish(a, F_XN, 63, sh=3)
        stamp(a, 1)
        a("s_branch L_b_pf_done")
        a.label("L_b_noln")
        warm_weights(a, 0, w0=2)
        a("s_barrier")
        if int(os.environ.get("L2PF", "1")): l2_prefetch(a)
        a.label("L_b_pf_done")
    gu_decode(a)
    g = (GU16 if XSWAP else GU)(a)
    WARM = int(os.environ.get("WARM", "1"))
    if int(os.environ.get("CODEPF", "1")): code_prefetch(a)
    if WARM and int(os.environ.get('WARMQ', '1')) and not Q2: warm_weights(a, 0)
    def f():
        get_nonce(a, False)
        wait_nonce(a, sleep=16)
    if not Q2: wave0(a, f)
    g.setup()
    if PRE_DMA:
        def f():
            a("s_sub_u32 s63, s2, 256")
            a("s_lshl_b32 s63, s63, 1")
            flag_addr(a, 0, F_XN, 63, 0)
            poll(a, 0, sleep=3, single=True)
        wave0(a, f)
        a("s_barrier")
        for st in range(PRE_DMA): g.dma_stage(st)
    def f():
        if BTRIG not in ("attn", "issue"):
            a("s_lshl_b32 s63, s27, 6")
            flag_addr(a, 0, F_XN, 63, 63)
            poll(a, 0, sleep=8 if BTRIG != "xn" else 3)
        if BTRIG not in ("attn", "xn", "issue"):
            a("s_cmp_ge_u32 s2, 496")
            a("s_cbranch_scc1 L_b_noql")
        if BTRIG == "xn": return
        a("s_sub_u32 s63, s2, 256")
        if os.environ.get("SQL", "1") == "1":
            a(f"s_lshl_b32 s63, s63, {FSH}")
            a(f"s_add_u32 s63, s63, {F_QL}")
            a("s_mov_b32 s83, 0x40000")
            a.label("L_b_sq")
            a(f"s_load_dwordx2 s[88:89], s[{S_WS}:{S_WS+1}], s63 glc")
            a("s_waitcnt lgkmcnt(0)")
            a("s_cmp_eq_u64 s[88:89], s[60:61]")
            a("s_cbranch_scc1 L_b_noql")
            a(f"s_sleep {os.environ.get('BSLEEP', '4')}")
            a("s_sub_u32 s83, s83, 1")
            a("s_cbranch_scc0 L_b_sq")
        else:
            flag_addr(a, 0, F_QL, 63, 0)
            poll(a, 0, sleep=int(os.environ.get("BSLEEP", "4")), single=True)
        a.label("L_b_noql")
    wave0(a, f)
    a("s_barrier")
    stamp(a, 2)
    a(f"s_setprio {os.environ.get('PG', '0')}")
    def warm2():
        srd(a, 36, S_WD, 1966080)
        srd(a, 52, S_WO, 819200)
        a("s_sub_u32 s50, s2, 256")
        a("s_lshl_b32 s50, s50, 3")
        a("s_add_u32 s50, s50, s25")
        a("s_mul_i32 s51, s50, 960")
        a("s_mul_i32 s50, s50, 400")
        g.vm.issue("buffer_load_dwordx4 v[120:123], v9, s[36:39], s51 offen", ("P", 0))
        g.vm.issue("buffer_load_dwordx4 v[124:127], v9, s[52:55], s50 offen", ("P", 1))
    g.main(PRE_DMA, warm2 if WARM == 1 else None)
    a("s_lshl_b32 s63, s27, 5")
    a("s_add_u32 s63, s63, s24")
    fin_decode(a)
    SK = int(os.environ.get("SK", "0"))
    fn = (FIN2 if SK else FIN)(a); fn.setup(zero_acc=False)
    a("s_waitcnt vmcnt(0)")
    if os.environ.get("LNSTAMP"): stamp(a, 1)
    a("s_barrier")
    wave0(a, lambda: publish(a, F_H, 63, t=56))
    NPRE = int(os.environ.get("NPRE", "4"))
    for m in range(NPRE): fn.dma_wd(m)
    fn.zero_acc()
    def f():
        a("s_lshr_b32 s63, s27, 2")
        a("s_lshl_b32 s63, s63, 5")
        if SK:
            a("s_lshl_b32 s3, s58, 4")
            a("s_add_u32 s62, s63, s3")
            flag_addr(a, 0, F_H, 62, 15)
        else:
            flag_addr(a, 0, F_H, 63, 31)
        poll(a, 0, 56, direct=bool(int(os.environ.get("HDIRECT", "1"))))
    wave0(a, f)
    a("s_barrier")
    stamp(a, 8)
    a(f"s_setprio {os.environ.get('PD', '0')}")
    fn.down(NPRE)
    if int(os.environ.get("PW", "1")): a("s_setprio 3")
    if SK:
        def pub():
            a("s_and_b32 s45, s2, 255")
            wave0(a, lambda: publish(a, F_EX, 45, t=56))
        fn.wo_prefetch(pub)
        def f():
            a("s_xor_b32 s45, s45, 8")
            a(f"s_lshl_b32 s45, s45, {FSH}")
            a(f"s_add_u32 s45, s45, {F_EX}")
            a("s_mov_b32 s83, 0x40000")
            a.label("L_b_ex")
            a(f"s_load_dwordx2 s[88:89], s[{S_WS}:{S_WS+1}], s45 glc")
            a("s_waitcnt lgkmcnt(0)")
            a("s_cmp_eq_u64 s[88:89], s[60:61]")
            a("s_cbranch_scc1 L_b_exok")
            a("s_sleep 2")
            a("s_sub_u32 s83, s83, 1")
            a("s_cbranch_scc0 L_b_ex")
            a.label("L_b_exok")
        wave0(a, f)
        a("s_barrier")
        fn.receive()
    else:
        fn.wo_prefetch()
    a("s_setprio 3")
    def f():
        flag_addr(a, 58, F_O, 63, 31)
        poll(a, 58, 56, direct=bool(int(os.environ.get("ODIRECT", "0"))), sleep2=int(os.environ.get("OSLEEP", "1")))
    wave0(a, f)
    a("s_waitcnt vmcnt(0)")
    a("s_barrier")
    stamp(a, 11)
    fn.wo_main()
    probe_floor(a)
    if os.environ.get("FLOOR"):
        a.label("L_floor")
        a("s_memrealtime s[90:91]")
        a("s_waitcnt lgkmcnt(0)")
        a("s_sub_u32 s90, s90, s92")
        a(f"s_cmp_lt_u32 s90, {int(os.environ['FLOOR']) * 100}")
        a("s_cbranch_scc1 L_floor")
    stamp_flush(a, 0, 25)
    dbg_flush(a, 264, [int(x) for x in os.environ.get('DBGB', '2,3,6,8,10,11,13').split(',')], 9)
    a.label("L_end")
    a("s_endpgm")
    return a

def build_single(a):
    name = NAME + "_kernel"
    for p in check_program(a.lines): print("HAZARD", p)
    out = HEADER + "; @launch grid=(512,1,1) block=(512,1,1) lds=81920\n"
    out += '.amdgcn_target "amdgcn-amd-amdhsa--gfx950"\n.text\n' + kernel_header(name) + a.text()
    out += '.section .rodata,"a"\n' + kernel_desc(name, 128, 128)
    return out

if __name__ == "__main__":
    path = sys.argv[1] if len(sys.argv) > 1 else f"cdna_kernels/{NAME}.s"
    open(path, "w").write(build_single(gen_fused()))
    import subprocess
    r = subprocess.run(["clang", "-x", "assembler", "-target", "amdgcn-amd-amdhsa", "-mcpu=gfx950", "-c", path, "-o", "gen_check.o"], capture_output=True, text=True)
    if r.returncode: print(r.stderr[:1500])
    print("wrote", path, "OK" if r.returncode == 0 else "ASM FAILED")
```

```python
from common import *
from k_ln import ln_rows
import struct

def f2hex(x):
    return "0x%08x" % struct.unpack("<I", struct.pack("<f", x))[0]

QSCALE = (20 ** -0.5) * 1.4426950408889634
WS_FL = 0x1400000
FSH = int(os.environ.get("FSH", "7"))
F_XN, F_QKV, F_QL, F_H, F_O = WS_FL, WS_FL + 0x10000, WS_FL + 0x20000, WS_FL + 0x30000, WS_FL + 0x40000
QSH = int(os.environ.get("QSH", "7"))
OOB = 0x7ffffff0
WS_ST = 0x1480000

class Cfg:
    fused = False
    sc = ""
cfg = Cfg()

_uid = [0]
def uid(p):
    _uid[0] += 1
    return f"{p}{_uid[0]}"

def publish(a, base, idx_sgpr, t=10, sh=None):
    if not cfg.fused: return
    a(f"s_lshl_b32 s62, s{idx_sgpr}, {FSH if sh is None else sh}")
    a(f"s_add_u32 s62, s62, {base}")
    a("v_mov_b32 v0, 0")
    a(f"v_mov_b32 v{t}, s60")
    a(f"v_mov_b32 v{t+1}, s61")
    a("s_mov_b64 exec, 1")
    a(f"buffer_store_dwordx2 v[{t}:{t+1}], v0, s[32:35], s62 offen sc1")
    a("s_mov_b64 exec, -1")

def poll(a, vaddr, t=10, sleep=2, single=False, sleep2=1, direct=False):
    if not cfg.fused: return
    L = uid("L_poll")
    a("s_mov_b32 s83, 0x40000")
    if not direct:
        a("s_mov_b64 exec, 1")
        a.label(L)
        a(f"buffer_load_dwordx2 v[{t}:{t+1}], v{vaddr}, s[32:35], 0 offen sc1")
        a("s_waitcnt vmcnt(0)")
        a(f"v_cmp_ne_u64 vcc, s[60:61], v[{t}:{t+1}]")
        a(f"s_cbranch_vccz {L}_1")
        a(f"s_sleep {sleep}")
        a("s_sub_u32 s83, s83, 1")
        a(f"s_cbranch_scc0 {L}")
        a.label(L + "_1")
    if not single:
        if not direct: a("s_mov_b64 exec, -2")
        a.label(L + "_2")
        a(f"buffer_load_dwordx2 v[{t}:{t+1}], v{vaddr}, s[32:35], 0 offen sc1")
        a("s_waitcnt vmcnt(0)")
        a(f"v_cmp_ne_u64 vcc, s[60:61], v[{t}:{t+1}]")
        a(f"s_cbranch_vccz {L}_ok")
        a("s_mov_b64 exec, vcc")
        a(f"s_sleep {sleep2}")
        a("s_sub_u32 s83, s83, 1")
        a(f"s_cbranch_scc0 {L}_2")
        a.label(L + "_ok")
    a("s_mov_b64 exec, -1")

LNWG = ["s2"]
XSWAP = int(os.environ.get("GU16", "1"))
def ln_issue(a):
    a(f"s_lshl_b32 s3, {LNWG[0]}, 3")
    a("v_lshrrev_b32 v3, 4, v0")
    a("v_add_u32 v3, s3, v3")
    a("v_mul_u32_u24 v3, 1280, v3")
    a("v_and_b32 v4, 15, v0")
    a("v_lshl_add_u32 v3, v4, 4, v3")
    srd(a, 36, S_X, 2621440)
    for i in range(5):
        a(f"buffer_load_dwordx4 v[{16+4*i}:{19+4*i}], v3, s[36:39], 0 offen offset:{256*i}")

def ln_addr(a):
    a("v_and_b32 v4, 3, v2")
    a("v_lshrrev_b32 v5, 2, v2")
    a("v_lshl_add_u32 v6, v4, 4, v5")
    a("v_lshlrev_b32 v6, 2, v6")
    a(f"s_lshl_b32 s3, {LNWG[0]}, 3")
    a("s_lshl_b32 s26, s25, 2")
    a("s_add_u32 s3, s3, s26")
    a("s_lshr_b32 s26, s3, 5")
    a("s_mul_i32 s26, s26, 40960")
    a("s_and_b32 s3, s3, 31")
    a("s_lshl_b32 s3, s3, 4")
    a("s_add_u32 s26, s26, s3")
    a("v_lshrrev_b32 v7, 1, v5")
    a("v_lshlrev_b32 v7, 10, v7")
    a("v_and_b32 v5, 1, v5")
    a("v_lshl_add_u32 v7, v5, 9, v7")
    a("v_lshl_add_u32 v7, v4, 4, v7")
    a("v_add_u32 v7, s26, v7")
    for i in range(5):
        a(f"s_mov_b32 s{40+i}, {WS_XN + 8192*i}")

def ln_body(a):
    ln_rows(a, 16, 40, 80, None, None)
    for i in range(20):
        a(f"ds_bpermute_b32 v{40+i}, v6, v{16+i}")

def ln_finish(a):
    ln_addr(a)
    a("s_waitcnt vmcnt(0)")
    stamp(a, 1)
    ln_body(a)
    ln_store(a)

def ln_stats(a):
    a(f"s_lshl_b32 s3, {LNWG[0]}, 3")
    a("s_lshl_b32 s45, s25, 2")
    a("s_add_u32 s3, s3, s45")
    a("s_lshr_b32 s45, s3, 7")
    a("s_lshl_b32 s45, s45, 10")
    a("s_and_b32 s3, s3, 127")
    a("s_lshl_b32 s3, s3, 2")
    a("s_add_u32 s45, s45, s3")
    a(f"s_add_u32 s45, s45, {WS_ST}")
    a("v_lshrrev_b32 v4, 4, v2")
    a("v_lshlrev_b32 v4, 2, v4")
    a("s_mov_b32 exec_lo, 0x00010001")
    a("s_mov_b32 exec_hi, 0x00010001")
    a(f"buffer_store_dword v84, v4, s[32:35], s45 offen{cfg.sc}")
    a(f"buffer_store_dword v80, v4, s[32:35], s45 offen offset:512{cfg.sc}")
    a("s_mov_b64 exec, -1")

def ln_store(a):
    if XSWAP:
        a("v_and_b32 v4, 4, v2")
        a("v_cmp_ne_u32 vcc, 0, v4")
    for i in range(5):
        a(f"s_waitcnt lgkmcnt({min(15, 16-4*i)})")
        r = 40 + 4 * i
        if XSWAP:
            if i == 0: a("s_nop 0")
            for j in range(4):
                a(f"v_cndmask_b32 v{60+4*i+j}, v{r+j}, v{r+(j^2)}, vcc")
            r = 60 + 4 * i
        a(f"buffer_store_dwordx4 v[{r}:{r+3}], v7, s[32:35], s{40+i} offen{cfg.sc}")

qkv_hook = None
attn_hook = None
attn_hook0 = None
def qkv_decode(a):
    a("s_and_b32 s24, s2, 7")
    a("s_lshr_b32 s26, s2, 3")
    LM = int(os.environ.get("QMAP", "2"))
    a(f"s_lshr_b32 s27, s24, {LM}")
    a(f"s_lshl_b32 s27, s27, {LM}")
    a(f"s_and_b32 s24, s24, {(1 << LM) - 1}")
    a("s_mul_i32 s24, s24, 30")
    a("s_add_u32 s24, s24, s26")
    a(f"s_and_b32 s3, s24, {(1 << LM) - 1}")
    a("s_add_u32 s27, s27, s3")
    a(f"s_lshr_b32 s47, s24, {LM}")
    a("s_lshl_b32 s46, s47, 3")
    a("s_add_u32 s46, s46, s27")
    a("s_lshl_b32 s26, s27, 3")
    a("s_add_u32 s26, s26, s25")
    a("s_cmp_ge_u32 s47, 10")
    a("s_cselect_b32 s24, 1, 0")
    a("s_cmp_ge_u32 s47, 20")
    a("s_cselect_b32 s24, 2, s24")
    a("s_mul_i32 s3, s24, 10")
    a("s_sub_u32 s27, s47, s3")

def qkv_wdma(a, j0=0, j1=20, setup=True):
    if not setup:
        for j in range(j0, j1):
            a(f"s_add_u32 m0, s42, {4096*j}")
            a(f"s_add_u32 s3, s41, {4*30720*j}")
            a("buffer_load_dwordx4 v4, s[28:31], s3 offen lds")
        return
    srd(a, 28, S_WQKV, 2457600)
    a("v_lshrrev_b32 v4, 3, v2")
    a("v_bfe_u32 v5, v2, 2, 1")
    a("v_bfe_u32 v6, v2, 4, 1")
    a("v_xor_b32 v5, v5, v6")
    a("v_lshlrev_b32 v5, 6, v5")
    a("v_and_b32 v6, 3, v2")
    a("v_lshl_add_u32 v5, v6, 4, v5")
    a("s_movk_i32 s3, 3840")
    a("v_mad_u32_u24 v4, v4, s3, v5")
    a("s_sub_u32 s3, s25, 4")
    a("s_lshl_b32 s41, s47, 7")
    a("s_mul_i32 s42, s3, 30720")
    a("s_add_u32 s41, s41, s42")
    a("s_lshl_b32 s42, s3, 10")
    for j in range(j0, j1):
        a(f"s_add_u32 m0, s42, {4096*j}")
        a(f"s_add_u32 s3, s41, {4*30720*j}")
        a("buffer_load_dwordx4 v4, s[28:31], s3 offen lds")

def qkv_uaddr(a, T0, T1, U0, U1):
    if XSWAP:
        a(f"v_lshl_add_u32 v{T0}, v7, 9, v{T0}")
    a(f"v_xor_b32 v{T1}, 64, v{T0}")
    a(f"v_xor_b32 v{U0}, 512, v{T0}")
    a(f"v_xor_b32 v{U1}, 512, v{T1}")

def qkv_main(a, gate=None):
    ACC, XF, WF, AD = 16, 48, 96, 112
    XD = 12
    T0, T1, U0, U1 = 4, 5, 124, 125
    vm = VM(a)
    a("s_mul_i32 s40, s26, 40960")
    a(f"s_add_u32 s40, s40, {WS_XN}")
    def xload(s):
        r = XF + 4 * (s % XD)
        vm.issue(f"buffer_load_dwordx4 v[{r}:{r+3}], v9, s[32:35], s40 offen offset:{1024*(s%4)}{cfg.sc}", ("X", s))
        if s % 4 == 3: a("s_add_u32 s40, s40, 4096")
    X0 = int(os.environ.get("QX0", "4"))
    a("v_bfe_u32 v6, v2, 2, 2")
    a("v_lshrrev_b32 v7, 5, v2")
    a("v_lshl_add_u32 v8, v7, 3, v6")
    a("v_lshlrev_b32 v8, 7, v8")
    a("v_bfe_u32 v10, v2, 4, 1")
    a("v_lshl_add_u32 v8, v10, 5, v8")
    a("v_lshrrev_b32 v6, 1, v6")
    a("v_lshl_add_u32 v8, v6, 6, v8")
    a("v_and_b32 v10, 31, v2")
    for i in range(32):
        a(f"v_mov_b32 v{ACC+i}, 0")
    a("s_cmp_eq_u32 s24, 2")
    a("s_cbranch_scc1 L_qkv_V")
    a("v_and_b32 v11, 1, v2")
    a("v_lshlrev_b32 v11, 4, v11")
    a("v_bfe_u32 v12, v2, 1, 1")
    a("v_lshl_add_u32 v11, v12, 3, v11")
    a(f"v_add_u32 v{T0}, v8, v11")
    qkv_uaddr(a, T0, T1, U0, U1)
    a("s_lshl_b32 s45, s26, 10")
    a(f"s_add_u32 s45, s45, {WS_QM}")
    a("s_lshl_b32 s43, s26, 8")
    a(f"s_add_u32 s43, s43, {WS_QR}")
    a("s_mov_b32 s44, 65536")
    a("s_mov_b32 s42, 16384")
    a(f"s_mov_b32 s48, {f2hex(QSCALE)}")
    a("s_cmp_eq_u32 s24, 0")
    a("s_cbranch_scc1 L_qkv_isq")
    a("s_mul_i32 s45, s26, 2560")
    a(f"s_add_u32 s45, s45, {WS_KV}")
    a("s_add_u32 s43, s45, 1024")
    a("s_mov_b32 s44, 163840")
    a("s_mov_b32 s42, 163840")
    a("s_mov_b32 s48, 1.0")
    a.label("L_qkv_isq")
    a("s_mov_b32 s49, s48")
    a("s_lshl_b32 s3, s27, 3")
    a("v_add_u32 v11, s3, v7")
    a("v_lshl_add_u32 v12, v10, 4, s45")
    a("v_lshl_add_u32 v13, v10, 3, s43")
    a(f"s_mov_b32 s50, {OOB}")
    a("s_mov_b32 s51, 0")
    for q in range(4):
        a(f"v_add_u32 v14, {2*q}, v11")
        a("v_mul_u32_u24 v15, 205, v14")
        a("v_lshrrev_b32 v15, 10, v15")
        a("v_mul_u32_u24 v3, 5, v15")
        a("v_sub_u32 v14, v14, v3")
        a("v_lshlrev_b32 v15, 1, v15")
        a("v_mul_lo_u32 v3, v15, s42")
        a(f"v_add_u32 v{AD+3*q+1}, v3, v13")
        a(f"v_add_u32 v{AD+3*q+2}, s42, v{AD+3*q+1}")
        a("v_cmp_lt_u32 vcc, 2, v14")
        a("v_subrev_u32 v3, 3, v14")
        a("s_nop 0")
        a("v_addc_co_u32 v15, s[52:53], 0, v15, vcc")
        a("v_cndmask_b32 v3, v14, v3, vcc")
        a("v_mul_lo_u32 v15, v15, s44")
        a("v_lshl_add_u32 v3, v3, 9, v12")
        a("v_add_u32 v3, v3, v15")
        a("v_cmp_eq_u32 vcc, 2, v14")
        a("v_mov_b32 v15, s50")
        a("s_cmp_lg_u64 vcc, 0")
        a(f"s_cselect_b32 s3, {1 << q}, 0")
        a("s_or_b32 s51, s51, s3")
        a(f"v_cndmask_b32 v{AD+3*q}, v3, v15, vcc")
        a(f"v_cndmask_b32 v{AD+3*q+1}, v15, v{AD+3*q+1}, vcc")
        a(f"v_cndmask_b32 v{AD+3*q+2}, v15, v{AD+3*q+2}, vcc")
    def loop(vtype):
        vq = list(vm.q)
        if gate: gate()
        for s in range(X0): xload(s)
        def reads(s):
            w = WF + 8 * (s % 2)
            if s == 32:
                for r in (T0, T1, U0, U1):
                    a(f"v_add_u32 v{r}, 0x10000, v{r}")
            for ft in range(2):
                for u in range(2):
                    off = (16 * s * 128) % 65536
                    a(f"ds_read_b64_tr_b16 v[{w+4*ft+2*u}:{w+4*ft+2*u+1}], v{(U0 if u else T0)+ft} offset:{off}")
        reads(0)
        nx = X0
        for s in range(40):
            if s + 1 < 40:
                reads(s + 1)
                vm.wait(lambda t: t == ("X", s), "lgkmcnt(4)")
            else:
                vm.wait(lambda t: t == ("X", s), "lgkmcnt(0)")
            if s == 0 and not os.environ.get('LNSTAMP'): stamp(a, 5)
            w = WF + 8 * (s % 2); x = XF + 4 * (s % XD)
            for ft in range(2):
                W = f"v[{w+4*ft}:{w+4*ft+3}]"; X = f"v[{x}:{x+3}]"
                A, B = (X, W) if vtype else (W, X)
                D = f"v[{ACC+16*ft}:{ACC+16*ft+15}]"
                a(f"v_mfma_f32_32x32x16_bf16 {D}, {A}, {B}, {D}")
            for _ in range(2):
                if nx <= s + XD and nx < 40:
                    xload(nx); nx += 1
        vm.q = vq
        stamp(a, 6)
        if qkv_hook: qkv_hook()
    loop(False)
    a("s_nop 10")
    for q in range(4):
        r = ACC + 8 * q
        for i in range(0, 8, 2):
            a(f"v_pk_mul_f32 v[{r+i}:{r+i+1}], v[{r+i}:{r+i+1}], s[48:49]")
        for i in range(4):
            a(f"v_cvt_pk_bf16_f32 v{r+i}, v{r+2*i}, v{r+2*i+1}")
        a(f"buffer_store_dwordx4 v[{r}:{r+3}], v{AD+3*q}, s[32:35], 0 offen{cfg.sc}")
        L = uid("L_qr")
        a(f"s_bitcmp0_b32 s51, {q}")
        a(f"s_cbranch_scc1 {L}")
        a(f"buffer_store_dwordx2 v[{r}:{r+1}], v{AD+3*q+1}, s[32:35], 0 offen{cfg.sc}")
        a(f"buffer_store_dwordx2 v[{r+2}:{r+3}], v{AD+3*q+2}, s[32:35], 0 offen{cfg.sc}")
        a.label(L)
    a("s_branch L_qkv_done")
    a.label("L_qkv_V")
    a("v_and_b32 v11, 3, v2")
    a(f"v_lshl_add_u32 v{T0}, v11, 3, v8")
    qkv_uaddr(a, T0, T1, U0, U1)
    a("s_mul_i32 s45, s26, 2560")
    a(f"s_add_u32 s45, s45, {WS_KV + 1280}")
    a("s_lshl_b32 s3, s27, 6")
    a("v_add_u32 v10, s3, v10")
    a("v_mul_u32_u24 v11, 320, v7")
    a("v_add_u32 v11, s45, v11")
    a("s_mov_b32 s44, 163840")
    for ft in range(2):
        a(f"v_add_u32 v13, {32*ft}, v10")
        a("v_mul_u32_u24 v14, 3277, v13")
        a("v_lshrrev_b32 v14, 16, v14")
        a("v_mul_u32_u24 v15, 20, v14")
        a("v_sub_u32 v15, v13, v15")
        a("v_lshl_add_u32 v3, v15, 4, v11")
        a("v_mul_lo_u32 v14, v14, s44")
        a(f"v_add_u32 v{AD+ft}, v3, v14")
    loop(True)
    a("s_nop 10")
    for ft in range(2):
        for gm in range(2):
            r = ACC + 16 * ft + 8 * gm
            for i in range(4):
                a(f"v_cvt_pk_bf16_f32 v{r+i}, v{r+2*i}, v{r+2*i+1}")
            a(f"buffer_store_dwordx4 v[{r}:{r+3}], v{AD+ft}, s[32:35], 0 offen offset:{640*gm}{cfg.sc}")
    a.label("L_qkv_done")
    stamp(a, 7)

CHUNK = 20480
NBUF = 3
DELTA = 96.0
S0, S1, P, O0, O1, Q0, Q1, KA, KB, VA, VB = 16, 32, 48, 56, 72, 88, 94, 100, 106, 112, 120
AK, AKR, AV = 3, 4, 5

def rowmax16(a, S, d, t):
    a(f"v_max3_f32 v{d}, v{S}, v{S+1}, v{S+2}")
    a(f"v_max3_f32 v{t}, v{S+3}, v{S+4}, v{S+5}")
    a(f"v_max3_f32 v{d}, v{d}, v{S+6}, v{S+7}")
    a(f"v_max3_f32 v{t}, v{t}, v{S+8}, v{S+9}")
    a(f"v_max3_f32 v{d}, v{d}, v{S+10}, v{S+11}")
    a(f"v_max3_f32 v{t}, v{t}, v{S+12}, v{S+13}")
    a(f"v_max3_f32 v{d}, v{d}, v{S+14}, v{S+15}")
    a(f"v_max_f32 v{d}, v{d}, v{t}")
    a(f"v_mov_b32 v{t}, v{d}")
    a("s_nop 1")
    a(f"v_permlane32_swap_b32 v{d}, v{t}")
    a(f"v_max_f32 v{d}, v{d}, v{t}")

def attn_decode(a):
    a("s_and_b32 s24, s2, 7")
    a("s_lshr_b32 s27, s2, 3")
    a("s_lshl_b32 s24, s24, 2")
    a("s_lshr_b32 s3, s27, 3")
    a("s_add_u32 s24, s24, s3")
    a("s_and_b32 s27, s27, 7")

def attn_flag_addr(a, vd):
    a("s_mul_i32 s3, s24, 20")
    a("s_lshr_b32 s26, s3, 6")
    a("s_add_u32 s3, s3, 19")
    a("s_lshr_b32 s3, s3, 6")
    a("s_sub_u32 s3, s3, s26")
    a("v_min_u32 v10, 47, v2")
    a("v_lshrrev_b32 v11, 4, v10")
    a("v_mul_u32_u24 v11, 10, v11")
    a("v_bfe_u32 v12, v10, 3, 1")
    a("v_mul_lo_u32 v12, v12, s3")
    a("v_add3_u32 v11, v11, v12, s26")
    a("v_and_b32 v12, 7, v10")
    a("v_mov_b32 v13, s27")
    a("v_cmp_gt_u32 vcc, 16, v10")
    a("s_nop 1")
    a("v_cndmask_b32 v12, v12, v13, vcc")
    a(f"v_lshl_add_u32 v{vd}, v11, 3, v12")
    a(f"v_lshlrev_b32 v{vd}, {QSH}, v{vd}")
    a(f"v_add_u32 v{vd}, {F_QKV}, v{vd}")

PA = [int(x) for x in os.environ.get("PA", "2,3,1").split(",")]
JLOW = int(os.environ.get("JLOW", "3"))
def attn_main(a, prio=True):
    sc = cfg.sc
    a("s_and_b32 s46, s25, 3")
    a("s_lshr_b32 s47, s25, 2")
    a("s_lshl_b32 s26, s27, 3")
    a("s_lshl_b32 s3, s46, 1")
    a("s_add_u32 s26, s26, s3")
    a("s_lshl_b32 s3, s24, 6")
    a("s_add_u32 s3, s3, s26")
    a("s_lshl_b32 s40, s3, 10")
    a(f"s_add_u32 s40, s40, {WS_QM}")
    a("s_lshl_b32 s41, s3, 8")
    a(f"s_add_u32 s41, s41, {WS_QR}")
    a("s_mul_i32 s42, s24, 163840")
    a(f"s_add_u32 s42, s42, {WS_KV}")
    a("s_mul_i32 s3, s25, 5120")
    a("s_add_u32 s43, s42, s3")
    a("s_mov_b32 s44, s3")
    def dma_chunk():
        a("s_mov_b32 m0, s44")
        a("s_add_u32 s50, s43, 4096")
        for i in range(4):
            off = f" offset:{1024*i}" if i else ""
            a(f"buffer_load_dwordx4 v9, s[32:35], s43 offen{off}{sc} lds")
        a("s_add_u32 m0, s44, 4096")
        a(f"s_add_u32 s43, s43, {CHUNK}")
        a(f"buffer_load_dwordx4 v9, s[32:35], s50 offen{sc} lds")
        a(f"s_add_u32 s44, s44, {CHUNK}")
    a("v_and_b32 v6, 31, v2")
    a(f"v_lshlrev_b32 v{AKR}, 3, v6")
    a(f"buffer_load_dwordx4 v[{Q0}:{Q0+3}], v9, s[32:35], s40 offen{sc}")
    a(f"buffer_load_dwordx4 v[{Q1}:{Q1+3}], v9, s[32:35], s40 offen offset:1024{sc}")
    for r in (Q0 + 4, Q0 + 5, Q1 + 4, Q1 + 5, KA + 5, KB + 5):
        a(f"v_mov_b32 v{r}, 0")
    a("s_mov_b32 exec_hi, 0")
    a(f"buffer_load_dwordx2 v[{Q0+4}:{Q0+5}], v{AKR}, s[32:35], s41 offen{sc}")
    a(f"buffer_load_dwordx2 v[{Q1+4}:{Q1+5}], v{AKR}, s[32:35], s41 offen offset:256{sc}")
    a("s_mov_b32 exec_hi, -1")
    a("s_cmp_ge_u32 s25, 4")
    a("s_cbranch_scc1 L_at_nodma0")
    dma_chunk()
    dma_chunk()
    dma_chunk()
    a(f"s_sub_u32 s44, s44, {NBUF*CHUNK}")
    a.label("L_at_nodma0")
    if attn_hook0: attn_hook0()
    a("v_lshrrev_b32 v7, 5, v2")
    a(f"v_mul_u32_u24 v{AV}, 320, v7")
    a(f"v_lshl_add_u32 v{AV}, v6, 4, v{AV}")
    a("s_mov_b32 s30, 0x000fffff")
    a("s_mov_b32 s31, 0x000fffff")
    a(f"v_mov_b32 v{KA+4}, 0x3f80")
    a(f"v_mov_b32 v{KB+4}, 0x3f80")
    a("v_cmp_eq_u32 vcc, 20, v6")
    a("v_mov_b32 v8, 0x3f803f80")
    a("s_nop 0")
    a("v_cndmask_b32 v8, 0, v8, vcc")
    for i in range(16):
        a(f"v_mov_b32 v{VA+i}, v8")
    for i in range(4, 8):
        a(f"v_mov_b32 v{P+i}, 0")
    a("s_cmp_ge_u32 s25, 4")
    a("s_cbranch_scc1 L_at_w0")
    a("s_waitcnt vmcnt(10)")
    a("s_branch L_at_w1")
    a.label("L_at_w0")
    a("s_waitcnt vmcnt(0)")
    a.label("L_at_w1")
    a("s_barrier")
    if not os.environ.get("LNSTAMP"): stamp(a, 10)
    if attn_hook: attn_hook()
    a("s_mul_i32 s3, s47, 10240")
    a("s_xor_b32 s50, s3, 10240")
    a("v_add_u32 v10, s50, v9")
    a(f"v_add_u32 v11, s50, v{AKR}")
    a(f"v_add_u32 v{AK}, s3, v9")
    a(f"v_add_u32 v{AKR}, s3, v{AKR}")
    a(f"v_add_u32 v{AV}, s3, v{AV}")
    a(f"ds_read_b128 v[{KB}:{KB+3}], v10")
    a(f"ds_read_b128 v[{KA}:{KA+3}], v{AK}")
    a("s_mov_b32 exec_hi, 0")
    a(f"ds_read_b64 v[{KB+4}:{KB+5}], v11 offset:1024")
    a(f"ds_read_b64 v[{KA+4}:{KA+5}], v{AKR} offset:1024")
    a("s_mov_b64 exec, s[30:31]")
    a(f"ds_read_b128 v[{VA}:{VA+3}], v{AV} offset:1280")
    a(f"ds_read_b128 v[{VA+4}:{VA+7}], v{AV} offset:1920")
    a("s_mov_b64 exec, -1")
    a("s_waitcnt lgkmcnt(2)")
    def qk(S, K, Q):
        return (f"v_mfma_f32_32x32x16_bf16 v[{S}:{S+15}], v[{K}:{K+3}], v[{Q}:{Q+3}], 0",
                f"v_mfma_f32_32x32x8_bf16 v[{S}:{S+15}], v[{K+4}:{K+5}], v[{Q+4}:{Q+5}], v[{S}:{S+15}]")
    for x in qk(S0, KB, Q0) + qk(S1, KA, Q0) + qk(O0, KB, Q1) + qk(O1, KA, Q1): a(x)
    a("s_nop 4")
    def max32(Sa, d, t):
        a(f"v_max3_f32 v{d}, v{Sa}, v{Sa+1}, v{Sa+2}")
        a(f"v_max3_f32 v{t}, v{Sa+3}, v{Sa+4}, v{Sa+5}")
        k = 0
        for i in range(6, 32, 2):
            r = d if k % 2 == 0 else t
            a(f"v_max3_f32 v{r}, v{r}, v{Sa+i}, v{Sa+i+1}")
            k += 1
        a(f"v_max_f32 v{d}, v{d}, v{t}")
        a(f"v_mov_b32 v{t}, v{d}")
        a("s_nop 1")
        a(f"v_permlane32_swap_b32 v{d}, v{t}")
        a(f"v_max_f32 v{d}, v{d}, v{t}")
        a(f"v_add_f32 v{d}, {f2hex(DELTA)}, v{d}")
        a(f"v_sub_f32 v{d}, 0, v{d}")
        a(f"v_cvt_pk_bf16_f32 v{d}, v{d}, 0")
    a("v_cmp_lt_u32 vcc, 31, v2")
    max32(S0, 10, 11)
    a(f"v_cndmask_b32 v{Q0+4}, v{Q0+4}, v10, vcc")
    max32(O0, 12, 13)
    for x in qk(S0, KA, Q0): a(x)
    a(f"v_cndmask_b32 v{Q1+4}, v{Q1+4}, v12, vcc")
    for i in range(32):
        a(f"v_mov_b32 v{O0+i}, 0")
    a("s_waitcnt lgkmcnt(0)")
    a("s_mov_b32 s45, 8")
    a(f"s_mov_b32 s48, {CHUNK}")
    a("s_mov_b32 s49, 0")
    a(".p2align 6")
    a.label("L_at_loop")
    if PROFILE:
        a("s_memtime s[84:85]")
        a("s_memrealtime s[86:87]")
        a("s_waitcnt lgkmcnt(0)")
        a("s_sub_u32 m0, 8, s45")
        a("s_nop 0")
        a("v_writelane_b32 v15, s84, m0")
        a("s_add_u32 m0, m0, 8")
        a("s_nop 0")
        a("v_writelane_b32 v15, s86, m0")
    def half(Sc, qks, pvp, pv1, mid=()):
        e = lambda i: f"v_exp_f32 v{Sc+i}, v{Sc+i}"
        c = lambda i: f"v_cvt_pk_bf16_f32 v{P+i}, v{Sc+2*i}, v{Sc+2*i+1}"
        seq = [qks[0], e(0), e(1), e(2), e(3), c(0), c(1), pvp] + list(mid) + [e(4), e(5), e(6), e(7), c(2), c(3), qks[1],
               e(8), e(9), e(10), e(11), e(12), pv1, e(13), e(14), e(15), c(4), c(5), c(6), c(7)]
        ORD = os.environ.get("ORD", "0")
        if ORD == "1":
            seq = [qks[0], e(0), e(1), e(2), e(3), pvp] + list(mid) + [e(4), c(0), e(5), c(1), e(6), e(7), qks[1], e(8), c(2), c(3), e(9), e(10),
                   e(11), pv1, e(12), c(4), e(13), c(5), e(14), e(15), c(6), c(7)]
        if ORD == "2":
            seq = [e(0), qks[0], e(1), e(2), e(3), c(0), e(4), pvp, c(1)] + list(mid) + [e(5), e(6), e(7), c(2), e(8), qks[1], c(3), e(9), e(10),
                   e(11), c(4), e(12), pv1, c(5), e(13), e(14), e(15), c(6), c(7)]
        if ORD == "3":
            seq = [qks[0]] + [e(i) for i in range(4)] + [pvp] + list(mid) + [e(i) for i in range(4, 8)] + [qks[1], c(0), c(1), c(2), c(3), e(8), e(9), pv1] + \
                  [e(i) for i in range(10, 16)] + [c(4), c(5), c(6), c(7)]
        if "noqk2" in os.environ.get("ABL", ""): seq = [x for x in seq if x != qks[1]]
        if "nokv" in os.environ.get("ABL", ""): seq = [x for x in seq if not x.startswith("ds_read")]
        if "nopv" in os.environ.get("ABL", ""): seq = [x for x in seq if x not in (pvp, pv1)]
        for x in seq: a(x)
    def pv(Oo, V, Pp):
        return f"v_mfma_f32_32x32x16_bf16 v[{Oo}:{Oo+15}], v[{V}:{V+3}], v[{Pp}:{Pp+3}], v[{Oo}:{Oo+15}]"
    for j in range(4):
        Kc, Kn = (KA, KB) if j % 2 == 0 else (KB, KA)
        Vc, Vn = (VA, VB) if j % 2 == 0 else (VB, VA)
        if j == 0 and prio:
            a("s_cmp_ge_u32 s25, 4")
            a("s_cbranch_scc1 L_at_y0")
            a(f"s_setprio {PA[0]}")
            a("s_branch L_at_y1")
            a.label("L_at_y0")
            a(f"s_setprio {PA[1]}")
            a.label("L_at_y1")
        if j == JLOW and JLOW != 3 and prio:
            a("s_cmp_lt_u32 s25, 4")
            a("s_cbranch_scc1 L_at_z")
            a(f"s_setprio {PA[2]}")
            a.label("L_at_z")
        if j == 3:
            a("s_cmp_eq_u32 s45, 8")
            a("s_cbranch_scc1 L_at_first")
            a("s_waitcnt vmcnt(0)")
            a.label("L_at_first")
            a("s_waitcnt vmcnt(5)")
            a("s_barrier")
            a("s_sub_u32 s3, s48, s49")
            a(f"v_add_u32 v{AK}, s3, v{AK}")
            a(f"v_add_u32 v{AKR}, s3, v{AKR}")
            a(f"v_add_u32 v{AV}, s3, v{AV}")
            a("s_mov_b32 s49, s48")
            a(f"s_add_u32 s48, s48, {CHUNK}")
            a(f"s_cmp_ge_u32 s48, {NBUF*CHUNK}")
            a("s_cselect_b32 s48, 0, s48")
            a("s_cmp_ge_u32 s25, 4")
            a("s_cbranch_scc1 L_at_young")
            a("s_sub_u32 s50, s45, 3")
            a("s_cmp_ge_u32 s50, 5")
            a("s_cbranch_scc1 L_at_nodma1")
            dma_chunk()
            a(f"s_cmp_ge_u32 s44, {NBUF*CHUNK}")
            a(f"s_cselect_b32 s50, {NBUF*CHUNK}, 0")
            a("s_sub_u32 s44, s44, s50")
            a("s_branch L_at_nodma1")
            a.label("L_at_young")
            if prio and JLOW == 3: a(f"s_setprio {PA[2]}")
            a.label("L_at_nodma1")
        o = 2560 * ((j + 1) % 4)
        rd = [f"ds_read_b128 v[{Kn}:{Kn+3}], v{AK} offset:{o}",
              "s_mov_b32 exec_hi, 0",
              f"ds_read_b64 v[{Kn+4}:{Kn+5}], v{AKR} offset:{o+1024}",
              "s_mov_b64 exec, s[30:31]",
              f"ds_read_b128 v[{Vn}:{Vn+3}], v{AV} offset:{o+1280}",
              f"ds_read_b128 v[{Vn+4}:{Vn+7}], v{AV} offset:{o+1920}",
              "s_mov_b64 exec, -1"]
        half(S0, qk(S1, Kc, Q1), pv(O1, Vn + 4, P + 4), pv(O0, Vc, P), rd)
        a("s_waitcnt lgkmcnt(0)")
        half(S1, qk(S0, Kn, Q0), pv(O0, Vc + 4, P + 4), pv(O1, Vc, P))
    a("s_sub_u32 s45, s45, 1")
    a("s_cmp_lg_u32 s45, 0")
    a("s_cbranch_scc1 L_at_loop")
    a(pv(O1, VB + 4, P + 4))
    if prio: a("s_setprio 3")
    stamp(a, 11)
    a("s_lshl_b32 s3, s46, 12")
    a("v_add_u32 v6, s3, v9")
    a(f"v_add_u32 v7, {NBUF*CHUNK}, v6")
    a("s_cmp_eq_u32 s47, 0")
    a("s_cbranch_scc1 L_at_x0")
    for i in range(3):
        a(f"ds_write_b128 v7, v[{O0+4*i}:{O0+4*i+3}] offset:{1024*i}")
    a("v_mov_b32 v7, v6")
    for i in range(6):
        a(f"v_mov_b32 v{Q0+i}, v{Q1+i}")
    a("s_nop 0")
    for i in range(12):
        a(f"v_mov_b32 v{O0+i}, v{O1+i}")
    a("s_branch L_at_x1")
    a.label("L_at_x0")
    a("s_nop 6")
    for i in range(3):
        a(f"ds_write_b128 v6, v[{O1+4*i}:{O1+4*i+3}] offset:{1024*i}")
    a.label("L_at_x1")
    a("s_add_u32 s26, s26, s47")
    a("s_waitcnt lgkmcnt(0)")
    if os.environ.get("TAILSTAMP"): stamp(a, 1)
    a("s_barrier")
    if os.environ.get("TAILSTAMP"): stamp(a, 2)
    for i in range(3):
        a(f"ds_read_b128 v[{S1+4*i}:{S1+4*i+3}], v7 offset:{1024*i}")
    a("s_mov_b32 s51, 0")
    a(f"s_mov_b32 s54, {f2hex(2.0**-100)}")
    a(f"s_mov_b32 s55, {f2hex(2.0**122)}")
    a("s_mov_b32 s58, 0x7f800000")
    a("s_waitcnt lgkmcnt(0)")
    for i in range(0, 12, 2):
        a(f"v_pk_add_f32 v[{O0+i}:{O0+i+1}], v[{O0+i}:{O0+i+1}], v[{S1+i}:{S1+i+1}]")
    a.label("L_at_fin")
    a(f"v_mov_b32 v8, v{O0+8}")
    a(f"v_mov_b32 v10, v{O0+8}")
    a("s_nop 1")
    a("v_permlane32_swap_b32 v8, v10")
    a("v_rcp_f32 v11, v10")
    a("s_nop 0")
    for i in range(12):
        a(f"v_mul_f32 v{S0+i}, v11, v{O0+i}")
    a.label("L_at_store")
    if os.environ.get("TAILSTAMP"): stamp(a, 3)
    for i in range(6):
        a(f"v_cvt_pk_bf16_f32 v{P+i}, v{S0+2*i}, v{S0+2*i+1}")
    a("s_mul_i32 s3, s26, 40")
    a("s_add_u32 s50, s3, s24")
    a("s_lshl_b32 s50, s50, 10")
    a(f"s_add_u32 s50, s50, {WS_O}")
    a(f"buffer_store_dwordx4 v[{P}:{P+3}], v9, s[32:35], s50 offen{sc}")
    a("s_lshr_b32 s50, s24, 2")
    a("s_add_u32 s50, s50, s3")
    a("s_add_u32 s50, s50, 32")
    a("s_lshl_b32 s50, s50, 10")
    a("s_and_b32 s3, s24, 1")
    a("s_lshl_b32 s3, s3, 9")
    a("s_add_u32 s50, s50, s3")
    a("s_bfe_u32 s3, s24, 0x10001")
    a("s_lshl_b32 s3, s3, 3")
    a("s_add_u32 s50, s50, s3")
    a(f"s_add_u32 s50, s50, {WS_O}")
    a("s_mov_b32 exec_hi, 0")
    a(f"buffer_store_dwordx2 v[{P+4}:{P+5}], v9, s[32:35], s50 offen{sc}")
    a("s_mov_b32 exec_hi, -1")
    if os.environ.get("TAILSTAMP"): stamp(a, 4)
    a("s_cmp_eq_u32 s51, 1")
    a("s_cbranch_scc1 L_at_done")
    a(f"v_add_f32 v12, |v{S0}|, |v{S0+1}|")
    for i in range(2, 8):
        a(f"v_add_f32 v12, |v{S0+i}|, v12")
    a(f"v_add_f32 v13, |v{S0+8}|, |v{S0+9}|")
    a(f"v_add_f32 v13, |v{S0+10}|, v13")
    a(f"v_add_f32 v13, |v{S0+11}|, v13")
    a("v_cmp_gt_u32 vcc, 32, v2")
    a("s_nop 1")
    a("v_cndmask_b32 v13, 0, v13, vcc")
    a("v_add_f32 v12, v12, v13")
    a("v_cmp_gt_f32 s[52:53], v10, s54")
    a("v_cmp_lt_f32 s[56:57], v10, s55")
    a("v_cmp_lt_f32 vcc, v12, s58")
    a("s_and_b64 s[52:53], s[52:53], s[56:57]")
    a("s_and_b64 s[52:53], s[52:53], vcc")
    a("s_cmp_eq_u64 s[52:53], exec")
    if not os.environ.get("ABL", ""): a("s_cbranch_scc0 L_at_slow")
    a("s_branch L_at_done")
    NM = O1
    a.label("L_at_slow")
    a("s_waitcnt vmcnt(0)")
    a("v_and_b32 v6, 31, v2")
    a("v_lshlrev_b32 v4, 3, v6")
    a("v_lshrrev_b32 v7, 5, v2")
    a("v_mul_u32_u24 v5, 320, v7")
    a("v_lshl_add_u32 v5, v6, 4, v5")
    a("v_cmp_gt_u32 vcc, 32, v2")
    a("v_mov_b32 v14, 0xff800000")
    a("s_mov_b32 s50, s42")
    a(f"v_cndmask_b32 v{Q0+4}, 0, v{Q0+4}, vcc")
    a("s_mov_b32 s45, 64")
    a.label("L_at_slow1")
    a(f"buffer_load_dwordx4 v[{KA}:{KA+3}], v9, s[32:35], s50 offen{sc}")
    a(f"buffer_load_dwordx2 v[{KA+4}:{KA+5}], v4, s[32:35], s50 offen offset:1024{sc}")
    a("s_waitcnt vmcnt(0)")
    for x in qk(S0, KA, Q0): a(x)
    a("s_nop 11")
    rowmax16(a, S0, 8, 10)
    a("v_max_f32 v14, v14, v8")
    a("s_add_u32 s50, s50, 2560")
    a("s_sub_u32 s45, s45, 1")
    a("s_cmp_lg_u32 s45, 0")
    a("s_cbranch_scc1 L_at_slow1")
    a("v_sub_f32 v8, 0, v14")
    for i in range(16):
        a(f"v_mov_b32 v{NM+i}, v8")
        a(f"v_mov_b32 v{O0+i}, 0")
    a("s_mov_b32 s50, s42")
    a("s_mov_b32 s45, 64")
    a.label("L_at_slow2")
    a(f"buffer_load_dwordx4 v[{KA}:{KA+3}], v9, s[32:35], s50 offen{sc}")
    a(f"buffer_load_dwordx2 v[{KA+4}:{KA+5}], v4, s[32:35], s50 offen offset:1024{sc}")
    a("s_mov_b64 exec, s[30:31]")
    a(f"buffer_load_dwordx4 v[{VA}:{VA+3}], v5, s[32:35], s50 offen offset:1280{sc}")
    a(f"buffer_load_dwordx4 v[{VA+4}:{VA+7}], v5, s[32:35], s50 offen offset:1920{sc}")
    a("s_mov_b64 exec, -1")
    a("s_waitcnt vmcnt(0)")
    a(f"v_mfma_f32_32x32x16_bf16 v[{S0}:{S0+15}], v[{KA}:{KA+3}], v[{Q0}:{Q0+3}], v[{NM}:{NM+15}]")
    a(f"v_mfma_f32_32x32x8_bf16 v[{S0}:{S0+15}], v[{KA+4}:{KA+5}], v[{Q0+4}:{Q0+5}], v[{S0}:{S0+15}]")
    a("s_nop 11")
    for i in range(16):
        a(f"v_exp_f32 v{S0+i}, v{S0+i}")
    a("s_nop 0")
    for i in range(8):
        a(f"v_cvt_pk_bf16_f32 v{P+i}, v{S0+2*i}, v{S0+2*i+1}")
    a("s_nop 1")
    a(pv(O0, VA, P))
    a(pv(O0, VA + 4, P + 4))
    a("s_add_u32 s50, s50, 2560")
    a("s_sub_u32 s45, s45, 1")
    a("s_cmp_lg_u32 s45, 0")
    a("s_cbranch_scc1 L_at_slow2")
    a("s_mov_b32 s51, 1")
    a("s_nop 10")
    a("s_branch L_at_fin")
    a.label("L_at_done")

GU_BUF = 24832
GU_UP = 12416
def gu_decode(a):
    a("s_sub_u32 s3, s2, 256")
    a("s_and_b32 s24, s3, 7")
    a("s_lshr_b32 s26, s3, 3")
    a("s_lshr_b32 s27, s24, 2")
    a("s_lshl_b32 s27, s27, 2")
    a("s_and_b32 s3, s26, 3")
    a("s_add_u32 s27, s27, s3")
    a("s_and_b32 s24, s24, 3")
    a("s_lshl_b32 s24, s24, 3")
    a("s_lshr_b32 s26, s26, 2")
    a("s_add_u32 s24, s24, s26")
    a("s_lshl_b32 s26, s27, 3")
    a("s_add_u32 s26, s26, s25")

class GU:
    ACC, XF, WF, XD = 16, 64, 96, int(os.environ.get("GXD", "8"))
    def __init__(self, a):
        self.a = a; self.vm = VM(a)
    def setup(self):
        a = self.a
        a("s_mul_i32 s40, s26, 40960")
        a(f"s_add_u32 s40, s40, {WS_XN}")
        a("s_mul_i32 s41, s24, 96")
        a("s_and_b32 s3, s25, 3")
        a("s_mul_i32 s42, s3, 3072")
        a("s_cmp_ge_u32 s25, 4")
        a(f"s_cselect_b32 s43, {GU_UP}, 0")
        a(f"s_cselect_b32 s28, s{S_WU}, s{S_WG}")
        a(f"s_cselect_b32 s29, s{S_WU+1}, s{S_WG+1}")
        a("s_mov_b32 s30, 1966080")
        a("s_mov_b32 s31, 0x00020000")
        a("s_add_u32 s42, s42, s43")
        a("s_mul_i32 s3, s3, 192")
        a("s_movk_i32 s43, 3072")
        for i in range(3):
            a(f"v_add_u32 v8, s3, v2")
            if i: a(f"v_add_u32 v8, {64*i}, v8")
            a("v_mul_u32_u24 v10, 10923, v8")
            a("v_lshrrev_b32 v10, 16, v10")
            a("v_mul_u32_u24 v11, 6, v10")
            a("v_sub_u32 v11, v8, v11")
            a("v_lshlrev_b32 v11, 4, v11")
            a(f"v_mad_u32_u24 v{4+i}, v10, s43, v11")
        a("v_bfe_u32 v8, v2, 2, 2")
        a("v_lshrrev_b32 v10, 5, v2")
        a("v_lshl_add_u32 v8, v10, 3, v8")
        a("v_mul_u32_u24 v8, 96, v8")
        a("v_and_b32 v10, 3, v2")
        a("v_lshl_add_u32 v8, v10, 3, v8")
        a("v_bfe_u32 v10, v2, 4, 1")
        a(f"v_mul_u32_u24 v10, {GU_UP}, v10")
        a("v_add_u32 v7, v8, v10")
        a(f"v_add_u32 v8, {2*GU_BUF}, v7")
        for i in range(48):
            a(f"v_mov_b32 v{self.ACC+i}, 0")
    def dma_stage(self, st):
        a = self.a
        for i in range(3):
            a(f"s_add_u32 m0, s42, {(st % 3) * GU_BUF + 1024 * i}")
            a("s_nop 0")
            self.vm.issue(f"buffer_load_dwordx4 v{4+i}, s[28:31], s41 offen lds", ("W", st))
        a(f"s_add_u32 s41, s41, {128*3072}")
    def xload(self, s):
        r = self.XF + 4 * (s % self.XD)
        self.vm.issue(f"buffer_load_dwordx4 v[{r}:{r+3}], v9, s[32:35], s40 offen offset:{1024*(s%4)}{cfg.sc}", ("X", s))
        if s % 4 == 3: self.a("s_add_u32 s40, s40, 4096")
    def main(self, pre_dma, hook=None):
        a, vm, ACC, XF, WF, XD = self.a, self.vm, self.ACC, self.XF, self.WF, self.XD
        if pre_dma < 1: self.dma_stage(0)
        G0 = int(os.environ.get("G0", "4"))
        for s in range(G0): self.xload(s)
        a("s_barrier")
        for s in range(G0, XD): self.xload(s)
        if pre_dma < 2: self.dma_stage(1)
        nx = [XD]
        def reads(s):
            st, sp = s // 8, s % 8
            w = WF + 12 * (s % 2)
            buf = st % 3
            base = "v8" if buf == 2 else "v7"
            bo = 0 if buf == 2 else buf * GU_BUF
            AB = os.environ.get("ABL", "")
            for ft in range(3):
                if "b128" in AB and s > 1:
                    a(f"ds_read_b128 v[{w+4*ft}:{w+4*ft+3}], v9 offset:{bo + (sp*3+ft)*1024}")
                    a("s_nop 0") if False else None
                    continue
                for u in range(2):
                    if "notr" in AB and s > 1: continue
                    a(f"ds_read_b64_tr_b16 v[{w+4*ft+2*u}:{w+4*ft+2*u+1}], {base} offset:{bo + (16*sp+4*u)*96 + 32*ft}")
        def pre(s):
            if s % 8 == 0:
                st = s // 8
                vm.wait(lambda t: t == ("W", st), "lgkmcnt(0)" if s else "")
                if os.environ.get("GSTAMP") and st == 0: stamp(a, 12)
                a("s_barrier")
                if st in (0, 2, 4): stamp(a, 3 + st // 2)
                if st >= 1 and st + 2 < 5:
                    self.dma_stage(st + 2)
        pre(0); reads(0)
        for s in range(40):
            if s + 1 < 40:
                pre(s + 1); reads(s + 1)
                vm.wait(lambda t: t == ("X", s), "lgkmcnt(3)" if "b128" in os.environ.get("ABL", "") and s > 0 else "lgkmcnt(6)")
            else:
                vm.wait(lambda t: t == ("X", s), "lgkmcnt(0)")
            w = WF + 12 * (s % 2)
            x = XF + 4 * (s % XD)
            for ft in range(3):
                D = f"v[{ACC+16*ft}:{ACC+16*ft+15}]"
                if "m16" in os.environ.get("ABL", ""):
                    for q in range(2):
                        d = ACC + 16 * ft + 8 * q + 4 * (s % 2)
                        a(f"v_mfma_f32_16x16x32_bf16 v[{d}:{d+3}], v[{w+4*ft}:{w+4*ft+3}], v[{x}:{x+3}], v[{d}:{d+3}]")
                else:
                    a(f"v_mfma_f32_32x32x16_bf16 {D}, v[{w+4*ft}:{w+4*ft+3}], v[{x}:{x+3}], {D}")
            for _ in range(2):
                if nx[0] <= s + XD and nx[0] < 40:
                    self.xload(nx[0]); nx[0] += 1
            if s == 2 and pre_dma < 3: self.dma_stage(2)
            if s == 6 and hook: hook()
        stamp(a, 6)
        a("s_setprio 3")
        a("s_mul_i32 s50, s26, 96")
        a("s_mul_i32 s3, s24, 3")
        a("s_add_u32 s50, s50, s3")
        a("s_lshl_b32 s50, s50, 10")
        a(f"s_add_u32 s50, s50, {WS_H}")
        a(f"s_mov_b32 s52, {f2hex(-1.4426950408889634)}")
        a("s_mov_b32 s53, s52")
        a("s_mov_b32 s54, 1.0")
        a("s_mov_b32 s55, 1.0")
        a("s_nop 1")
        T = XF
        for ft in range(3):
            g = ACC + 16 * ft; u = g + 8
            for i in range(0, 8, 2):
                a(f"v_pk_mul_f32 v[{T+i}:{T+i+1}], v[{g+i}:{g+i+1}], s[52:53]")
            for i in range(8):
                a(f"v_exp_f32 v{T+i}, v{T+i}")
            for i in range(0, 8, 2):
                a(f"v_pk_add_f32 v[{T+i}:{T+i+1}], v[{T+i}:{T+i+1}], s[54:55]")
            for i in range(8):
                a(f"v_rcp_f32 v{T+i}, v{T+i}")
            for i in range(0, 8, 2):
                a(f"v_pk_mul_f32 v[{g+i}:{g+i+1}], v[{g+i}:{g+i+1}], v[{u+i}:{u+i+1}]")
            for i in range(0, 8, 2):
                a(f"v_pk_mul_f32 v[{g+i}:{g+i+1}], v[{g+i}:{g+i+1}], v[{T+i}:{T+i+1}]")
            for i in range(4):
                a(f"v_cvt_pk_bf16_f32 v{g+i}, v{g+2*i}, v{g+2*i+1}")
            a(f"buffer_store_dwordx4 v[{g}:{g+3}], v9, s[32:35], s50 offen offset:{1024*ft}{cfg.sc}")
        stamp(a, 7)

class GU16(GU):
    def setup(self):
        a = self.a
        GU.setup(self)
        a("v_lshrrev_b32 v10, 4, v2")
        a("v_and_b32 v11, 15, v2")
        a("v_lshlrev_b32 v3, 4, v11")
        a("v_lshl_add_u32 v3, v10, 9, v3")
        a("v_and_b32 v12, 1, v10")
        a("v_lshlrev_b32 v14, 4, v11")
        a("v_lshl_add_u32 v14, v12, 9, v14")
        a("v_lshrrev_b32 v13, 5, v2")
        a("v_lshl_add_u32 v14, v13, 8, v14")
        a("v_bfe_u32 v8, v2, 2, 2")
        a("v_lshl_add_u32 v8, v10, 3, v8")
        a("v_lshl_add_u32 v7, v12, 2, v8")
        a("v_xor_b32 v8, 4, v7")
        a("v_and_b32 v10, 3, v2")
        a("v_lshlrev_b32 v10, 3, v10")
        a("s_movk_i32 s3, 96")
        a("v_mad_u32_u24 v7, v7, s3, v10")
        a("v_mad_u32_u24 v8, v8, s3, v10")
        a(f"v_add_u32 v12, {2*GU_BUF}, v7")
        a(f"v_add_u32 v13, {2*GU_BUF}, v8")
    def xload(self, k):
        r = self.XF + 8 * (k % 4)
        for th in range(2):
            self.vm.issue(f"buffer_load_dwordx4 v[{r+4*th}:{r+4*th+3}], v3, s[32:35], s40 offen offset:{2048*(k%2) + 256*th}{cfg.sc}", ("X", k))
        if k % 2 == 1: self.a("s_add_u32 s40, s40, 4096")
    def main(self, pre_dma, hook=None, gate2=None):
        a, vm, ACC, XF, WF = self.a, self.vm, self.ACC, self.XF, self.WF
        if pre_dma < 1: self.dma_stage(0)
        self.xload(0); self.xload(1)
        XR = int(os.environ.get("GXR", "0"))
        nx = [2]
        if gate2:
            if int(os.environ.get("H2W1", "0")): self.dma_stage(1); pre_dma = 2
            gate2()
        if not XR:
            if pre_dma < 3: a("s_barrier")
            self.xload(2); self.xload(3); nx = [4]
        if pre_dma < 2: self.dma_stage(1)
        def reads(s):
            st, sp, reg = s // 8, (s % 8) // 2, s % 2
            w = WF + 12 * (s % 2)
            buf = st % 3
            bo = (0 if buf == 2 else buf * GU_BUF) + reg * GU_UP + 32 * sp * 96
            for ft in range(3):
                for u in range(2):
                    base = (12 if buf == 2 else 7) + u
                    if "gnotr" in os.environ.get("ABL", "") and s > 1: continue
                    a(f"ds_read_b64_tr_b16 v[{w+4*ft+2*u}:{w+4*ft+2*u+1}], v{base} offset:{bo + 32*ft}")
        def pre(s):
            if s % 8 == 0:
                st = s // 8
                vm.wait(lambda t: t == ("W", st), "lgkmcnt(0)" if s else "")
                a("s_barrier")
                if st in (0, 2, 4): stamp(a, 3 + st // 2)
                if st >= 1 and st + 2 < 5 and "gnow" not in os.environ.get("ABL", ""):
                    self.dma_stage(st + 2)
        pre(0); reads(0)
        for s in range(40):
            k = s // 2
            lg = "lgkmcnt(6)" if s + 1 < 40 else "lgkmcnt(0)"
            if s + 1 < 40:
                pre(s + 1); reads(s + 1)
            vm.wait(lambda t: t == ("X", k), lg)
            w = WF + 12 * (s % 2)
            x = XF + 8 * (k % 4)
            for ft in range(3):
                for th in range(2):
                    d = ACC + 16 * ft + 8 * (s % 2) + 4 * th
                    if "gnomf" in os.environ.get("ABL", ""): continue
                    a(f"v_mfma_f32_16x16x32_bf16 v[{d}:{d+3}], v[{w+4*ft}:{w+4*ft+3}], v[{x+4*th}:{x+4*th+3}], v[{d}:{d+3}]")
            if s % 2 == 1:
                for _ in range(2):
                    if nx[0] <= k + (2 if s < XR else 4) and nx[0] < 20:
                        self.xload(nx[0]); nx[0] += 1
            if s == 2 and pre_dma < 3: self.dma_stage(2)
            if s == int(os.environ.get("HOOKS", "6")) and hook: hook()
        stamp(a, 6)
        a(f"s_setprio {os.environ.get('PE', '3')}")
        a("s_mul_i32 s50, s26, 96")
        a("s_mul_i32 s3, s24, 3")
        a("s_add_u32 s50, s50, s3")
        a("s_lshl_b32 s50, s50, 10")
        a(f"s_add_u32 s50, s50, {WS_H}")
        a(f"s_mov_b32 s52, {f2hex(-1.4426950408889634)}")
        a("s_mov_b32 s53, s52")
        a("s_mov_b32 s54, 1.0")
        a("s_mov_b32 s55, 1.0")
        T = XF
        for ft in range(3):
            g = ACC + 16 * ft; u = g + 8
            for i in range(0, 8, 2):
                a(f"v_pk_mul_f32 v[{T+i}:{T+i+1}], v[{g+i}:{g+i+1}], s[52:53]")
            for i in range(8):
                a(f"v_exp_f32 v{T+i}, v{T+i}")
            for i in range(0, 8, 2):
                a(f"v_pk_add_f32 v[{T+i}:{T+i+1}], v[{T+i}:{T+i+1}], s[54:55]")
            for i in range(8):
                a(f"v_rcp_f32 v{T+i}, v{T+i}")
            for i in range(0, 8, 2):
                a(f"v_pk_mul_f32 v[{g+i}:{g+i+1}], v[{g+i}:{g+i+1}], v[{u+i}:{u+i+1}]")
            for i in range(0, 8, 2):
                a(f"v_pk_mul_f32 v[{g+i}:{g+i+1}], v[{g+i}:{g+i+1}], v[{T+i}:{T+i+1}]")
            for i in range(4):
                a(f"v_cvt_pk_bf16_f32 v{g+i}, v{g+2*i}, v{g+2*i+1}")
            a("s_nop 1")
            a(f"v_permlane32_swap_b32 v{g}, v{g+2}")
            a(f"v_permlane32_swap_b32 v{g+1}, v{g+3}")
            a(f"buffer_store_dwordx4 v[{g}:{g+3}], v14, s[32:35], s50 offen offset:{1024*ft}{cfg.sc}")
        stamp(a, 7)

def fin_decode(a):
    a("s_and_b32 s3, s2, 255")
    a("s_and_b32 s24, s3, 7")
    a("s_lshr_b32 s26, s3, 3")
    a("s_lshr_b32 s27, s24, 1")
    a("s_lshl_b32 s27, s27, 3")
    a("s_and_b32 s3, s26, 7")
    a("s_add_u32 s27, s27, s3")
    a("s_and_b32 s24, s24, 1")
    a("s_lshl_b32 s24, s24, 2")
    a("s_lshr_b32 s26, s26, 3")
    a("s_add_u32 s24, s24, s26")

class FIN:
    ACC, XF, WF = 16, 56, 88
    DV = [4, 5, 6, 7, 8]
    TD, TM, TR = 11, 12, 13
    def __init__(self, a):
        self.a = a; self.vm = VM(a); self.q = [[], []]
    def roles(self):
        a = self.a
        a("s_and_b32 s46, s25, 1")
        a("s_lshr_b32 s47, s25, 1")
        a("s_mov_b32 s56, s25")
    BOFF = 0
    def zero_acc(self):
        for i in range(40):
            self.a(f"v_mov_b32 v{self.ACC+i}, 0")
    def setup(self, zero_acc=True):
        a = self.a
        srd(a, 28, S_WD, 1966080)
        srd(a, 36, S_WO, 819200)
        self.roles()
        a("s_lshl_b32 s26, s27, 1")
        a("s_add_u32 s26, s26, s46")
        a("s_lshl_b32 s3, s47, 11")
        a("s_mul_i32 s40, s26, 98304")
        a("s_add_u32 s40, s40, s3")
        a(f"s_add_u32 s40, s40, {WS_H}")
        a("s_mul_i32 s43, s26, 40960")
        a("s_add_u32 s43, s43, s3")
        a(f"s_add_u32 s43, s43, {WS_O}")
        a("s_mul_i32 s41, s24, 160")
        a("s_mul_i32 s3, s25, 40960")
        a("s_add_u32 s41, s41, s3")
        a("s_mov_b32 s44, s41")
        a("s_mul_i32 s49, s25, 5120")
        a("s_and_b32 s3, s25, 3")
        a("s_mul_i32 s42, s3, 5120")
        a("s_lshr_b32 s48, s25, 2")
        a("v_lshrrev_b32 v10, 4, v2")
        a("v_and_b32 v14, 15, v2")
        a("v_lshlrev_b32 v3, 4, v14")
        a("v_lshl_add_u32 v3, v10, 9, v3")
        a("s_movk_i32 s3, 1280")
        for b in range(5):
            a(f"v_add_u32 v11, {64*b}, v2")
            a("v_mul_u32_u24 v12, 6554, v11")
            a("v_lshrrev_b32 v12, 16, v12")
            a("v_mul_u32_u24 v13, 10, v12")
            a("v_sub_u32 v13, v11, v13")
            a("v_lshlrev_b32 v13, 4, v13")
            a(f"v_mad_u32_u24 v{self.DV[b]}, v12, s3, v13")
        a("s_lshl_b32 s45, s26, 5")
        a("v_add_u32 v14, s45, v14")
        a("v_mul_u32_u24 v14, 1280, v14")
        a("v_lshl_add_u32 v14, v10, 3, v14")
        a("s_mul_i32 s45, s24, 160")
        a("v_add_u32 v14, s45, v14")
        a("v_bfe_u32 v10, v2, 2, 2")
        a("v_bfe_u32 v15, v2, 4, 1")
        a("v_lshrrev_b32 v1, 5, v2")
        a("v_and_b32 v0, 3, v2")
        a("v_lshlrev_b32 v0, 3, v0")
        a("s_movk_i32 s3, 160")
        a(f"v_lshl_add_u32 v{self.TD}, v1, 4, v10")
        a(f"v_lshl_add_u32 v{self.TD}, v15, 2, v{self.TD}")
        a(f"v_mad_u32_u24 v{self.TD}, v{self.TD}, s3, v0")
        a("s_mul_i32 s45, s47, 5120")
        a(f"v_add_u32 v{self.TD}, s45, v{self.TD}")
        a(f"v_mul_u32_u24 v{self.TM}, 20, v1")
        a(f"v_lshl_add_u32 v{self.TM}, v15, 2, v{self.TM}")
        a(f"v_add_u32 v{self.TM}, v{self.TM}, v10")
        a(f"v_mad_u32_u24 v{self.TM}, v{self.TM}, s3, v0")
        a("s_mul_i32 s45, s47, 6400")
        a(f"v_add_u32 v{self.TM}, s45, v{self.TM}")
        a(f"v_mul_u32_u24 v{self.TR}, 80, v1")
        a("v_mul_u32_u24 v15, 20, v15")
        a(f"v_add3_u32 v{self.TR}, v{self.TR}, v15, v10")
        a(f"v_mad_u32_u24 v{self.TR}, v{self.TR}, s3, v0")
        a(f"v_add_u32 v{self.TR}, {16*160}, v{self.TR}")
        if zero_acc: self.zero_acc()
    def dma_wd(self, m):
        a = self.a
        L = uid("L_dwd")
        a(f"s_cmp_lg_u32 s48, {m % 2}")
        a(f"s_cbranch_scc1 {L}")
        for b in range(5):
            a(f"s_add_u32 m0, s42, {((m + self.BOFF) % 4) * 20480 + 1024 * b}")
            a("s_nop 0")
            a(f"buffer_load_dwordx4 v{self.DV[b]}, s[28:31], s41 offen lds")
        a(f"s_add_u32 s41, s41, {256*1280}")
        a.label(L)
        self.q[m % 2] += [("W", m)] * 5
    def hload(self, m):
        r = self.XF + 8 * (m % 4)
        for th in range(2):
            self.a(f"buffer_load_dwordx4 v[{r+4*th}:{r+4*th+3}], v3, s[32:35], s40 offen offset:{256*th}{cfg.sc}")
            for q in self.q: q.append(("X", m))
        self.a("s_add_u32 s40, s40, 8192")
    def wait2(self, preds, extra=""):
        n = 63
        for q in self.q:
            last = max([i for i, t in enumerate(q) if t in preds], default=-1)
            if last >= 0: n = min(n, len(q) - 1 - last)
        if n == 63:
            if extra: self.a(f"s_waitcnt {extra}")
            return
        self.a(f"s_waitcnt vmcnt({n}) {extra}".strip())
        self.q = [q[max(0, len(q) - n):] if n > 0 else [] for q in self.q]
    def wreads(self, w, base, off, ustep):
        for ft in range(5):
            for u in range(2):
                self.a(f"ds_read_b64_tr_b16 v[{w+4*ft+2*u}:{w+4*ft+2*u+1}], v{base} offset:{off + ustep*u + 32*ft}")
    def mfmas(self, w, x):
        if "dnomf" in os.environ.get("ABL", ""): return
        for ft in range(5):
            for th in range(2):
                d = self.ACC + 4 * (5 * th + ft)
                self.a(f"v_mfma_f32_16x16x32_bf16 v[{d}:{d+3}], v[{w+4*ft}:{w+4*ft+3}], v[{x+4*th}:{x+4*th+3}], v[{d}:{d+3}]")
    def down(self, npre=4):
        a = self.a
        for m in range(2): self.hload(m)
        nw = npre
        nh = 2
        TD2 = 15
        a(f"v_add_u32 v{TD2}, 40960, v{self.TD}")
        def reads(m):
            base = self.TD if (m % 4) < 2 else TD2
            self.wreads(self.WF + 20 * (m % 2), base, (m % 2) * 20480, 1280)
        self.wait2([("W", 0)])
        a("s_barrier")
        if not os.environ.get("GSTAMP"): stamp(a, 9)
        reads(0)
        for m in range(12):
            if m + 1 < 12:
                self.wait2([("W", m + 1)], "lgkmcnt(0)")
                a("s_barrier")
                reads(m + 1)
                for _ in range(2):
                    if nw <= m + 4 and nw < 12:
                        self.dma_wd(nw); nw += 1
                if m == 9:
                    a("s_waitcnt vmcnt(0)")
                    self.q = [[], []]
                    self.wo_dma((0, 8), 0, 0)
                if m == 10:
                    self.wo_dma((0, 4), 8, 8)
                self.wait2([("X", m)])
            else:
                self.wait2([("X", m)], "lgkmcnt(0)")
            self.mfmas(self.WF + 20 * (m % 2), self.XF + 8 * (m % 4))
            for _ in range(2):
                if nh <= m + 4 and nh < 12:
                    self.hload(nh); nh += 1
        if not os.environ.get("GSTAMP"): stamp(a, 10)
    def wo_dma(self, cond, first_group, lds_group):
        a = self.a
        lo, hi = cond
        L = uid("L_wod")
        if lo > 0:
            a(f"s_cmp_lt_u32 s25, {lo}")
            a(f"s_cbranch_scc1 {L}")
        if hi < 8:
            a(f"s_cmp_ge_u32 s25, {hi}")
            a(f"s_cbranch_scc1 {L}")
        a(f"s_add_u32 s3, s44, {(first_group - lo) * 32 * 1280}")
        for b in range(5):
            a(f"s_add_u32 m0, s49, {(lds_group - lo) * 5120 + 1024 * b}")
            a("s_nop 0")
            a(f"buffer_load_dwordx4 v{self.DV[b]}, s[36:39], s3 offen lds")
        a.label(L)
    def wo_prefetch(self, after_first=None):
        a = self.a
        if after_first is None:
            a("s_waitcnt vmcnt(5)")
            a("s_cmp_lt_u32 s25, 4")
            a("s_cbranch_scc1 L_fin_p0")
        a("s_waitcnt vmcnt(0)")
        a.label("L_fin_p0")
        a("s_barrier")
        if after_first: after_first()
        self.wo_dma((4, 7), 12, 12)
        self.wreads(self.WF + 20, self.TM, 0, 1280)
        a("s_cmp_lg_u32 s47, 0")
        a("s_cbranch_scc1 L_fin_p1")
        self.wreads(self.WF, self.TR, 0, 6400)
        a.label("L_fin_p1")
        a("s_cmp_eq_u32 s47, 3")
        a("s_cselect_b32 s3, 0, s47")
        a("s_mul_i32 s3, s3, 25600")
        a(f"v_add_u32 v{self.TR}, s3, v{self.TR}")
        a("s_waitcnt lgkmcnt(0)")
        a("s_barrier")
        self.wo_dma((0, 5), 15, 0)
        srd(a, 28, S_X, 2621440)
        for i in range(3):
            a(f"s_add_u32 s3, s47, {4*i}")
            a("s_cmp_ge_u32 s3, 5")
            a(f"s_cselect_b32 s50, {20480 - 160}, 0")
            a("s_lshl_b32 s51, s3, 5")
            a(f"s_add_u32 s{52+i}, s50, s51")
        a("s_cmp_ge_u32 s47, 2")
        a("s_cselect_b32 s54, s53, s54")
        a("buffer_load_dwordx2 v[0:1], v14, s[28:31], s52 offen")
    def wo_main(self):
        a, vm = self.a, self.vm
        vm.q = []
        XS = {4: 56, 0: 64, 1: 72, 2: 80, 3: 4}
        def oload(rd):
            a(f"s_add_u32 s3, s43, {8192*rd}")
            for th in range(2):
                r = XS[rd] + 4 * th
                vm.issue(f"buffer_load_dwordx4 v[{r}:{r+3}], v3, s[32:35], s3 offen offset:{256*th}{cfg.sc}", ("X", rd))
        for rd in (4, 0, 1, 2, 3): oload(rd)
        srd(a, 36, S_OUT, 2621440)
        A, B = self.WF, self.WF + 20
        a("s_cmp_eq_u32 s47, 0")
        a("s_cbranch_scc1 L_fin_r4")
        self.wreads(A, self.TR, 0, 6400)
        a.label("L_fin_r4")
        vm.wait(lambda t: t == ("X", 4), "lgkmcnt(0)")
        if os.environ.get("TAILSTAMP"): stamp(a, 1)
        self.mfmas(A, XS[4])
        self.wreads(A, self.TM, 160 * 160, 1280)
        vm.wait(lambda t: t == ("X", 0))
        self.mfmas(B, XS[0])
        self.wreads(B, self.TM, 320 * 160, 1280)
        vm.wait(lambda t: t == ("X", 1), "lgkmcnt(10)")
        self.mfmas(A, XS[1])
        self.wreads(A, self.TM, 0, 1280)
        vm.wait(lambda t: t == ("X", 2), "lgkmcnt(10)")
        self.mfmas(B, XS[2])
        for i in range(1, 3):
            vm.issue(f"buffer_load_dwordx2 v[{56+2*i}:{57+2*i}], v14, s[28:31], s{52+i} offen", ("R", i))
        vm.wait(lambda t: t == ("X", 3), "lgkmcnt(0)")
        a("s_barrier")
        self.mfmas(A, XS[3])
        if not os.environ.get("GSTAMP"): stamp(a, 12)
        a("v_lshlrev_b32 v9, 4, v2")
        a("s_mul_i32 s3, s56, 10240")
        a("v_add_u32 v10, s3, v9")
        for j in range(10):
            L = uid("L_fw")
            a(f"s_cmp_eq_u32 s47, {j % 4}")
            a(f"s_cbranch_scc1 {L}")
            a(f"ds_write_b128 v10, v[{self.ACC+4*j}:{self.ACC+4*j+3}] offset:{1024*j}")
            a(f"s_branch {L}_n")
            a.label(L)
            r = 64 + 16 * (j // 4)
            for t in range(4):
                a(f"v_mov_b32 v{r+t}, v{self.ACC+4*j+t}")
            a.label(L + "_n")
        a("s_mul_i32 s3, s46, 10240")
        a("s_lshl_b32 s50, s47, 10")
        a("s_add_u32 s3, s3, s50")
        a("v_add_u32 v10, s3, v9")
        for k in range(1, 4):
            a(f"s_add_u32 s3, s47, {k}")
            a("s_and_b32 s3, s3, 3")
            a("s_mul_i32 s3, s3, 20480")
            a(f"v_add_u32 v{3+k}, s3, v10")
        a("s_waitcnt lgkmcnt(0)")
        if os.environ.get("TAILSTAMP"): stamp(a, 3)
        a("s_barrier")
        if os.environ.get("TAILSTAMP"): stamp(a, 4)
        R = 64
        for i in range(3):
            if i == 2:
                a("s_cmp_ge_u32 s47, 2")
                a("s_cbranch_scc1 L_fin_r2")
            for k in range(1, 4):
                r = R + 16 * i + 4 * k
                a(f"ds_read_b128 v[{r}:{r+3}], v{3+k} offset:{4096*i}")
        a.label("L_fin_r2")
        a("s_waitcnt vmcnt(0) lgkmcnt(0)")
        if os.environ.get("TAILSTAMP"): stamp(a, 5)
        for i in range(3):
            r = R + 16 * i; xr = 0 if i == 0 else 56 + 2 * i
            if i == 2:
                a("s_cmp_ge_u32 s47, 2")
                a("s_cbranch_scc1 L_fin_end")
            a(f"v_lshlrev_b32 v4, 16, v{xr}")
            a(f"v_and_b32 v5, 0xffff0000, v{xr}")
            a(f"v_lshlrev_b32 v6, 16, v{xr+1}")
            a(f"v_and_b32 v7, 0xffff0000, v{xr+1}")
            for h in range(2):
                a(f"v_pk_add_f32 v[{r+2*h}:{r+2*h+1}], v[{r+2*h}:{r+2*h+1}], v[{r+4+2*h}:{r+5+2*h}]")
                a(f"v_pk_add_f32 v[{r+8+2*h}:{r+9+2*h}], v[{r+8+2*h}:{r+9+2*h}], v[{r+12+2*h}:{r+13+2*h}]")
                a(f"v_pk_add_f32 v[{r+2*h}:{r+2*h+1}], v[{r+2*h}:{r+2*h+1}], v[{4+2*h}:{5+2*h}]")
                a(f"v_pk_add_f32 v[{r+2*h}:{r+2*h+1}], v[{r+2*h}:{r+2*h+1}], v[{r+8+2*h}:{r+9+2*h}]")
            a(f"v_cvt_pk_bf16_f32 v{r}, v{r}, v{r+1}")
            a(f"v_cvt_pk_bf16_f32 v{r+1}, v{r+2}, v{r+3}")
            a(f"buffer_store_dwordx2 v[{r}:{r+1}], v14, s[36:39], s{52+i} offen{os.environ.get('OUTSC', '')}")
        a.label("L_fin_end")
        if os.environ.get("TAILSTAMP"): stamp(a, 6)

WS_ST = 0x1480000
def qkv2_decode(a):
    a("s_and_b32 s24, s2, 7")
    a("s_lshr_b32 s26, s2, 3")
    a("s_mul_i32 s24, s24, 30")
    a("s_add_u32 s27, s24, s26")
    a("s_cmp_ge_u32 s27, 80")
    a("s_cselect_b32 s24, 1, 0")
    a("s_cmp_ge_u32 s27, 160")
    a("s_cselect_b32 s24, 2, s24")
    a("s_mul_i32 s26, s24, 80")
    a("s_sub_u32 s27, s27, s26")
    a("s_mul_i32 s26, s27, 205")
    a("s_lshr_b32 s26, s26, 10")
    a("s_mul_i32 s3, s26, 5")
    a("s_sub_u32 s27, s27, s3")
    a("s_mul_i32 s47, s24, 5")
    a("s_add_u32 s47, s47, s27")
    a("s_lshl_b32 s46, s47, 4")
    a("s_add_u32 s46, s46, s26")

def qkv2(a, nonce_check):
    ACC, XF, WF, CS, SEL, AD = 16, 48, 64, 72, 76, 80
    XA0, XA1, TW, DX, DW = 3, 4, 5, 6, 7
    NSL, RING = 20, 5
    L_CS, L_ST = 0, 1024
    XB0, XB1, TW2 = 90, 91, 92
    vm = VM(a)
    srd(a, 28, S_WQKV, 2457600)
    srd(a, 36, S_X, 2621440)
    a("v_lshrrev_b32 v10, 2, v2")
    a("s_lshl_b32 s3, s25, 4")
    a("v_add_u32 v10, s3, v10")
    a("v_mul_u32_u24 v10, 1280, v10")
    a("v_lshrrev_b32 v11, 4, v2")
    a("v_and_b32 v12, 3, v2")
    a("v_xor_b32 v13, v12, v11")
    a(f"v_lshl_add_u32 v{DX}, v13, 4, v10")
    a("s_lshl_b32 s3, s25, 2")
    a("v_add_u32 v10, s3, v11")
    a("v_mul_u32_u24 v10, 3840, v10")
    a("v_bfe_u32 v13, v2, 2, 2")
    a("v_xor_b32 v13, v13, v11")
    a("v_lshl_add_u32 v10, v13, 6, v10")
    a(f"v_lshl_add_u32 v{DW}, v12, 4, v10")
    a("s_mul_i32 s40, s26, 163840")
    a("s_lshl_b32 s41, s47, 8")
    a("s_lshl_b32 s42, s25, 10")
    def dma(sl):
        base = (sl % RING) * 16384
        a(f"s_add_u32 m0, s42, {base}")
        a("s_nop 0")
        vm.issue(f"buffer_load_dwordx4 v{DX}, s[36:39], s40 offen lds", ("S", sl))
        a(f"s_add_u32 m0, s42, {base + 8192}")
        a("s_add_u32 s40, s40, 64")
        vm.issue(f"buffer_load_dwordx4 v{DW}, s[28:31], s41 offen lds", ("S", sl))
        a(f"s_add_u32 s41, s41, {32*3840}")
    NUP = int(os.environ.get('Q2UP', '5'))
    for sl in range(NUP): dma(sl)
    stamp(a, 1)
    a("s_lshr_b32 s48, s25, 2")
    a("s_and_b32 s49, s25, 3")
    a("v_and_b32 v10, 31, v2")
    a("v_lshrrev_b32 v8, 5, v2")
    a("v_bfe_u32 v11, v2, 2, 2")
    a("v_xor_b32 v12, v8, v11")
    a("v_lshlrev_b32 v13, 6, v10")
    a("s_lshl_b32 s3, s48, 12")
    a("v_add_u32 v13, s3, v13")
    a(f"v_lshl_add_u32 v{XA0}, v12, 4, v13")
    a(f"v_xor_b32 v{XA1}, 32, v{XA0}")
    a("v_lshl_add_u32 v12, v8, 3, v11")
    a("v_lshlrev_b32 v12, 8, v12")
    a("v_xor_b32 v13, s49, v11")
    a("v_lshl_add_u32 v12, v13, 6, v12")
    a("v_bfe_u32 v13, v2, 4, 1")
    a("v_lshl_add_u32 v12, v13, 5, v12")
    a("v_add_u32 v12, 8192, v12")
    a("v_and_b32 v14, 15, v2")
    a("v_cmp_eq_u32 vcc, v14, v13")
    a("v_mov_b32 v14, 0x3f803f80")
    for i in range(32): a(f"v_mov_b32 v{ACC+i}, 0")
    a("v_cndmask_b32 v14, 0, v14, vcc")
    for i in range(4):
        a(f"v_mov_b32 v{SEL+i}, v14")
        a(f"v_mov_b32 v{CS+i}, 0")
    a("s_lshl_b32 s3, s26, 8")
    a(f"s_add_u32 s50, s3, {F_XN}")
    a("v_lshlrev_b32 v15, 3, v10")
    a("s_lshl_b32 s51, s26, 10")
    a(f"s_add_u32 s51, s51, {WS_ST}")
    a("s_lshl_b32 s43, s26, 2")
    a("s_lshl_b32 s3, s48, 1")
    a("s_add_u32 s43, s43, s3")
    a("s_cmp_eq_u32 s24, 2")
    a("s_cbranch_scc1 L_q2_V")
    a("v_and_b32 v13, 1, v2")
    a("v_lshl_add_u32 v12, v13, 4, v12")
    a("v_bfe_u32 v13, v2, 1, 1")
    a(f"v_lshl_add_u32 v{TW}, v13, 3, v12")
    a("s_lshl_b32 s45, s43, 10")
    a(f"s_add_u32 s45, s45, {WS_QM}")
    a("s_lshl_b32 s44, s43, 8")
    a(f"s_add_u32 s44, s44, {WS_QR}")
    a("s_mov_b32 s52, 65536")
    a("s_mov_b32 s53, 16384")
    a("s_movk_i32 s54, 1024")
    a("s_movk_i32 s55, 256")
    a(f"s_mov_b32 s63, {f2hex(QSCALE)}")
    a("s_cmp_eq_u32 s24, 0")
    a("s_cbranch_scc1 L_q2_isq")
    a("s_mul_i32 s45, s43, 2560")
    a(f"s_add_u32 s45, s45, {WS_KV}")
    a("s_add_u32 s44, s45, 1024")
    a("s_mov_b32 s52, 163840")
    a("s_mov_b32 s53, 163840")
    a("s_movk_i32 s54, 2560")
    a("s_movk_i32 s55, 2560")
    a("s_mov_b32 s63, 1.0")
    a.label("L_q2_isq")
    a("s_lshl_b32 s3, s27, 2")
    a("s_add_u32 s3, s3, s49")
    a("s_lshl_b32 s3, s3, 2")
    a("v_add_u32 v11, s3, v8")
    a("v_lshl_add_u32 v12, v10, 4, s45")
    a("v_lshl_add_u32 v13, v10, 3, s44")
    for q in range(2):
        a(f"v_add_u32 v14, {2*q}, v11")
        a("v_mul_u32_u24 v1, 205, v14")
        a("v_lshrrev_b32 v1, 10, v1")
        a("v_mul_u32_u24 v0, 5, v1")
        a("v_sub_u32 v14, v14, v0")
        a("v_lshlrev_b32 v1, 1, v1")
        a("v_mul_lo_u32 v0, v1, s53")
        a(f"v_add_u32 v{AD+3*q+1}, v0, v13")
        a(f"v_add_u32 v{AD+3*q+2}, s53, v{AD+3*q+1}")
        a("v_cmp_lt_u32 vcc, 2, v14")
        a("v_subrev_u32 v0, 3, v14")
        a("s_nop 0")
        a("v_addc_co_u32 v1, s[86:87], 0, v1, vcc")
        a("v_cndmask_b32 v0, v14, v0, vcc")
        a("v_mul_lo_u32 v1, v1, s52")
        a("v_lshl_add_u32 v0, v0, 9, v12")
        a("v_add_u32 v0, v0, v1")
        a("v_cmp_eq_u32 vcc, 2, v14")
        a(f"v_mov_b32 v1, {OOB - 0x100000}")
        a("s_nop 0")
        a(f"v_cndmask_b32 v{AD+3*q}, v0, v1, vcc")
        a(f"v_cndmask_b32 v{AD+3*q+1}, v1, v{AD+3*q+1}, vcc")
        a(f"v_cndmask_b32 v{AD+3*q+2}, v1, v{AD+3*q+2}, vcc")

    def loop(vtype):
        vq = list(vm.q)
        a(f"v_add_u32 v{XB0}, 0x10000, v{XA0}")
        a(f"v_add_u32 v{XB1}, 0x10000, v{XA1}")
        a(f"v_add_u32 v{TW2}, 0x10000, v{TW}")
        nd = [NUP]
        def reads(s):
            sl, sp = s // 2, s % 2
            base = (sl % RING) * 16384
            x = XF + 8 * (s % 2); w = WF + 4 * (s % 2)
            xa = XA1 if sp else XA0; tw = TW
            if base >= 65536:
                base -= 65536; xa = XB1 if sp else XB0; tw = TW2
            a(f"ds_read_b128 v[{x}:{x+3}], v{xa} offset:{base}")
            a(f"ds_read_b64_tr_b16 v[{w}:{w+1}], v{tw} offset:{base + 16*sp*256}")
            a(f"ds_read_b64_tr_b16 v[{w+2}:{w+3}], v{tw} offset:{base + (16*sp+4)*256}")
            a(f"ds_read_b128 v[{x+4}:{x+7}], v{xa} offset:{base + 2048}")
        def pre(s):
            if s % 4: return
            sl = s // 2
            vm.wait(lambda t: t == ("S", sl + 1), "lgkmcnt(0)" if s else "")
            a("s_barrier")
            if sl in (0, 10): stamp(a, 2 if sl == 0 else 3)
            if PROFILE and os.environ.get("SLOTTRACE"):
                a("s_memtime s[84:85]")
                a("s_waitcnt lgkmcnt(0)")
                a("s_sub_u32 s84, s84, s64")
                a(f"v_writelane_b32 v120, s84, {sl // 2}")
            while nd[0] < sl + RING and nd[0] < NSL:
                dma(nd[0]); nd[0] += 1
            if cfg.fused:
                if sl == 6:
                    a("v_mov_b32 v0, 0")
                    vm.issue("buffer_load_dwordx2 v[88:89], v0, s[56:59], 0 offen sc1", ("N", 0))
                if sl == 10:
                    vm.wait(lambda t: t == ("N", 0))
                    nonce_check(88)
                if sl == 12:
                    vm.issue("buffer_load_dwordx2 v[88:89], v15, s[32:35], s50 offen sc1", ("F", 0))
                if sl == 16:
                    vm.wait(lambda t: t == ("F", 0))
                    L = uid("L_q2f")
                    a("v_cmp_ne_u64 vcc, s[60:61], v[88:89]")
                    a(f"s_cbranch_vccz {L}")
                    a("v_add_u32 v0, s50, v15")
                    poll(a, 0, 88)
                    a.label(L)
            if sl == 16:
                a(f"s_mov_b32 m0, {L_ST}")
                a("s_nop 0")
                vm.issue(f"buffer_load_dwordx4 v9, s[32:35], s51 offen{cfg.sc} lds", ("T", 0))
        pre(0); reads(0)
        for s in range(2 * NSL):
            if s + 1 < 2 * NSL:
                pre(s + 1); reads(s + 1)
                a("s_waitcnt lgkmcnt(4)")
            else:
                a("s_waitcnt lgkmcnt(0)")
            x = XF + 8 * (s % 2); w = WF + 4 * (s % 2)
            for j in range(2):
                W = f"v[{w}:{w+3}]"; X = f"v[{x+4*j}:{x+4*j+3}]"
                A, B = (X, W) if vtype else (W, X)
                D = f"v[{ACC+16*j}:{ACC+16*j+15}]"
                a(f"v_mfma_f32_32x32x16_bf16 {D}, {A}, {B}, {D}")
            L = uid("L_q2s")
            a(f"s_cmp_lg_u32 s48, {s % 2}")
            a(f"s_cbranch_scc1 {L}")
            a(f"v_mfma_f32_16x16x32_bf16 v[{CS}:{CS+3}], v[{w}:{w+3}], v[{SEL}:{SEL+3}], v[{CS}:{CS+3}]")
            a.label(L)
        stamp(a, 6)
        if qkv_hook: qkv_hook()
        a("v_and_b32 v0, 15, v2")
        a("v_lshrrev_b32 v1, 4, v2")
        a("v_lshlrev_b32 v1, 4, v1")
        a("v_lshl_add_u32 v1, v0, 6, v1")
        a("s_lshl_b32 s3, s25, 7")
        a(f"s_add_u32 s3, s3, {L_CS}")
        a("v_add_u32 v1, s3, v1")
        a("v_cmp_gt_u32 vcc, 2, v0")
        a("s_nop 1")
        a("s_mov_b64 exec, vcc")
        a(f"ds_write_b128 v1, v[{CS}:{CS+3}]")
        a("s_mov_b64 exec, -1")
        vm.wait(lambda t: t == ("T", 0), "lgkmcnt(0)")
        a("s_barrier")
        vm.q = vq
    loop(False)
    C0, C1, MR = 48, 64, 88
    a("s_lshl_b32 s3, s49, 7")
    a(f"s_add_u32 s3, s3, {L_CS}")
    a("v_lshl_add_u32 v0, v8, 4, s3")
    for g in range(4):
        a(f"ds_read_b128 v[{C0+4*g}:{C0+4*g+3}], v0 offset:{32*g}")
        a(f"ds_read_b128 v[{C1+4*g}:{C1+4*g+3}], v0 offset:{512 + 32*g}")
    a("s_lshl_b32 s3, s48, 8")
    a(f"s_add_u32 s3, s3, {L_ST}")
    a("v_lshl_add_u32 v1, v10, 2, s3")
    for j in range(2):
        a(f"ds_read_b32 v{MR+4*j}, v1 offset:{128*j}")
        a(f"ds_read_b32 v{MR+4*j+2}, v1 offset:{512 + 128*j}")
    a("s_waitcnt lgkmcnt(0)")
    for i in range(0, 16, 2):
        a(f"v_pk_add_f32 v[{C0+i}:{C0+i+1}], v[{C0+i}:{C0+i+1}], v[{C1+i}:{C1+i+1}]")
    for j in range(2):
        a(f"v_mov_b32 v{MR+4*j+1}, v{MR+4*j}")
        a(f"v_mul_f32 v{MR+4*j+2}, s63, v{MR+4*j+2}")
        a(f"v_mov_b32 v{MR+4*j+3}, v{MR+4*j+2}")
    for j in range(2):
        for q in range(2):
            r = ACC + 16 * j + 8 * q
            for i in range(0, 8, 2):
                c = C0 + 8 * q + i
                a(f"v_pk_fma_f32 v[{r+i}:{r+i+1}], v[{c}:{c+1}], v[{MR+4*j}:{MR+4*j+1}], v[{r+i}:{r+i+1}]")
            for i in range(0, 8, 2):
                a(f"v_pk_mul_f32 v[{r+i}:{r+i+1}], v[{r+i}:{r+i+1}], v[{MR+4*j+2}:{MR+4*j+3}]")
            for i in range(4):
                a(f"v_cvt_pk_bf16_f32 v{r+i}, v{r+2*i}, v{r+2*i+1}")
            sm, sr_ = ("0", "0") if j == 0 else ("s54", "s55")
            a(f"buffer_store_dwordx4 v[{r}:{r+3}], v{AD+3*q}, s[32:35], {sm} offen{cfg.sc}")
            a(f"buffer_store_dwordx2 v[{r}:{r+1}], v{AD+3*q+1}, s[32:35], {sr_} offen{cfg.sc}")
            a(f"buffer_store_dwordx2 v[{r+2}:{r+3}], v{AD+3*q+2}, s[32:35], {sr_} offen{cfg.sc}")
    a("s_branch L_q2_done")
    a.label("L_q2_V")
    a("v_and_b32 v13, 3, v2")
    a(f"v_lshl_add_u32 v{TW}, v13, 3, v12")
    a("s_mul_i32 s45, s43, 2560")
    a(f"s_add_u32 s45, s45, {WS_KV + 1280}")
    a("s_lshl_b32 s3, s27, 2")
    a("s_add_u32 s3, s3, s49")
    a("s_lshl_b32 s3, s3, 5")
    a("v_add_u32 v13, s3, v10")
    a("v_mul_u32_u24 v11, 320, v8")
    a("v_add_u32 v11, s45, v11")
    a("s_mov_b32 s52, 163840")
    a("v_mul_u32_u24 v14, 3277, v13")
    a("v_lshrrev_b32 v14, 16, v14")
    a("v_mul_u32_u24 v1, 20, v14")
    a("v_sub_u32 v1, v13, v1")
    a("v_lshl_add_u32 v0, v1, 4, v11")
    a("v_mul_lo_u32 v14, v14, s52")
    a(f"v_add_u32 v{AD}, v0, v14")
    loop(True)
    MN, RS = 48, 88
    a("s_lshl_b32 s3, s49, 7")
    a(f"s_add_u32 s3, s3, {L_CS}")
    a("v_lshl_add_u32 v0, v10, 2, s3")
    a("ds_read_b32 v12, v0")
    a("ds_read_b32 v13, v0 offset:512")
    a("s_lshl_b32 s3, s48, 8")
    a(f"s_add_u32 s3, s3, {L_ST}")
    a("v_lshl_add_u32 v1, v8, 4, s3")
    for j in range(2):
        for g in range(4):
            a(f"ds_read_b128 v[{MN+16*j+4*g}:{MN+16*j+4*g+3}], v1 offset:{128*j + 32*g}")
            a(f"ds_read_b128 v[{RS+16*j+4*g}:{RS+16*j+4*g+3}], v1 offset:{512 + 128*j + 32*g}")
    a("s_waitcnt lgkmcnt(15)")
    a("v_add_f32 v12, v12, v13")
    a("v_mov_b32 v13, v12")
    a("s_waitcnt lgkmcnt(0)")
    for j in range(2):
        for gm in range(2):
            r = ACC + 16 * j + 8 * gm
            for i in range(0, 8, 2):
                m = MN + 16 * j + 8 * gm + i
                a(f"v_pk_fma_f32 v[{r+i}:{r+i+1}], v[{m}:{m+1}], v[12:13], v[{r+i}:{r+i+1}]")
            for i in range(0, 8, 2):
                m = RS + 16 * j + 8 * gm + i
                a(f"v_pk_mul_f32 v[{r+i}:{r+i+1}], v[{r+i}:{r+i+1}], v[{m}:{m+1}]")
            for i in range(4):
                a(f"v_cvt_pk_bf16_f32 v{r+i}, v{r+2*i}, v{r+2*i+1}")
            a(f"buffer_store_dwordx4 v[{r}:{r+3}], v{AD}, s[32:35], 0 offen offset:{2560*j + 640*gm}{cfg.sc}")
    a.label("L_q2_done")
    if PROFILE and os.environ.get("SLOTTRACE"):
        a("s_lshl_b32 s84, s2, 4")
        a("s_add_u32 s84, s84, s25")
        a("s_lshl_b32 s84, s84, 6")
        a(f"s_add_u32 s84, s84, {WS_PROF + 0x600000}")
        a("v_lshlrev_b32 v1, 2, v2")
        a("s_mov_b64 exec, 0xffff")
        a("buffer_store_dword v120, v1, s[32:35], s84 offen")
        a("s_mov_b64 exec, -1")
    stamp(a, 7)

def attn_flag_addr2(a, vd):
    a("s_mul_i32 s3, s24, 20")
    a("s_lshr_b32 s26, s3, 7")
    a("s_add_u32 s3, s3, 19")
    a("s_lshr_b32 s3, s3, 7")
    a("s_sub_u32 s3, s3, s26")
    a("v_bfe_u32 v11, v2, 4, 1")
    a("v_mul_u32_u24 v11, 5, v11")
    a("v_lshrrev_b32 v12, 5, v2")
    a("v_mul_lo_u32 v12, v12, s3")
    a("v_add3_u32 v11, v11, v12, s26")
    a("v_add_u32 v11, 5, v11")
    a("v_and_b32 v12, 15, v2")
    a(f"v_lshl_add_u32 v{vd}, v11, 4, v12")
    a(f"v_lshlrev_b32 v{vd}, {FSH}, v{vd}")
    a(f"v_add_u32 v{vd}, {F_QKV}, v{vd}")
    a("v_bfe_u32 v12, v2, 1, 1")
    a("v_mul_lo_u32 v12, v12, s3")
    a("v_add_u32 v12, s26, v12")
    a("v_and_b32 v11, 1, v2")
    a("s_lshl_b32 s3, s27, 1")
    a("v_lshl_add_u32 v12, v12, 4, v11")
    a("v_add_u32 v12, s3, v12")
    a(f"v_lshlrev_b32 v{vd+1}, {FSH}, v12")
    a(f"v_add_u32 v{vd+1}, {F_QKV}, v{vd+1}")

C_XN, C_QKV, C_H, C_O, C_QL = 0, 8, 40, 48, 64
NCNT = 320
def cnt_base(a):
    a(f"s_add_u32 s60, s{S_WS}, {WS_FL}")
    a(f"s_addc_u32 s61, s{S_WS+1}, 0")

def cnt_init(a):
    a("v_lshlrev_b32 v10, 7, v2")
    a("v_mov_b32 v11, 0")
    for i in range(NCNT // 64):
        a(f"s_mov_b32 s62, {WS_FL + i * 8192}")
        a("buffer_store_dword v11, v10, s[32:35], s62 offen sc1")
    srd(a, 56, S_DBG, 256)
    a("v_mov_b32 v10, 1")
    a("s_waitcnt vmcnt(0)")
    a("s_mov_b64 exec, 1")
    a("buffer_store_dword v10, v11, s[56:59], 0 offen sc1")
    a("s_mov_b64 exec, -1")

def go_issue(a, t=10):
    srd(a, 56, S_DBG, 256)
    a(f"v_mov_b32 v{t+1}, 0")
    a(f"buffer_load_dword v{t}, v{t+1}, s[56:59], 0 offen sc1")

def wait_go(a, t=10, issued=False, sleep=1):
    L = uid("L_go")
    a("s_mov_b32 s83, 0x40000")
    if issued:
        a(f"s_branch {L}_chk")
    else:
        srd(a, 56, S_DBG, 256)
        a(f"v_mov_b32 v{t+1}, 0")
    a.label(L)
    a(f"buffer_load_dword v{t}, v{t+1}, s[56:59], 0 offen sc1")
    a.label(L + "_chk")
    a("s_waitcnt vmcnt(0)")
    a(f"v_readfirstlane_b32 s62, v{t}")
    a("s_cmp_lg_u32 s62, 0")
    a(f"s_cbranch_scc1 {L}_ok")
    a(f"s_sleep {sleep}")
    a("s_sub_u32 s83, s83, 1")
    a(f"s_cbranch_scc0 {L}")
    a.label(L + "_ok")

def vpoll(a, offs, target, t=10, sleep=1):
    L = uid("L_vp")
    a(f"v_mov_b32 v{t+1}, s{offs[0]}")
    for i, o in enumerate(offs[1:], 1):
        a(f"v_writelane_b32 v{t+1}, s{o}, {i}")
    a(f"s_mov_b32 s62, {WS_FL}")
    a("s_mov_b32 s83, 0x40000")
    a(f"s_mov_b64 exec, {(1 << len(offs)) - 1}")
    a.label(L)
    a(f"buffer_load_dword v{t}, v{t+1}, s[32:35], s62 offen sc1")
    a("s_waitcnt vmcnt(0)")
    a(f"v_cmp_gt_u32 vcc, {target}, v{t}")
    a(f"s_cbranch_vccz {L}_ok")
    a(f"s_sleep {sleep}")
    a("s_sub_u32 s83, s83, 1")
    a(f"s_cbranch_scc0 {L}")
    a.label(L + "_ok")
    a("s_mov_b64 exec, -1")

def cadd(a, base, idx_sgpr, t=10):
    a(f"s_lshl_b32 s62, s{idx_sgpr}, 7")
    a(f"s_add_u32 s62, s62, {WS_FL + base * 128}")
    a(f"v_mov_b32 v{t}, 1")
    a(f"v_mov_b32 v{t+1}, 0")
    a("s_mov_b64 exec, 1")
    a(f"buffer_atomic_add v{t}, v{t+1}, s[32:35], s62 offen sc1")
    a("s_mov_b64 exec, -1")

def cpoll(a, offs, target, sleep=1):
    L = uid("L_cp")
    a("s_mov_b32 s83, 0x40000")
    a.label(L)
    for i, o in enumerate(offs):
        a(f"s_load_dword s{88+i}, s[60:61], s{o} glc")
    a("s_waitcnt lgkmcnt(0)")
    for i in range(1, len(offs)):
        a(f"s_min_u32 s88, s88, s{88+i}")
    a(f"s_cmp_ge_u32 s88, {target}")
    a(f"s_cbranch_scc1 {L}_ok")
    a(f"s_sleep {sleep}")
    a("s_sub_u32 s83, s83, 1")
    a(f"s_cbranch_scc0 {L}")
    a.label(L + "_ok")


WS_EX = 0x1500000
F_EX = WS_FL + 0x50000
class FIN2(FIN):
    BOFF = 2
    def roles(self):
        a = self.a
        a("s_and_b32 s46, s25, 1")
        a("s_bfe_u32 s3, s25, 0x10001")
        a("s_and_b32 s58, s27, 1")
        a("s_xor_b32 s57, s3, s58")
        a("s_lshr_b32 s47, s25, 2")
        a("s_lshl_b32 s3, s57, 1")
        a("s_add_u32 s47, s47, s3")
        a("s_lshl_b32 s56, s47, 1")
        a("s_add_u32 s56, s56, s46")
    def setup(self, zero_acc=True):
        a = self.a
        FIN.setup(self, zero_acc)
        a("s_lshr_b32 s3, s27, 1")
        a("s_lshl_b32 s3, s3, 2")
        a("s_and_b32 s45, s25, 3")
        a("s_add_u32 s3, s3, s45")
        a("s_mul_i32 s40, s3, 98304")
        a("s_mul_i32 s3, s58, 49152")
        a("s_add_u32 s40, s40, s3")
        a("s_lshl_b32 s3, s48, 11")
        a("s_add_u32 s40, s40, s3")
        a(f"s_add_u32 s40, s40, {WS_H}")
        a(f"s_mul_i32 s3, s58, {768*1280}")
        a("s_add_u32 s41, s41, s3")
        a("s_mul_i32 s3, s57, 10240")
        a(f"v_subrev_u32 v{self.TD}, s3, v{self.TD}")
        a("s_and_b32 s3, s56, 3")
        a("s_mul_i32 s59, s3, 5120")
        a("s_and_b32 s3, s2, 255")
        a("s_mul_i32 s3, s3, 20480")
        a("s_add_u32 s59, s59, s3")
        a(f"s_add_u32 s59, s59, {WS_EX}")
    def hload(self, m):
        r = self.XF + 8 * (m % 4)
        for th in range(2):
            self.a(f"buffer_load_dwordx4 v[{r+4*th}:{r+4*th+3}], v3, s[32:35], s40 offen offset:{256*th}{cfg.sc}")
            for q in self.q: q.append(("X", m))
        self.a("s_add_u32 s40, s40, 4096")
    def down(self, npre=4):
        a = self.a
        for m in range(2): self.hload(m)
        nw, nh = npre, 2
        TD2 = 15
        a(f"v_add_u32 v{TD2}, 40960, v{self.TD}")
        def reads(i):
            buf = (i // 2 + self.BOFF) % 4
            base = self.TD if buf < 2 else TD2
            self.wreads(self.WF + 20 * (i % 2), base, (buf % 2) * 20480 + (i % 2) * 10240, 1280)
        self.wait2([("W", 0)])
        a("s_barrier")
        stamp(a, 9)
        reads(0)
        for i in range(12):
            if i + 1 < 12:
                if i % 2 == 1:
                    sl = i // 2
                    self.wait2([("W", sl + 1)], "lgkmcnt(0)")
                    a("s_barrier")
                    reads(i + 1)
                    for _ in range(2):
                        if nw <= sl + 4 and nw < 6:
                            self.dma_wd(nw); nw += 1
                    if sl == 3:
                        self.wo_dma((0, 8), 0, 0)
                        for q in self.q: q += [("O", 0)] * 5
                    if sl == 4:
                        self.wo_dma((0, 4), 8, 8)
                        self.q[0] += [("O", 1)] * 5
                    self.wait2([("X", i)])
                else:
                    reads(i + 1)
                    self.wait2([("X", i)], "lgkmcnt(10)")
            else:
                self.wait2([("X", i)], "lgkmcnt(0)")
            self.mfmas(self.WF + 20 * (i % 2), self.XF + 8 * (i % 4))
            for _ in range(2):
                if nh <= i + 4 and nh < 12:
                    self.hload(nh); nh += 1
        stamp(a, 10)
        a("s_cmp_eq_u32 s57, 0")
        a("s_cbranch_scc1 L_fin_keep")
        a("s_add_u32 s3, s59, 4096")
        a("s_nop 4")
        for j in range(20):
            a(f"v_cvt_pk_bf16_f32 v{self.XF+j}, v{self.ACC+2*j}, v{self.ACC+2*j+1}")
            if j % 4 == 3:
                k = j // 4
                so, off = ("s59", 1024 * k) if k < 4 else ("s3", 0)
                a(f"buffer_store_dwordx4 v[{self.XF+4*k}:{self.XF+4*k+3}], v9, s[32:35], {so} offen offset:{off}{cfg.sc}")
        a.label("L_fin_keep")
    def receive(self):
        a = self.a
        a("s_cmp_eq_u32 s57, 0")
        a("s_cbranch_scc1 L_fin_got")
        a("s_bitcmp1_b32 s2, 3")
        a("s_cselect_b32 s3, -8, 8")
        a("s_mul_i32 s3, s3, 20480")
        a("s_add_u32 s59, s59, s3")
        a("s_add_u32 s3, s59, 4096")
        for k in range(5):
            so, off = ("s59", 1024 * k) if k < 4 else ("s3", 0)
            a(f"buffer_load_dwordx4 v[{self.XF+4+4*k}:{self.XF+7+4*k}], v9, s[32:35], {so} offen offset:{off}{cfg.sc}")
        a("s_waitcnt vmcnt(0)")
        for j in range(20):
            a(f"v_lshlrev_b32 v{self.ACC+2*j}, 16, v{self.XF+4+j}")
            a(f"v_and_b32 v{self.ACC+2*j+1}, 0xffff0000, v{self.XF+4+j}")
        a.label("L_fin_got")
```

```python
import sys, os
sys.path.insert(0, os.path.dirname(__file__))
from common import *
import roles
from roles import *
from gen2 import prologue, flush_attn

HEADER = open(os.path.join(os.path.dirname(__file__), "header.txt")).read()
PRE_DMA = int(os.environ.get("PRE_DMA", "0"))

def get_nonce(a, is_a, pre=True):
    srd(a, 56, S_DBG, 256)
    L = uid("L_nonce")
    if is_a:
        if pre: a("s_add_u32 s3, s2, s25")
        a("s_cmp_lg_u32 s3, 0")
        a(f"s_cbranch_scc1 {L}")
        a("s_memrealtime s[60:61]")
        a("s_waitcnt lgkmcnt(0)")
        a("s_or_b32 s60, s60, 1")
        a("s_or_b32 s61, s61, 0x9e370000")
        a("v_mov_b32 v10, s60")
        a("v_mov_b32 v11, s61")
        a("v_mov_b32 v12, 0")
        a("s_mov_b64 exec, 1")
        a("buffer_store_dwordx2 v[10:11], v12, s[56:59], 0 offen sc1")
        a("s_mov_b64 exec, -1")
    a.label(L)

def wait_nonce(a, first_issued=False, t=10, sleep=1):
    L = uid("L_wn")
    ad = 12 if t == 10 else 0
    a("s_mov_b32 s83, 0x40000")
    if first_issued:
        a(f"s_branch {L}_chk")
    else:
        a(f"v_mov_b32 v{ad}, 0")
    a.label(L)
    a(f"buffer_load_dwordx2 v[{t}:{t+1}], v{ad}, s[56:59], 0 offen sc1")
    a.label(L + "_chk")
    a("s_waitcnt vmcnt(0)")
    a(f"v_readfirstlane_b32 s60, v{t}")
    a(f"v_readfirstlane_b32 s61, v{t+1}")
    a("s_min_u32 s62, s60, s61")
    a("s_cmp_lg_u32 s62, 0")
    a(f"s_cbranch_scc1 {L}_ok")
    a(f"s_sleep {sleep}")
    a("s_sub_u32 s83, s83, 1")
    a(f"s_cbranch_scc0 {L}")
    a.label(L + "_ok")

XSH = 3 if int(os.environ.get("Q2", "0")) else int(os.environ.get("XSH", "7"))
def flag_addr(a, vd, base, s_first, mask):
    a(f"v_and_b32 v{vd}, {mask}, v2")
    a(f"v_add_u32 v{vd}, s{s_first}, v{vd}")
    a(f"v_lshlrev_b32 v{vd}, {XSH if base == F_XN else FSH}, v{vd}")
    a(f"v_add_u32 v{vd}, {base}, v{vd}")

def wave0(a, fn):
    L = uid("L_w0")
    a("s_cmp_lg_u32 s25, 0")
    a(f"s_cbranch_scc1 {L}")
    fn()
    a.label(L)

def warm_weights(a, part, w0=1):
    a("s_sub_u32 s50, s2, 256")
    L = uid("L_warm")
    if part == 0:
        spec = [(S_WQKV, 2457600, 4800, 0), (S_WQKV, 2457600, 4800, 1228800)]
        if PRE_DMA: spec += [(S_WG, 1966080, 1536 * PRE_DMA, 0), (S_WU, 1966080, 1536 * PRE_DMA, 0)]
    else:
        spec = [(S_WD, 1966080, 3840, 0), (S_WD, 1966080, 3840, 983040), (S_WO, 819200, 3200, 0)]
    for w, (ptr, size, per, base) in enumerate(spec):
        a(f"s_cmp_lg_u32 s25, {w + w0}")
        a(f"s_cbranch_scc1 {L}_{w}")
        srd(a, 36, ptr, size)
        a(f"s_mul_i32 s51, s50, {per}")
        if base: a(f"s_add_u32 s51, s51, {base}")
        n = (per + 1023) // 1024
        for i in range(n):
            if i == 4: a("s_add_u32 s51, s51, 4096")
            r = 96 + 4 * (i % 8) if part == 0 else 120
            a(f"buffer_load_dwordx4 v[{r}:{r+3}], v9, s[36:39], s51 offen offset:{1024*(i%4)}")
        if part == 0: a("s_waitcnt vmcnt(0)")
        a.label(f"{L}_{w}")

def code_prefetch(a):
    L = uid("L_cpf")
    a("s_cmp_ge_u32 s2, 264")
    a(f"s_cbranch_scc1 {L}")
    a("s_cmp_lg_u32 s25, 7")
    a(f"s_cbranch_scc1 {L}")
    a("s_getpc_b64 s[50:51]")
    a.label(L + "_pc")
    a(f"s_sub_u32 s50, s50, {L}_pc-{NAME}_kernel")
    a("s_subb_u32 s51, s51, 0")
    a(f"s_mov_b32 s52, (L_end-{NAME}_kernel)/1024")
    a("v_mov_b32 v10, v9")
    a.label(L + "_l")
    a("global_load_dwordx4 v[96:99], v10, s[50:51]")
    a("v_add_u32 v10, 1024, v10")
    a("s_sub_u32 s52, s52, 1")
    a("s_cmp_lg_u32 s52, 0")
    a(f"s_cbranch_scc1 {L}_l")
    a("s_waitcnt vmcnt(0)")
    a.label(L)

def l2_prefetch(a):
    a("s_cmp_ge_u32 s49, 240")
    a("s_cbranch_scc1 L_b_pf_done")
    a("s_mov_b32 s62, s2")
    a("s_mov_b32 s2, s49")
    qkv2_decode(a)
    a("s_mov_b32 s2, s62")
    srd(a, 28, S_WQKV, 2457600)
    srd(a, 36, S_X, 2621440)
    a("v_lshrrev_b32 v10, 4, v2")
    a("v_and_b32 v11, 15, v2")
    a("v_lshlrev_b32 v11, 4, v11")
    a("s_movk_i32 s3, 1280")
    a("v_mad_u32_u24 v12, v10, s3, v11")
    a("s_movk_i32 s3, 3840")
    a("v_mad_u32_u24 v13, v10, s3, v11")
    a("s_sub_u32 s50, s25, 2")
    a("s_mul_i32 s51, s26, 163840")
    a("s_lshl_b32 s3, s27, 8")
    a("s_add_u32 s51, s51, s3")
    a("s_mul_i32 s3, s50, 5120")
    a("s_add_u32 s51, s51, s3")
    a("s_mul_i32 s3, s26, 43")
    a("s_lshr_b32 s3, s3, 8")
    a("s_mul_i32 s3, s3, 6")
    a("s_sub_u32 s3, s26, s3")
    a(f"s_mul_i32 s52, s3, {108*3840}")
    a("s_lshl_b32 s3, s47, 8")
    a("s_add_u32 s52, s52, s3")
    a("s_mul_i32 s3, s50, 15360")
    a("s_add_u32 s52, s52, s3")
    for i in range(6):
        if i < 5:
            a(f"buffer_load_dwordx4 v[{16+8*i}:{19+8*i}], v13, s[28:31], s52 offen")
            a(f"s_add_u32 s52, s52, {6*15360}")
        if i == 5:
            a("s_cmp_ge_u32 s50, 2")
            a("s_cbranch_scc1 L_b_pf_w")
        a(f"buffer_load_dwordx4 v[{20+8*i}:{23+8*i}], v12, s[36:39], s51 offen")
        a(f"s_add_u32 s51, s51, {6*5120}")
    a.label("L_b_pf_w")
    a("s_waitcnt vmcnt(0)")

def gen_fused():
    cfg.fused = True; cfg.sc = " sc1"
    a = Asm()
    if os.environ.get("FLOOR0") or os.environ.get("PROBE"): a("s_memrealtime s[92:93]")
    FASTP = int(os.environ.get("FASTP", "0")) and not int(os.environ.get("Q2", "0"))
    if FASTP:
        stamp_start(a)
        load_args(a)
        a("s_lshl_b32 s3, s2, 3")
        a("v_lshrrev_b32 v3, 4, v0")
        a("v_add_u32 v3, s3, v3")
        a("v_mul_u32_u24 v3, 1280, v3")
        a("v_and_b32 v4, 15, v0")
        a("v_lshl_add_u32 v3, v4, 4, v3")
        a("v_lshrrev_b32 v1, 6, v0")
        a("s_mov_b32 s38, 2621440")
        a("s_mov_b32 s39, 0x00020000")
        a("v_readfirstlane_b32 s25, v1")
        a("s_lshr_b32 s3, s2, 7")
        a("s_or_b32 s3, s3, s25")
        a("s_cmp_ge_u32 s3, 2")
        a("s_waitcnt lgkmcnt(0)")
        a("s_mov_b64 s[36:37], s[4:5]")
        a("s_cbranch_scc1 L_nox")
        for i in range(5):
            a(f"buffer_load_dwordx4 v[{16+4*i}:{19+4*i}], v3, s[36:39], 0 offen offset:{256*i}")
        a.label("L_nox")
        a("s_cmp_ge_u32 s2, 512")
        a("s_cbranch_scc1 L_end")
        a("v_and_b32 v2, 63, v0")
        a("v_lshlrev_b32 v9, 4, v2")
        srd(a, 32, S_WS, WS_SIZE)
    else:
        prologue(a, 512, "L_end")
    a("s_cmp_ge_u32 s2, 256")
    a("s_cbranch_scc1 L_roleB")
    Q2 = int(os.environ.get("Q2", "0"))
    HYB = int(os.environ.get("HYB", "0"))
    BTRIG = os.environ.get("BTRIG", "qkv")
    if Q2:
        srd(a, 56, S_DBG, 256)
        a("s_cmp_ge_u32 s2, 240")
        a("s_cbranch_scc1 L_a_spare")
        qkv2_decode(a)
        def nonce_check(t):
            L = uid("L_nc")
            a(f"v_readfirstlane_b32 s60, v{t}")
            a(f"v_readfirstlane_b32 s61, v{t+1}")
            a("s_min_u32 s62, s60, s61")
            a("s_cmp_lg_u32 s62, 0")
            a(f"s_cbranch_scc1 {L}")
            wait_nonce(a, t=t)
            a.label(L)
        if BTRIG == "loop": roles.qkv_hook = lambda: wave0(a, lambda: publish(a, F_QL, 2, t=94))
        if BTRIG == "attn": roles.attn_hook = lambda: wave0(a, lambda: publish(a, F_QL, 2))
        if BTRIG == "issue": roles.attn_hook0 = lambda: wave0(a, lambda: publish(a, F_QL, 2))
        qkv2(a, nonce_check)
    else:
        DRY = int(os.environ.get("DRY", "1"))
        WLATE = int(os.environ.get("WLATE", "1"))
        a("s_cmp_ge_u32 s25, 2")
        a("s_cbranch_scc1 L_a_noln")
        if not FASTP: ln_issue(a)
        get_nonce(a, True)
        if not WLATE: a("s_barrier")
        ln_addr(a)
        a("s_waitcnt vmcnt(0)")
        stamp(a, 1)
        if WLATE == 2: a("s_barrier")
        a("v_mov_b32 v12, 0")
        a("buffer_load_dwordx2 v[10:11], v12, s[56:59], 0 offen sc1")
        a.label("L_a_lnbody")
        ln_body(a)
        if DRY:
            a("s_cmp_ge_u32 s25, 2")
            a("s_cbranch_scc1 L_a_dry_done")
        ln_store(a)
        if WLATE == 1: a("s_barrier")
        stamp(a, 2)
        wait_nonce(a, first_issued=True)
        stamp(a, 3)
        a("s_lshl_b32 s63, s2, 1")
        a("s_add_u32 s63, s63, s25")
        publish(a, F_XN, 63, sh=XSH)
        a("s_branch L_a_ln_done")
        a.label("L_a_noln")
        PWV = int(os.environ.get("PWV", "7"))
        a(f"s_cmp_lg_u32 s25, {PWV}")
        a("s_cbranch_scc1 L_a_non2")
        srd(a, 56, S_DBG, 256)
        wait_nonce(a, sleep=6)
        a.label("L_a_non2")
        W1 = int(os.environ.get("W1", "0"))
        if W1:
            a("s_cmp_lt_u32 s25, 4")
            a("s_cbranch_scc1 L_a_now1")
            a("s_cmp_ge_u32 s2, 240")
            a("s_cbranch_scc1 L_a_now1")
            qkv_decode(a)
            qkv_wdma(a, 0, W1)
            a.label("L_a_now1")
        if int(os.environ.get("TLB", "0")):
            a("s_cmp_lg_u32 s25, 3")
            a("s_cbranch_scc1 L_a_notlb")
            a("v_min_u32 v10, 10, v2")
            a("v_lshlrev_b32 v10, 21, v10")
            a("buffer_load_dword v11, v10, s[32:35], 0 offen")
            a.label("L_a_notlb")
        if DRY:
            if not WLATE: a("s_barrier")
            a("s_cmp_eq_u32 s25, 2")
            a("s_cbranch_scc1 L_a_lnbody")
            a.label("L_a_dry_done")
            a("s_waitcnt lgkmcnt(0)")
            if WLATE: a("s_barrier")
        else:
            a("s_barrier")
        a.label("L_a_ln_done")
        a("s_cmp_ge_u32 s2, 240")
        a("s_cbranch_scc1 L_a_spare")
        qkv_decode(a)
        a("s_cmp_lt_u32 s25, 4")
        a("s_cbranch_scc1 L_a_nodma")
        qkv_wdma(a, W1, 20)
        if PWV == 7:
            a("s_cmp_lg_u32 s25, 7")
            a("s_cbranch_scc1 L_a_nodma")
            a("s_and_b32 s63, s46, 7")
            a("s_lshl_b32 s63, s63, 6")
            flag_addr(a, 0, F_XN, 63, 63)
            a("buffer_load_dwordx2 v[126:127], v0, s[32:35], 0 offen sc1")
        a.label("L_a_nodma")
        def gate():
            L = uid("L_w2")
            if PWV == 2:
                a("s_cmp_lt_u32 s25, 4")
                a(f"s_cbranch_scc1 {L}_a")
                a("s_waitcnt vmcnt(0)")
                a.label(L + "_a")
            if os.environ.get("LNSTAMP"): stamp(a, 10)
            a(f"s_cmp_lg_u32 s25, {PWV}")
            a(f"s_cbranch_scc1 {L}")
            if PWV == 7:
                a("s_waitcnt vmcnt(0)")
                a("v_cmp_ne_u64 vcc, s[60:61], v[126:127]")
                a(f"s_cbranch_vccz {L}")
                a("s_mov_b64 exec, vcc")
            else:
                a("s_and_b32 s63, s46, 7")
                a("s_lshl_b32 s63, s63, 6")
                flag_addr(a, 0, F_XN, 63, 63)
            poll(a, 0, 126, direct=bool(int(os.environ.get("XDIRECT", "1"))), sleep2=int(os.environ.get("XSLEEP", "1")))
            a.label(L)
            if PWV != 2:
                a("s_cmp_lt_u32 s25, 4")
                a(f"s_cbranch_scc1 {L}_a")
                a("s_waitcnt vmcnt(0)")
                a.label(L + "_a")
            if os.environ.get("LNSTAMP"): stamp(a, 5)
            a("s_barrier")
            stamp(a, 4)
        BTRIG = os.environ.get("BTRIG", "qkv")
        if BTRIG == "loop": roles.qkv_hook = lambda: wave0(a, lambda: publish(a, F_QL, 2))
        if BTRIG == "attn": roles.attn_hook = lambda: wave0(a, lambda: publish(a, F_QL, 2))
        if BTRIG == "issue": roles.attn_hook0 = lambda: wave0(a, lambda: publish(a, F_QL, 2))
        if HYB: roles.attn_hook0 = lambda: wave0(a, lambda: publish(a, F_EX, 2))
        qkv_main(a, gate)
    a("s_setprio 3")
    a("s_waitcnt vmcnt(0)")
    stamp(a, 8)
    for _ in range(int(os.environ.get("DELAY", "0"))): a("s_sleep 32")
    a("s_barrier")
    wave0(a, lambda: publish(a, F_QKV, 46, sh=QSH))
    if BTRIG == "qkv": wave0(a, lambda: publish(a, F_QL, 2))
    a("s_branch L_a_attn")
    a.label("L_a_spare")
    if Q2:
        a("s_lshl_b32 s3, s2, 3")
        a("s_add_u32 s3, s3, s25")
        a("s_sub_u32 s3, s3, 1920")
        get_nonce(a, True, pre=False)
        wave0(a, lambda: wait_nonce(a, sleep=4))
    if int(os.environ.get("WARM", "1")) == 1:
        if int(os.environ.get("SPDELAY", "1")):
            def f():
                a("s_and_b32 s63, s2, 7")
                a("s_lshl_b32 s63, s63, 6")
                flag_addr(a, 12, F_XN, 63, 63)
                poll(a, 12, sleep=4)
            wave0(a, f)
            a("s_barrier")
        a("s_cmp_ge_u32 s25, 4")
        a(f"s_cselect_b32 s36, s{S_WU}, s{S_WG}")
        a(f"s_cselect_b32 s37, s{S_WU+1}, s{S_WG+1}")
        a("s_mov_b32 s38, 1966080")
        a("s_mov_b32 s39, 0x00020000")
        a("s_and_b32 s3, s25, 3")
        a("s_sub_u32 s50, s2, 240")
        a("s_lshl_b32 s50, s50, 2")
        a("s_add_u32 s50, s50, s3")
        a("s_lshl_b32 s50, s50, 10")
        if PRE_DMA: a(f"s_add_u32 s50, s50, {PRE_DMA * 393216}")
        for i in range(min(int(os.environ.get("SPN", "18")), 30 - 6 * PRE_DMA)):
            a(f"buffer_load_dwordx4 v[{16+4*(i%16)}:{19+4*(i%16)}], v9, s[36:39], s50 offen")
            a("s_add_u32 s50, s50, 65536")
        a("s_waitcnt vmcnt(0)")
    a("s_setprio 3")
    a.label("L_a_attn")
    attn_decode(a)
    def f():
        if Q2:
            attn_flag_addr2(a, 14)
            poll(a, 14)
            poll(a, 15, direct=True)
        else:
            attn_flag_addr(a, 14)
            poll(a, 14, direct=bool(int(os.environ.get("DIRECT", "0"))))
    wave0(a, f)
    a("s_barrier")
    stamp(a, 9)
    attn_main(a)
    a("s_waitcnt vmcnt(0)")
    stamp(a, 12)
    a("s_barrier")
    def f():
        a("s_lshl_b32 s63, s27, 5")
        a("s_add_u32 s63, s63, s24")
        publish(a, F_O, 63)
    wave0(a, f)
    flush_attn(a, 0)
    probe_floor(a)
    dbg_flush(a, 8, [int(x) for x in os.environ.get('DBGA', '1,4,6,9,10,11,12').split(',')], 2)
    a("s_endpgm")
    a.label("L_roleB")
    ROLE[0] = "B"
    if os.environ.get("FLOOR") and not os.environ.get("FLOOR0"):
        a("s_memrealtime s[92:93]")
        a("s_waitcnt lgkmcnt(0)")
    if Q2:
        srd(a, 56, S_DBG, 256)
        a("s_sub_u32 s49, s2, 256")
        roles.LNWG[0] = "s49"
        a("s_cmp_ge_u32 s25, 2")
        a("s_cbranch_scc1 L_b_noln")
        ln_issue(a)
        ln_addr(a)
        a("s_waitcnt vmcnt(0)")
        a("s_barrier")
        a("v_mov_b32 v12, 0")
        a("buffer_load_dwordx2 v[10:11], v12, s[56:59], 0 offen sc1")
        ln_body(a)
        ln_store(a)
        ln_stats(a)
        wait_nonce(a, first_issued=True)
        a("s_lshl_b32 s63, s49, 1")
        a("s_add_u32 s63, s63, s25")
        publish(a, F_XN, 63, sh=3)
        stamp(a, 1)
        a("s_branch L_b_pf_done")
        a.label("L_b_noln")
        warm_weights(a, 0, w0=2)
        a("s_barrier")
        if int(os.environ.get("L2PF", "1")): l2_prefetch(a)
        a.label("L_b_pf_done")
    gu_decode(a)
    g = (GU16 if XSWAP else GU)(a)
    WARM = int(os.environ.get("WARM", "1"))
    if int(os.environ.get("CODEPF", "1")): code_prefetch(a)
    if WARM and int(os.environ.get('WARMQ', '1')) and not Q2: warm_weights(a, 0)
    def f():
        get_nonce(a, False)
        wait_nonce(a, sleep=16)
    if not Q2: wave0(a, f)
    g.setup()
    if PRE_DMA:
        def f():
            a("s_sub_u32 s63, s2, 256")
            a("s_lshl_b32 s63, s63, 1")
            flag_addr(a, 0, F_XN, 63, 0)
            poll(a, 0, sleep=3, single=True)
        wave0(a, f)
        a("s_barrier")
        for st in range(PRE_DMA): g.dma_stage(st)
    def f():
        if BTRIG not in ("attn", "issue"):
            a("s_lshl_b32 s63, s27, 6")
            flag_addr(a, 0, F_XN, 63, 63)
            poll(a, 0, sleep=8 if BTRIG != "xn" else 3)
        if BTRIG not in ("attn", "xn", "issue"):
            a("s_cmp_ge_u32 s2, 496")
            a("s_cbranch_scc1 L_b_noql")
        if BTRIG == "xn": return
        a("s_sub_u32 s63, s2, 256")
        if os.environ.get("SQL", "1") == "1":
            a(f"s_lshl_b32 s63, s63, {FSH}")
            a(f"s_add_u32 s63, s63, {F_QL}")
            a("s_mov_b32 s83, 0x40000")
            a.label("L_b_sq")
            a(f"s_load_dwordx2 s[88:89], s[{S_WS}:{S_WS+1}], s63 glc")
            a("s_waitcnt lgkmcnt(0)")
            a("s_cmp_eq_u64 s[88:89], s[60:61]")
            a("s_cbranch_scc1 L_b_noql")
            a(f"s_sleep {os.environ.get('BSLEEP', '4')}")
            a("s_sub_u32 s83, s83, 1")
            a("s_cbranch_scc0 L_b_sq")
        else:
            flag_addr(a, 0, F_QL, 63, 0)
            poll(a, 0, sleep=int(os.environ.get("BSLEEP", "4")), single=True)
        a.label("L_b_noql")
    wave0(a, f)
    a("s_barrier")
    stamp(a, 2)
    a(f"s_setprio {os.environ.get('PG', '0')}")
    def warm2():
        srd(a, 36, S_WD, 1966080)
        srd(a, 52, S_WO, 819200)
        a("s_sub_u32 s50, s2, 256")
        a("s_lshl_b32 s50, s50, 3")
        a("s_add_u32 s50, s50, s25")
        a("s_mul_i32 s51, s50, 960")
        a("s_mul_i32 s50, s50, 400")
        g.vm.issue("buffer_load_dwordx4 v[120:123], v9, s[36:39], s51 offen", ("P", 0))
        g.vm.issue("buffer_load_dwordx4 v[124:127], v9, s[52:55], s50 offen", ("P", 1))
    def gate2():
        def f():
            a("s_sub_u32 s63, s2, 256")
            a(f"s_lshl_b32 s63, s63, {FSH}")
            a(f"s_add_u32 s63, s63, {F_EX}")
            a("s_mov_b32 s83, 0x40000")
            a.label("L_b_s2")
            a(f"s_load_dwordx2 s[88:89], s[{S_WS}:{S_WS+1}], s63 glc")
            a("s_waitcnt lgkmcnt(0)")
            a("s_cmp_eq_u64 s[88:89], s[60:61]")
            a("s_cbranch_scc1 L_b_s2ok")
            a("s_sleep 2")
            a("s_sub_u32 s83, s83, 1")
            a("s_cbranch_scc0 L_b_s2")
            a.label("L_b_s2ok")
        wave0(a, f)
    if HYB: g.main(PRE_DMA, warm2 if WARM == 1 else None, gate2)
    else: g.main(PRE_DMA, warm2 if WARM == 1 else None)
    a("s_lshl_b32 s63, s27, 5")
    a("s_add_u32 s63, s63, s24")
    fin_decode(a)
    SK = int(os.environ.get("SK", "0"))
    fn = (FIN2 if SK else FIN)(a); fn.setup(zero_acc=False)
    a("s_waitcnt vmcnt(0)")
    if os.environ.get("LNSTAMP"): stamp(a, 1)
    a("s_barrier")
    wave0(a, lambda: publish(a, F_H, 63, t=56))
    NPRE = int(os.environ.get("NPRE", "4"))
    for m in range(NPRE): fn.dma_wd(m)
    fn.zero_acc()
    def f():
        a("s_lshr_b32 s63, s27, 2")
        a("s_lshl_b32 s63, s63, 5")
        if SK:
            a("s_lshl_b32 s3, s58, 4")
            a("s_add_u32 s62, s63, s3")
            flag_addr(a, 0, F_H, 62, 15)
        else:
            flag_addr(a, 0, F_H, 63, 31)
        poll(a, 0, 56, direct=bool(int(os.environ.get("HDIRECT", "1"))))
    wave0(a, f)
    a("s_barrier")
    stamp(a, 8)
    a(f"s_setprio {os.environ.get('PD', '0')}")
    fn.down(NPRE)
    if int(os.environ.get("PW", "1")): a("s_setprio 3")
    if SK:
        def pub():
            a("s_and_b32 s45, s2, 255")
            wave0(a, lambda: publish(a, F_EX, 45, t=56))
        fn.wo_prefetch(pub)
        def f():
            a("s_xor_b32 s45, s45, 8")
            a(f"s_lshl_b32 s45, s45, {FSH}")
            a(f"s_add_u32 s45, s45, {F_EX}")
            a("s_mov_b32 s83, 0x40000")
            a.label("L_b_ex")
            a(f"s_load_dwordx2 s[88:89], s[{S_WS}:{S_WS+1}], s45 glc")
            a("s_waitcnt lgkmcnt(0)")
            a("s_cmp_eq_u64 s[88:89], s[60:61]")
            a("s_cbranch_scc1 L_b_exok")
            a("s_sleep 2")
            a("s_sub_u32 s83, s83, 1")
            a("s_cbranch_scc0 L_b_ex")
            a.label("L_b_exok")
        wave0(a, f)
        a("s_barrier")
        fn.receive()
    else:
        fn.wo_prefetch()
    a("s_setprio 3")
    def f():
        flag_addr(a, 58, F_O, 63, 31)
        poll(a, 58, 56, direct=bool(int(os.environ.get("ODIRECT", "0"))), sleep2=int(os.environ.get("OSLEEP", "1")))
    wave0(a, f)
    a("s_waitcnt vmcnt(0)")
    a("s_barrier")
    stamp(a, 11)
    fn.wo_main()
    probe_floor(a)
    if os.environ.get("FLOOR"):
        a.label("L_floor")
        a("s_memrealtime s[90:91]")
        a("s_waitcnt lgkmcnt(0)")
        a("s_sub_u32 s90, s90, s92")
        a(f"s_cmp_lt_u32 s90, {int(os.environ['FLOOR']) * 100}")
        a("s_cbranch_scc1 L_floor")
    stamp_flush(a, 0, 25)
    dbg_flush(a, 264, [int(x) for x in os.environ.get('DBGB', '2,3,6,8,10,11,13').split(',')], 9)
    a.label("L_end")
    a("s_endpgm")
    return a

def build_single(a):
    name = NAME + "_kernel"
    for p in check_program(a.lines): print("HAZARD", p)
    out = HEADER + "; @launch grid=(512,1,1) block=(512,1,1) lds=81920\n"
    out += '.amdgcn_target "amdgcn-amd-amdhsa--gfx950"\n.text\n' + kernel_header(name) + a.text()
    out += '.section .rodata,"a"\n' + kernel_desc(name, 128, 128)
    return out

if __name__ == "__main__":
    path = sys.argv[1] if len(sys.argv) > 1 else f"cdna_kernels/{NAME}.s"
    open(path, "w").write(build_single(gen_fused()))
    import subprocess
    r = subprocess.run(["clang", "-x", "assembler", "-target", "amdgcn-amd-amdhsa", "-mcpu=gfx950", "-c", path, "-o", "gen_check.o"], capture_output=True, text=True)
    if r.returncode: print(r.stderr[:1500])
    print("wrote", path, "OK" if r.returncode == 0 else "ASM FAILED")
```

```python
from common import *
from k_ln import ln_rows
import struct

def f2hex(x):
    return "0x%08x" % struct.unpack("<I", struct.pack("<f", x))[0]

QSCALE = (20 ** -0.5) * 1.4426950408889634
WS_FL = 0x1400000
FSH = int(os.environ.get("FSH", "7"))
F_XN, F_QKV, F_QL, F_H, F_O = WS_FL, WS_FL + 0x10000, WS_FL + 0x20000, WS_FL + 0x30000, WS_FL + 0x40000
QSH = int(os.environ.get("QSH", "7"))
OOB = 0x7ffffff0
WS_ST = 0x1480000

class Cfg:
    fused = False
    sc = ""
cfg = Cfg()

_uid = [0]
def uid(p):
    _uid[0] += 1
    return f"{p}{_uid[0]}"

def publish(a, base, idx_sgpr, t=10, sh=None):
    if not cfg.fused: return
    a(f"s_lshl_b32 s62, s{idx_sgpr}, {FSH if sh is None else sh}")
    a(f"s_add_u32 s62, s62, {base}")
    a("v_mov_b32 v0, 0")
    a(f"v_mov_b32 v{t}, s60")
    a(f"v_mov_b32 v{t+1}, s61")
    a("s_mov_b64 exec, 1")
    a(f"buffer_store_dwordx2 v[{t}:{t+1}], v0, s[32:35], s62 offen sc1")
    a("s_mov_b64 exec, -1")

def poll(a, vaddr, t=10, sleep=2, single=False, sleep2=1, direct=False, t2=None):
    if not cfg.fused: return
    L = uid("L_poll")
    a("s_mov_b32 s83, 0x40000")
    if not direct:
        a("s_mov_b64 exec, 1")
        a.label(L)
        a(f"buffer_load_dwordx2 v[{t}:{t+1}], v{vaddr}, s[32:35], 0 offen sc1")
        a("s_waitcnt vmcnt(0)")
        a(f"v_cmp_ne_u64 vcc, s[60:61], v[{t}:{t+1}]")
        a(f"s_cbranch_vccz {L}_1")
        a(f"s_sleep {sleep}")
        a("s_sub_u32 s83, s83, 1")
        a(f"s_cbranch_scc0 {L}")
        a.label(L + "_1")
    if not single and t2 is not None:
        if not direct: a("s_mov_b64 exec, -2")
        a(f"buffer_load_dwordx2 v[{t}:{t+1}], v{vaddr}, s[32:35], 0 offen sc1")
        a.label(L + "_2")
        for x, y in ((t, t2), (t2, t)):
            a(f"s_sleep {int(os.environ.get('PSL', '5'))}")
            a(f"buffer_load_dwordx2 v[{y}:{y+1}], v{vaddr}, s[32:35], 0 offen sc1")
            a("s_waitcnt vmcnt(1)")
            a(f"v_cmp_ne_u64 vcc, s[60:61], v[{x}:{x+1}]")
            a(f"s_cbranch_vccz {L}_ok")
            a("s_mov_b64 exec, vcc")
        a("s_sub_u32 s83, s83, 1")
        a(f"s_cbranch_scc0 {L}_2")
        a.label(L + "_ok")
        a("s_mov_b64 exec, -1")
        return
    if not single:
        if not direct: a("s_mov_b64 exec, -2")
        a.label(L + "_2")
        a(f"buffer_load_dwordx2 v[{t}:{t+1}], v{vaddr}, s[32:35], 0 offen sc1")
        a("s_waitcnt vmcnt(0)")
        a(f"v_cmp_ne_u64 vcc, s[60:61], v[{t}:{t+1}]")
        a(f"s_cbranch_vccz {L}_ok")
        a("s_mov_b64 exec, vcc")
        a(f"s_sleep {sleep2}")
        a("s_sub_u32 s83, s83, 1")
        a(f"s_cbranch_scc0 {L}_2")
        a.label(L + "_ok")
    a("s_mov_b64 exec, -1")

LNWG = ["s2"]
XSWAP = int(os.environ.get("GU16", "1"))
def ln_issue(a):
    a(f"s_lshl_b32 s3, {LNWG[0]}, 3")
    a("v_lshrrev_b32 v3, 4, v0")
    a("v_add_u32 v3, s3, v3")
    a("v_mul_u32_u24 v3, 1280, v3")
    a("v_and_b32 v4, 15, v0")
    a("v_lshl_add_u32 v3, v4, 4, v3")
    srd(a, 36, S_X, 2621440)
    for i in range(5):
        a(f"buffer_load_dwordx4 v[{16+4*i}:{19+4*i}], v3, s[36:39], 0 offen offset:{256*i}")

def ln_addr(a):
    a("v_and_b32 v4, 3, v2")
    a("v_lshrrev_b32 v5, 2, v2")
    a("v_lshl_add_u32 v6, v4, 4, v5")
    a("v_lshlrev_b32 v6, 2, v6")
    a(f"s_lshl_b32 s3, {LNWG[0]}, 3")
    a("s_lshl_b32 s26, s25, 2")
    a("s_add_u32 s3, s3, s26")
    a("s_lshr_b32 s26, s3, 5")
    a("s_mul_i32 s26, s26, 40960")
    a("s_and_b32 s3, s3, 31")
    a("s_lshl_b32 s3, s3, 4")
    a("s_add_u32 s26, s26, s3")
    a("v_lshrrev_b32 v7, 1, v5")
    a("v_lshlrev_b32 v7, 10, v7")
    a("v_and_b32 v5, 1, v5")
    a("v_lshl_add_u32 v7, v5, 9, v7")
    a("v_lshl_add_u32 v7, v4, 4, v7")
    a("v_add_u32 v7, s26, v7")
    for i in range(5):
        a(f"s_mov_b32 s{40+i}, {WS_XN + 8192*i}")

def ln_body(a):
    ln_rows(a, 16, 40, 80, None, None)
    for i in range(20):
        a(f"ds_bpermute_b32 v{40+i}, v6, v{16+i}")

def ln_finish(a):
    ln_addr(a)
    a("s_waitcnt vmcnt(0)")
    stamp(a, 1)
    ln_body(a)
    ln_store(a)

def ln_stats(a):
    a(f"s_lshl_b32 s3, {LNWG[0]}, 3")
    a("s_lshl_b32 s45, s25, 2")
    a("s_add_u32 s3, s3, s45")
    a("s_lshr_b32 s45, s3, 7")
    a("s_lshl_b32 s45, s45, 10")
    a("s_and_b32 s3, s3, 127")
    a("s_lshl_b32 s3, s3, 2")
    a("s_add_u32 s45, s45, s3")
    a(f"s_add_u32 s45, s45, {WS_ST}")
    a("v_lshrrev_b32 v4, 4, v2")
    a("v_lshlrev_b32 v4, 2, v4")
    a("s_mov_b32 exec_lo, 0x00010001")
    a("s_mov_b32 exec_hi, 0x00010001")
    a(f"buffer_store_dword v84, v4, s[32:35], s45 offen{cfg.sc}")
    a(f"buffer_store_dword v80, v4, s[32:35], s45 offen offset:512{cfg.sc}")
    a("s_mov_b64 exec, -1")

def ln_store(a):
    if XSWAP:
        a("v_and_b32 v4, 4, v2")
        a("v_cmp_ne_u32 vcc, 0, v4")
    for i in range(5):
        a(f"s_waitcnt lgkmcnt({min(15, 16-4*i)})")
        r = 40 + 4 * i
        if XSWAP:
            if i == 0: a("s_nop 0")
            for j in range(4):
                a(f"v_cndmask_b32 v{60+4*i+j}, v{r+j}, v{r+(j^2)}, vcc")
            r = 60 + 4 * i
        a(f"buffer_store_dwordx4 v[{r}:{r+3}], v7, s[32:35], s{40+i} offen{cfg.sc}")

qkv_hook = None
attn_hook = None
attn_hook0 = None
def qkv_decode(a):
    a("s_and_b32 s24, s2, 7")
    a("s_lshr_b32 s26, s2, 3")
    LM = int(os.environ.get("QMAP", "2"))
    a(f"s_lshr_b32 s27, s24, {LM}")
    a(f"s_lshl_b32 s27, s27, {LM}")
    a(f"s_and_b32 s24, s24, {(1 << LM) - 1}")
    a("s_mul_i32 s24, s24, 30")
    a("s_add_u32 s24, s24, s26")
    a(f"s_and_b32 s3, s24, {(1 << LM) - 1}")
    a("s_add_u32 s27, s27, s3")
    a(f"s_lshr_b32 s47, s24, {LM}")
    a("s_lshl_b32 s46, s47, 3")
    a("s_add_u32 s46, s46, s27")
    a("s_lshl_b32 s26, s27, 3")
    a("s_add_u32 s26, s26, s25")
    a("s_cmp_ge_u32 s47, 10")
    a("s_cselect_b32 s24, 1, 0")
    a("s_cmp_ge_u32 s47, 20")
    a("s_cselect_b32 s24, 2, s24")
    a("s_mul_i32 s3, s24, 10")
    a("s_sub_u32 s27, s47, s3")

def qkv_wdma(a, j0=0, j1=20, setup=True):
    if not setup:
        for j in range(j0, j1):
            a(f"s_add_u32 m0, s42, {4096*j}")
            a(f"s_add_u32 s3, s41, {4*30720*j}")
            a("buffer_load_dwordx4 v4, s[28:31], s3 offen lds")
        return
    srd(a, 28, S_WQKV, 2457600)
    a("v_lshrrev_b32 v4, 3, v2")
    a("v_bfe_u32 v5, v2, 2, 1")
    a("v_bfe_u32 v6, v2, 4, 1")
    a("v_xor_b32 v5, v5, v6")
    a("v_lshlrev_b32 v5, 6, v5")
    a("v_and_b32 v6, 3, v2")
    a("v_lshl_add_u32 v5, v6, 4, v5")
    a("s_movk_i32 s3, 3840")
    a("v_mad_u32_u24 v4, v4, s3, v5")
    a("s_sub_u32 s3, s25, 4")
    a("s_lshl_b32 s41, s47, 7")
    a("s_mul_i32 s42, s3, 30720")
    a("s_add_u32 s41, s41, s42")
    a("s_lshl_b32 s42, s3, 10")
    for j in range(j0, j1):
        a(f"s_add_u32 m0, s42, {4096*j}")
        a(f"s_add_u32 s3, s41, {4*30720*j}")
        a("buffer_load_dwordx4 v4, s[28:31], s3 offen lds")

def qkv_uaddr(a, T0, T1, U0, U1):
    if XSWAP:
        a(f"v_lshl_add_u32 v{T0}, v7, 9, v{T0}")
    a(f"v_xor_b32 v{T1}, 64, v{T0}")
    a(f"v_xor_b32 v{U0}, 512, v{T0}")
    a(f"v_xor_b32 v{U1}, 512, v{T1}")

def qkv_main(a, gate=None):
    ACC, XF, WF, AD = 16, 48, 96, 112
    XD = 12
    T0, T1, U0, U1 = 4, 5, 124, 125
    vm = VM(a)
    a("s_mul_i32 s40, s26, 40960")
    a(f"s_add_u32 s40, s40, {WS_XN}")
    def xload(s):
        r = XF + 4 * (s % XD)
        vm.issue(f"buffer_load_dwordx4 v[{r}:{r+3}], v9, s[32:35], s40 offen offset:{1024*(s%4)}{cfg.sc}", ("X", s))
        if s % 4 == 3: a("s_add_u32 s40, s40, 4096")
    X0 = int(os.environ.get("QX0", "4"))
    a("v_bfe_u32 v6, v2, 2, 2")
    a("v_lshrrev_b32 v7, 5, v2")
    a("v_lshl_add_u32 v8, v7, 3, v6")
    a("v_lshlrev_b32 v8, 7, v8")
    a("v_bfe_u32 v10, v2, 4, 1")
    a("v_lshl_add_u32 v8, v10, 5, v8")
    a("v_lshrrev_b32 v6, 1, v6")
    a("v_lshl_add_u32 v8, v6, 6, v8")
    a("v_and_b32 v10, 31, v2")
    for i in range(32):
        a(f"v_mov_b32 v{ACC+i}, 0")
    a("s_cmp_eq_u32 s24, 2")
    a("s_cbranch_scc1 L_qkv_V")
    a("v_and_b32 v11, 1, v2")
    a("v_lshlrev_b32 v11, 4, v11")
    a("v_bfe_u32 v12, v2, 1, 1")
    a("v_lshl_add_u32 v11, v12, 3, v11")
    a(f"v_add_u32 v{T0}, v8, v11")
    qkv_uaddr(a, T0, T1, U0, U1)
    a("s_lshl_b32 s45, s26, 10")
    a(f"s_add_u32 s45, s45, {WS_QM}")
    a("s_lshl_b32 s43, s26, 8")
    a(f"s_add_u32 s43, s43, {WS_QR}")
    a("s_mov_b32 s44, 65536")
    a("s_mov_b32 s42, 16384")
    a(f"s_mov_b32 s48, {f2hex(QSCALE)}")
    a("s_cmp_eq_u32 s24, 0")
    a("s_cbranch_scc1 L_qkv_isq")
    a("s_mul_i32 s45, s26, 2560")
    a(f"s_add_u32 s45, s45, {WS_KV}")
    a("s_add_u32 s43, s45, 1024")
    a("s_mov_b32 s44, 163840")
    a("s_mov_b32 s42, 163840")
    a("s_mov_b32 s48, 1.0")
    a.label("L_qkv_isq")
    a("s_mov_b32 s49, s48")
    a("s_lshl_b32 s3, s27, 3")
    a("v_add_u32 v11, s3, v7")
    a("v_lshl_add_u32 v12, v10, 4, s45")
    a("v_lshl_add_u32 v13, v10, 3, s43")
    a(f"s_mov_b32 s50, {OOB}")
    a("s_mov_b32 s51, 0")
    for q in range(4):
        a(f"v_add_u32 v14, {2*q}, v11")
        a("v_mul_u32_u24 v15, 205, v14")
        a("v_lshrrev_b32 v15, 10, v15")
        a("v_mul_u32_u24 v3, 5, v15")
        a("v_sub_u32 v14, v14, v3")
        a("v_lshlrev_b32 v15, 1, v15")
        a("v_mul_lo_u32 v3, v15, s42")
        a(f"v_add_u32 v{AD+3*q+1}, v3, v13")
        a(f"v_add_u32 v{AD+3*q+2}, s42, v{AD+3*q+1}")
        a("v_cmp_lt_u32 vcc, 2, v14")
        a("v_subrev_u32 v3, 3, v14")
        a("s_nop 0")
        a("v_addc_co_u32 v15, s[52:53], 0, v15, vcc")
        a("v_cndmask_b32 v3, v14, v3, vcc")
        a("v_mul_lo_u32 v15, v15, s44")
        a("v_lshl_add_u32 v3, v3, 9, v12")
        a("v_add_u32 v3, v3, v15")
        a("v_cmp_eq_u32 vcc, 2, v14")
        a("v_mov_b32 v15, s50")
        a("s_cmp_lg_u64 vcc, 0")
        a(f"s_cselect_b32 s3, {1 << q}, 0")
        a("s_or_b32 s51, s51, s3")
        a(f"v_cndmask_b32 v{AD+3*q}, v3, v15, vcc")
        a(f"v_cndmask_b32 v{AD+3*q+1}, v15, v{AD+3*q+1}, vcc")
        a(f"v_cndmask_b32 v{AD+3*q+2}, v15, v{AD+3*q+2}, vcc")
    def loop(vtype):
        vq = list(vm.q)
        if gate: gate()
        for s in range(X0): xload(s)
        def reads(s):
            w = WF + 8 * (s % 2)
            if s == 32:
                for r in (T0, T1, U0, U1):
                    a(f"v_add_u32 v{r}, 0x10000, v{r}")
            for ft in range(2):
                for u in range(2):
                    off = (16 * s * 128) % 65536
                    a(f"ds_read_b64_tr_b16 v[{w+4*ft+2*u}:{w+4*ft+2*u+1}], v{(U0 if u else T0)+ft} offset:{off}")
        reads(0)
        nx = X0
        for s in range(40):
            if s + 1 < 40:
                reads(s + 1)
                vm.wait(lambda t: t == ("X", s), "lgkmcnt(4)")
            else:
                vm.wait(lambda t: t == ("X", s), "lgkmcnt(0)")
            if s == 0 and not os.environ.get('LNSTAMP'): stamp(a, 5)
            w = WF + 8 * (s % 2); x = XF + 4 * (s % XD)
            for ft in range(2):
                W = f"v[{w+4*ft}:{w+4*ft+3}]"; X = f"v[{x}:{x+3}]"
                A, B = (X, W) if vtype else (W, X)
                D = f"v[{ACC+16*ft}:{ACC+16*ft+15}]"
                a(f"v_mfma_f32_32x32x16_bf16 {D}, {A}, {B}, {D}")
            for _ in range(2):
                if nx <= s + XD and nx < 40:
                    xload(nx); nx += 1
        vm.q = vq
        stamp(a, 6)
        if qkv_hook: qkv_hook()
    loop(False)
    a("s_nop 10")
    for q in range(4):
        r = ACC + 8 * q
        for i in range(0, 8, 2):
            a(f"v_pk_mul_f32 v[{r+i}:{r+i+1}], v[{r+i}:{r+i+1}], s[48:49]")
        for i in range(4):
            a(f"v_cvt_pk_bf16_f32 v{r+i}, v{r+2*i}, v{r+2*i+1}")
        a(f"buffer_store_dwordx4 v[{r}:{r+3}], v{AD+3*q}, s[32:35], 0 offen{cfg.sc}")
        L = uid("L_qr")
        a(f"s_bitcmp0_b32 s51, {q}")
        a(f"s_cbranch_scc1 {L}")
        a(f"buffer_store_dwordx2 v[{r}:{r+1}], v{AD+3*q+1}, s[32:35], 0 offen{cfg.sc}")
        a(f"buffer_store_dwordx2 v[{r+2}:{r+3}], v{AD+3*q+2}, s[32:35], 0 offen{cfg.sc}")
        a.label(L)
    a("s_branch L_qkv_done")
    a.label("L_qkv_V")
    a("v_and_b32 v11, 3, v2")
    a(f"v_lshl_add_u32 v{T0}, v11, 3, v8")
    qkv_uaddr(a, T0, T1, U0, U1)
    a("s_mul_i32 s45, s26, 2560")
    a(f"s_add_u32 s45, s45, {WS_KV + 1280}")
    a("s_lshl_b32 s3, s27, 6")
    a("v_add_u32 v10, s3, v10")
    a("v_mul_u32_u24 v11, 320, v7")
    a("v_add_u32 v11, s45, v11")
    a("s_mov_b32 s44, 163840")
    for ft in range(2):
        a(f"v_add_u32 v13, {32*ft}, v10")
        a("v_mul_u32_u24 v14, 3277, v13")
        a("v_lshrrev_b32 v14, 16, v14")
        a("v_mul_u32_u24 v15, 20, v14")
        a("v_sub_u32 v15, v13, v15")
        a("v_lshl_add_u32 v3, v15, 4, v11")
        a("v_mul_lo_u32 v14, v14, s44")
        a(f"v_add_u32 v{AD+ft}, v3, v14")
    loop(True)
    a("s_nop 10")
    for ft in range(2):
        for gm in range(2):
            r = ACC + 16 * ft + 8 * gm
            for i in range(4):
                a(f"v_cvt_pk_bf16_f32 v{r+i}, v{r+2*i}, v{r+2*i+1}")
            a(f"buffer_store_dwordx4 v[{r}:{r+3}], v{AD+ft}, s[32:35], 0 offen offset:{640*gm}{cfg.sc}")
    a.label("L_qkv_done")
    stamp(a, 7)

CHUNK = 20480
NBUF = 3
DELTA = 96.0
S0, S1, P, O0, O1, Q0, Q1, KA, KB, VA, VB = 16, 32, 48, 56, 72, 88, 94, 100, 106, 112, 120
AK, AKR, AV = 3, 4, 5

def rowmax16(a, S, d, t):
    a(f"v_max3_f32 v{d}, v{S}, v{S+1}, v{S+2}")
    a(f"v_max3_f32 v{t}, v{S+3}, v{S+4}, v{S+5}")
    a(f"v_max3_f32 v{d}, v{d}, v{S+6}, v{S+7}")
    a(f"v_max3_f32 v{t}, v{t}, v{S+8}, v{S+9}")
    a(f"v_max3_f32 v{d}, v{d}, v{S+10}, v{S+11}")
    a(f"v_max3_f32 v{t}, v{t}, v{S+12}, v{S+13}")
    a(f"v_max3_f32 v{d}, v{d}, v{S+14}, v{S+15}")
    a(f"v_max_f32 v{d}, v{d}, v{t}")
    a(f"v_mov_b32 v{t}, v{d}")
    a("s_nop 1")
    a(f"v_permlane32_swap_b32 v{d}, v{t}")
    a(f"v_max_f32 v{d}, v{d}, v{t}")

def attn_decode(a):
    a("s_and_b32 s24, s2, 7")
    a("s_lshr_b32 s27, s2, 3")
    a("s_lshl_b32 s24, s24, 2")
    a("s_lshr_b32 s3, s27, 3")
    a("s_add_u32 s24, s24, s3")
    a("s_and_b32 s27, s27, 7")

def attn_flag_addr(a, vd):
    a("s_mul_i32 s3, s24, 20")
    a("s_lshr_b32 s26, s3, 6")
    a("s_add_u32 s3, s3, 19")
    a("s_lshr_b32 s3, s3, 6")
    a("s_sub_u32 s3, s3, s26")
    a("v_min_u32 v10, 47, v2")
    a("v_lshrrev_b32 v11, 4, v10")
    a("v_mul_u32_u24 v11, 10, v11")
    a("v_bfe_u32 v12, v10, 3, 1")
    a("v_mul_lo_u32 v12, v12, s3")
    a("v_add3_u32 v11, v11, v12, s26")
    a("v_and_b32 v12, 7, v10")
    a("v_mov_b32 v13, s27")
    a("v_cmp_gt_u32 vcc, 16, v10")
    a("s_nop 1")
    a("v_cndmask_b32 v12, v12, v13, vcc")
    a(f"v_lshl_add_u32 v{vd}, v11, 3, v12")
    a(f"v_lshlrev_b32 v{vd}, {QSH}, v{vd}")
    a(f"v_add_u32 v{vd}, {F_QKV}, v{vd}")

PA = [int(x) for x in os.environ.get("PA", "2,3,1").split(",")]
JLOW = int(os.environ.get("JLOW", "3"))
def attn_main(a, prio=True):
    sc = cfg.sc
    a("s_and_b32 s46, s25, 3")
    a("s_lshr_b32 s47, s25, 2")
    a("s_lshl_b32 s26, s27, 3")
    a("s_lshl_b32 s3, s46, 1")
    a("s_add_u32 s26, s26, s3")
    a("s_lshl_b32 s3, s24, 6")
    a("s_add_u32 s3, s3, s26")
    a("s_lshl_b32 s40, s3, 10")
    a(f"s_add_u32 s40, s40, {WS_QM}")
    a("s_lshl_b32 s41, s3, 8")
    a(f"s_add_u32 s41, s41, {WS_QR}")
    a("s_mul_i32 s42, s24, 163840")
    a(f"s_add_u32 s42, s42, {WS_KV}")
    a("s_mul_i32 s3, s25, 5120")
    a("s_add_u32 s43, s42, s3")
    a("s_mov_b32 s44, s3")
    def dma_chunk():
        a("s_mov_b32 m0, s44")
        a("s_add_u32 s50, s43, 4096")
        for i in range(4):
            off = f" offset:{1024*i}" if i else ""
            a(f"buffer_load_dwordx4 v9, s[32:35], s43 offen{off}{sc} lds")
        a("s_add_u32 m0, s44, 4096")
        a(f"s_add_u32 s43, s43, {CHUNK}")
        a(f"buffer_load_dwordx4 v9, s[32:35], s50 offen{sc} lds")
        a(f"s_add_u32 s44, s44, {CHUNK}")
    a("v_and_b32 v6, 31, v2")
    a(f"v_lshlrev_b32 v{AKR}, 3, v6")
    a(f"buffer_load_dwordx4 v[{Q0}:{Q0+3}], v9, s[32:35], s40 offen{sc}")
    a(f"buffer_load_dwordx4 v[{Q1}:{Q1+3}], v9, s[32:35], s40 offen offset:1024{sc}")
    for r in (Q0 + 4, Q0 + 5, Q1 + 4, Q1 + 5, KA + 5, KB + 5):
        a(f"v_mov_b32 v{r}, 0")
    a("s_mov_b32 exec_hi, 0")
    a(f"buffer_load_dwordx2 v[{Q0+4}:{Q0+5}], v{AKR}, s[32:35], s41 offen{sc}")
    a(f"buffer_load_dwordx2 v[{Q1+4}:{Q1+5}], v{AKR}, s[32:35], s41 offen offset:256{sc}")
    a("s_mov_b32 exec_hi, -1")
    a("s_cmp_ge_u32 s25, 4")
    a("s_cbranch_scc1 L_at_nodma0")
    dma_chunk()
    dma_chunk()
    dma_chunk()
    a(f"s_sub_u32 s44, s44, {NBUF*CHUNK}")
    a.label("L_at_nodma0")
    if attn_hook0: attn_hook0()
    a("v_lshrrev_b32 v7, 5, v2")
    a(f"v_mul_u32_u24 v{AV}, 320, v7")
    a(f"v_lshl_add_u32 v{AV}, v6, 4, v{AV}")
    a("s_mov_b32 s30, 0x000fffff")
    a("s_mov_b32 s31, 0x000fffff")
    a(f"v_mov_b32 v{KA+4}, 0x3f80")
    a(f"v_mov_b32 v{KB+4}, 0x3f80")
    a("v_cmp_eq_u32 vcc, 20, v6")
    a("v_mov_b32 v8, 0x3f803f80")
    a("s_nop 0")
    a("v_cndmask_b32 v8, 0, v8, vcc")
    for i in range(16):
        a(f"v_mov_b32 v{VA+i}, v8")
    for i in range(4, 8):
        a(f"v_mov_b32 v{P+i}, 0")
    a("s_cmp_ge_u32 s25, 4")
    a("s_cbranch_scc1 L_at_w0")
    a("s_waitcnt vmcnt(10)")
    a("s_branch L_at_w1")
    a.label("L_at_w0")
    a("s_waitcnt vmcnt(0)")
    a.label("L_at_w1")
    a("s_barrier")
    if not os.environ.get("LNSTAMP"): stamp(a, 10)
    if attn_hook: attn_hook()
    a("s_mul_i32 s3, s47, 10240")
    a("s_xor_b32 s50, s3, 10240")
    a("v_add_u32 v10, s50, v9")
    a(f"v_add_u32 v11, s50, v{AKR}")
    a(f"v_add_u32 v{AK}, s3, v9")
    a(f"v_add_u32 v{AKR}, s3, v{AKR}")
    a(f"v_add_u32 v{AV}, s3, v{AV}")
    a(f"ds_read_b128 v[{KB}:{KB+3}], v10")
    a(f"ds_read_b128 v[{KA}:{KA+3}], v{AK}")
    a("s_mov_b32 exec_hi, 0")
    a(f"ds_read_b64 v[{KB+4}:{KB+5}], v11 offset:1024")
    a(f"ds_read_b64 v[{KA+4}:{KA+5}], v{AKR} offset:1024")
    a("s_mov_b64 exec, s[30:31]")
    a(f"ds_read_b128 v[{VA}:{VA+3}], v{AV} offset:1280")
    a(f"ds_read_b128 v[{VA+4}:{VA+7}], v{AV} offset:1920")
    a("s_mov_b64 exec, -1")
    a("s_waitcnt lgkmcnt(2)")
    def qk(S, K, Q):
        return (f"v_mfma_f32_32x32x16_bf16 v[{S}:{S+15}], v[{K}:{K+3}], v[{Q}:{Q+3}], 0",
                f"v_mfma_f32_32x32x8_bf16 v[{S}:{S+15}], v[{K+4}:{K+5}], v[{Q+4}:{Q+5}], v[{S}:{S+15}]")
    for x in qk(S0, KB, Q0) + qk(S1, KA, Q0) + qk(O0, KB, Q1) + qk(O1, KA, Q1): a(x)
    a("s_nop 4")
    def max32(Sa, d, t):
        a(f"v_max3_f32 v{d}, v{Sa}, v{Sa+1}, v{Sa+2}")
        a(f"v_max3_f32 v{t}, v{Sa+3}, v{Sa+4}, v{Sa+5}")
        k = 0
        for i in range(6, 32, 2):
            r = d if k % 2 == 0 else t
            a(f"v_max3_f32 v{r}, v{r}, v{Sa+i}, v{Sa+i+1}")
            k += 1
        a(f"v_max_f32 v{d}, v{d}, v{t}")
        a(f"v_mov_b32 v{t}, v{d}")
        a("s_nop 1")
        a(f"v_permlane32_swap_b32 v{d}, v{t}")
        a(f"v_max_f32 v{d}, v{d}, v{t}")
        a(f"v_add_f32 v{d}, {f2hex(DELTA)}, v{d}")
        a(f"v_sub_f32 v{d}, 0, v{d}")
        a(f"v_cvt_pk_bf16_f32 v{d}, v{d}, 0")
    a("v_cmp_lt_u32 vcc, 31, v2")
    max32(S0, 10, 11)
    a(f"v_cndmask_b32 v{Q0+4}, v{Q0+4}, v10, vcc")
    max32(O0, 12, 13)
    for x in qk(S0, KA, Q0): a(x)
    a(f"v_cndmask_b32 v{Q1+4}, v{Q1+4}, v12, vcc")
    for i in range(32):
        a(f"v_mov_b32 v{O0+i}, 0")
    a("s_waitcnt lgkmcnt(0)")
    a("s_mov_b32 s45, 8")
    a(f"s_mov_b32 s48, {CHUNK}")
    a("s_mov_b32 s49, 0")
    a(".p2align 6")
    a.label("L_at_loop")
    if PROFILE:
        a("s_memtime s[84:85]")
        a("s_memrealtime s[86:87]")
        a("s_waitcnt lgkmcnt(0)")
        a("s_sub_u32 m0, 8, s45")
        a("s_nop 0")
        a("v_writelane_b32 v15, s84, m0")
        a("s_add_u32 m0, m0, 8")
        a("s_nop 0")
        a("v_writelane_b32 v15, s86, m0")
    def half(Sc, qks, pvp, pv1, mid=()):
        e = lambda i: f"v_exp_f32 v{Sc+i}, v{Sc+i}"
        c = lambda i: f"v_cvt_pk_bf16_f32 v{P+i}, v{Sc+2*i}, v{Sc+2*i+1}"
        seq = [qks[0], e(0), e(1), e(2), e(3), c(0), c(1), pvp] + list(mid) + [e(4), e(5), e(6), e(7), c(2), c(3), qks[1],
               e(8), e(9), e(10), e(11), e(12), pv1, e(13), e(14), e(15), c(4), c(5), c(6), c(7)]
        ORD = os.environ.get("ORD", "0")
        if ORD == "1":
            seq = [qks[0], e(0), e(1), e(2), e(3), pvp] + list(mid) + [e(4), c(0), e(5), c(1), e(6), e(7), qks[1], e(8), c(2), c(3), e(9), e(10),
                   e(11), pv1, e(12), c(4), e(13), c(5), e(14), e(15), c(6), c(7)]
        if ORD == "2":
            seq = [e(0), qks[0], e(1), e(2), e(3), c(0), e(4), pvp, c(1)] + list(mid) + [e(5), e(6), e(7), c(2), e(8), qks[1], c(3), e(9), e(10),
                   e(11), c(4), e(12), pv1, c(5), e(13), e(14), e(15), c(6), c(7)]
        if ORD == "3":
            seq = [qks[0]] + [e(i) for i in range(4)] + [pvp] + list(mid) + [e(i) for i in range(4, 8)] + [qks[1], c(0), c(1), c(2), c(3), e(8), e(9), pv1] + \
                  [e(i) for i in range(10, 16)] + [c(4), c(5), c(6), c(7)]
        if "noqk2" in os.environ.get("ABL", ""): seq = [x for x in seq if x != qks[1]]
        if "nokv" in os.environ.get("ABL", ""): seq = [x for x in seq if not x.startswith("ds_read")]
        if "nopv" in os.environ.get("ABL", ""): seq = [x for x in seq if x not in (pvp, pv1)]
        for x in seq: a(x)
    def pv(Oo, V, Pp):
        return f"v_mfma_f32_32x32x16_bf16 v[{Oo}:{Oo+15}], v[{V}:{V+3}], v[{Pp}:{Pp+3}], v[{Oo}:{Oo+15}]"
    for j in range(4):
        Kc, Kn = (KA, KB) if j % 2 == 0 else (KB, KA)
        Vc, Vn = (VA, VB) if j % 2 == 0 else (VB, VA)
        if j == 0 and prio:
            a("s_cmp_ge_u32 s25, 4")
            a("s_cbranch_scc1 L_at_y0")
            a(f"s_setprio {PA[0]}")
            a("s_branch L_at_y1")
            a.label("L_at_y0")
            a(f"s_setprio {PA[1]}")
            a.label("L_at_y1")
        if j == JLOW and JLOW != 3 and prio:
            a("s_cmp_lt_u32 s25, 4")
            a("s_cbranch_scc1 L_at_z")
            a(f"s_setprio {PA[2]}")
            a.label("L_at_z")
        if j == 3:
            a("s_cmp_eq_u32 s45, 8")
            a("s_cbranch_scc1 L_at_first")
            a("s_waitcnt vmcnt(0)")
            a.label("L_at_first")
            a("s_waitcnt vmcnt(5)")
            a("s_barrier")
            a("s_sub_u32 s3, s48, s49")
            a(f"v_add_u32 v{AK}, s3, v{AK}")
            a(f"v_add_u32 v{AKR}, s3, v{AKR}")
            a(f"v_add_u32 v{AV}, s3, v{AV}")
            a("s_mov_b32 s49, s48")
            a(f"s_add_u32 s48, s48, {CHUNK}")
            a(f"s_cmp_ge_u32 s48, {NBUF*CHUNK}")
            a("s_cselect_b32 s48, 0, s48")
            a("s_cmp_ge_u32 s25, 4")
            a("s_cbranch_scc1 L_at_young")
            a("s_sub_u32 s50, s45, 3")
            a("s_cmp_ge_u32 s50, 5")
            a("s_cbranch_scc1 L_at_nodma1")
            dma_chunk()
            a(f"s_cmp_ge_u32 s44, {NBUF*CHUNK}")
            a(f"s_cselect_b32 s50, {NBUF*CHUNK}, 0")
            a("s_sub_u32 s44, s44, s50")
            a("s_branch L_at_nodma1")
            a.label("L_at_young")
            if prio and JLOW == 3: a(f"s_setprio {PA[2]}")
            a.label("L_at_nodma1")
        o = 2560 * ((j + 1) % 4)
        rd = [f"ds_read_b128 v[{Kn}:{Kn+3}], v{AK} offset:{o}",
              "s_mov_b32 exec_hi, 0",
              f"ds_read_b64 v[{Kn+4}:{Kn+5}], v{AKR} offset:{o+1024}",
              "s_mov_b64 exec, s[30:31]",
              f"ds_read_b128 v[{Vn}:{Vn+3}], v{AV} offset:{o+1280}",
              f"ds_read_b128 v[{Vn+4}:{Vn+7}], v{AV} offset:{o+1920}",
              "s_mov_b64 exec, -1"]
        half(S0, qk(S1, Kc, Q1), pv(O1, Vn + 4, P + 4), pv(O0, Vc, P), rd)
        a("s_waitcnt lgkmcnt(0)")
        half(S1, qk(S0, Kn, Q0), pv(O0, Vc + 4, P + 4), pv(O1, Vc, P))
    a("s_sub_u32 s45, s45, 1")
    a("s_cmp_lg_u32 s45, 0")
    a("s_cbranch_scc1 L_at_loop")
    a(pv(O1, VB + 4, P + 4))
    if prio: a("s_setprio 3")
    stamp(a, 11)
    a("s_lshl_b32 s3, s46, 12")
    a("v_add_u32 v6, s3, v9")
    a(f"v_add_u32 v7, {NBUF*CHUNK}, v6")
    a("s_cmp_eq_u32 s47, 0")
    a("s_cbranch_scc1 L_at_x0")
    for i in range(3):
        a(f"ds_write_b128 v7, v[{O0+4*i}:{O0+4*i+3}] offset:{1024*i}")
    a("v_mov_b32 v7, v6")
    for i in range(6):
        a(f"v_mov_b32 v{Q0+i}, v{Q1+i}")
    a("s_nop 0")
    for i in range(12):
        a(f"v_mov_b32 v{O0+i}, v{O1+i}")
    a("s_branch L_at_x1")
    a.label("L_at_x0")
    a("s_nop 6")
    for i in range(3):
        a(f"ds_write_b128 v6, v[{O1+4*i}:{O1+4*i+3}] offset:{1024*i}")
    a.label("L_at_x1")
    a("s_add_u32 s26, s26, s47")
    a("s_waitcnt lgkmcnt(0)")
    if os.environ.get("TAILSTAMP"): stamp(a, 1)
    a("s_barrier")
    if os.environ.get("TAILSTAMP"): stamp(a, 2)
    for i in range(3):
        a(f"ds_read_b128 v[{S1+4*i}:{S1+4*i+3}], v7 offset:{1024*i}")
    a("s_mov_b32 s51, 0")
    a(f"s_mov_b32 s54, {f2hex(2.0**-100)}")
    a(f"s_mov_b32 s55, {f2hex(2.0**122)}")
    a("s_mov_b32 s58, 0x7f800000")
    a("s_waitcnt lgkmcnt(0)")
    for i in range(0, 12, 2):
        a(f"v_pk_add_f32 v[{O0+i}:{O0+i+1}], v[{O0+i}:{O0+i+1}], v[{S1+i}:{S1+i+1}]")
    a.label("L_at_fin")
    a(f"v_mov_b32 v8, v{O0+8}")
    a(f"v_mov_b32 v10, v{O0+8}")
    a("s_nop 1")
    a("v_permlane32_swap_b32 v8, v10")
    a("v_rcp_f32 v11, v10")
    a("s_nop 0")
    for i in range(12):
        a(f"v_mul_f32 v{S0+i}, v11, v{O0+i}")
    a.label("L_at_store")
    if os.environ.get("TAILSTAMP"): stamp(a, 3)
    for i in range(6):
        a(f"v_cvt_pk_bf16_f32 v{P+i}, v{S0+2*i}, v{S0+2*i+1}")
    a("s_mul_i32 s3, s26, 40")
    a("s_add_u32 s50, s3, s24")
    a("s_lshl_b32 s50, s50, 10")
    a(f"s_add_u32 s50, s50, {WS_O}")
    a(f"buffer_store_dwordx4 v[{P}:{P+3}], v9, s[32:35], s50 offen{sc}")
    a("s_lshr_b32 s50, s24, 2")
    a("s_add_u32 s50, s50, s3")
    a("s_add_u32 s50, s50, 32")
    a("s_lshl_b32 s50, s50, 10")
    a("s_and_b32 s3, s24, 1")
    a("s_lshl_b32 s3, s3, 9")
    a("s_add_u32 s50, s50, s3")
    a("s_bfe_u32 s3, s24, 0x10001")
    a("s_lshl_b32 s3, s3, 3")
    a("s_add_u32 s50, s50, s3")
    a(f"s_add_u32 s50, s50, {WS_O}")
    a("s_mov_b32 exec_hi, 0")
    a(f"buffer_store_dwordx2 v[{P+4}:{P+5}], v9, s[32:35], s50 offen{sc}")
    a("s_mov_b32 exec_hi, -1")
    if os.environ.get("TAILSTAMP"): stamp(a, 4)
    a("s_cmp_eq_u32 s51, 1")
    a("s_cbranch_scc1 L_at_done")
    a(f"v_add_f32 v12, |v{S0}|, |v{S0+1}|")
    for i in range(2, 8):
        a(f"v_add_f32 v12, |v{S0+i}|, v12")
    a(f"v_add_f32 v13, |v{S0+8}|, |v{S0+9}|")
    a(f"v_add_f32 v13, |v{S0+10}|, v13")
    a(f"v_add_f32 v13, |v{S0+11}|, v13")
    a("v_cmp_gt_u32 vcc, 32, v2")
    a("s_nop 1")
    a("v_cndmask_b32 v13, 0, v13, vcc")
    a("v_add_f32 v12, v12, v13")
    a("v_cmp_gt_f32 s[52:53], v10, s54")
    a("v_cmp_lt_f32 s[56:57], v10, s55")
    a("v_cmp_lt_f32 vcc, v12, s58")
    a("s_and_b64 s[52:53], s[52:53], s[56:57]")
    a("s_and_b64 s[52:53], s[52:53], vcc")
    a("s_cmp_eq_u64 s[52:53], exec")
    if not os.environ.get("ABL", ""): a("s_cbranch_scc0 L_at_slow")
    a("s_branch L_at_done")
    NM = O1
    a.label("L_at_slow")
    a("s_waitcnt vmcnt(0)")
    a("v_and_b32 v6, 31, v2")
    a("v_lshlrev_b32 v4, 3, v6")
    a("v_lshrrev_b32 v7, 5, v2")
    a("v_mul_u32_u24 v5, 320, v7")
    a("v_lshl_add_u32 v5, v6, 4, v5")
    a("v_cmp_gt_u32 vcc, 32, v2")
    a("v_mov_b32 v14, 0xff800000")
    a("s_mov_b32 s50, s42")
    a(f"v_cndmask_b32 v{Q0+4}, 0, v{Q0+4}, vcc")
    a("s_mov_b32 s45, 64")
    a.label("L_at_slow1")
    a(f"buffer_load_dwordx4 v[{KA}:{KA+3}], v9, s[32:35], s50 offen{sc}")
    a(f"buffer_load_dwordx2 v[{KA+4}:{KA+5}], v4, s[32:35], s50 offen offset:1024{sc}")
    a("s_waitcnt vmcnt(0)")
    for x in qk(S0, KA, Q0): a(x)
    a("s_nop 11")
    rowmax16(a, S0, 8, 10)
    a("v_max_f32 v14, v14, v8")
    a("s_add_u32 s50, s50, 2560")
    a("s_sub_u32 s45, s45, 1")
    a("s_cmp_lg_u32 s45, 0")
    a("s_cbranch_scc1 L_at_slow1")
    a("v_sub_f32 v8, 0, v14")
    for i in range(16):
        a(f"v_mov_b32 v{NM+i}, v8")
        a(f"v_mov_b32 v{O0+i}, 0")
    a("s_mov_b32 s50, s42")
    a("s_mov_b32 s45, 64")
    a.label("L_at_slow2")
    a(f"buffer_load_dwordx4 v[{KA}:{KA+3}], v9, s[32:35], s50 offen{sc}")
    a(f"buffer_load_dwordx2 v[{KA+4}:{KA+5}], v4, s[32:35], s50 offen offset:1024{sc}")
    a("s_mov_b64 exec, s[30:31]")
    a(f"buffer_load_dwordx4 v[{VA}:{VA+3}], v5, s[32:35], s50 offen offset:1280{sc}")
    a(f"buffer_load_dwordx4 v[{VA+4}:{VA+7}], v5, s[32:35], s50 offen offset:1920{sc}")
    a("s_mov_b64 exec, -1")
    a("s_waitcnt vmcnt(0)")
    a(f"v_mfma_f32_32x32x16_bf16 v[{S0}:{S0+15}], v[{KA}:{KA+3}], v[{Q0}:{Q0+3}], v[{NM}:{NM+15}]")
    a(f"v_mfma_f32_32x32x8_bf16 v[{S0}:{S0+15}], v[{KA+4}:{KA+5}], v[{Q0+4}:{Q0+5}], v[{S0}:{S0+15}]")
    a("s_nop 11")
    for i in range(16):
        a(f"v_exp_f32 v{S0+i}, v{S0+i}")
    a("s_nop 0")
    for i in range(8):
        a(f"v_cvt_pk_bf16_f32 v{P+i}, v{S0+2*i}, v{S0+2*i+1}")
    a("s_nop 1")
    a(pv(O0, VA, P))
    a(pv(O0, VA + 4, P + 4))
    a("s_add_u32 s50, s50, 2560")
    a("s_sub_u32 s45, s45, 1")
    a("s_cmp_lg_u32 s45, 0")
    a("s_cbranch_scc1 L_at_slow2")
    a("s_mov_b32 s51, 1")
    a("s_nop 10")
    a("s_branch L_at_fin")
    a.label("L_at_done")

GU_BUF = 24832
GU_UP = 12416
def gu_decode(a):
    a("s_sub_u32 s3, s2, 256")
    a("s_and_b32 s24, s3, 7")
    a("s_lshr_b32 s26, s3, 3")
    a("s_lshr_b32 s27, s24, 2")
    a("s_lshl_b32 s27, s27, 2")
    a("s_and_b32 s3, s26, 3")
    a("s_add_u32 s27, s27, s3")
    a("s_and_b32 s24, s24, 3")
    a("s_lshl_b32 s24, s24, 3")
    a("s_lshr_b32 s26, s26, 2")
    a("s_add_u32 s24, s24, s26")
    a("s_lshl_b32 s26, s27, 3")
    a("s_add_u32 s26, s26, s25")

class GU:
    ACC, XF, WF, XD = 16, 64, 96, int(os.environ.get("GXD", "8"))
    def __init__(self, a):
        self.a = a; self.vm = VM(a)
    def setup(self):
        a = self.a
        a("s_mul_i32 s40, s26, 40960")
        a(f"s_add_u32 s40, s40, {WS_XN}")
        a("s_mul_i32 s41, s24, 96")
        a("s_and_b32 s3, s25, 3")
        a("s_mul_i32 s42, s3, 3072")
        a("s_cmp_ge_u32 s25, 4")
        a(f"s_cselect_b32 s43, {GU_UP}, 0")
        a(f"s_cselect_b32 s28, s{S_WU}, s{S_WG}")
        a(f"s_cselect_b32 s29, s{S_WU+1}, s{S_WG+1}")
        a("s_mov_b32 s30, 1966080")
        a("s_mov_b32 s31, 0x00020000")
        a("s_add_u32 s42, s42, s43")
        a("s_mul_i32 s3, s3, 192")
        a("s_movk_i32 s43, 3072")
        for i in range(3):
            a(f"v_add_u32 v8, s3, v2")
            if i: a(f"v_add_u32 v8, {64*i}, v8")
            a("v_mul_u32_u24 v10, 10923, v8")
            a("v_lshrrev_b32 v10, 16, v10")
            a("v_mul_u32_u24 v11, 6, v10")
            a("v_sub_u32 v11, v8, v11")
            a("v_lshlrev_b32 v11, 4, v11")
            a(f"v_mad_u32_u24 v{4+i}, v10, s43, v11")
        a("v_bfe_u32 v8, v2, 2, 2")
        a("v_lshrrev_b32 v10, 5, v2")
        a("v_lshl_add_u32 v8, v10, 3, v8")
        a("v_mul_u32_u24 v8, 96, v8")
        a("v_and_b32 v10, 3, v2")
        a("v_lshl_add_u32 v8, v10, 3, v8")
        a("v_bfe_u32 v10, v2, 4, 1")
        a(f"v_mul_u32_u24 v10, {GU_UP}, v10")
        a("v_add_u32 v7, v8, v10")
        a(f"v_add_u32 v8, {2*GU_BUF}, v7")
        for i in range(48):
            a(f"v_mov_b32 v{self.ACC+i}, 0")
    def dma_stage(self, st):
        a = self.a
        for i in range(3):
            a(f"s_add_u32 m0, s42, {(st % 3) * GU_BUF + 1024 * i}")
            a("s_nop 0")
            self.vm.issue(f"buffer_load_dwordx4 v{4+i}, s[28:31], s41 offen lds", ("W", st))
        a(f"s_add_u32 s41, s41, {128*3072}")
    def xload(self, s):
        r = self.XF + 4 * (s % self.XD)
        self.vm.issue(f"buffer_load_dwordx4 v[{r}:{r+3}], v9, s[32:35], s40 offen offset:{1024*(s%4)}{cfg.sc}", ("X", s))
        if s % 4 == 3: self.a("s_add_u32 s40, s40, 4096")
    def main(self, pre_dma, hook=None):
        a, vm, ACC, XF, WF, XD = self.a, self.vm, self.ACC, self.XF, self.WF, self.XD
        if pre_dma < 1: self.dma_stage(0)
        G0 = int(os.environ.get("G0", "4"))
        for s in range(G0): self.xload(s)
        a("s_barrier")
        for s in range(G0, XD): self.xload(s)
        if pre_dma < 2: self.dma_stage(1)
        nx = [XD]
        def reads(s):
            st, sp = s // 8, s % 8
            w = WF + 12 * (s % 2)
            buf = st % 3
            base = "v8" if buf == 2 else "v7"
            bo = 0 if buf == 2 else buf * GU_BUF
            AB = os.environ.get("ABL", "")
            for ft in range(3):
                if "b128" in AB and s > 1:
                    a(f"ds_read_b128 v[{w+4*ft}:{w+4*ft+3}], v9 offset:{bo + (sp*3+ft)*1024}")
                    a("s_nop 0") if False else None
                    continue
                for u in range(2):
                    if "notr" in AB and s > 1: continue
                    a(f"ds_read_b64_tr_b16 v[{w+4*ft+2*u}:{w+4*ft+2*u+1}], {base} offset:{bo + (16*sp+4*u)*96 + 32*ft}")
        def pre(s):
            if s % 8 == 0:
                st = s // 8
                vm.wait(lambda t: t == ("W", st), "lgkmcnt(0)" if s else "")
                if os.environ.get("GSTAMP") and st == 0: stamp(a, 12)
                a("s_barrier")
                if st in (0, 2, 4): stamp(a, 3 + st // 2)
                if st >= 1 and st + 2 < 5:
                    self.dma_stage(st + 2)
        pre(0); reads(0)
        for s in range(40):
            if s + 1 < 40:
                pre(s + 1); reads(s + 1)
                vm.wait(lambda t: t == ("X", s), "lgkmcnt(3)" if "b128" in os.environ.get("ABL", "") and s > 0 else "lgkmcnt(6)")
            else:
                vm.wait(lambda t: t == ("X", s), "lgkmcnt(0)")
            w = WF + 12 * (s % 2)
            x = XF + 4 * (s % XD)
            for ft in range(3):
                D = f"v[{ACC+16*ft}:{ACC+16*ft+15}]"
                if "m16" in os.environ.get("ABL", ""):
                    for q in range(2):
                        d = ACC + 16 * ft + 8 * q + 4 * (s % 2)
                        a(f"v_mfma_f32_16x16x32_bf16 v[{d}:{d+3}], v[{w+4*ft}:{w+4*ft+3}], v[{x}:{x+3}], v[{d}:{d+3}]")
                else:
                    a(f"v_mfma_f32_32x32x16_bf16 {D}, v[{w+4*ft}:{w+4*ft+3}], v[{x}:{x+3}], {D}")
            for _ in range(2):
                if nx[0] <= s + XD and nx[0] < 40:
                    self.xload(nx[0]); nx[0] += 1
            if s == 2 and pre_dma < 3: self.dma_stage(2)
            if s == 6 and hook: hook()
        stamp(a, 6)
        a("s_setprio 3")
        a("s_mul_i32 s50, s26, 96")
        a("s_mul_i32 s3, s24, 3")
        a("s_add_u32 s50, s50, s3")
        a("s_lshl_b32 s50, s50, 10")
        a(f"s_add_u32 s50, s50, {WS_H}")
        a(f"s_mov_b32 s52, {f2hex(-1.4426950408889634)}")
        a("s_mov_b32 s53, s52")
        a("s_mov_b32 s54, 1.0")
        a("s_mov_b32 s55, 1.0")
        a("s_nop 1")
        T = XF
        for ft in range(3):
            g = ACC + 16 * ft; u = g + 8
            for i in range(0, 8, 2):
                a(f"v_pk_mul_f32 v[{T+i}:{T+i+1}], v[{g+i}:{g+i+1}], s[52:53]")
            for i in range(8):
                a(f"v_exp_f32 v{T+i}, v{T+i}")
            for i in range(0, 8, 2):
                a(f"v_pk_add_f32 v[{T+i}:{T+i+1}], v[{T+i}:{T+i+1}], s[54:55]")
            for i in range(8):
                a(f"v_rcp_f32 v{T+i}, v{T+i}")
            for i in range(0, 8, 2):
                a(f"v_pk_mul_f32 v[{g+i}:{g+i+1}], v[{g+i}:{g+i+1}], v[{u+i}:{u+i+1}]")
            for i in range(0, 8, 2):
                a(f"v_pk_mul_f32 v[{g+i}:{g+i+1}], v[{g+i}:{g+i+1}], v[{T+i}:{T+i+1}]")
            for i in range(4):
                a(f"v_cvt_pk_bf16_f32 v{g+i}, v{g+2*i}, v{g+2*i+1}")
            a(f"buffer_store_dwordx4 v[{g}:{g+3}], v9, s[32:35], s50 offen offset:{1024*ft}{cfg.sc}")
        stamp(a, 7)

class GU16(GU):
    def setup(self):
        a = self.a
        GU.setup(self)
        a("v_lshrrev_b32 v10, 4, v2")
        a("v_and_b32 v11, 15, v2")
        a("v_lshlrev_b32 v3, 4, v11")
        a("v_lshl_add_u32 v3, v10, 9, v3")
        a("v_and_b32 v12, 1, v10")
        a("v_lshlrev_b32 v14, 4, v11")
        a("v_lshl_add_u32 v14, v12, 9, v14")
        a("v_lshrrev_b32 v13, 5, v2")
        a("v_lshl_add_u32 v14, v13, 8, v14")
        a("v_bfe_u32 v8, v2, 2, 2")
        a("v_lshl_add_u32 v8, v10, 3, v8")
        a("v_lshl_add_u32 v7, v12, 2, v8")
        a("v_xor_b32 v8, 4, v7")
        a("v_and_b32 v10, 3, v2")
        a("v_lshlrev_b32 v10, 3, v10")
        a("s_movk_i32 s3, 96")
        a("v_mad_u32_u24 v7, v7, s3, v10")
        a("v_mad_u32_u24 v8, v8, s3, v10")
        a(f"v_add_u32 v12, {2*GU_BUF}, v7")
        a(f"v_add_u32 v13, {2*GU_BUF}, v8")
    def xload(self, k):
        r = self.XF + 8 * (k % 4)
        for th in range(2):
            self.vm.issue(f"buffer_load_dwordx4 v[{r+4*th}:{r+4*th+3}], v3, s[32:35], s40 offen offset:{2048*(k%2) + 256*th}{cfg.sc}", ("X", k))
        if k % 2 == 1: self.a("s_add_u32 s40, s40, 4096")
    def main(self, pre_dma, hook=None, gate2=None):
        a, vm, ACC, XF, WF = self.a, self.vm, self.ACC, self.XF, self.WF
        if pre_dma < 1: self.dma_stage(0)
        self.xload(0); self.xload(1)
        XR = int(os.environ.get("GXR", "0"))
        nx = [2]
        HY2 = gate2 and int(os.environ.get("HYB", "2")) == 2
        if HY2:
            a("s_barrier")
            self.xload(2); self.xload(3); nx = [4]
            if int(os.environ.get("H2W1", "0")): self.dma_stage(1)
        elif gate2:
            if int(os.environ.get("H2W1", "0")): self.dma_stage(1); pre_dma = 2
            gate2()
        if HY2: pass
        elif not XR:
            if pre_dma < 3: a("s_barrier")
            self.xload(2); self.xload(3); nx = [4]
        if pre_dma < 2 and not HY2: self.dma_stage(1)
        def reads(s):
            st, sp, reg = s // 8, (s % 8) // 2, s % 2
            w = WF + 12 * (s % 2)
            buf = st % 3
            bo = (0 if buf == 2 else buf * GU_BUF) + reg * GU_UP + 32 * sp * 96
            for ft in range(3):
                for u in range(2):
                    base = (12 if buf == 2 else 7) + u
                    if "gnotr" in os.environ.get("ABL", "") and s > 1: continue
                    a(f"ds_read_b64_tr_b16 v[{w+4*ft+2*u}:{w+4*ft+2*u+1}], v{base} offset:{bo + 32*ft}")
        def pre(s):
            if s % 8 == 0:
                st = s // 8
                vm.wait(lambda t: t == ("W", st), "lgkmcnt(0)" if s else "")
                a("s_barrier")
                if st in (0, 2, 4): stamp(a, 3 + st // 2)
                if st >= 1 and st + 2 < 5 and "gnow" not in os.environ.get("ABL", ""):
                    self.dma_stage(st + 2)
        pre(0); reads(0)
        for s in range(40):
            k = s // 2
            lg = "lgkmcnt(6)" if s + 1 < 40 else "lgkmcnt(0)"
            if s + 1 < 40:
                pre(s + 1); reads(s + 1)
            vm.wait(lambda t: t == ("X", k), lg)
            w = WF + 12 * (s % 2)
            x = XF + 8 * (k % 4)
            for ft in range(3):
                for th in range(2):
                    d = ACC + 16 * ft + 8 * (s % 2) + 4 * th
                    if "gnomf" in os.environ.get("ABL", ""): continue
                    a(f"v_mfma_f32_16x16x32_bf16 v[{d}:{d+3}], v[{w+4*ft}:{w+4*ft+3}], v[{x+4*th}:{x+4*th+3}], v[{d}:{d+3}]")
            if HY2 and s == 6:
                gate2()
                a("s_barrier")
                if not int(os.environ.get("H2W1", "0")): self.dma_stage(1)
                for _ in range(3):
                    self.xload(nx[0]); nx[0] += 1
            if s % 2 == 1 and not (HY2 and s < 6):
                for _ in range(2):
                    if nx[0] <= k + (2 if s < XR else 4) and nx[0] < 20:
                        self.xload(nx[0]); nx[0] += 1
            if s == (6 if HY2 else 2) and pre_dma < 3: self.dma_stage(2)
            if s == int(os.environ.get("HOOKS", "12")) and hook: hook()
        stamp(a, 6)
        a(f"s_setprio {os.environ.get('PE', '3')}")
        a("s_mul_i32 s50, s26, 96")
        a("s_mul_i32 s3, s24, 3")
        a("s_add_u32 s50, s50, s3")
        a("s_lshl_b32 s50, s50, 10")
        a(f"s_add_u32 s50, s50, {WS_H}")
        a(f"s_mov_b32 s52, {f2hex(-1.4426950408889634)}")
        a("s_mov_b32 s53, s52")
        a("s_mov_b32 s54, 1.0")
        a("s_mov_b32 s55, 1.0")
        T = XF
        for ft in range(3):
            g = ACC + 16 * ft; u = g + 8
            for i in range(0, 8, 2):
                a(f"v_pk_mul_f32 v[{T+i}:{T+i+1}], v[{g+i}:{g+i+1}], s[52:53]")
            for i in range(8):
                a(f"v_exp_f32 v{T+i}, v{T+i}")
            for i in range(0, 8, 2):
                a(f"v_pk_add_f32 v[{T+i}:{T+i+1}], v[{T+i}:{T+i+1}], s[54:55]")
            for i in range(8):
                a(f"v_rcp_f32 v{T+i}, v{T+i}")
            for i in range(0, 8, 2):
                a(f"v_pk_mul_f32 v[{g+i}:{g+i+1}], v[{g+i}:{g+i+1}], v[{u+i}:{u+i+1}]")
            for i in range(0, 8, 2):
                a(f"v_pk_mul_f32 v[{g+i}:{g+i+1}], v[{g+i}:{g+i+1}], v[{T+i}:{T+i+1}]")
            for i in range(4):
                a(f"v_cvt_pk_bf16_f32 v{g+i}, v{g+2*i}, v{g+2*i+1}")
            a("s_nop 1")
            a(f"v_permlane32_swap_b32 v{g}, v{g+2}")
            a(f"v_permlane32_swap_b32 v{g+1}, v{g+3}")
            a(f"buffer_store_dwordx4 v[{g}:{g+3}], v14, s[32:35], s50 offen offset:{1024*ft}{cfg.sc}")
        stamp(a, 7)

def fin_decode(a):
    a("s_and_b32 s3, s2, 255")
    a("s_and_b32 s24, s3, 7")
    a("s_lshr_b32 s26, s3, 3")
    a("s_lshr_b32 s27, s24, 1")
    a("s_lshl_b32 s27, s27, 3")
    a("s_and_b32 s3, s26, 7")
    a("s_add_u32 s27, s27, s3")
    a("s_and_b32 s24, s24, 1")
    a("s_lshl_b32 s24, s24, 2")
    a("s_lshr_b32 s26, s26, 3")
    a("s_add_u32 s24, s24, s26")

OUT16 = int(os.environ.get("OUT16", "1"))
class FIN:
    ACC, XF, WF = 16, 56, 88
    DV = [4, 5, 6, 7, 8]
    TD, TM, TR = 11, 12, 13
    def __init__(self, a):
        self.a = a; self.vm = VM(a); self.q = [[], []]
    def roles(self):
        a = self.a
        a("s_and_b32 s46, s25, 1")
        a("s_lshr_b32 s47, s25, 1")
        a("s_mov_b32 s56, s25")
    BOFF = 0
    def zero_acc(self):
        for i in range(40):
            self.a(f"v_mov_b32 v{self.ACC+i}, 0")
    def setup(self, zero_acc=True):
        a = self.a
        srd(a, 28, S_WD, 1966080)
        srd(a, 36, S_WO, 819200)
        self.roles()
        a("s_lshl_b32 s26, s27, 1")
        a("s_add_u32 s26, s26, s46")
        a("s_lshl_b32 s3, s47, 11")
        a("s_mul_i32 s40, s26, 98304")
        a("s_add_u32 s40, s40, s3")
        a(f"s_add_u32 s40, s40, {WS_H}")
        a("s_mul_i32 s43, s26, 40960")
        a("s_add_u32 s43, s43, s3")
        a(f"s_add_u32 s43, s43, {WS_O}")
        a("s_mul_i32 s41, s24, 160")
        a("s_mul_i32 s3, s25, 40960")
        a("s_add_u32 s41, s41, s3")
        a("s_mov_b32 s44, s41")
        a("s_mul_i32 s49, s25, 5120")
        a("s_and_b32 s3, s25, 3")
        a("s_mul_i32 s42, s3, 5120")
        a("s_lshr_b32 s48, s25, 2")
        a("v_lshrrev_b32 v10, 4, v2")
        a("v_and_b32 v14, 15, v2")
        a("v_lshlrev_b32 v3, 4, v14")
        a("v_lshl_add_u32 v3, v10, 9, v3")
        a("s_movk_i32 s3, 1280")
        for b in range(5):
            a(f"v_add_u32 v11, {64*b}, v2")
            a("v_mul_u32_u24 v12, 6554, v11")
            a("v_lshrrev_b32 v12, 16, v12")
            a("v_mul_u32_u24 v13, 10, v12")
            a("v_sub_u32 v13, v11, v13")
            a("v_lshlrev_b32 v13, 4, v13")
            a(f"v_mad_u32_u24 v{self.DV[b]}, v12, s3, v13")
        a("s_lshl_b32 s45, s26, 5")
        a("v_add_u32 v14, s45, v14")
        a("v_mul_u32_u24 v14, 1280, v14")
        if OUT16:
            a("v_and_b32 v11, 1, v10")
            a("v_lshl_add_u32 v14, v11, 4, v14")
            a("v_lshrrev_b32 v11, 1, v10")
            a("v_lshl_add_u32 v14, v11, 3, v14")
        else:
            a("v_lshl_add_u32 v14, v10, 3, v14")
        a("s_mul_i32 s45, s24, 160")
        a("v_add_u32 v14, s45, v14")
        a("v_bfe_u32 v10, v2, 2, 2")
        a("v_bfe_u32 v15, v2, 4, 1")
        a("v_lshrrev_b32 v1, 5, v2")
        if OUT16:
            a("v_and_b32 v0, 1, v2")
            a("v_lshlrev_b32 v0, 4, v0")
            a("v_bfe_u32 v11, v2, 1, 1")
            a("v_lshl_add_u32 v0, v11, 3, v0")
        else:
            a("v_and_b32 v0, 3, v2")
            a("v_lshlrev_b32 v0, 3, v0")
        a("s_movk_i32 s3, 160")
        a(f"v_lshl_add_u32 v{self.TD}, v1, 4, v10")
        a(f"v_lshl_add_u32 v{self.TD}, v15, 2, v{self.TD}")
        a(f"v_mad_u32_u24 v{self.TD}, v{self.TD}, s3, v0")
        a("s_mul_i32 s45, s47, 5120")
        a(f"v_add_u32 v{self.TD}, s45, v{self.TD}")
        a(f"v_mul_u32_u24 v{self.TM}, 20, v1")
        a(f"v_lshl_add_u32 v{self.TM}, v15, 2, v{self.TM}")
        a(f"v_add_u32 v{self.TM}, v{self.TM}, v10")
        a(f"v_mad_u32_u24 v{self.TM}, v{self.TM}, s3, v0")
        a("s_mul_i32 s45, s47, 6400")
        a(f"v_add_u32 v{self.TM}, s45, v{self.TM}")
        a(f"v_mul_u32_u24 v{self.TR}, 80, v1")
        a("v_mul_u32_u24 v15, 20, v15")
        a(f"v_add3_u32 v{self.TR}, v{self.TR}, v15, v10")
        a(f"v_mad_u32_u24 v{self.TR}, v{self.TR}, s3, v0")
        a(f"v_add_u32 v{self.TR}, {16*160}, v{self.TR}")
        if zero_acc: self.zero_acc()
    def dma_wd(self, m):
        a = self.a
        L = uid("L_dwd")
        a(f"s_cmp_lg_u32 s48, {m % 2}")
        a(f"s_cbranch_scc1 {L}")
        for b in range(5):
            a(f"s_add_u32 m0, s42, {((m + self.BOFF) % 4) * 20480 + 1024 * b}")
            a("s_nop 0")
            a(f"buffer_load_dwordx4 v{self.DV[b]}, s[28:31], s41 offen lds")
        a(f"s_add_u32 s41, s41, {256*1280}")
        a.label(L)
        self.q[m % 2] += [("W", m)] * 5
    def hload(self, m):
        r = self.XF + 8 * (m % 4)
        for th in range(2):
            self.a(f"buffer_load_dwordx4 v[{r+4*th}:{r+4*th+3}], v3, s[32:35], s40 offen offset:{256*th}{cfg.sc}")
            for q in self.q: q.append(("X", m))
        self.a("s_add_u32 s40, s40, 8192")
    def wait2(self, preds, extra=""):
        n = 63
        for q in self.q:
            last = max([i for i, t in enumerate(q) if t in preds], default=-1)
            if last >= 0: n = min(n, len(q) - 1 - last)
        if n == 63:
            if extra: self.a(f"s_waitcnt {extra}")
            return
        self.a(f"s_waitcnt vmcnt({n}) {extra}".strip())
        self.q = [q[max(0, len(q) - n):] if n > 0 else [] for q in self.q]
    def wreads(self, w, base, off, ustep):
        for ft in range(5):
            for u in range(2):
                self.a(f"ds_read_b64_tr_b16 v[{w+4*ft+2*u}:{w+4*ft+2*u+1}], v{base} offset:{off + ustep*u + 32*ft}")
    def mfmas(self, w, x):
        if "dnomf" in os.environ.get("ABL", ""): return
        for ft in range(5):
            for th in range(2):
                d = self.ACC + 4 * (5 * th + ft)
                self.a(f"v_mfma_f32_16x16x32_bf16 v[{d}:{d+3}], v[{w+4*ft}:{w+4*ft+3}], v[{x+4*th}:{x+4*th+3}], v[{d}:{d+3}]")
    def down(self, npre=4):
        a = self.a
        for m in range(2): self.hload(m)
        nw = npre
        nh = 2
        TD2 = 15
        a(f"v_add_u32 v{TD2}, 40960, v{self.TD}")
        def reads(m):
            base = self.TD if (m % 4) < 2 else TD2
            self.wreads(self.WF + 20 * (m % 2), base, (m % 2) * 20480, 1280)
        self.wait2([("W", 0)])
        a("s_barrier")
        if not os.environ.get("GSTAMP"): stamp(a, 9)
        reads(0)
        for m in range(12):
            if m + 1 < 12:
                self.wait2([("W", m + 1)], "lgkmcnt(0)")
                a("s_barrier")
                reads(m + 1)
                for _ in range(2):
                    if nw <= m + 4 and nw < 12:
                        self.dma_wd(nw); nw += 1
                if m == 9:
                    a("s_waitcnt vmcnt(0)")
                    self.q = [[], []]
                    self.wo_dma((0, 8), 0, 0)
                if m == 10:
                    self.wo_dma((0, 4), 8, 8)
                self.wait2([("X", m)])
            else:
                self.wait2([("X", m)], "lgkmcnt(0)")
            self.mfmas(self.WF + 20 * (m % 2), self.XF + 8 * (m % 4))
            for _ in range(2):
                if nh <= m + 4 and nh < 12:
                    self.hload(nh); nh += 1
        if not os.environ.get("GSTAMP"): stamp(a, 10)
    def wo_dma(self, cond, first_group, lds_group):
        a = self.a
        lo, hi = cond
        L = uid("L_wod")
        if lo > 0:
            a(f"s_cmp_lt_u32 s25, {lo}")
            a(f"s_cbranch_scc1 {L}")
        if hi < 8:
            a(f"s_cmp_ge_u32 s25, {hi}")
            a(f"s_cbranch_scc1 {L}")
        a(f"s_add_u32 s3, s44, {(first_group - lo) * 32 * 1280}")
        for b in range(5):
            a(f"s_add_u32 m0, s49, {(lds_group - lo) * 5120 + 1024 * b}")
            a("s_nop 0")
            a(f"buffer_load_dwordx4 v{self.DV[b]}, s[36:39], s3 offen lds")
        a.label(L)
    def wo_prefetch(self, after_first=None):
        a = self.a
        if after_first is None:
            a("s_waitcnt vmcnt(5)")
            a("s_cmp_lt_u32 s25, 4")
            a("s_cbranch_scc1 L_fin_p0")
        a("s_waitcnt vmcnt(0)")
        a.label("L_fin_p0")
        a("s_barrier")
        if after_first: after_first()
        self.wo_dma((4, 7), 12, 12)
        self.wreads(self.WF + 20, self.TM, 0, 1280)
        a("s_cmp_lg_u32 s47, 0")
        a("s_cbranch_scc1 L_fin_p1")
        self.wreads(self.WF, self.TR, 0, 6400)
        a.label("L_fin_p1")
        a("s_cmp_eq_u32 s47, 3")
        a("s_cselect_b32 s3, 0, s47")
        a("s_mul_i32 s3, s3, 25600")
        a(f"v_add_u32 v{self.TR}, s3, v{self.TR}")
        a("s_waitcnt lgkmcnt(0)")
        a("s_barrier")
        self.wo_dma((0, 5), 15, 0)
        srd(a, 28, S_X, 2621440)
        if OUT16:
            a("s_lshl_b32 s52, s47, 5")
            a("s_add_u32 s53, s52, 20480")
            a("s_movk_i32 s54, 128")
            a("s_movk_i32 s55, 20608")
            a("v_lshrrev_b32 v15, 5, v2")
            a("v_and_b32 v10, 15, v2")
            a("v_lshl_add_u32 v15, v15, 4, v10")
            a("s_lshl_b32 s3, s26, 5")
            a("v_add_u32 v15, s3, v15")
            a("v_mul_u32_u24 v15, 1280, v15")
            a("v_bfe_u32 v10, v2, 4, 1")
            a("v_lshl_add_u32 v15, v10, 4, v15")
            a("s_mul_i32 s3, s24, 160")
            a("v_add_u32 v15, s3, v15")
        else:
            for i in range(3):
                a(f"s_add_u32 s3, s47, {4*i}")
                a("s_cmp_ge_u32 s3, 5")
                a(f"s_cselect_b32 s50, {20480 - 160}, 0")
                a("s_lshl_b32 s51, s3, 5")
                a(f"s_add_u32 s{52+i}, s50, s51")
            a("s_cmp_ge_u32 s47, 2")
            a("s_cselect_b32 s54, s53, s54")
        a("buffer_load_dwordx2 v[0:1], v14, s[28:31], s52 offen")
    def wo_main(self):
        a, vm = self.a, self.vm
        vm.q = []
        XS = {4: 56, 0: 64, 1: 72, 2: 80, 3: 4}
        def oload(rd):
            a(f"s_add_u32 s3, s43, {8192*rd}")
            for th in range(2):
                r = XS[rd] + 4 * th
                vm.issue(f"buffer_load_dwordx4 v[{r}:{r+3}], v3, s[32:35], s3 offen offset:{256*th}{cfg.sc}", ("X", rd))
        for rd in (4, 0, 1, 2, 3): oload(rd)
        srd(a, 36, S_OUT, 2621440)
        A, B = self.WF, self.WF + 20
        a("s_cmp_eq_u32 s47, 0")
        a("s_cbranch_scc1 L_fin_r4")
        self.wreads(A, self.TR, 0, 6400)
        a.label("L_fin_r4")
        vm.wait(lambda t: t == ("X", 4), "lgkmcnt(0)")
        if os.environ.get("TAILSTAMP"): stamp(a, 1)
        self.mfmas(A, XS[4])
        self.wreads(A, self.TM, 160 * 160, 1280)
        vm.wait(lambda t: t == ("X", 0))
        self.mfmas(B, XS[0])
        self.wreads(B, self.TM, 320 * 160, 1280)
        vm.wait(lambda t: t == ("X", 1), "lgkmcnt(10)")
        self.mfmas(A, XS[1])
        self.wreads(A, self.TM, 0, 1280)
        vm.wait(lambda t: t == ("X", 2), "lgkmcnt(10)")
        self.mfmas(B, XS[2])
        for i in range(1, 4 if OUT16 else 3):
            vm.issue(f"buffer_load_dwordx2 v[{56+2*i}:{57+2*i}], v14, s[28:31], s{52+i} offen", ("R", i))
        vm.wait(lambda t: t == ("X", 3), "lgkmcnt(0)")
        a("s_barrier")
        self.mfmas(A, XS[3])
        if not os.environ.get("GSTAMP"): stamp(a, 12)
        a("v_lshlrev_b32 v9, 4, v2")
        a("s_mul_i32 s3, s56, 10240")
        a("v_add_u32 v10, s3, v9")
        for j in range(10):
            L = uid("L_fw")
            a(f"s_cmp_eq_u32 s47, {min(j % 5, 3) if OUT16 else j % 4}")
            a(f"s_cbranch_scc1 {L}")
            a(f"ds_write_b128 v10, v[{self.ACC+4*j}:{self.ACC+4*j+3}] offset:{1024*j}")
            a(f"s_branch {L}_n")
            a.label(L)
            r = 64 + 16 * ((j // 5 + (2 if j % 5 == 4 else 0)) if OUT16 else j // 4)
            for t in range(4):
                a(f"v_mov_b32 v{r+t}, v{self.ACC+4*j+t}")
            a.label(L + "_n")
        a("s_mul_i32 s3, s46, 10240")
        a("s_lshl_b32 s50, s47, 10")
        a("s_add_u32 s3, s3, s50")
        a("v_add_u32 v10, s3, v9")
        for k in range(1, 4):
            a(f"s_add_u32 s3, s47, {k}")
            a("s_and_b32 s3, s3, 3")
            a("s_mul_i32 s3, s3, 20480")
            a(f"v_add_u32 v{3+k}, s3, v10")
        a("s_waitcnt lgkmcnt(0)")
        if os.environ.get("TAILSTAMP"): stamp(a, 3)
        a("s_barrier")
        if os.environ.get("TAILSTAMP"): stamp(a, 4)
        R = 64
        if OUT16:
            for i, off in enumerate((0, 5120, 1024, 6144)):
                if i == 2:
                    a("s_cmp_lg_u32 s47, 3")
                    a("s_cbranch_scc1 L_fin_r2")
                for k in range(1, 4):
                    r = R + 16 * i + 4 * k
                    a(f"ds_read_b128 v[{r}:{r+3}], v{3+k} offset:{off}")
            a.label("L_fin_r2")
            a("s_waitcnt vmcnt(0) lgkmcnt(0)")
            for un in range(2):
                if un == 1:
                    a("s_cmp_lg_u32 s47, 3")
                    a("s_cbranch_scc1 L_fin_end")
                o = R + 32 * un
                for th in range(2):
                    i = 2 * un + th
                    r = R + 16 * i; xr = 0 if i == 0 else 56 + 2 * i
                    a(f"v_lshlrev_b32 v4, 16, v{xr}")
                    a(f"v_and_b32 v5, 0xffff0000, v{xr}")
                    a(f"v_lshlrev_b32 v6, 16, v{xr+1}")
                    a(f"v_and_b32 v7, 0xffff0000, v{xr+1}")
                    for h in range(2):
                        a(f"v_pk_add_f32 v[{r+2*h}:{r+2*h+1}], v[{r+2*h}:{r+2*h+1}], v[{r+4+2*h}:{r+5+2*h}]")
                        a(f"v_pk_add_f32 v[{r+8+2*h}:{r+9+2*h}], v[{r+8+2*h}:{r+9+2*h}], v[{r+12+2*h}:{r+13+2*h}]")
                        a(f"v_pk_add_f32 v[{r+2*h}:{r+2*h+1}], v[{r+2*h}:{r+2*h+1}], v[{4+2*h}:{5+2*h}]")
                        a(f"v_pk_add_f32 v[{r+2*h}:{r+2*h+1}], v[{r+2*h}:{r+2*h+1}], v[{r+8+2*h}:{r+9+2*h}]")
                    a(f"v_cvt_pk_bf16_f32 v{o+4+2*th}, v{r}, v{r+1}")
                    a(f"v_cvt_pk_bf16_f32 v{o+5+2*th}, v{r+2}, v{r+3}")
                a("s_nop 1")
                a(f"v_permlane32_swap_b32 v{o+4}, v{o+6}")
                a(f"v_permlane32_swap_b32 v{o+5}, v{o+7}")
                a(f"buffer_store_dwordx4 v[{o+4}:{o+7}], v15, s[36:39], s{52+2*un} offen{os.environ.get('OUTSC', '')}")
            a.label("L_fin_end")
            return
        for i in range(3):
            if i == 2:
                a("s_cmp_ge_u32 s47, 2")
                a("s_cbranch_scc1 L_fin_r2")
            for k in range(1, 4):
                r = R + 16 * i + 4 * k
                a(f"ds_read_b128 v[{r}:{r+3}], v{3+k} offset:{4096*i}")
        a.label("L_fin_r2")
        a("s_waitcnt vmcnt(0) lgkmcnt(0)")
        if os.environ.get("TAILSTAMP"): stamp(a, 5)
        for i in range(3):
            r = R + 16 * i; xr = 0 if i == 0 else 56 + 2 * i
            if i == 2:
                a("s_cmp_ge_u32 s47, 2")
                a("s_cbranch_scc1 L_fin_end")
            a(f"v_lshlrev_b32 v4, 16, v{xr}")
            a(f"v_and_b32 v5, 0xffff0000, v{xr}")
            a(f"v_lshlrev_b32 v6, 16, v{xr+1}")
            a(f"v_and_b32 v7, 0xffff0000, v{xr+1}")
            for h in range(2):
                a(f"v_pk_add_f32 v[{r+2*h}:{r+2*h+1}], v[{r+2*h}:{r+2*h+1}], v[{r+4+2*h}:{r+5+2*h}]")
                a(f"v_pk_add_f32 v[{r+8+2*h}:{r+9+2*h}], v[{r+8+2*h}:{r+9+2*h}], v[{r+12+2*h}:{r+13+2*h}]")
                a(f"v_pk_add_f32 v[{r+2*h}:{r+2*h+1}], v[{r+2*h}:{r+2*h+1}], v[{4+2*h}:{5+2*h}]")
                a(f"v_pk_add_f32 v[{r+2*h}:{r+2*h+1}], v[{r+2*h}:{r+2*h+1}], v[{r+8+2*h}:{r+9+2*h}]")
            a(f"v_cvt_pk_bf16_f32 v{r}, v{r}, v{r+1}")
            a(f"v_cvt_pk_bf16_f32 v{r+1}, v{r+2}, v{r+3}")
            a(f"buffer_store_dwordx2 v[{r}:{r+1}], v14, s[36:39], s{52+i} offen{os.environ.get('OUTSC', '')}")
        a.label("L_fin_end")
        if os.environ.get("TAILSTAMP"): stamp(a, 6)

WS_ST = 0x1480000
def qkv2_decode(a):
    a("s_and_b32 s24, s2, 7")
    a("s_lshr_b32 s26, s2, 3")
    a("s_mul_i32 s24, s24, 30")
    a("s_add_u32 s27, s24, s26")
    a("s_cmp_ge_u32 s27, 80")
    a("s_cselect_b32 s24, 1, 0")
    a("s_cmp_ge_u32 s27, 160")
    a("s_cselect_b32 s24, 2, s24")
    a("s_mul_i32 s26, s24, 80")
    a("s_sub_u32 s27, s27, s26")
    a("s_mul_i32 s26, s27, 205")
    a("s_lshr_b32 s26, s26, 10")
    a("s_mul_i32 s3, s26, 5")
    a("s_sub_u32 s27, s27, s3")
    a("s_mul_i32 s47, s24, 5")
    a("s_add_u32 s47, s47, s27")
    a("s_lshl_b32 s46, s47, 4")
    a("s_add_u32 s46, s46, s26")

def qkv2(a, nonce_check):
    ACC, XF, WF, CS, SEL, AD = 16, 48, 64, 72, 76, 80
    XA0, XA1, TW, DX, DW = 3, 4, 5, 6, 7
    NSL, RING = 20, 5
    L_CS, L_ST = 0, 1024
    XB0, XB1, TW2 = 90, 91, 92
    vm = VM(a)
    srd(a, 28, S_WQKV, 2457600)
    srd(a, 36, S_X, 2621440)
    a("v_lshrrev_b32 v10, 2, v2")
    a("s_lshl_b32 s3, s25, 4")
    a("v_add_u32 v10, s3, v10")
    a("v_mul_u32_u24 v10, 1280, v10")
    a("v_lshrrev_b32 v11, 4, v2")
    a("v_and_b32 v12, 3, v2")
    a("v_xor_b32 v13, v12, v11")
    a(f"v_lshl_add_u32 v{DX}, v13, 4, v10")
    a("s_lshl_b32 s3, s25, 2")
    a("v_add_u32 v10, s3, v11")
    a("v_mul_u32_u24 v10, 3840, v10")
    a("v_bfe_u32 v13, v2, 2, 2")
    a("v_xor_b32 v13, v13, v11")
    a("v_lshl_add_u32 v10, v13, 6, v10")
    a(f"v_lshl_add_u32 v{DW}, v12, 4, v10")
    a("s_mul_i32 s40, s26, 163840")
    a("s_lshl_b32 s41, s47, 8")
    a("s_lshl_b32 s42, s25, 10")
    def dma(sl):
        base = (sl % RING) * 16384
        a(f"s_add_u32 m0, s42, {base}")
        a("s_nop 0")
        vm.issue(f"buffer_load_dwordx4 v{DX}, s[36:39], s40 offen lds", ("S", sl))
        a(f"s_add_u32 m0, s42, {base + 8192}")
        a("s_add_u32 s40, s40, 64")
        vm.issue(f"buffer_load_dwordx4 v{DW}, s[28:31], s41 offen lds", ("S", sl))
        a(f"s_add_u32 s41, s41, {32*3840}")
    NUP = int(os.environ.get('Q2UP', '5'))
    for sl in range(NUP): dma(sl)
    stamp(a, 1)
    a("s_lshr_b32 s48, s25, 2")
    a("s_and_b32 s49, s25, 3")
    a("v_and_b32 v10, 31, v2")
    a("v_lshrrev_b32 v8, 5, v2")
    a("v_bfe_u32 v11, v2, 2, 2")
    a("v_xor_b32 v12, v8, v11")
    a("v_lshlrev_b32 v13, 6, v10")
    a("s_lshl_b32 s3, s48, 12")
    a("v_add_u32 v13, s3, v13")
    a(f"v_lshl_add_u32 v{XA0}, v12, 4, v13")
    a(f"v_xor_b32 v{XA1}, 32, v{XA0}")
    a("v_lshl_add_u32 v12, v8, 3, v11")
    a("v_lshlrev_b32 v12, 8, v12")
    a("v_xor_b32 v13, s49, v11")
    a("v_lshl_add_u32 v12, v13, 6, v12")
    a("v_bfe_u32 v13, v2, 4, 1")
    a("v_lshl_add_u32 v12, v13, 5, v12")
    a("v_add_u32 v12, 8192, v12")
    a("v_and_b32 v14, 15, v2")
    a("v_cmp_eq_u32 vcc, v14, v13")
    a("v_mov_b32 v14, 0x3f803f80")
    for i in range(32): a(f"v_mov_b32 v{ACC+i}, 0")
    a("v_cndmask_b32 v14, 0, v14, vcc")
    for i in range(4):
        a(f"v_mov_b32 v{SEL+i}, v14")
        a(f"v_mov_b32 v{CS+i}, 0")
    a("s_lshl_b32 s3, s26, 8")
    a(f"s_add_u32 s50, s3, {F_XN}")
    a("v_lshlrev_b32 v15, 3, v10")
    a("s_lshl_b32 s51, s26, 10")
    a(f"s_add_u32 s51, s51, {WS_ST}")
    a("s_lshl_b32 s43, s26, 2")
    a("s_lshl_b32 s3, s48, 1")
    a("s_add_u32 s43, s43, s3")
    a("s_cmp_eq_u32 s24, 2")
    a("s_cbranch_scc1 L_q2_V")
    a("v_and_b32 v13, 1, v2")
    a("v_lshl_add_u32 v12, v13, 4, v12")
    a("v_bfe_u32 v13, v2, 1, 1")
    a(f"v_lshl_add_u32 v{TW}, v13, 3, v12")
    a("s_lshl_b32 s45, s43, 10")
    a(f"s_add_u32 s45, s45, {WS_QM}")
    a("s_lshl_b32 s44, s43, 8")
    a(f"s_add_u32 s44, s44, {WS_QR}")
    a("s_mov_b32 s52, 65536")
    a("s_mov_b32 s53, 16384")
    a("s_movk_i32 s54, 1024")
    a("s_movk_i32 s55, 256")
    a(f"s_mov_b32 s63, {f2hex(QSCALE)}")
    a("s_cmp_eq_u32 s24, 0")
    a("s_cbranch_scc1 L_q2_isq")
    a("s_mul_i32 s45, s43, 2560")
    a(f"s_add_u32 s45, s45, {WS_KV}")
    a("s_add_u32 s44, s45, 1024")
    a("s_mov_b32 s52, 163840")
    a("s_mov_b32 s53, 163840")
    a("s_movk_i32 s54, 2560")
    a("s_movk_i32 s55, 2560")
    a("s_mov_b32 s63, 1.0")
    a.label("L_q2_isq")
    a("s_lshl_b32 s3, s27, 2")
    a("s_add_u32 s3, s3, s49")
    a("s_lshl_b32 s3, s3, 2")
    a("v_add_u32 v11, s3, v8")
    a("v_lshl_add_u32 v12, v10, 4, s45")
    a("v_lshl_add_u32 v13, v10, 3, s44")
    for q in range(2):
        a(f"v_add_u32 v14, {2*q}, v11")
        a("v_mul_u32_u24 v1, 205, v14")
        a("v_lshrrev_b32 v1, 10, v1")
        a("v_mul_u32_u24 v0, 5, v1")
        a("v_sub_u32 v14, v14, v0")
        a("v_lshlrev_b32 v1, 1, v1")
        a("v_mul_lo_u32 v0, v1, s53")
        a(f"v_add_u32 v{AD+3*q+1}, v0, v13")
        a(f"v_add_u32 v{AD+3*q+2}, s53, v{AD+3*q+1}")
        a("v_cmp_lt_u32 vcc, 2, v14")
        a("v_subrev_u32 v0, 3, v14")
        a("s_nop 0")
        a("v_addc_co_u32 v1, s[86:87], 0, v1, vcc")
        a("v_cndmask_b32 v0, v14, v0, vcc")
        a("v_mul_lo_u32 v1, v1, s52")
        a("v_lshl_add_u32 v0, v0, 9, v12")
        a("v_add_u32 v0, v0, v1")
        a("v_cmp_eq_u32 vcc, 2, v14")
        a(f"v_mov_b32 v1, {OOB - 0x100000}")
        a("s_nop 0")
        a(f"v_cndmask_b32 v{AD+3*q}, v0, v1, vcc")
        a(f"v_cndmask_b32 v{AD+3*q+1}, v1, v{AD+3*q+1}, vcc")
        a(f"v_cndmask_b32 v{AD+3*q+2}, v1, v{AD+3*q+2}, vcc")

    def loop(vtype):
        vq = list(vm.q)
        a(f"v_add_u32 v{XB0}, 0x10000, v{XA0}")
        a(f"v_add_u32 v{XB1}, 0x10000, v{XA1}")
        a(f"v_add_u32 v{TW2}, 0x10000, v{TW}")
        nd = [NUP]
        def reads(s):
            sl, sp = s // 2, s % 2
            base = (sl % RING) * 16384
            x = XF + 8 * (s % 2); w = WF + 4 * (s % 2)
            xa = XA1 if sp else XA0; tw = TW
            if base >= 65536:
                base -= 65536; xa = XB1 if sp else XB0; tw = TW2
            a(f"ds_read_b128 v[{x}:{x+3}], v{xa} offset:{base}")
            a(f"ds_read_b64_tr_b16 v[{w}:{w+1}], v{tw} offset:{base + 16*sp*256}")
            a(f"ds_read_b64_tr_b16 v[{w+2}:{w+3}], v{tw} offset:{base + (16*sp+4)*256}")
            a(f"ds_read_b128 v[{x+4}:{x+7}], v{xa} offset:{base + 2048}")
        def pre(s):
            if s % 4: return
            sl = s // 2
            vm.wait(lambda t: t == ("S", sl + 1), "lgkmcnt(0)" if s else "")
            a("s_barrier")
            if sl in (0, 10): stamp(a, 2 if sl == 0 else 3)
            if PROFILE and os.environ.get("SLOTTRACE"):
                a("s_memtime s[84:85]")
                a("s_waitcnt lgkmcnt(0)")
                a("s_sub_u32 s84, s84, s64")
                a(f"v_writelane_b32 v120, s84, {sl // 2}")
            while nd[0] < sl + RING and nd[0] < NSL:
                dma(nd[0]); nd[0] += 1
            if cfg.fused:
                if sl == 6:
                    a("v_mov_b32 v0, 0")
                    vm.issue("buffer_load_dwordx2 v[88:89], v0, s[56:59], 0 offen sc1", ("N", 0))
                if sl == 10:
                    vm.wait(lambda t: t == ("N", 0))
                    nonce_check(88)
                if sl == 12:
                    vm.issue("buffer_load_dwordx2 v[88:89], v15, s[32:35], s50 offen sc1", ("F", 0))
                if sl == 16:
                    vm.wait(lambda t: t == ("F", 0))
                    L = uid("L_q2f")
                    a("v_cmp_ne_u64 vcc, s[60:61], v[88:89]")
                    a(f"s_cbranch_vccz {L}")
                    a("v_add_u32 v0, s50, v15")
                    poll(a, 0, 88)
                    a.label(L)
            if sl == 16:
                a(f"s_mov_b32 m0, {L_ST}")
                a("s_nop 0")
                vm.issue(f"buffer_load_dwordx4 v9, s[32:35], s51 offen{cfg.sc} lds", ("T", 0))
        pre(0); reads(0)
        for s in range(2 * NSL):
            if s + 1 < 2 * NSL:
                pre(s + 1); reads(s + 1)
                a("s_waitcnt lgkmcnt(4)")
            else:
                a("s_waitcnt lgkmcnt(0)")
            x = XF + 8 * (s % 2); w = WF + 4 * (s % 2)
            for j in range(2):
                W = f"v[{w}:{w+3}]"; X = f"v[{x+4*j}:{x+4*j+3}]"
                A, B = (X, W) if vtype else (W, X)
                D = f"v[{ACC+16*j}:{ACC+16*j+15}]"
                a(f"v_mfma_f32_32x32x16_bf16 {D}, {A}, {B}, {D}")
            L = uid("L_q2s")
            a(f"s_cmp_lg_u32 s48, {s % 2}")
            a(f"s_cbranch_scc1 {L}")
            a(f"v_mfma_f32_16x16x32_bf16 v[{CS}:{CS+3}], v[{w}:{w+3}], v[{SEL}:{SEL+3}], v[{CS}:{CS+3}]")
            a.label(L)
        stamp(a, 6)
        if qkv_hook: qkv_hook()
        a("v_and_b32 v0, 15, v2")
        a("v_lshrrev_b32 v1, 4, v2")
        a("v_lshlrev_b32 v1, 4, v1")
        a("v_lshl_add_u32 v1, v0, 6, v1")
        a("s_lshl_b32 s3, s25, 7")
        a(f"s_add_u32 s3, s3, {L_CS}")
        a("v_add_u32 v1, s3, v1")
        a("v_cmp_gt_u32 vcc, 2, v0")
        a("s_nop 1")
        a("s_mov_b64 exec, vcc")
        a(f"ds_write_b128 v1, v[{CS}:{CS+3}]")
        a("s_mov_b64 exec, -1")
        vm.wait(lambda t: t == ("T", 0), "lgkmcnt(0)")
        a("s_barrier")
        vm.q = vq
    loop(False)
    C0, C1, MR = 48, 64, 88
    a("s_lshl_b32 s3, s49, 7")
    a(f"s_add_u32 s3, s3, {L_CS}")
    a("v_lshl_add_u32 v0, v8, 4, s3")
    for g in range(4):
        a(f"ds_read_b128 v[{C0+4*g}:{C0+4*g+3}], v0 offset:{32*g}")
        a(f"ds_read_b128 v[{C1+4*g}:{C1+4*g+3}], v0 offset:{512 + 32*g}")
    a("s_lshl_b32 s3, s48, 8")
    a(f"s_add_u32 s3, s3, {L_ST}")
    a("v_lshl_add_u32 v1, v10, 2, s3")
    for j in range(2):
        a(f"ds_read_b32 v{MR+4*j}, v1 offset:{128*j}")
        a(f"ds_read_b32 v{MR+4*j+2}, v1 offset:{512 + 128*j}")
    a("s_waitcnt lgkmcnt(0)")
    for i in range(0, 16, 2):
        a(f"v_pk_add_f32 v[{C0+i}:{C0+i+1}], v[{C0+i}:{C0+i+1}], v[{C1+i}:{C1+i+1}]")
    for j in range(2):
        a(f"v_mov_b32 v{MR+4*j+1}, v{MR+4*j}")
        a(f"v_mul_f32 v{MR+4*j+2}, s63, v{MR+4*j+2}")
        a(f"v_mov_b32 v{MR+4*j+3}, v{MR+4*j+2}")
    for j in range(2):
        for q in range(2):
            r = ACC + 16 * j + 8 * q
            for i in range(0, 8, 2):
                c = C0 + 8 * q + i
                a(f"v_pk_fma_f32 v[{r+i}:{r+i+1}], v[{c}:{c+1}], v[{MR+4*j}:{MR+4*j+1}], v[{r+i}:{r+i+1}]")
            for i in range(0, 8, 2):
                a(f"v_pk_mul_f32 v[{r+i}:{r+i+1}], v[{r+i}:{r+i+1}], v[{MR+4*j+2}:{MR+4*j+3}]")
            for i in range(4):
                a(f"v_cvt_pk_bf16_f32 v{r+i}, v{r+2*i}, v{r+2*i+1}")
            sm, sr_ = ("0", "0") if j == 0 else ("s54", "s55")
            a(f"buffer_store_dwordx4 v[{r}:{r+3}], v{AD+3*q}, s[32:35], {sm} offen{cfg.sc}")
            a(f"buffer_store_dwordx2 v[{r}:{r+1}], v{AD+3*q+1}, s[32:35], {sr_} offen{cfg.sc}")
            a(f"buffer_store_dwordx2 v[{r+2}:{r+3}], v{AD+3*q+2}, s[32:35], {sr_} offen{cfg.sc}")
    a("s_branch L_q2_done")
    a.label("L_q2_V")
    a("v_and_b32 v13, 3, v2")
    a(f"v_lshl_add_u32 v{TW}, v13, 3, v12")
    a("s_mul_i32 s45, s43, 2560")
    a(f"s_add_u32 s45, s45, {WS_KV + 1280}")
    a("s_lshl_b32 s3, s27, 2")
    a("s_add_u32 s3, s3, s49")
    a("s_lshl_b32 s3, s3, 5")
    a("v_add_u32 v13, s3, v10")
    a("v_mul_u32_u24 v11, 320, v8")
    a("v_add_u32 v11, s45, v11")
    a("s_mov_b32 s52, 163840")
    a("v_mul_u32_u24 v14, 3277, v13")
    a("v_lshrrev_b32 v14, 16, v14")
    a("v_mul_u32_u24 v1, 20, v14")
    a("v_sub_u32 v1, v13, v1")
    a("v_lshl_add_u32 v0, v1, 4, v11")
    a("v_mul_lo_u32 v14, v14, s52")
    a(f"v_add_u32 v{AD}, v0, v14")
    loop(True)
    MN, RS = 48, 88
    a("s_lshl_b32 s3, s49, 7")
    a(f"s_add_u32 s3, s3, {L_CS}")
    a("v_lshl_add_u32 v0, v10, 2, s3")
    a("ds_read_b32 v12, v0")
    a("ds_read_b32 v13, v0 offset:512")
    a("s_lshl_b32 s3, s48, 8")
    a(f"s_add_u32 s3, s3, {L_ST}")
    a("v_lshl_add_u32 v1, v8, 4, s3")
    for j in range(2):
        for g in range(4):
            a(f"ds_read_b128 v[{MN+16*j+4*g}:{MN+16*j+4*g+3}], v1 offset:{128*j + 32*g}")
            a(f"ds_read_b128 v[{RS+16*j+4*g}:{RS+16*j+4*g+3}], v1 offset:{512 + 128*j + 32*g}")
    a("s_waitcnt lgkmcnt(15)")
    a("v_add_f32 v12, v12, v13")
    a("v_mov_b32 v13, v12")
    a("s_waitcnt lgkmcnt(0)")
    for j in range(2):
        for gm in range(2):
            r = ACC + 16 * j + 8 * gm
            for i in range(0, 8, 2):
                m = MN + 16 * j + 8 * gm + i
                a(f"v_pk_fma_f32 v[{r+i}:{r+i+1}], v[{m}:{m+1}], v[12:13], v[{r+i}:{r+i+1}]")
            for i in range(0, 8, 2):
                m = RS + 16 * j + 8 * gm + i
                a(f"v_pk_mul_f32 v[{r+i}:{r+i+1}], v[{r+i}:{r+i+1}], v[{m}:{m+1}]")
            for i in range(4):
                a(f"v_cvt_pk_bf16_f32 v{r+i}, v{r+2*i}, v{r+2*i+1}")
            a(f"buffer_store_dwordx4 v[{r}:{r+3}], v{AD}, s[32:35], 0 offen offset:{2560*j + 640*gm}{cfg.sc}")
    a.label("L_q2_done")
    if PROFILE and os.environ.get("SLOTTRACE"):
        a("s_lshl_b32 s84, s2, 4")
        a("s_add_u32 s84, s84, s25")
        a("s_lshl_b32 s84, s84, 6")
        a(f"s_add_u32 s84, s84, {WS_PROF + 0x600000}")
        a("v_lshlrev_b32 v1, 2, v2")
        a("s_mov_b64 exec, 0xffff")
        a("buffer_store_dword v120, v1, s[32:35], s84 offen")
        a("s_mov_b64 exec, -1")
    stamp(a, 7)

def attn_flag_addr2(a, vd):
    a("s_mul_i32 s3, s24, 20")
    a("s_lshr_b32 s26, s3, 7")
    a("s_add_u32 s3, s3, 19")
    a("s_lshr_b32 s3, s3, 7")
    a("s_sub_u32 s3, s3, s26")
    a("v_bfe_u32 v11, v2, 4, 1")
    a("v_mul_u32_u24 v11, 5, v11")
    a("v_lshrrev_b32 v12, 5, v2")
    a("v_mul_lo_u32 v12, v12, s3")
    a("v_add3_u32 v11, v11, v12, s26")
    a("v_add_u32 v11, 5, v11")
    a("v_and_b32 v12, 15, v2")
    a(f"v_lshl_add_u32 v{vd}, v11, 4, v12")
    a(f"v_lshlrev_b32 v{vd}, {FSH}, v{vd}")
    a(f"v_add_u32 v{vd}, {F_QKV}, v{vd}")
    a("v_bfe_u32 v12, v2, 1, 1")
    a("v_mul_lo_u32 v12, v12, s3")
    a("v_add_u32 v12, s26, v12")
    a("v_and_b32 v11, 1, v2")
    a("s_lshl_b32 s3, s27, 1")
    a("v_lshl_add_u32 v12, v12, 4, v11")
    a("v_add_u32 v12, s3, v12")
    a(f"v_lshlrev_b32 v{vd+1}, {FSH}, v12")
    a(f"v_add_u32 v{vd+1}, {F_QKV}, v{vd+1}")

C_XN, C_QKV, C_H, C_O, C_QL = 0, 8, 40, 48, 64
NCNT = 320
def cnt_base(a):
    a(f"s_add_u32 s60, s{S_WS}, {WS_FL}")
    a(f"s_addc_u32 s61, s{S_WS+1}, 0")

def cnt_init(a):
    a("v_lshlrev_b32 v10, 7, v2")
    a("v_mov_b32 v11, 0")
    for i in range(NCNT // 64):
        a(f"s_mov_b32 s62, {WS_FL + i * 8192}")
        a("buffer_store_dword v11, v10, s[32:35], s62 offen sc1")
    srd(a, 56, S_DBG, 256)
    a("v_mov_b32 v10, 1")
    a("s_waitcnt vmcnt(0)")
    a("s_mov_b64 exec, 1")
    a("buffer_store_dword v10, v11, s[56:59], 0 offen sc1")
    a("s_mov_b64 exec, -1")

def go_issue(a, t=10):
    srd(a, 56, S_DBG, 256)
    a(f"v_mov_b32 v{t+1}, 0")
    a(f"buffer_load_dword v{t}, v{t+1}, s[56:59], 0 offen sc1")

def wait_go(a, t=10, issued=False, sleep=1):
    L = uid("L_go")
    a("s_mov_b32 s83, 0x40000")
    if issued:
        a(f"s_branch {L}_chk")
    else:
        srd(a, 56, S_DBG, 256)
        a(f"v_mov_b32 v{t+1}, 0")
    a.label(L)
    a(f"buffer_load_dword v{t}, v{t+1}, s[56:59], 0 offen sc1")
    a.label(L + "_chk")
    a("s_waitcnt vmcnt(0)")
    a(f"v_readfirstlane_b32 s62, v{t}")
    a("s_cmp_lg_u32 s62, 0")
    a(f"s_cbranch_scc1 {L}_ok")
    a(f"s_sleep {sleep}")
    a("s_sub_u32 s83, s83, 1")
    a(f"s_cbranch_scc0 {L}")
    a.label(L + "_ok")

def vpoll(a, offs, target, t=10, sleep=1):
    L = uid("L_vp")
    a(f"v_mov_b32 v{t+1}, s{offs[0]}")
    for i, o in enumerate(offs[1:], 1):
        a(f"v_writelane_b32 v{t+1}, s{o}, {i}")
    a(f"s_mov_b32 s62, {WS_FL}")
    a("s_mov_b32 s83, 0x40000")
    a(f"s_mov_b64 exec, {(1 << len(offs)) - 1}")
    a.label(L)
    a(f"buffer_load_dword v{t}, v{t+1}, s[32:35], s62 offen sc1")
    a("s_waitcnt vmcnt(0)")
    a(f"v_cmp_gt_u32 vcc, {target}, v{t}")
    a(f"s_cbranch_vccz {L}_ok")
    a(f"s_sleep {sleep}")
    a("s_sub_u32 s83, s83, 1")
    a(f"s_cbranch_scc0 {L}")
    a.label(L + "_ok")
    a("s_mov_b64 exec, -1")

def cadd(a, base, idx_sgpr, t=10):
    a(f"s_lshl_b32 s62, s{idx_sgpr}, 7")
    a(f"s_add_u32 s62, s62, {WS_FL + base * 128}")
    a(f"v_mov_b32 v{t}, 1")
    a(f"v_mov_b32 v{t+1}, 0")
    a("s_mov_b64 exec, 1")
    a(f"buffer_atomic_add v{t}, v{t+1}, s[32:35], s62 offen sc1")
    a("s_mov_b64 exec, -1")

def cpoll(a, offs, target, sleep=1):
    L = uid("L_cp")
    a("s_mov_b32 s83, 0x40000")
    a.label(L)
    for i, o in enumerate(offs):
        a(f"s_load_dword s{88+i}, s[60:61], s{o} glc")
    a("s_waitcnt lgkmcnt(0)")
    for i in range(1, len(offs)):
        a(f"s_min_u32 s88, s88, s{88+i}")
    a(f"s_cmp_ge_u32 s88, {target}")
    a(f"s_cbranch_scc1 {L}_ok")
    a(f"s_sleep {sleep}")
    a("s_sub_u32 s83, s83, 1")
    a(f"s_cbranch_scc0 {L}")
    a.label(L + "_ok")


WS_EX = 0x1500000
F_EX = WS_FL + 0x50000
class FIN2(FIN):
    BOFF = 2
    def roles(self):
        a = self.a
        a("s_and_b32 s46, s25, 1")
        a("s_bfe_u32 s3, s25, 0x10001")
        a("s_and_b32 s58, s27, 1")
        a("s_xor_b32 s57, s3, s58")
        a("s_lshr_b32 s47, s25, 2")
        a("s_lshl_b32 s3, s57, 1")
        a("s_add_u32 s47, s47, s3")
        a("s_lshl_b32 s56, s47, 1")
        a("s_add_u32 s56, s56, s46")
    def setup(self, zero_acc=True):
        a = self.a
        FIN.setup(self, zero_acc)
        a("s_lshr_b32 s3, s27, 1")
        a("s_lshl_b32 s3, s3, 2")
        a("s_and_b32 s45, s25, 3")
        a("s_add_u32 s3, s3, s45")
        a("s_mul_i32 s40, s3, 98304")
        a("s_mul_i32 s3, s58, 49152")
        a("s_add_u32 s40, s40, s3")
        a("s_lshl_b32 s3, s48, 11")
        a("s_add_u32 s40, s40, s3")
        a(f"s_add_u32 s40, s40, {WS_H}")
        a(f"s_mul_i32 s3, s58, {768*1280}")
        a("s_add_u32 s41, s41, s3")
        a("s_mul_i32 s3, s57, 10240")
        a(f"v_subrev_u32 v{self.TD}, s3, v{self.TD}")
        a("s_and_b32 s3, s56, 3")
        a("s_mul_i32 s59, s3, 5120")
        a("s_and_b32 s3, s2, 255")
        a("s_mul_i32 s3, s3, 20480")
        a("s_add_u32 s59, s59, s3")
        a(f"s_add_u32 s59, s59, {WS_EX}")
    def hload(self, m):
        r = self.XF + 8 * (m % 4)
        for th in range(2):
            self.a(f"buffer_load_dwordx4 v[{r+4*th}:{r+4*th+3}], v3, s[32:35], s40 offen offset:{256*th}{cfg.sc}")
            for q in self.q: q.append(("X", m))
        self.a("s_add_u32 s40, s40, 4096")
    def down(self, npre=4):
        a = self.a
        for m in range(2): self.hload(m)
        nw, nh = npre, 2
        TD2 = 15
        a(f"v_add_u32 v{TD2}, 40960, v{self.TD}")
        def reads(i):
            buf = (i // 2 + self.BOFF) % 4
            base = self.TD if buf < 2 else TD2
            self.wreads(self.WF + 20 * (i % 2), base, (buf % 2) * 20480 + (i % 2) * 10240, 1280)
        self.wait2([("W", 0)])
        a("s_barrier")
        stamp(a, 9)
        reads(0)
        for i in range(12):
            if i + 1 < 12:
                if i % 2 == 1:
                    sl = i // 2
                    self.wait2([("W", sl + 1)], "lgkmcnt(0)")
                    a("s_barrier")
                    reads(i + 1)
                    for _ in range(2):
                        if nw <= sl + 4 and nw < 6:
                            self.dma_wd(nw); nw += 1
                    if sl == 3:
                        self.wo_dma((0, 8), 0, 0)
                        for q in self.q: q += [("O", 0)] * 5
                    if sl == 4:
                        self.wo_dma((0, 4), 8, 8)
                        self.q[0] += [("O", 1)] * 5
                    self.wait2([("X", i)])
                else:
                    reads(i + 1)
                    self.wait2([("X", i)], "lgkmcnt(10)")
            else:
                self.wait2([("X", i)], "lgkmcnt(0)")
            self.mfmas(self.WF + 20 * (i % 2), self.XF + 8 * (i % 4))
            for _ in range(2):
                if nh <= i + 4 and nh < 12:
                    self.hload(nh); nh += 1
        stamp(a, 10)
        a("s_cmp_eq_u32 s57, 0")
        a("s_cbranch_scc1 L_fin_keep")
        a("s_add_u32 s3, s59, 4096")
        a("s_nop 4")
        for j in range(20):
            a(f"v_cvt_pk_bf16_f32 v{self.XF+j}, v{self.ACC+2*j}, v{self.ACC+2*j+1}")
            if j % 4 == 3:
                k = j // 4
                so, off = ("s59", 1024 * k) if k < 4 else ("s3", 0)
                a(f"buffer_store_dwordx4 v[{self.XF+4*k}:{self.XF+4*k+3}], v9, s[32:35], {so} offen offset:{off}{cfg.sc}")
        a.label("L_fin_keep")
    def receive(self):
        a = self.a
        a("s_cmp_eq_u32 s57, 0")
        a("s_cbranch_scc1 L_fin_got")
        a("s_bitcmp1_b32 s2, 3")
        a("s_cselect_b32 s3, -8, 8")
        a("s_mul_i32 s3, s3, 20480")
        a("s_add_u32 s59, s59, s3")
        a("s_add_u32 s3, s59, 4096")
        for k in range(5):
            so, off = ("s59", 1024 * k) if k < 4 else ("s3", 0)
            a(f"buffer_load_dwordx4 v[{self.XF+4+4*k}:{self.XF+7+4*k}], v9, s[32:35], {so} offen offset:{off}{cfg.sc}")
        a("s_waitcnt vmcnt(0)")
        for j in range(20):
            a(f"v_lshlrev_b32 v{self.ACC+2*j}, 16, v{self.XF+4+j}")
            a(f"v_and_b32 v{self.ACC+2*j+1}, 0xffff0000, v{self.XF+4+j}")
        a.label("L_fin_got")
```

```python
import sys, os
sys.path.insert(0, os.path.dirname(__file__))
from common import *
import roles
from roles import *
from gen2 import prologue, flush_attn

HEADER = open(os.path.join(os.path.dirname(__file__), "header.txt")).read()
F_Q2 = WS_FL + 0x60000
PP = os.environ.get("PP", "")
PRE_DMA = int(os.environ.get("PRE_DMA", "0"))

def get_nonce(a, is_a, pre=True):
    srd(a, 56, S_DBG, 256)
    L = uid("L_nonce")
    if is_a:
        if pre: a("s_add_u32 s3, s2, s25")
        a("s_cmp_lg_u32 s3, 0")
        a(f"s_cbranch_scc1 {L}")
        a("s_memrealtime s[60:61]")
        a("s_waitcnt lgkmcnt(0)")
        a("s_or_b32 s60, s60, 1")
        a("s_or_b32 s61, s61, 0x9e370000")
        a("v_mov_b32 v10, s60")
        a("v_mov_b32 v11, s61")
        a("v_mov_b32 v12, 0")
        a("s_mov_b64 exec, 1")
        a("buffer_store_dwordx2 v[10:11], v12, s[56:59], 0 offen sc1")
        a("s_mov_b64 exec, -1")
    a.label(L)

def wait_nonce(a, first_issued=False, t=10, sleep=1):
    L = uid("L_wn")
    ad = 12 if t == 10 else 0
    a("s_mov_b32 s83, 0x40000")
    if first_issued:
        a(f"s_branch {L}_chk")
    else:
        a(f"v_mov_b32 v{ad}, 0")
    a.label(L)
    a(f"buffer_load_dwordx2 v[{t}:{t+1}], v{ad}, s[56:59], 0 offen sc1")
    a.label(L + "_chk")
    a("s_waitcnt vmcnt(0)")
    a(f"v_readfirstlane_b32 s60, v{t}")
    a(f"v_readfirstlane_b32 s61, v{t+1}")
    a("s_min_u32 s62, s60, s61")
    a("s_cmp_lg_u32 s62, 0")
    a(f"s_cbranch_scc1 {L}_ok")
    a(f"s_sleep {sleep}")
    a("s_sub_u32 s83, s83, 1")
    a(f"s_cbranch_scc0 {L}")
    a.label(L + "_ok")

XSH = 3 if int(os.environ.get("Q2", "0")) else int(os.environ.get("XSH", "7"))
def flag_addr(a, vd, base, s_first, mask):
    a(f"v_and_b32 v{vd}, {mask}, v2")
    a(f"v_add_u32 v{vd}, s{s_first}, v{vd}")
    a(f"v_lshlrev_b32 v{vd}, {XSH if base == F_XN else FSH}, v{vd}")
    a(f"v_add_u32 v{vd}, {base}, v{vd}")

def wave0(a, fn):
    L = uid("L_w0")
    a("s_cmp_lg_u32 s25, 0")
    a(f"s_cbranch_scc1 {L}")
    fn()
    a.label(L)

def warm_weights(a, part, w0=1):
    a("s_sub_u32 s50, s2, 256")
    L = uid("L_warm")
    if part == 0:
        spec = [(S_WQKV, 2457600, 4800, 0), (S_WQKV, 2457600, 4800, 1228800)]
        if PRE_DMA: spec += [(S_WG, 1966080, 1536 * PRE_DMA, 0), (S_WU, 1966080, 1536 * PRE_DMA, 0)]
    else:
        spec = [(S_WD, 1966080, 3840, 0), (S_WD, 1966080, 3840, 983040), (S_WO, 819200, 3200, 0)]
    for w, (ptr, size, per, base) in enumerate(spec):
        a(f"s_cmp_lg_u32 s25, {w + w0}")
        a(f"s_cbranch_scc1 {L}_{w}")
        srd(a, 36, ptr, size)
        a(f"s_mul_i32 s51, s50, {per}")
        if base: a(f"s_add_u32 s51, s51, {base}")
        n = (per + 1023) // 1024
        for i in range(n):
            if i == 4: a("s_add_u32 s51, s51, 4096")
            r = 96 + 4 * (i % 8) if part == 0 else 120
            a(f"buffer_load_dwordx4 v[{r}:{r+3}], v9, s[36:39], s51 offen offset:{1024*(i%4)}")
        if part == 0: a("s_waitcnt vmcnt(0)")
        a.label(f"{L}_{w}")

def code_prefetch(a):
    L = uid("L_cpf")
    a("s_cmp_ge_u32 s2, 264")
    a(f"s_cbranch_scc1 {L}")
    a("s_cmp_lg_u32 s25, 7")
    a(f"s_cbranch_scc1 {L}")
    a("s_getpc_b64 s[50:51]")
    a.label(L + "_pc")
    a(f"s_sub_u32 s50, s50, {L}_pc-{NAME}_kernel")
    a("s_subb_u32 s51, s51, 0")
    a(f"s_mov_b32 s52, (L_end-{NAME}_kernel)/1024")
    a("v_mov_b32 v10, v9")
    a.label(L + "_l")
    a("global_load_dwordx4 v[96:99], v10, s[50:51]")
    a("v_add_u32 v10, 1024, v10")
    a("s_sub_u32 s52, s52, 1")
    a("s_cmp_lg_u32 s52, 0")
    a(f"s_cbranch_scc1 {L}_l")
    a("s_waitcnt vmcnt(0)")
    a.label(L)

def l2_prefetch(a):
    a("s_cmp_ge_u32 s49, 240")
    a("s_cbranch_scc1 L_b_pf_done")
    a("s_mov_b32 s62, s2")
    a("s_mov_b32 s2, s49")
    qkv2_decode(a)
    a("s_mov_b32 s2, s62")
    srd(a, 28, S_WQKV, 2457600)
    srd(a, 36, S_X, 2621440)
    a("v_lshrrev_b32 v10, 4, v2")
    a("v_and_b32 v11, 15, v2")
    a("v_lshlrev_b32 v11, 4, v11")
    a("s_movk_i32 s3, 1280")
    a("v_mad_u32_u24 v12, v10, s3, v11")
    a("s_movk_i32 s3, 3840")
    a("v_mad_u32_u24 v13, v10, s3, v11")
    a("s_sub_u32 s50, s25, 2")
    a("s_mul_i32 s51, s26, 163840")
    a("s_lshl_b32 s3, s27, 8")
    a("s_add_u32 s51, s51, s3")
    a("s_mul_i32 s3, s50, 5120")
    a("s_add_u32 s51, s51, s3")
    a("s_mul_i32 s3, s26, 43")
    a("s_lshr_b32 s3, s3, 8")
    a("s_mul_i32 s3, s3, 6")
    a("s_sub_u32 s3, s26, s3")
    a(f"s_mul_i32 s52, s3, {108*3840}")
    a("s_lshl_b32 s3, s47, 8")
    a("s_add_u32 s52, s52, s3")
    a("s_mul_i32 s3, s50, 15360")
    a("s_add_u32 s52, s52, s3")
    for i in range(6):
        if i < 5:
            a(f"buffer_load_dwordx4 v[{16+8*i}:{19+8*i}], v13, s[28:31], s52 offen")
            a(f"s_add_u32 s52, s52, {6*15360}")
        if i == 5:
            a("s_cmp_ge_u32 s50, 2")
            a("s_cbranch_scc1 L_b_pf_w")
        a(f"buffer_load_dwordx4 v[{20+8*i}:{23+8*i}], v12, s[36:39], s51 offen")
        a(f"s_add_u32 s51, s51, {6*5120}")
    a.label("L_b_pf_w")
    a("s_waitcnt vmcnt(0)")

def gen_fused():
    cfg.fused = True; cfg.sc = " sc1"
    a = Asm()
    if os.environ.get("FLOOR0") or os.environ.get("PROBE"): a("s_memrealtime s[92:93]")
    FASTP = int(os.environ.get("FASTP", "0")) and not int(os.environ.get("Q2", "0"))
    if FASTP:
        stamp_start(a)
        load_args(a)
        a("s_lshl_b32 s3, s2, 3")
        a("v_lshrrev_b32 v3, 4, v0")
        a("v_add_u32 v3, s3, v3")
        a("v_mul_u32_u24 v3, 1280, v3")
        a("v_and_b32 v4, 15, v0")
        a("v_lshl_add_u32 v3, v4, 4, v3")
        a("v_lshrrev_b32 v1, 6, v0")
        a("s_mov_b32 s38, 2621440")
        a("s_mov_b32 s39, 0x00020000")
        a("v_readfirstlane_b32 s25, v1")
        a("s_lshr_b32 s3, s2, 7")
        a("s_or_b32 s3, s3, s25")
        a("s_cmp_ge_u32 s3, 2")
        a("s_waitcnt lgkmcnt(0)")
        a("s_mov_b64 s[36:37], s[4:5]")
        a("s_cbranch_scc1 L_nox")
        for i in range(5):
            a(f"buffer_load_dwordx4 v[{16+4*i}:{19+4*i}], v3, s[36:39], 0 offen offset:{256*i}")
        a.label("L_nox")
        a("s_cmp_ge_u32 s2, 512")
        a("s_cbranch_scc1 L_end")
        a("v_and_b32 v2, 63, v0")
        a("v_lshlrev_b32 v9, 4, v2")
        srd(a, 32, S_WS, WS_SIZE)
    else:
        prologue(a, 512, "L_end")
    a("s_cmp_ge_u32 s2, 256")
    a("s_cbranch_scc1 L_roleB")
    Q2 = int(os.environ.get("Q2", "0"))
    HYB = int(os.environ.get("HYB", "2"))
    BTRIG = os.environ.get("BTRIG", "qkv")
    if Q2:
        srd(a, 56, S_DBG, 256)
        a("s_cmp_ge_u32 s2, 240")
        a("s_cbranch_scc1 L_a_spare")
        qkv2_decode(a)
        def nonce_check(t):
            L = uid("L_nc")
            a(f"v_readfirstlane_b32 s60, v{t}")
            a(f"v_readfirstlane_b32 s61, v{t+1}")
            a("s_min_u32 s62, s60, s61")
            a("s_cmp_lg_u32 s62, 0")
            a(f"s_cbranch_scc1 {L}")
            wait_nonce(a, t=t)
            a.label(L)
        if BTRIG == "loop": roles.qkv_hook = lambda: wave0(a, lambda: publish(a, F_QL, 2, t=94))
        if BTRIG == "attn": roles.attn_hook = lambda: wave0(a, lambda: publish(a, F_QL, 2))
        if BTRIG == "issue": roles.attn_hook0 = lambda: wave0(a, lambda: publish(a, F_QL, 2))
        qkv2(a, nonce_check)
    else:
        DRY = int(os.environ.get("DRY", "0"))
        WLATE = int(os.environ.get("WLATE", "1"))
        a("s_cmp_ge_u32 s25, 2")
        a("s_cbranch_scc1 L_a_noln")
        if not FASTP: ln_issue(a)
        get_nonce(a, True)
        if not WLATE: a("s_barrier")
        ln_addr(a)
        a("s_waitcnt vmcnt(0)")
        stamp(a, 1)
        if WLATE == 2: a("s_barrier")
        a("v_mov_b32 v12, 0")
        a("buffer_load_dwordx2 v[10:11], v12, s[56:59], 0 offen sc1")
        a.label("L_a_lnbody")
        ln_body(a)
        if DRY:
            a("s_cmp_ge_u32 s25, 2")
            a("s_cbranch_scc1 L_a_dry_done")
        if WLATE == 3: a("s_barrier")
        ln_store(a)
        if WLATE == 1: a("s_barrier")
        stamp(a, 2)
        wait_nonce(a, first_issued=True)
        stamp(a, 3)
        a("s_lshl_b32 s63, s2, 1")
        a("s_add_u32 s63, s63, s25")
        publish(a, F_XN, 63, sh=XSH)
        a("s_branch L_a_ln_done")
        a.label("L_a_noln")
        PWV = int(os.environ.get("PWV", "7"))
        a(f"s_cmp_lg_u32 s25, {PWV}")
        a("s_cbranch_scc1 L_a_non2")
        srd(a, 56, S_DBG, 256)
        wait_nonce(a, sleep=6)
        a.label("L_a_non2")
        W1 = int(os.environ.get("W1", "0"))
        if W1:
            a("s_cmp_lt_u32 s25, 4")
            a("s_cbranch_scc1 L_a_now1")
            a("s_cmp_ge_u32 s2, 240")
            a("s_cbranch_scc1 L_a_now1")
            qkv_decode(a)
            qkv_wdma(a, 0, W1)
            a.label("L_a_now1")
        if int(os.environ.get("TLB", "0")):
            a("s_cmp_lg_u32 s25, 3")
            a("s_cbranch_scc1 L_a_notlb")
            a("v_min_u32 v10, 10, v2")
            a("v_lshlrev_b32 v10, 21, v10")
            a("buffer_load_dword v11, v10, s[32:35], 0 offen")
            a.label("L_a_notlb")
        if DRY:
            if not WLATE: a("s_barrier")
            a("s_cmp_eq_u32 s25, 2")
            a("s_cbranch_scc1 L_a_lnbody")
            a.label("L_a_dry_done")
            a("s_waitcnt lgkmcnt(0)")
            if WLATE: a("s_barrier")
        else:
            a("s_barrier")
        a.label("L_a_ln_done")
        a("s_cmp_ge_u32 s2, 240")
        a("s_cbranch_scc1 L_a_spare")
        qkv_decode(a)
        a("s_cmp_lt_u32 s25, 4")
        a("s_cbranch_scc1 L_a_nodma")
        qkv_wdma(a, W1, 20)
        if PWV == 7:
            a("s_cmp_lg_u32 s25, 7")
            a("s_cbranch_scc1 L_a_nodma")
            a("s_and_b32 s63, s46, 7")
            a("s_lshl_b32 s63, s63, 6")
            flag_addr(a, 0, F_XN, 63, 63)
            a("buffer_load_dwordx2 v[126:127], v0, s[32:35], 0 offen sc1")
        a.label("L_a_nodma")
        def gate():
            L = uid("L_w2")
            if PWV == 2:
                a("s_cmp_lt_u32 s25, 4")
                a(f"s_cbranch_scc1 {L}_a")
                a("s_waitcnt vmcnt(0)")
                a.label(L + "_a")
            if os.environ.get("LNSTAMP"): stamp(a, 10)
            a(f"s_cmp_lg_u32 s25, {PWV}")
            a(f"s_cbranch_scc1 {L}")
            if PWV == 7:
                a("s_waitcnt vmcnt(0)")
                a("v_cmp_ne_u64 vcc, s[60:61], v[126:127]")
                a(f"s_cbranch_vccz {L}")
                a("s_mov_b64 exec, vcc")
            else:
                a("s_and_b32 s63, s46, 7")
                a("s_lshl_b32 s63, s63, 6")
                flag_addr(a, 0, F_XN, 63, 63)
            poll(a, 0, 126, direct=bool(int(os.environ.get("XDIRECT", "1"))), sleep2=int(os.environ.get("XSLEEP", "1")))
            a.label(L)
            if PWV != 2:
                a("s_cmp_lt_u32 s25, 4")
                a(f"s_cbranch_scc1 {L}_a")
                a("s_waitcnt vmcnt(0)")
                a.label(L + "_a")
            if os.environ.get("LNSTAMP"): stamp(a, 5)
            a("s_barrier")
            stamp(a, 4)
        BTRIG = os.environ.get("BTRIG", "qkv")
        if BTRIG == "loop": roles.qkv_hook = lambda: wave0(a, lambda: publish(a, F_QL, 2))
        if BTRIG == "attn": roles.attn_hook = lambda: wave0(a, lambda: publish(a, F_QL, 2))
        if BTRIG == "issue": roles.attn_hook0 = lambda: wave0(a, lambda: publish(a, F_QL, 2))
        if HYB: roles.attn_hook0 = lambda: wave0(a, lambda: publish(a, F_Q2, 2))
        qkv_main(a, gate)
    a("s_setprio 3")
    a("s_waitcnt vmcnt(0)")
    stamp(a, 8)
    for _ in range(int(os.environ.get("DELAY", "0"))): a("s_sleep 32")
    a("s_barrier")
    wave0(a, lambda: publish(a, F_QKV, 46, sh=QSH))
    if BTRIG == "qkv": wave0(a, lambda: publish(a, F_QL, 2))
    a("s_branch L_a_attn")
    a.label("L_a_spare")
    if Q2:
        a("s_lshl_b32 s3, s2, 3")
        a("s_add_u32 s3, s3, s25")
        a("s_sub_u32 s3, s3, 1920")
        get_nonce(a, True, pre=False)
        wave0(a, lambda: wait_nonce(a, sleep=4))
    if int(os.environ.get("WARM", "1")) == 1:
        if int(os.environ.get("SPDELAY", "1")):
            def f():
                a("s_and_b32 s63, s2, 7")
                a("s_lshl_b32 s63, s63, 6")
                flag_addr(a, 12, F_XN, 63, 63)
                poll(a, 12, sleep=4)
            wave0(a, f)
            a("s_barrier")
        a("s_cmp_ge_u32 s25, 4")
        a(f"s_cselect_b32 s36, s{S_WU}, s{S_WG}")
        a(f"s_cselect_b32 s37, s{S_WU+1}, s{S_WG+1}")
        a("s_mov_b32 s38, 1966080")
        a("s_mov_b32 s39, 0x00020000")
        a("s_and_b32 s3, s25, 3")
        a("s_sub_u32 s50, s2, 240")
        a("s_lshl_b32 s50, s50, 2")
        a("s_add_u32 s50, s50, s3")
        a("s_lshl_b32 s50, s50, 10")
        if PRE_DMA: a(f"s_add_u32 s50, s50, {PRE_DMA * 393216}")
        for i in range(min(int(os.environ.get("SPN", "18")), 30 - 6 * PRE_DMA)):
            a(f"buffer_load_dwordx4 v[{16+4*(i%16)}:{19+4*(i%16)}], v9, s[36:39], s50 offen")
            a("s_add_u32 s50, s50, 65536")
        a("s_waitcnt vmcnt(0)")
    a("s_setprio 3")
    a.label("L_a_attn")
    attn_decode(a)
    def f():
        if Q2:
            attn_flag_addr2(a, 14)
            poll(a, 14)
            poll(a, 15, direct=True)
        else:
            attn_flag_addr(a, 14)
            poll(a, 14, direct=bool(int(os.environ.get("DIRECT", "0"))), t2=12 if "Q" in PP else None)
    wave0(a, f)
    a("s_barrier")
    stamp(a, 9)
    attn_main(a)
    a("s_waitcnt vmcnt(0)")
    stamp(a, 12)
    a("s_barrier")
    def f():
        a("s_lshl_b32 s63, s27, 5")
        a("s_add_u32 s63, s63, s24")
        publish(a, F_O, 63)
    wave0(a, f)
    flush_attn(a, 0)
    probe_floor(a)
    dbg_flush(a, 8, [int(x) for x in os.environ.get('DBGA', '1,4,6,9,10,11,12').split(',')], 2)
    a("s_endpgm")
    a.label("L_roleB")
    ROLE[0] = "B"
    if os.environ.get("FLOOR") and not os.environ.get("FLOOR0"):
        a("s_memrealtime s[92:93]")
        a("s_waitcnt lgkmcnt(0)")
    if Q2:
        srd(a, 56, S_DBG, 256)
        a("s_sub_u32 s49, s2, 256")
        roles.LNWG[0] = "s49"
        a("s_cmp_ge_u32 s25, 2")
        a("s_cbranch_scc1 L_b_noln")
        ln_issue(a)
        ln_addr(a)
        a("s_waitcnt vmcnt(0)")
        a("s_barrier")
        a("v_mov_b32 v12, 0")
        a("buffer_load_dwordx2 v[10:11], v12, s[56:59], 0 offen sc1")
        ln_body(a)
        ln_store(a)
        ln_stats(a)
        wait_nonce(a, first_issued=True)
        a("s_lshl_b32 s63, s49, 1")
        a("s_add_u32 s63, s63, s25")
        publish(a, F_XN, 63, sh=3)
        stamp(a, 1)
        a("s_branch L_b_pf_done")
        a.label("L_b_noln")
        warm_weights(a, 0, w0=2)
        a("s_barrier")
        if int(os.environ.get("L2PF", "1")): l2_prefetch(a)
        a.label("L_b_pf_done")
    gu_decode(a)
    g = (GU16 if GU16ON else GU)(a)
    WARM = int(os.environ.get("WARM", "1"))
    if int(os.environ.get("CODEPF", "0")): code_prefetch(a)
    if WARM and int(os.environ.get('WARMQ', '1')) and not Q2: warm_weights(a, 0)
    def f():
        get_nonce(a, False)
        wait_nonce(a, sleep=16)
    if not Q2: wave0(a, f)
    g.setup()
    if PRE_DMA:
        def f():
            a("s_sub_u32 s63, s2, 256")
            a("s_lshl_b32 s63, s63, 1")
            flag_addr(a, 0, F_XN, 63, 0)
            poll(a, 0, sleep=3, single=True)
        wave0(a, f)
        a("s_barrier")
        for st in range(PRE_DMA): g.dma_stage(st)
    def f():
        if BTRIG not in ("attn", "issue"):
            a("s_lshl_b32 s63, s27, 6")
            flag_addr(a, 0, F_XN, 63, 63)
            poll(a, 0, sleep=8 if BTRIG != "xn" else 3)
        if BTRIG not in ("attn", "xn", "issue"):
            a("s_cmp_ge_u32 s2, 496")
            a("s_cbranch_scc1 L_b_noql")
        if BTRIG == "xn": return
        a("s_sub_u32 s63, s2, 256")
        if os.environ.get("SQL", "1") == "1":
            a(f"s_lshl_b32 s63, s63, {FSH}")
            a(f"s_add_u32 s63, s63, {F_QL}")
            a("s_mov_b32 s83, 0x40000")
            a.label("L_b_sq")
            a(f"s_load_dwordx2 s[88:89], s[{S_WS}:{S_WS+1}], s63 glc")
            a("s_waitcnt lgkmcnt(0)")
            a("s_cmp_eq_u64 s[88:89], s[60:61]")
            a("s_cbranch_scc1 L_b_noql")
            a(f"s_sleep {os.environ.get('BSLEEP', '4')}")
            a("s_sub_u32 s83, s83, 1")
            a("s_cbranch_scc0 L_b_sq")
        else:
            flag_addr(a, 0, F_QL, 63, 0)
            poll(a, 0, sleep=int(os.environ.get("BSLEEP", "4")), single=True)
        a.label("L_b_noql")
    wave0(a, f)
    a("s_barrier")
    stamp(a, 2)
    a(f"s_setprio {os.environ.get('PG', '0')}")
    def warm2():
        srd(a, 36, S_WD, 1966080)
        srd(a, 52, S_WO, 819200)
        a("s_sub_u32 s50, s2, 256")
        a("s_lshl_b32 s50, s50, 3")
        a("s_add_u32 s50, s50, s25")
        a("s_mul_i32 s51, s50, 960")
        a("s_mul_i32 s50, s50, 400")
        g.vm.issue("buffer_load_dwordx4 v[120:123], v9, s[36:39], s51 offen", ("P", 0))
        g.vm.issue("buffer_load_dwordx4 v[124:127], v9, s[52:55], s50 offen", ("P", 1))
    def gate2():
        def f():
            a("s_sub_u32 s63, s2, 256")
            a(f"s_lshl_b32 s63, s63, {FSH}")
            a(f"s_add_u32 s63, s63, {F_Q2}")
            a("s_mov_b32 s83, 0x40000")
            a.label("L_b_s2")
            a(f"s_load_dwordx2 s[88:89], s[{S_WS}:{S_WS+1}], s63 glc")
            a("s_waitcnt lgkmcnt(0)")
            a("s_cmp_eq_u64 s[88:89], s[60:61]")
            a("s_cbranch_scc1 L_b_s2ok")
            a("s_sleep 2")
            a("s_sub_u32 s83, s83, 1")
            a("s_cbranch_scc0 L_b_s2")
            a.label("L_b_s2ok")
        wave0(a, f)
    if HYB: g.main(PRE_DMA, warm2 if WARM == 1 else None, gate2)
    else: g.main(PRE_DMA, warm2 if WARM == 1 else None)
    a("s_lshl_b32 s63, s27, 5")
    a("s_add_u32 s63, s63, s24")
    fin_decode(a)
    SK = int(os.environ.get("SK", "0"))
    fn = (FIN2 if SK else FIN)(a); fn.setup(zero_acc=False)
    a("s_waitcnt vmcnt(0)")
    if os.environ.get("LNSTAMP"): stamp(a, 1)
    a("s_barrier")
    wave0(a, lambda: publish(a, F_H, 63, t=56))
    NPRE = int(os.environ.get("NPRE", "4"))
    for m in range(NPRE): fn.dma_wd(m)
    fn.zero_acc()
    def f():
        a("s_lshr_b32 s63, s27, 2")
        a("s_lshl_b32 s63, s63, 5")
        if SK:
            a("s_lshl_b32 s3, s58, 4")
            a("s_add_u32 s62, s63, s3")
            flag_addr(a, 0, F_H, 62, 15)
        else:
            flag_addr(a, 0, F_H, 63, 31)
        poll(a, 0, 56, direct=bool(int(os.environ.get("HDIRECT", "1"))), t2=58 if "H" in PP else None)
    wave0(a, f)
    a("s_barrier")
    stamp(a, 8)
    a(f"s_setprio {os.environ.get('PD', '0')}")
    fn.down(NPRE)
    if int(os.environ.get("PW", "1")): a("s_setprio 3")
    if SK:
        def pub():
            a("s_and_b32 s45, s2, 255")
            wave0(a, lambda: publish(a, F_EX, 45, t=56))
        fn.wo_prefetch(pub)
        def f():
            a("s_xor_b32 s45, s45, 8")
            a(f"s_lshl_b32 s45, s45, {FSH}")
            a(f"s_add_u32 s45, s45, {F_EX}")
            a("s_mov_b32 s83, 0x40000")
            a.label("L_b_ex")
            a(f"s_load_dwordx2 s[88:89], s[{S_WS}:{S_WS+1}], s45 glc")
            a("s_waitcnt lgkmcnt(0)")
            a("s_cmp_eq_u64 s[88:89], s[60:61]")
            a("s_cbranch_scc1 L_b_exok")
            a("s_sleep 2")
            a("s_sub_u32 s83, s83, 1")
            a("s_cbranch_scc0 L_b_ex")
            a.label("L_b_exok")
        wave0(a, f)
        a("s_barrier")
        fn.receive()
    else:
        fn.wo_prefetch()
    a("s_setprio 3")
    def f():
        flag_addr(a, 58, F_O, 63, 31)
        poll(a, 58, 56, direct=bool(int(os.environ.get("ODIRECT", "0"))), sleep2=int(os.environ.get("OSLEEP", "1")), t2=60 if "O" in PP else None)
    wave0(a, f)
    a("s_waitcnt vmcnt(0)")
    a("s_barrier")
    stamp(a, 11)
    fn.wo_main()
    probe_floor(a)
    if os.environ.get("FLOOR"):
        a.label("L_floor")
        a("s_memrealtime s[90:91]")
        a("s_waitcnt lgkmcnt(0)")
        a("s_sub_u32 s90, s90, s92")
        a(f"s_cmp_lt_u32 s90, {int(os.environ['FLOOR']) * 100}")
        a("s_cbranch_scc1 L_floor")
    stamp_flush(a, 0, 25)
    dbg_flush(a, 264, [int(x) for x in os.environ.get('DBGB', '2,3,6,8,10,11,13').split(',')], 9)
    a.label("L_end")
    a("s_endpgm")
    return a

def build_single(a):
    name = NAME + "_kernel"
    for p in check_program(a.lines): print("HAZARD", p)
    out = HEADER + "; @launch grid=(512,1,1) block=(512,1,1) lds=81920\n"
    out += '.amdgcn_target "amdgcn-amd-amdhsa--gfx950"\n.text\n' + kernel_header(name) + a.text()
    out += '.section .rodata,"a"\n' + kernel_desc(name, 128, 128)
    return out

if __name__ == "__main__":
    path = sys.argv[1] if len(sys.argv) > 1 else f"cdna_kernels/{NAME}.s"
    open(path, "w").write(build_single(gen_fused()))
    import subprocess
    r = subprocess.run(["clang", "-x", "assembler", "-target", "amdgcn-amd-amdhsa", "-mcpu=gfx950", "-c", path, "-o", "gen_check.o"], capture_output=True, text=True)
    if r.returncode: print(r.stderr[:1500])
    print("wrote", path, "OK" if r.returncode == 0 else "ASM FAILED")
```

```python
from common import *
from k_ln import ln_rows
import struct

def f2hex(x):
    return "0x%08x" % struct.unpack("<I", struct.pack("<f", x))[0]

QSCALE = (20 ** -0.5) * 1.4426950408889634
WS_FL = 0x1400000
FSH = int(os.environ.get("FSH", "7"))
F_XN, F_QKV, F_QL, F_H, F_O = WS_FL, WS_FL + 0x10000, WS_FL + 0x20000, WS_FL + 0x30000, WS_FL + 0x40000
QSH = int(os.environ.get("QSH", "7"))
OOB = 0x7ffffff0
WS_ST = 0x1480000

class Cfg:
    fused = False
    sc = ""
cfg = Cfg()

_uid = [0]
def uid(p):
    _uid[0] += 1
    return f"{p}{_uid[0]}"

def publish(a, base, idx_sgpr, t=10, sh=None):
    if not cfg.fused: return
    a(f"s_lshl_b32 s62, s{idx_sgpr}, {FSH if sh is None else sh}")
    a(f"s_add_u32 s62, s62, {base}")
    a("v_mov_b32 v0, 0")
    a(f"v_mov_b32 v{t}, s60")
    a(f"v_mov_b32 v{t+1}, s61")
    a("s_mov_b64 exec, 1")
    a(f"buffer_store_dwordx2 v[{t}:{t+1}], v0, s[32:35], s62 offen sc1")
    a("s_mov_b64 exec, -1")

def poll(a, vaddr, t=10, sleep=2, single=False, sleep2=1, direct=False, t2=None):
    if not cfg.fused: return
    L = uid("L_poll")
    a("s_mov_b32 s83, 0x40000")
    if not direct:
        a("s_mov_b64 exec, 1")
        a.label(L)
        a(f"buffer_load_dwordx2 v[{t}:{t+1}], v{vaddr}, s[32:35], 0 offen sc1")
        a("s_waitcnt vmcnt(0)")
        a(f"v_cmp_ne_u64 vcc, s[60:61], v[{t}:{t+1}]")
        a(f"s_cbranch_vccz {L}_1")
        a(f"s_sleep {sleep}")
        a("s_sub_u32 s83, s83, 1")
        a(f"s_cbranch_scc0 {L}")
        a.label(L + "_1")
    if not single and t2 is not None:
        if not direct: a("s_mov_b64 exec, -2")
        a(f"buffer_load_dwordx2 v[{t}:{t+1}], v{vaddr}, s[32:35], 0 offen sc1")
        a.label(L + "_2")
        for x, y in ((t, t2), (t2, t)):
            a(f"s_sleep {int(os.environ.get('PSL', '5'))}")
            a(f"buffer_load_dwordx2 v[{y}:{y+1}], v{vaddr}, s[32:35], 0 offen sc1")
            a("s_waitcnt vmcnt(1)")
            a(f"v_cmp_ne_u64 vcc, s[60:61], v[{x}:{x+1}]")
            a(f"s_cbranch_vccz {L}_ok")
            a("s_mov_b64 exec, vcc")
        a("s_sub_u32 s83, s83, 1")
        a(f"s_cbranch_scc0 {L}_2")
        a.label(L + "_ok")
        a("s_mov_b64 exec, -1")
        return
    if not single:
        if not direct: a("s_mov_b64 exec, -2")
        a.label(L + "_2")
        a(f"buffer_load_dwordx2 v[{t}:{t+1}], v{vaddr}, s[32:35], 0 offen sc1")
        a("s_waitcnt vmcnt(0)")
        a(f"v_cmp_ne_u64 vcc, s[60:61], v[{t}:{t+1}]")
        a(f"s_cbranch_vccz {L}_ok")
        a("s_mov_b64 exec, vcc")
        a(f"s_sleep {sleep2}")
        a("s_sub_u32 s83, s83, 1")
        a(f"s_cbranch_scc0 {L}_2")
        a.label(L + "_ok")
    a("s_mov_b64 exec, -1")

LNWG = ["s2"]
XSWAP = int(os.environ.get("GU16", "1"))
def ln_issue(a):
    a(f"s_lshl_b32 s3, {LNWG[0]}, 3")
    a("v_lshrrev_b32 v3, 4, v0")
    a("v_add_u32 v3, s3, v3")
    a("v_mul_u32_u24 v3, 1280, v3")
    a("v_and_b32 v4, 15, v0")
    a("v_lshl_add_u32 v3, v4, 4, v3")
    srd(a, 36, S_X, 2621440)
    for i in range(5):
        a(f"buffer_load_dwordx4 v[{16+4*i}:{19+4*i}], v3, s[36:39], 0 offen offset:{256*i}")

def ln_addr(a):
    a("v_and_b32 v4, 3, v2")
    a("v_lshrrev_b32 v5, 2, v2")
    a("v_lshl_add_u32 v6, v4, 4, v5")
    a("v_lshlrev_b32 v6, 2, v6")
    a(f"s_lshl_b32 s3, {LNWG[0]}, 3")
    a("s_lshl_b32 s26, s25, 2")
    a("s_add_u32 s3, s3, s26")
    a("s_lshr_b32 s26, s3, 5")
    a("s_mul_i32 s26, s26, 40960")
    a("s_and_b32 s3, s3, 31")
    a("s_lshl_b32 s3, s3, 4")
    a("s_add_u32 s26, s26, s3")
    a("v_lshrrev_b32 v7, 1, v5")
    a("v_lshlrev_b32 v7, 10, v7")
    a("v_and_b32 v5, 1, v5")
    a("v_lshl_add_u32 v7, v5, 9, v7")
    a("v_lshl_add_u32 v7, v4, 4, v7")
    a("v_add_u32 v7, s26, v7")
    for i in range(5):
        a(f"s_mov_b32 s{40+i}, {WS_XN + 8192*i}")

def ln_body(a):
    ln_rows(a, 16, 40, 80, None, None)
    for i in range(20):
        a(f"ds_bpermute_b32 v{40+i}, v6, v{16+i}")

def ln_finish(a):
    ln_addr(a)
    a("s_waitcnt vmcnt(0)")
    stamp(a, 1)
    ln_body(a)
    ln_store(a)

def ln_stats(a):
    a(f"s_lshl_b32 s3, {LNWG[0]}, 3")
    a("s_lshl_b32 s45, s25, 2")
    a("s_add_u32 s3, s3, s45")
    a("s_lshr_b32 s45, s3, 7")
    a("s_lshl_b32 s45, s45, 10")
    a("s_and_b32 s3, s3, 127")
    a("s_lshl_b32 s3, s3, 2")
    a("s_add_u32 s45, s45, s3")
    a(f"s_add_u32 s45, s45, {WS_ST}")
    a("v_lshrrev_b32 v4, 4, v2")
    a("v_lshlrev_b32 v4, 2, v4")
    a("s_mov_b32 exec_lo, 0x00010001")
    a("s_mov_b32 exec_hi, 0x00010001")
    a(f"buffer_store_dword v84, v4, s[32:35], s45 offen{cfg.sc}")
    a(f"buffer_store_dword v80, v4, s[32:35], s45 offen offset:512{cfg.sc}")
    a("s_mov_b64 exec, -1")

def ln_store(a):
    if XSWAP:
        a("v_and_b32 v4, 4, v2")
        a("v_cmp_ne_u32 vcc, 0, v4")
    for i in range(5):
        a(f"s_waitcnt lgkmcnt({min(15, 16-4*i)})")
        r = 40 + 4 * i
        if XSWAP:
            if i == 0: a("s_nop 0")
            for j in range(4):
                a(f"v_cndmask_b32 v{60+4*i+j}, v{r+j}, v{r+(j^2)}, vcc")
            r = 60 + 4 * i
        a(f"buffer_store_dwordx4 v[{r}:{r+3}], v7, s[32:35], s{40+i} offen{cfg.sc}")

qkv_hook = None
attn_hook = None
attn_hook0 = None
def qkv_decode(a):
    a("s_and_b32 s24, s2, 7")
    a("s_lshr_b32 s26, s2, 3")
    LM = int(os.environ.get("QMAP", "2"))
    a(f"s_lshr_b32 s27, s24, {LM}")
    a(f"s_lshl_b32 s27, s27, {LM}")
    a(f"s_and_b32 s24, s24, {(1 << LM) - 1}")
    a("s_mul_i32 s24, s24, 30")
    a("s_add_u32 s24, s24, s26")
    a(f"s_and_b32 s3, s24, {(1 << LM) - 1}")
    a("s_add_u32 s27, s27, s3")
    a(f"s_lshr_b32 s47, s24, {LM}")
    a("s_lshl_b32 s46, s47, 3")
    a("s_add_u32 s46, s46, s27")
    a("s_lshl_b32 s26, s27, 3")
    a("s_add_u32 s26, s26, s25")
    a("s_cmp_ge_u32 s47, 10")
    a("s_cselect_b32 s24, 1, 0")
    a("s_cmp_ge_u32 s47, 20")
    a("s_cselect_b32 s24, 2, s24")
    a("s_mul_i32 s3, s24, 10")
    a("s_sub_u32 s27, s47, s3")

def qkv_wdma(a, j0=0, j1=20, setup=True):
    if not setup:
        for j in range(j0, j1):
            a(f"s_add_u32 m0, s42, {4096*j}")
            a(f"s_add_u32 s3, s41, {4*30720*j}")
            a("buffer_load_dwordx4 v4, s[28:31], s3 offen lds")
        return
    srd(a, 28, S_WQKV, 2457600)
    a("v_lshrrev_b32 v4, 3, v2")
    a("v_bfe_u32 v5, v2, 2, 1")
    a("v_bfe_u32 v6, v2, 4, 1")
    a("v_xor_b32 v5, v5, v6")
    a("v_lshlrev_b32 v5, 6, v5")
    a("v_and_b32 v6, 3, v2")
    a("v_lshl_add_u32 v5, v6, 4, v5")
    a("s_movk_i32 s3, 3840")
    a("v_mad_u32_u24 v4, v4, s3, v5")
    a("s_sub_u32 s3, s25, 4")
    a("s_lshl_b32 s41, s47, 7")
    a("s_mul_i32 s42, s3, 30720")
    a("s_add_u32 s41, s41, s42")
    a("s_lshl_b32 s42, s3, 10")
    for j in range(j0, j1):
        a(f"s_add_u32 m0, s42, {4096*j}")
        a(f"s_add_u32 s3, s41, {4*30720*j}")
        a("buffer_load_dwordx4 v4, s[28:31], s3 offen lds")

def qkv_uaddr(a, T0, T1, U0, U1):
    if XSWAP:
        a(f"v_lshl_add_u32 v{T0}, v7, 9, v{T0}")
    a(f"v_xor_b32 v{T1}, 64, v{T0}")
    a(f"v_xor_b32 v{U0}, 512, v{T0}")
    a(f"v_xor_b32 v{U1}, 512, v{T1}")

def qkv_main(a, gate=None):
    ACC, XF, WF, AD = 16, 48, 96, 112
    XD = 12
    T0, T1, U0, U1 = 4, 5, 124, 125
    vm = VM(a)
    a("s_mul_i32 s40, s26, 40960")
    a(f"s_add_u32 s40, s40, {WS_XN}")
    def xload(s):
        r = XF + 4 * (s % XD)
        vm.issue(f"buffer_load_dwordx4 v[{r}:{r+3}], v9, s[32:35], s40 offen offset:{1024*(s%4)}{cfg.sc}", ("X", s))
        if s % 4 == 3:
            if ROT and s < 39:
                a("s_add_u32 s55, s55, 1")
                a("s_cmp_eq_u32 s55, 10")
                a("s_cselect_b32 s3, 40960, 0")
                a("s_sub_u32 s40, s40, s3")
            a("s_add_u32 s40, s40, 4096")
    X0 = int(os.environ.get("QX0", "4"))
    ROT = int(os.environ.get("ROT", "0"))
    if ROT:
        a(f"s_mul_i32 s55, s47, {ROT}")
        a("s_mul_i32 s3, s55, 205")
        a("s_lshr_b32 s3, s3, 11")
        a("s_mul_i32 s3, s3, 10")
        a("s_sub_u32 s55, s55, s3")
        a("s_mov_b32 s58, s55")
        a("s_lshl_b32 s3, s55, 12")
        a("s_add_u32 s40, s40, s3")
    a("v_bfe_u32 v6, v2, 2, 2")
    a("v_lshrrev_b32 v7, 5, v2")
    a("v_lshl_add_u32 v8, v7, 3, v6")
    a("v_lshlrev_b32 v8, 7, v8")
    a("v_bfe_u32 v10, v2, 4, 1")
    a("v_lshl_add_u32 v8, v10, 5, v8")
    a("v_lshrrev_b32 v6, 1, v6")
    a("v_lshl_add_u32 v8, v6, 6, v8")
    if ROT:
        a("s_lshl_b32 s3, s55, 13")
        a("v_add_u32 v8, s3, v8")
    a("v_and_b32 v10, 31, v2")
    for i in range(32):
        a(f"v_mov_b32 v{ACC+i}, 0")
    a("s_cmp_eq_u32 s24, 2")
    a("s_cbranch_scc1 L_qkv_V")
    a("v_and_b32 v11, 1, v2")
    a("v_lshlrev_b32 v11, 4, v11")
    a("v_bfe_u32 v12, v2, 1, 1")
    a("v_lshl_add_u32 v11, v12, 3, v11")
    a(f"v_add_u32 v{T0}, v8, v11")
    qkv_uaddr(a, T0, T1, U0, U1)
    a("s_lshl_b32 s45, s26, 10")
    a(f"s_add_u32 s45, s45, {WS_QM}")
    a("s_lshl_b32 s43, s26, 8")
    a(f"s_add_u32 s43, s43, {WS_QR}")
    a("s_mov_b32 s44, 65536")
    a("s_mov_b32 s42, 16384")
    a(f"s_mov_b32 s48, {f2hex(QSCALE)}")
    a("s_cmp_eq_u32 s24, 0")
    a("s_cbranch_scc1 L_qkv_isq")
    a("s_mul_i32 s45, s26, 2560")
    a(f"s_add_u32 s45, s45, {WS_KV}")
    a("s_add_u32 s43, s45, 1024")
    a("s_mov_b32 s44, 163840")
    a("s_mov_b32 s42, 163840")
    a("s_mov_b32 s48, 1.0")
    a.label("L_qkv_isq")
    a("s_mov_b32 s49, s48")
    a("s_lshl_b32 s3, s27, 3")
    a("v_add_u32 v11, s3, v7")
    a("v_lshl_add_u32 v12, v10, 4, s45")
    a("v_lshl_add_u32 v13, v10, 3, s43")
    a(f"s_mov_b32 s50, {OOB}")
    a("s_mov_b32 s51, 0")
    REM16 = int(os.environ.get("REM16", "1")) and not (PROFILE or DBGOUT)
    if REM16:
        a("s_mov_b32 s80, 0x55555555")
        a("s_mov_b32 s81, 0x55555555")
    for q in range(4):
        a(f"v_add_u32 v14, {2*q}, v11")
        a("v_mul_u32_u24 v15, 205, v14")
        a("v_lshrrev_b32 v15, 10, v15")
        a("v_mul_u32_u24 v3, 5, v15")
        a("v_sub_u32 v14, v14, v3")
        a("v_lshlrev_b32 v15, 1, v15")
        a("v_mul_lo_u32 v3, v15, s42")
        a(f"v_add_u32 v{AD+3*q+1}, v3, v13")
        a(f"v_add_u32 v{AD+3*q+2}, s42, v{AD+3*q+1}")
        a("v_cmp_lt_u32 vcc, 2, v14")
        a("v_subrev_u32 v3, 3, v14")
        a("s_nop 0")
        a("v_addc_co_u32 v15, s[52:53], 0, v15, vcc")
        a("v_cndmask_b32 v3, v14, v3, vcc")
        a("v_mul_lo_u32 v15, v15, s44")
        a("v_lshl_add_u32 v3, v3, 9, v12")
        a("v_add_u32 v3, v3, v15")
        a("v_cmp_eq_u32 vcc, 2, v14")
        a("v_mov_b32 v15, s50")
        a("s_cmp_lg_u64 vcc, 0")
        a(f"s_cselect_b32 s3, {1 << q}, 0")
        a("s_or_b32 s51, s51, s3")
        if REM16:
            a(f"s_and_b64 s[{64+4*q}:{65+4*q}], vcc, s[80:81]")
            a(f"s_andn2_b64 s[{66+4*q}:{67+4*q}], vcc, s[80:81]")
            a(f"v_subrev_u32 v15, 8, v{AD+3*q+2}")
            a(f"v_cndmask_b32 v{AD+3*q}, v3, v{AD+3*q+1}, s[{64+4*q}:{65+4*q}]")
            a(f"v_cndmask_b32 v{AD+3*q}, v{AD+3*q}, v15, s[{66+4*q}:{67+4*q}]")
            continue
        a(f"v_cndmask_b32 v{AD+3*q}, v3, v15, vcc")
        a(f"v_cndmask_b32 v{AD+3*q+1}, v15, v{AD+3*q+1}, vcc")
        a(f"v_cndmask_b32 v{AD+3*q+2}, v15, v{AD+3*q+2}, vcc")
    def loop(vtype):
        vq = list(vm.q)
        if gate: gate()
        for s in range(X0): xload(s)
        def reads(s):
            w = WF + 8 * (s % 2)
            if ROT and s % 4 == 0 and s:
                a("s_add_u32 s58, s58, 1")
                a("s_cmp_eq_u32 s58, 10")
                a("s_cselect_b32 s3, 81920, 0")
                a("s_sub_u32 s3, 8192, s3")
                for r in (T0, T1, U0, U1):
                    a(f"v_add_u32 v{r}, s3, v{r}")
            if s == 32 and not ROT:
                for r in (T0, T1, U0, U1):
                    a(f"v_add_u32 v{r}, 0x10000, v{r}")
            for ft in range(2):
                for u in range(2):
                    off = (16 * (s % 4) * 128) if ROT else (16 * s * 128) % 65536
                    a(f"ds_read_b64_tr_b16 v[{w+4*ft+2*u}:{w+4*ft+2*u+1}], v{(U0 if u else T0)+ft} offset:{off}")
        reads(0)
        nx = X0
        for s in range(40):
            if s + 1 < 40:
                reads(s + 1)
                vm.wait(lambda t: t == ("X", s), "lgkmcnt(4)")
            else:
                vm.wait(lambda t: t == ("X", s), "lgkmcnt(0)")
            if s == 0 and not os.environ.get('LNSTAMP'): stamp(a, 5)
            if str(s) in os.environ.get("QBAR", "").split(","): a("s_barrier")
            w = WF + 8 * (s % 2); x = XF + 4 * (s % XD)
            for ft in range(2):
                W = f"v[{w+4*ft}:{w+4*ft+3}]"; X = f"v[{x}:{x+3}]"
                A, B = (X, W) if vtype else (W, X)
                D = f"v[{ACC+16*ft}:{ACC+16*ft+15}]"
                if "q16" in os.environ.get("ABL", ""):
                    for q in range(2):
                        d = ACC + 16 * ft + 8 * q + 4 * (s % 2)
                        a(f"v_mfma_f32_16x16x32_bf16 v[{d}:{d+3}], {A}, {B}, v[{d}:{d+3}]")
                elif "q0" in os.environ.get("ABL", ""):
                    pass
                else:
                    a(f"v_mfma_f32_32x32x16_bf16 {D}, {A}, {B}, {D}")
            for _ in range(2):
                if nx <= s + XD and nx < 40:
                    xload(nx); nx += 1
        vm.q = vq
        stamp(a, 6)
        if qkv_hook: qkv_hook()
    loop(False)
    a("s_nop 10")
    for q in range(4):
        r = ACC + 8 * q
        for i in range(0, 8, 2):
            a(f"v_pk_mul_f32 v[{r+i}:{r+i+1}], v[{r+i}:{r+i+1}], s[48:49]")
        for i in range(4):
            a(f"v_cvt_pk_bf16_f32 v{r+i}, v{r+2*i}, v{r+2*i+1}")
        if REM16:
            L = uid("L_qr")
            a(f"s_bitcmp0_b32 s51, {q}")
            a(f"s_cbranch_scc1 {L}")
            a("s_nop 0")
            for i in range(4):
                a(f"v_mov_b32_dpp v{r+4+i}, v{r+i} quad_perm:[1,0,3,2] row_mask:0xf bank_mask:0xf")
            a(f"v_cndmask_b32 v{r+2}, v{r+2}, v{r+4}, s[{64+4*q}:{65+4*q}]")
            a(f"v_cndmask_b32 v{r+3}, v{r+3}, v{r+5}, s[{64+4*q}:{65+4*q}]")
            a(f"v_cndmask_b32 v{r}, v{r}, v{r+6}, s[{66+4*q}:{67+4*q}]")
            a(f"v_cndmask_b32 v{r+1}, v{r+1}, v{r+7}, s[{66+4*q}:{67+4*q}]")
            a.label(L)
            a(f"buffer_store_dwordx4 v[{r}:{r+3}], v{AD+3*q}, s[32:35], 0 offen{cfg.sc}")
            continue
        a(f"buffer_store_dwordx4 v[{r}:{r+3}], v{AD+3*q}, s[32:35], 0 offen{cfg.sc}")
        L = uid("L_qr")
        a(f"s_bitcmp0_b32 s51, {q}")
        a(f"s_cbranch_scc1 {L}")
        a(f"buffer_store_dwordx2 v[{r}:{r+1}], v{AD+3*q+1}, s[32:35], 0 offen{cfg.sc}")
        a(f"buffer_store_dwordx2 v[{r+2}:{r+3}], v{AD+3*q+2}, s[32:35], 0 offen{cfg.sc}")
        a.label(L)
    a("s_branch L_qkv_done")
    a.label("L_qkv_V")
    a("v_and_b32 v11, 3, v2")
    a(f"v_lshl_add_u32 v{T0}, v11, 3, v8")
    qkv_uaddr(a, T0, T1, U0, U1)
    a("s_mul_i32 s45, s26, 2560")
    a(f"s_add_u32 s45, s45, {WS_KV + 1280}")
    a("s_lshl_b32 s3, s27, 6")
    a("v_add_u32 v10, s3, v10")
    a("v_mul_u32_u24 v11, 320, v7")
    a("v_add_u32 v11, s45, v11")
    a("s_mov_b32 s44, 163840")
    for ft in range(2):
        a(f"v_add_u32 v13, {32*ft}, v10")
        a("v_mul_u32_u24 v14, 3277, v13")
        a("v_lshrrev_b32 v14, 16, v14")
        a("v_mul_u32_u24 v15, 20, v14")
        a("v_sub_u32 v15, v13, v15")
        a("v_lshl_add_u32 v3, v15, 4, v11")
        a("v_mul_lo_u32 v14, v14, s44")
        a(f"v_add_u32 v{AD+ft}, v3, v14")
    loop(True)
    a("s_nop 10")
    for ft in range(2):
        for gm in range(2):
            r = ACC + 16 * ft + 8 * gm
            for i in range(4):
                a(f"v_cvt_pk_bf16_f32 v{r+i}, v{r+2*i}, v{r+2*i+1}")
            a(f"buffer_store_dwordx4 v[{r}:{r+3}], v{AD+ft}, s[32:35], 0 offen offset:{640*gm}{cfg.sc}")
    a.label("L_qkv_done")
    stamp(a, 7)

CHUNK = 20480
NBUF = 3
DELTA = float(os.environ.get('DELTA', '96'))
S0, S1, P, O0, O1, Q0, Q1, KA, KB, VA, VB = 16, 32, 48, 56, 72, 88, 94, 100, 106, 112, 120
AK, AKR, AV = 3, 4, 5

def rowmax16(a, S, d, t):
    a(f"v_max3_f32 v{d}, v{S}, v{S+1}, v{S+2}")
    a(f"v_max3_f32 v{t}, v{S+3}, v{S+4}, v{S+5}")
    a(f"v_max3_f32 v{d}, v{d}, v{S+6}, v{S+7}")
    a(f"v_max3_f32 v{t}, v{t}, v{S+8}, v{S+9}")
    a(f"v_max3_f32 v{d}, v{d}, v{S+10}, v{S+11}")
    a(f"v_max3_f32 v{t}, v{t}, v{S+12}, v{S+13}")
    a(f"v_max3_f32 v{d}, v{d}, v{S+14}, v{S+15}")
    a(f"v_max_f32 v{d}, v{d}, v{t}")
    a(f"v_mov_b32 v{t}, v{d}")
    a("s_nop 1")
    a(f"v_permlane32_swap_b32 v{d}, v{t}")
    a(f"v_max_f32 v{d}, v{d}, v{t}")

def attn_decode(a):
    a("s_and_b32 s24, s2, 7")
    a("s_lshr_b32 s27, s2, 3")
    a("s_lshl_b32 s24, s24, 2")
    a("s_lshr_b32 s3, s27, 3")
    a("s_add_u32 s24, s24, s3")
    a("s_and_b32 s27, s27, 7")

def attn_flag_addr(a, vd):
    a("s_mul_i32 s3, s24, 20")
    a("s_lshr_b32 s26, s3, 6")
    a("s_add_u32 s3, s3, 19")
    a("s_lshr_b32 s3, s3, 6")
    a("s_sub_u32 s3, s3, s26")
    a("v_min_u32 v10, 47, v2")
    a("v_lshrrev_b32 v11, 4, v10")
    a("v_mul_u32_u24 v11, 10, v11")
    a("v_bfe_u32 v12, v10, 3, 1")
    a("v_mul_lo_u32 v12, v12, s3")
    a("v_add3_u32 v11, v11, v12, s26")
    a("v_and_b32 v12, 7, v10")
    a("v_mov_b32 v13, s27")
    a("v_cmp_gt_u32 vcc, 16, v10")
    a("s_nop 1")
    a("v_cndmask_b32 v12, v12, v13, vcc")
    a(f"v_lshl_add_u32 v{vd}, v11, 3, v12")
    a(f"v_lshlrev_b32 v{vd}, {QSH}, v{vd}")
    a(f"v_add_u32 v{vd}, {F_QKV}, v{vd}")

PA = [int(x) for x in os.environ.get("PA", "2,3,1").split(",")]
JLOW = int(os.environ.get("JLOW", "3"))
def attn_main(a, prio=True):
    sc = cfg.sc
    a("s_and_b32 s46, s25, 3")
    a("s_lshr_b32 s47, s25, 2")
    a("s_lshl_b32 s26, s27, 3")
    a("s_lshl_b32 s3, s46, 1")
    a("s_add_u32 s26, s26, s3")
    a("s_lshl_b32 s3, s24, 6")
    a("s_add_u32 s3, s3, s26")
    a("s_lshl_b32 s40, s3, 10")
    a(f"s_add_u32 s40, s40, {WS_QM}")
    a("s_lshl_b32 s41, s3, 8")
    a(f"s_add_u32 s41, s41, {WS_QR}")
    a("s_mul_i32 s42, s24, 163840")
    a(f"s_add_u32 s42, s42, {WS_KV}")
    a("s_mul_i32 s3, s25, 5120")
    a("s_add_u32 s43, s42, s3")
    a("s_mov_b32 s44, s3")
    def dma_chunk():
        a("s_mov_b32 m0, s44")
        a("s_add_u32 s50, s43, 4096")
        for i in range(4):
            off = f" offset:{1024*i}" if i else ""
            a(f"buffer_load_dwordx4 v9, s[32:35], s43 offen{off}{sc} lds")
        a("s_add_u32 m0, s44, 4096")
        a(f"s_add_u32 s43, s43, {CHUNK}")
        a(f"buffer_load_dwordx4 v9, s[32:35], s50 offen{sc} lds")
        a(f"s_add_u32 s44, s44, {CHUNK}")
    a("v_and_b32 v6, 31, v2")
    a(f"v_lshlrev_b32 v{AKR}, 3, v6")
    a(f"buffer_load_dwordx4 v[{Q0}:{Q0+3}], v9, s[32:35], s40 offen{sc}")
    a(f"buffer_load_dwordx4 v[{Q1}:{Q1+3}], v9, s[32:35], s40 offen offset:1024{sc}")
    for r in (Q0 + 4, Q0 + 5, Q1 + 4, Q1 + 5, KA + 5, KB + 5):
        a(f"v_mov_b32 v{r}, 0")
    a("s_mov_b32 exec_hi, 0")
    a(f"buffer_load_dwordx2 v[{Q0+4}:{Q0+5}], v{AKR}, s[32:35], s41 offen{sc}")
    a(f"buffer_load_dwordx2 v[{Q1+4}:{Q1+5}], v{AKR}, s[32:35], s41 offen offset:256{sc}")
    a("s_mov_b32 exec_hi, -1")
    a("s_cmp_ge_u32 s25, 4")
    a("s_cbranch_scc1 L_at_nodma0")
    dma_chunk()
    dma_chunk()
    dma_chunk()
    a(f"s_sub_u32 s44, s44, {NBUF*CHUNK}")
    a.label("L_at_nodma0")
    if attn_hook0: attn_hook0()
    a("v_lshrrev_b32 v7, 5, v2")
    a(f"v_mul_u32_u24 v{AV}, 320, v7")
    a(f"v_lshl_add_u32 v{AV}, v6, 4, v{AV}")
    a("s_mov_b32 s30, 0x000fffff")
    a("s_mov_b32 s31, 0x000fffff")
    a(f"v_mov_b32 v{KA+4}, 0x3f80")
    a(f"v_mov_b32 v{KB+4}, 0x3f80")
    a("v_cmp_eq_u32 vcc, 20, v6")
    a("v_mov_b32 v8, 0x3f803f80")
    a("s_nop 0")
    a("v_cndmask_b32 v8, 0, v8, vcc")
    for i in range(16):
        a(f"v_mov_b32 v{VA+i}, v8")
    for i in range(4, 8):
        a(f"v_mov_b32 v{P+i}, 0")
    a("s_cmp_ge_u32 s25, 4")
    a("s_cbranch_scc1 L_at_w0")
    a("s_waitcnt vmcnt(10)")
    a("s_branch L_at_w1")
    a.label("L_at_w0")
    a("s_waitcnt vmcnt(0)")
    a.label("L_at_w1")
    a("s_barrier")
    if not os.environ.get("LNSTAMP"): stamp(a, 10)
    if attn_hook: attn_hook()
    a("s_mul_i32 s3, s47, 10240")
    a("s_xor_b32 s50, s3, 10240")
    a("v_add_u32 v10, s50, v9")
    a(f"v_add_u32 v11, s50, v{AKR}")
    a(f"v_add_u32 v{AK}, s3, v9")
    a(f"v_add_u32 v{AKR}, s3, v{AKR}")
    a(f"v_add_u32 v{AV}, s3, v{AV}")
    a(f"ds_read_b128 v[{KB}:{KB+3}], v10")
    a(f"ds_read_b128 v[{KA}:{KA+3}], v{AK}")
    a("s_mov_b32 exec_hi, 0")
    a(f"ds_read_b64 v[{KB+4}:{KB+5}], v11 offset:1024")
    a(f"ds_read_b64 v[{KA+4}:{KA+5}], v{AKR} offset:1024")
    a("s_mov_b64 exec, s[30:31]")
    a(f"ds_read_b128 v[{VA}:{VA+3}], v{AV} offset:1280")
    a(f"ds_read_b128 v[{VA+4}:{VA+7}], v{AV} offset:1920")
    a("s_mov_b64 exec, -1")
    a("s_waitcnt lgkmcnt(2)")
    def qk(S, K, Q):
        return (f"v_mfma_f32_32x32x16_bf16 v[{S}:{S+15}], v[{K}:{K+3}], v[{Q}:{Q+3}], 0",
                f"v_mfma_f32_32x32x8_bf16 v[{S}:{S+15}], v[{K+4}:{K+5}], v[{Q+4}:{Q+5}], v[{S}:{S+15}]")
    for x in qk(S0, KB, Q0) + qk(S1, KA, Q0) + qk(O0, KB, Q1) + qk(O1, KA, Q1): a(x)
    a("s_nop 4")
    def max32(Sa, d, t):
        a(f"v_max3_f32 v{d}, v{Sa}, v{Sa+1}, v{Sa+2}")
        a(f"v_max3_f32 v{t}, v{Sa+3}, v{Sa+4}, v{Sa+5}")
        k = 0
        for i in range(6, 32, 2):
            r = d if k % 2 == 0 else t
            a(f"v_max3_f32 v{r}, v{r}, v{Sa+i}, v{Sa+i+1}")
            k += 1
        a(f"v_max_f32 v{d}, v{d}, v{t}")
        a(f"v_mov_b32 v{t}, v{d}")
        a("s_nop 1")
        a(f"v_permlane32_swap_b32 v{d}, v{t}")
        a(f"v_max_f32 v{d}, v{d}, v{t}")
        a(f"v_add_f32 v{d}, {f2hex(DELTA)}, v{d}")
        a(f"v_sub_f32 v{d}, 0, v{d}")
        a(f"v_cvt_pk_bf16_f32 v{d}, v{d}, 0")
    a("v_cmp_lt_u32 vcc, 31, v2")
    max32(S0, 10, 11)
    a(f"v_cndmask_b32 v{Q0+4}, v{Q0+4}, v10, vcc")
    max32(O0, 12, 13)
    for x in qk(S0, KA, Q0): a(x)
    a(f"v_cndmask_b32 v{Q1+4}, v{Q1+4}, v12, vcc")
    for i in range(32):
        a(f"v_mov_b32 v{O0+i}, 0")
    a("s_waitcnt lgkmcnt(0)")
    a("s_mov_b32 s45, 8")
    a(f"s_mov_b32 s48, {CHUNK}")
    a("s_mov_b32 s49, 0")
    a(".p2align 6")
    a.label("L_at_loop")
    if PROFILE:
        a("s_memtime s[84:85]")
        a("s_memrealtime s[86:87]")
        a("s_waitcnt lgkmcnt(0)")
        a("s_sub_u32 m0, 8, s45")
        a("s_nop 0")
        a("v_writelane_b32 v15, s84, m0")
        a("s_add_u32 m0, m0, 8")
        a("s_nop 0")
        a("v_writelane_b32 v15, s86, m0")
    def half(Sc, qks, pvp, pv1, mid=()):
        e = lambda i: f"v_exp_f32 v{Sc+i}, v{Sc+i}"
        c = lambda i: f"v_cvt_pk_bf16_f32 v{P+i}, v{Sc+2*i}, v{Sc+2*i+1}"
        seq = [qks[0], e(0), e(1), e(2), e(3), c(0), c(1), pvp] + list(mid) + [e(4), e(5), e(6), e(7), c(2), c(3), qks[1],
               e(8), e(9), e(10), e(11), e(12), pv1, e(13), e(14), e(15), c(4), c(5), c(6), c(7)]
        ORD = os.environ.get("ORD", "0")
        if ORD == "1":
            seq = [qks[0], e(0), e(1), e(2), e(3), pvp] + list(mid) + [e(4), c(0), e(5), c(1), e(6), e(7), qks[1], e(8), c(2), c(3), e(9), e(10),
                   e(11), pv1, e(12), c(4), e(13), c(5), e(14), e(15), c(6), c(7)]
        if ORD == "2":
            seq = [e(0), qks[0], e(1), e(2), e(3), c(0), e(4), pvp, c(1)] + list(mid) + [e(5), e(6), e(7), c(2), e(8), qks[1], c(3), e(9), e(10),
                   e(11), c(4), e(12), pv1, c(5), e(13), e(14), e(15), c(6), c(7)]
        if ORD == "3":
            seq = [qks[0]] + [e(i) for i in range(4)] + [pvp] + list(mid) + [e(i) for i in range(4, 8)] + [qks[1], c(0), c(1), c(2), c(3), e(8), e(9), pv1] + \
                  [e(i) for i in range(10, 16)] + [c(4), c(5), c(6), c(7)]
        if "noqk2" in os.environ.get("ABL", ""): seq = [x for x in seq if x != qks[1]]
        if "nokv" in os.environ.get("ABL", ""): seq = [x for x in seq if not x.startswith("ds_read")]
        if "nopv" in os.environ.get("ABL", ""): seq = [x for x in seq if x not in (pvp, pv1)]
        for x in seq: a(x)
    def pv(Oo, V, Pp):
        return f"v_mfma_f32_32x32x16_bf16 v[{Oo}:{Oo+15}], v[{V}:{V+3}], v[{Pp}:{Pp+3}], v[{Oo}:{Oo+15}]"
    for j in range(4):
        Kc, Kn = (KA, KB) if j % 2 == 0 else (KB, KA)
        Vc, Vn = (VA, VB) if j % 2 == 0 else (VB, VA)
        if j == 0 and prio:
            a("s_cmp_ge_u32 s25, 4")
            a("s_cbranch_scc1 L_at_y0")
            a(f"s_setprio {PA[0]}")
            a("s_branch L_at_y1")
            a.label("L_at_y0")
            a(f"s_setprio {PA[1]}")
            a.label("L_at_y1")
        if j == JLOW and JLOW != 3 and prio:
            a("s_cmp_lt_u32 s25, 4")
            a("s_cbranch_scc1 L_at_z")
            a(f"s_setprio {PA[2]}")
            a.label("L_at_z")
        if j == 3:
            a("s_cmp_eq_u32 s45, 8")
            a("s_cbranch_scc1 L_at_first")
            a("s_waitcnt vmcnt(0)")
            a.label("L_at_first")
            a("s_waitcnt vmcnt(5)")
            a("s_barrier")
            a("s_sub_u32 s3, s48, s49")
            a(f"v_add_u32 v{AK}, s3, v{AK}")
            a(f"v_add_u32 v{AKR}, s3, v{AKR}")
            a(f"v_add_u32 v{AV}, s3, v{AV}")
            a("s_mov_b32 s49, s48")
            a(f"s_add_u32 s48, s48, {CHUNK}")
            a(f"s_cmp_ge_u32 s48, {NBUF*CHUNK}")
            a("s_cselect_b32 s48, 0, s48")
            a("s_cmp_ge_u32 s25, 4")
            a("s_cbranch_scc1 L_at_young")
            a("s_sub_u32 s50, s45, 3")
            a("s_cmp_ge_u32 s50, 5")
            a("s_cbranch_scc1 L_at_nodma1")
            dma_chunk()
            a(f"s_cmp_ge_u32 s44, {NBUF*CHUNK}")
            a(f"s_cselect_b32 s50, {NBUF*CHUNK}, 0")
            a("s_sub_u32 s44, s44, s50")
            a("s_branch L_at_nodma1")
            a.label("L_at_young")
            if prio and JLOW == 3: a(f"s_setprio {PA[2]}")
            a.label("L_at_nodma1")
        o = 2560 * ((j + 1) % 4)
        rd = [f"ds_read_b128 v[{Kn}:{Kn+3}], v{AK} offset:{o}",
              "s_mov_b32 exec_hi, 0",
              f"ds_read_b64 v[{Kn+4}:{Kn+5}], v{AKR} offset:{o+1024}",
              "s_mov_b64 exec, s[30:31]",
              f"ds_read_b128 v[{Vn}:{Vn+3}], v{AV} offset:{o+1280}",
              f"ds_read_b128 v[{Vn+4}:{Vn+7}], v{AV} offset:{o+1920}",
              "s_mov_b64 exec, -1"]
        half(S0, qk(S1, Kc, Q1), pv(O1, Vn + 4, P + 4), pv(O0, Vc, P), rd)
        a("s_waitcnt lgkmcnt(0)")
        half(S1, qk(S0, Kn, Q0), pv(O0, Vc + 4, P + 4), pv(O1, Vc, P))
    a("s_sub_u32 s45, s45, 1")
    a("s_cmp_lg_u32 s45, 0")
    a("s_cbranch_scc1 L_at_loop")
    a(pv(O1, VB + 4, P + 4))
    if prio: a("s_setprio 3")
    stamp(a, 11)
    a("s_lshl_b32 s3, s46, 12")
    a("v_add_u32 v6, s3, v9")
    a(f"v_add_u32 v7, {NBUF*CHUNK}, v6")
    a("s_cmp_eq_u32 s47, 0")
    a("s_cbranch_scc1 L_at_x0")
    for i in range(3):
        a(f"ds_write_b128 v7, v[{O0+4*i}:{O0+4*i+3}] offset:{1024*i}")
    a("v_mov_b32 v7, v6")
    for i in range(6):
        a(f"v_mov_b32 v{Q0+i}, v{Q1+i}")
    a("s_nop 0")
    for i in range(12):
        a(f"v_mov_b32 v{O0+i}, v{O1+i}")
    a("s_branch L_at_x1")
    a.label("L_at_x0")
    a("s_nop 6")
    for i in range(3):
        a(f"ds_write_b128 v6, v[{O1+4*i}:{O1+4*i+3}] offset:{1024*i}")
    a.label("L_at_x1")
    a("s_add_u32 s26, s26, s47")
    a("s_waitcnt lgkmcnt(0)")
    if os.environ.get("TAILSTAMP"): stamp(a, 1)
    a("s_barrier")
    if os.environ.get("TAILSTAMP"): stamp(a, 2)
    for i in range(3):
        a(f"ds_read_b128 v[{S1+4*i}:{S1+4*i+3}], v7 offset:{1024*i}")
    a("s_mov_b32 s51, 0")
    a(f"s_mov_b32 s54, {f2hex(2.0**-(DELTA + 4))}")
    a(f"s_mov_b32 s55, {f2hex(2.0**122)}")
    a("s_mov_b32 s58, 0x7f800000")
    a("s_waitcnt lgkmcnt(0)")
    for i in range(0, 12, 2):
        a(f"v_pk_add_f32 v[{O0+i}:{O0+i+1}], v[{O0+i}:{O0+i+1}], v[{S1+i}:{S1+i+1}]")
    a.label("L_at_fin")
    a(f"v_mov_b32 v8, v{O0+8}")
    a(f"v_mov_b32 v10, v{O0+8}")
    a("s_nop 1")
    a("v_permlane32_swap_b32 v8, v10")
    a("v_rcp_f32 v11, v10")
    a("s_nop 0")
    for i in range(12):
        a(f"v_mul_f32 v{S0+i}, v11, v{O0+i}")
    a.label("L_at_store")
    if os.environ.get("TAILSTAMP"): stamp(a, 3)
    for i in range(6):
        a(f"v_cvt_pk_bf16_f32 v{P+i}, v{S0+2*i}, v{S0+2*i+1}")
    a("s_mul_i32 s3, s26, 40")
    a("s_add_u32 s50, s3, s24")
    a("s_lshl_b32 s50, s50, 10")
    a(f"s_add_u32 s50, s50, {WS_O}")
    a(f"buffer_store_dwordx4 v[{P}:{P+3}], v9, s[32:35], s50 offen{sc}")
    a("s_lshr_b32 s50, s24, 2")
    a("s_add_u32 s50, s50, s3")
    a("s_add_u32 s50, s50, 32")
    a("s_lshl_b32 s50, s50, 10")
    a("s_and_b32 s3, s24, 1")
    a("s_lshl_b32 s3, s3, 9")
    a("s_add_u32 s50, s50, s3")
    a("s_bfe_u32 s3, s24, 0x10001")
    a("s_lshl_b32 s3, s3, 3")
    a("s_add_u32 s50, s50, s3")
    a(f"s_add_u32 s50, s50, {WS_O}")
    a("s_mov_b32 exec_hi, 0")
    a(f"buffer_store_dwordx2 v[{P+4}:{P+5}], v9, s[32:35], s50 offen{sc}")
    a("s_mov_b32 exec_hi, -1")
    if os.environ.get("TAILSTAMP"): stamp(a, 4)
    a("s_cmp_eq_u32 s51, 1")
    a("s_cbranch_scc1 L_at_done")
    a(f"v_add_f32 v12, |v{S0}|, |v{S0+1}|")
    for i in range(2, 8):
        a(f"v_add_f32 v12, |v{S0+i}|, v12")
    a(f"v_add_f32 v13, |v{S0+8}|, |v{S0+9}|")
    a(f"v_add_f32 v13, |v{S0+10}|, v13")
    a(f"v_add_f32 v13, |v{S0+11}|, v13")
    a("v_cmp_gt_u32 vcc, 32, v2")
    a("s_nop 1")
    a("v_cndmask_b32 v13, 0, v13, vcc")
    a("v_add_f32 v12, v12, v13")
    a("v_cmp_gt_f32 s[52:53], v10, s54")
    a("v_cmp_lt_f32 s[56:57], v10, s55")
    a("v_cmp_lt_f32 vcc, v12, s58")
    a("s_and_b64 s[52:53], s[52:53], s[56:57]")
    a("s_and_b64 s[52:53], s[52:53], vcc")
    a("s_cmp_eq_u64 s[52:53], exec")
    if not os.environ.get("ABL", ""): a("s_cbranch_scc0 L_at_slow")
    a("s_branch L_at_done")
    NM = O1
    a.label("L_at_slow")
    a("s_waitcnt vmcnt(0)")
    a("v_and_b32 v6, 31, v2")
    a("v_lshlrev_b32 v4, 3, v6")
    a("v_lshrrev_b32 v7, 5, v2")
    a("v_mul_u32_u24 v5, 320, v7")
    a("v_lshl_add_u32 v5, v6, 4, v5")
    a("v_cmp_gt_u32 vcc, 32, v2")
    a("v_mov_b32 v14, 0xff800000")
    a("s_mov_b32 s50, s42")
    a(f"v_cndmask_b32 v{Q0+4}, 0, v{Q0+4}, vcc")
    a("s_mov_b32 s45, 64")
    a.label("L_at_slow1")
    a(f"buffer_load_dwordx4 v[{KA}:{KA+3}], v9, s[32:35], s50 offen{sc}")
    a(f"buffer_load_dwordx2 v[{KA+4}:{KA+5}], v4, s[32:35], s50 offen offset:1024{sc}")
    a("s_waitcnt vmcnt(0)")
    for x in qk(S0, KA, Q0): a(x)
    a("s_nop 11")
    rowmax16(a, S0, 8, 10)
    a("v_max_f32 v14, v14, v8")
    a("s_add_u32 s50, s50, 2560")
    a("s_sub_u32 s45, s45, 1")
    a("s_cmp_lg_u32 s45, 0")
    a("s_cbranch_scc1 L_at_slow1")
    a("v_sub_f32 v8, 0, v14")
    for i in range(16):
        a(f"v_mov_b32 v{NM+i}, v8")
        a(f"v_mov_b32 v{O0+i}, 0")
    a("s_mov_b32 s50, s42")
    a("s_mov_b32 s45, 64")
    a.label("L_at_slow2")
    a(f"buffer_load_dwordx4 v[{KA}:{KA+3}], v9, s[32:35], s50 offen{sc}")
    a(f"buffer_load_dwordx2 v[{KA+4}:{KA+5}], v4, s[32:35], s50 offen offset:1024{sc}")
    a("s_mov_b64 exec, s[30:31]")
    a(f"buffer_load_dwordx4 v[{VA}:{VA+3}], v5, s[32:35], s50 offen offset:1280{sc}")
    a(f"buffer_load_dwordx4 v[{VA+4}:{VA+7}], v5, s[32:35], s50 offen offset:1920{sc}")
    a("s_mov_b64 exec, -1")
    a("s_waitcnt vmcnt(0)")
    a(f"v_mfma_f32_32x32x16_bf16 v[{S0}:{S0+15}], v[{KA}:{KA+3}], v[{Q0}:{Q0+3}], v[{NM}:{NM+15}]")
    a(f"v_mfma_f32_32x32x8_bf16 v[{S0}:{S0+15}], v[{KA+4}:{KA+5}], v[{Q0+4}:{Q0+5}], v[{S0}:{S0+15}]")
    a("s_nop 11")
    for i in range(16):
        a(f"v_exp_f32 v{S0+i}, v{S0+i}")
    a("s_nop 0")
    for i in range(8):
        a(f"v_cvt_pk_bf16_f32 v{P+i}, v{S0+2*i}, v{S0+2*i+1}")
    a("s_nop 1")
    a(pv(O0, VA, P))
    a(pv(O0, VA + 4, P + 4))
    a("s_add_u32 s50, s50, 2560")
    a("s_sub_u32 s45, s45, 1")
    a("s_cmp_lg_u32 s45, 0")
    a("s_cbranch_scc1 L_at_slow2")
    a("s_mov_b32 s51, 1")
    a("s_nop 10")
    a("s_branch L_at_fin")
    a.label("L_at_done")

GU_BUF = 24832
GU_UP = 12416
def gu_decode(a):
    a("s_sub_u32 s3, s2, 256")
    a("s_and_b32 s24, s3, 7")
    a("s_lshr_b32 s26, s3, 3")
    a("s_lshr_b32 s27, s24, 2")
    a("s_lshl_b32 s27, s27, 2")
    a("s_and_b32 s3, s26, 3")
    a("s_add_u32 s27, s27, s3")
    a("s_and_b32 s24, s24, 3")
    a("s_lshl_b32 s24, s24, 3")
    a("s_lshr_b32 s26, s26, 2")
    a("s_add_u32 s24, s24, s26")
    a("s_lshl_b32 s26, s27, 3")
    a("s_add_u32 s26, s26, s25")

class GU:
    ACC, XF, WF, XD = 16, 64, 96, int(os.environ.get("GXD", "8"))
    def __init__(self, a):
        self.a = a; self.vm = VM(a)
    def setup(self):
        a = self.a
        a("s_mul_i32 s40, s26, 40960")
        a(f"s_add_u32 s40, s40, {WS_XN}")
        a("s_mul_i32 s41, s24, 96")
        a("s_and_b32 s3, s25, 3")
        a("s_mul_i32 s42, s3, 3072")
        a("s_cmp_ge_u32 s25, 4")
        a(f"s_cselect_b32 s43, {GU_UP}, 0")
        a(f"s_cselect_b32 s28, s{S_WU}, s{S_WG}")
        a(f"s_cselect_b32 s29, s{S_WU+1}, s{S_WG+1}")
        a("s_mov_b32 s30, 1966080")
        a("s_mov_b32 s31, 0x00020000")
        a("s_add_u32 s42, s42, s43")
        a("s_mul_i32 s3, s3, 192")
        a("s_movk_i32 s43, 3072")
        for i in range(3):
            a(f"v_add_u32 v8, s3, v2")
            if i: a(f"v_add_u32 v8, {64*i}, v8")
            a("v_mul_u32_u24 v10, 10923, v8")
            a("v_lshrrev_b32 v10, 16, v10")
            a("v_mul_u32_u24 v11, 6, v10")
            a("v_sub_u32 v11, v8, v11")
            a("v_lshlrev_b32 v11, 4, v11")
            a(f"v_mad_u32_u24 v{4+i}, v10, s43, v11")
        a("v_bfe_u32 v8, v2, 2, 2")
        a("v_lshrrev_b32 v10, 5, v2")
        a("v_lshl_add_u32 v8, v10, 3, v8")
        a("v_mul_u32_u24 v8, 96, v8")
        a("v_and_b32 v10, 3, v2")
        a("v_lshl_add_u32 v8, v10, 3, v8")
        a("v_bfe_u32 v10, v2, 4, 1")
        a(f"v_mul_u32_u24 v10, {GU_UP}, v10")
        a("v_add_u32 v7, v8, v10")
        a(f"v_add_u32 v8, {2*GU_BUF}, v7")
        for i in range(48):
            a(f"v_mov_b32 v{self.ACC+i}, 0")
    def dma_stage(self, st):
        a = self.a
        for i in range(3):
            a(f"s_add_u32 m0, s42, {(st % 3) * GU_BUF + 1024 * i}")
            a("s_nop 0")
            self.vm.issue(f"buffer_load_dwordx4 v{4+i}, s[28:31], s41 offen lds", ("W", st))
        a(f"s_add_u32 s41, s41, {128*3072}")
    def xload(self, s):
        r = self.XF + 4 * (s % self.XD)
        self.vm.issue(f"buffer_load_dwordx4 v[{r}:{r+3}], v9, s[32:35], s40 offen offset:{1024*(s%4)}{cfg.sc}", ("X", s))
        if s % 4 == 3: self.a("s_add_u32 s40, s40, 4096")
    def main(self, pre_dma, hook=None):
        a, vm, ACC, XF, WF, XD = self.a, self.vm, self.ACC, self.XF, self.WF, self.XD
        if pre_dma < 1: self.dma_stage(0)
        G0 = int(os.environ.get("G0", "4"))
        for s in range(G0): self.xload(s)
        a("s_barrier")
        for s in range(G0, XD): self.xload(s)
        if pre_dma < 2: self.dma_stage(1)
        nx = [XD]
        def reads(s):
            st, sp = s // 8, s % 8
            w = WF + 12 * (s % 2)
            buf = st % 3
            base = "v8" if buf == 2 else "v7"
            bo = 0 if buf == 2 else buf * GU_BUF
            AB = os.environ.get("ABL", "")
            for ft in range(3):
                if "b128" in AB and s > 1:
                    a(f"ds_read_b128 v[{w+4*ft}:{w+4*ft+3}], v9 offset:{bo + (sp*3+ft)*1024}")
                    a("s_nop 0") if False else None
                    continue
                for u in range(2):
                    if "notr" in AB and s > 1: continue
                    a(f"ds_read_b64_tr_b16 v[{w+4*ft+2*u}:{w+4*ft+2*u+1}], {base} offset:{bo + (16*sp+4*u)*96 + 32*ft}")
        def pre(s):
            if s % 8 == 0:
                st = s // 8
                vm.wait(lambda t: t == ("W", st), "lgkmcnt(0)" if s else "")
                if os.environ.get("GSTAMP") and st == 0: stamp(a, 12)
                a("s_barrier")
                if st in (0, 2, 4): stamp(a, 3 + st // 2)
                if st >= 1 and st + 2 < 5:
                    self.dma_stage(st + 2)
        pre(0); reads(0)
        for s in range(40):
            if s + 1 < 40:
                pre(s + 1); reads(s + 1)
                vm.wait(lambda t: t == ("X", s), "lgkmcnt(3)" if "b128" in os.environ.get("ABL", "") and s > 0 else "lgkmcnt(6)")
            else:
                vm.wait(lambda t: t == ("X", s), "lgkmcnt(0)")
            w = WF + 12 * (s % 2)
            x = XF + 4 * (s % XD)
            for ft in range(3):
                D = f"v[{ACC+16*ft}:{ACC+16*ft+15}]"
                if "m16" in os.environ.get("ABL", ""):
                    for q in range(2):
                        d = ACC + 16 * ft + 8 * q + 4 * (s % 2)
                        a(f"v_mfma_f32_16x16x32_bf16 v[{d}:{d+3}], v[{w+4*ft}:{w+4*ft+3}], v[{x}:{x+3}], v[{d}:{d+3}]")
                else:
                    a(f"v_mfma_f32_32x32x16_bf16 {D}, v[{w+4*ft}:{w+4*ft+3}], v[{x}:{x+3}], {D}")
            for _ in range(2):
                if nx[0] <= s + XD and nx[0] < 40:
                    self.xload(nx[0]); nx[0] += 1
            if s == 2 and pre_dma < 3: self.dma_stage(2)
            if s == 6 and hook: hook()
        stamp(a, 6)
        a("s_setprio 3")
        a("s_mul_i32 s50, s26, 96")
        a("s_mul_i32 s3, s24, 3")
        a("s_add_u32 s50, s50, s3")
        a("s_lshl_b32 s50, s50, 10")
        a(f"s_add_u32 s50, s50, {WS_H}")
        a(f"s_mov_b32 s52, {f2hex(-1.4426950408889634)}")
        a("s_mov_b32 s53, s52")
        a("s_mov_b32 s54, 1.0")
        a("s_mov_b32 s55, 1.0")
        a("s_nop 1")
        T = XF
        for ft in range(3):
            g = ACC + 16 * ft; u = g + 8
            for i in range(0, 8, 2):
                a(f"v_pk_mul_f32 v[{T+i}:{T+i+1}], v[{g+i}:{g+i+1}], s[52:53]")
            for i in range(8):
                a(f"v_exp_f32 v{T+i}, v{T+i}")
            for i in range(0, 8, 2):
                a(f"v_pk_add_f32 v[{T+i}:{T+i+1}], v[{T+i}:{T+i+1}], s[54:55]")
            for i in range(8):
                a(f"v_rcp_f32 v{T+i}, v{T+i}")
            for i in range(0, 8, 2):
                a(f"v_pk_mul_f32 v[{g+i}:{g+i+1}], v[{g+i}:{g+i+1}], v[{u+i}:{u+i+1}]")
            for i in range(0, 8, 2):
                a(f"v_pk_mul_f32 v[{g+i}:{g+i+1}], v[{g+i}:{g+i+1}], v[{T+i}:{T+i+1}]")
            for i in range(4):
                a(f"v_cvt_pk_bf16_f32 v{g+i}, v{g+2*i}, v{g+2*i+1}")
            a(f"buffer_store_dwordx4 v[{g}:{g+3}], v9, s[32:35], s50 offen offset:{1024*ft}{cfg.sc}")
        stamp(a, 7)

class GU16(GU):
    def setup(self):
        a = self.a
        GU.setup(self)
        a("v_lshrrev_b32 v10, 4, v2")
        a("v_and_b32 v11, 15, v2")
        a("v_lshlrev_b32 v3, 4, v11")
        a("v_lshl_add_u32 v3, v10, 9, v3")
        a("v_and_b32 v12, 1, v10")
        a("v_lshlrev_b32 v14, 4, v11")
        a("v_lshl_add_u32 v14, v12, 9, v14")
        a("v_lshrrev_b32 v13, 5, v2")
        a("v_lshl_add_u32 v14, v13, 8, v14")
        a("v_bfe_u32 v8, v2, 2, 2")
        a("v_lshl_add_u32 v8, v10, 3, v8")
        a("v_lshl_add_u32 v7, v12, 2, v8")
        a("v_xor_b32 v8, 4, v7")
        a("v_and_b32 v10, 3, v2")
        a("v_lshlrev_b32 v10, 3, v10")
        a("s_movk_i32 s3, 96")
        a("v_mad_u32_u24 v7, v7, s3, v10")
        a("v_mad_u32_u24 v8, v8, s3, v10")
        a(f"v_add_u32 v12, {2*GU_BUF}, v7")
        a(f"v_add_u32 v13, {2*GU_BUF}, v8")
    def xload(self, k):
        r = self.XF + 8 * (k % 4)
        for th in range(2):
            self.vm.issue(f"buffer_load_dwordx4 v[{r+4*th}:{r+4*th+3}], v3, s[32:35], s40 offen offset:{2048*(k%2) + 256*th}{cfg.sc}", ("X", k))
        if k % 2 == 1: self.a("s_add_u32 s40, s40, 4096")
    def main(self, pre_dma, hook=None, gate2=None):
        a, vm, ACC, XF, WF = self.a, self.vm, self.ACC, self.XF, self.WF
        if pre_dma < 1: self.dma_stage(0)
        self.xload(0); self.xload(1)
        XR = int(os.environ.get("GXR", "0"))
        nx = [2]
        HY2 = gate2 and int(os.environ.get("HYB", "2")) == 2
        if HY2:
            a("s_barrier")
            self.xload(2); self.xload(3); nx = [4]
            if int(os.environ.get("H2W1", "0")): self.dma_stage(1)
        elif gate2:
            if int(os.environ.get("H2W1", "0")): self.dma_stage(1); pre_dma = 2
            gate2()
        if HY2: pass
        elif not XR:
            if pre_dma < 3: a("s_barrier")
            self.xload(2); self.xload(3); nx = [4]
        if pre_dma < 2 and not HY2: self.dma_stage(1)
        def reads(s):
            st, sp, reg = s // 8, (s % 8) // 2, s % 2
            w = WF + 12 * (s % 2)
            buf = st % 3
            bo = (0 if buf == 2 else buf * GU_BUF) + reg * GU_UP + 32 * sp * 96
            for ft in range(3):
                for u in range(2):
                    base = (12 if buf == 2 else 7) + u
                    if "gnotr" in os.environ.get("ABL", "") and s > 1: continue
                    a(f"ds_read_b64_tr_b16 v[{w+4*ft+2*u}:{w+4*ft+2*u+1}], v{base} offset:{bo + 32*ft}")
        def pre(s):
            if s % 8 == 0:
                st = s // 8
                vm.wait(lambda t: t == ("W", st), "lgkmcnt(0)" if s else "")
                a("s_barrier")
                if st in (0, 2, 4): stamp(a, 3 + st // 2)
                if st >= 1 and st + 2 < 5 and "gnow" not in os.environ.get("ABL", ""):
                    self.dma_stage(st + 2)
        pre(0); reads(0)
        for s in range(40):
            k = s // 2
            lg = "lgkmcnt(6)" if s + 1 < 40 else "lgkmcnt(0)"
            if s + 1 < 40:
                pre(s + 1); reads(s + 1)
            vm.wait(lambda t: t == ("X", k), lg)
            w = WF + 12 * (s % 2)
            x = XF + 8 * (k % 4)
            for ft in range(3):
                for th in range(2):
                    d = ACC + 16 * ft + 8 * (s % 2) + 4 * th
                    if "gnomf" in os.environ.get("ABL", ""): continue
                    a(f"v_mfma_f32_16x16x32_bf16 v[{d}:{d+3}], v[{w+4*ft}:{w+4*ft+3}], v[{x+4*th}:{x+4*th+3}], v[{d}:{d+3}]")
            if HY2 and s == 6:
                gate2()
                a("s_barrier")
                if not int(os.environ.get("H2W1", "0")): self.dma_stage(1)
                for _ in range(3):
                    self.xload(nx[0]); nx[0] += 1
            if s % 2 == 1 and not (HY2 and s < 6):
                for _ in range(2):
                    if nx[0] <= k + (2 if s < XR else 4) and nx[0] < 20:
                        self.xload(nx[0]); nx[0] += 1
            if s == (6 if HY2 else 2) and pre_dma < 3: self.dma_stage(2)
            if s == int(os.environ.get("HOOKS", "12")) and hook: hook()
        stamp(a, 6)
        a(f"s_setprio {os.environ.get('PE', '3')}")
        a("s_mul_i32 s50, s26, 96")
        a("s_mul_i32 s3, s24, 3")
        a("s_add_u32 s50, s50, s3")
        a("s_lshl_b32 s50, s50, 10")
        a(f"s_add_u32 s50, s50, {WS_H}")
        a(f"s_mov_b32 s52, {f2hex(-1.4426950408889634)}")
        a("s_mov_b32 s53, s52")
        a("s_mov_b32 s54, 1.0")
        a("s_mov_b32 s55, 1.0")
        T = XF
        for ft in range(3):
            g = ACC + 16 * ft; u = g + 8
            for i in range(0, 8, 2):
                a(f"v_pk_mul_f32 v[{T+i}:{T+i+1}], v[{g+i}:{g+i+1}], s[52:53]")
            for i in range(8):
                a(f"v_exp_f32 v{T+i}, v{T+i}")
            for i in range(0, 8, 2):
                a(f"v_pk_add_f32 v[{T+i}:{T+i+1}], v[{T+i}:{T+i+1}], s[54:55]")
            for i in range(8):
                a(f"v_rcp_f32 v{T+i}, v{T+i}")
            for i in range(0, 8, 2):
                a(f"v_pk_mul_f32 v[{g+i}:{g+i+1}], v[{g+i}:{g+i+1}], v[{u+i}:{u+i+1}]")
            for i in range(0, 8, 2):
                a(f"v_pk_mul_f32 v[{g+i}:{g+i+1}], v[{g+i}:{g+i+1}], v[{T+i}:{T+i+1}]")
            for i in range(4):
                a(f"v_cvt_pk_bf16_f32 v{g+i}, v{g+2*i}, v{g+2*i+1}")
            a("s_nop 1")
            a(f"v_permlane32_swap_b32 v{g}, v{g+2}")
            a(f"v_permlane32_swap_b32 v{g+1}, v{g+3}")
            a(f"buffer_store_dwordx4 v[{g}:{g+3}], v14, s[32:35], s50 offen offset:{1024*ft}{cfg.sc}")
        stamp(a, 7)

def fin_decode(a):
    a("s_and_b32 s3, s2, 255")
    a("s_and_b32 s24, s3, 7")
    a("s_lshr_b32 s26, s3, 3")
    a("s_lshr_b32 s27, s24, 1")
    a("s_lshl_b32 s27, s27, 3")
    a("s_and_b32 s3, s26, 7")
    a("s_add_u32 s27, s27, s3")
    a("s_and_b32 s24, s24, 1")
    a("s_lshl_b32 s24, s24, 2")
    a("s_lshr_b32 s26, s26, 3")
    a("s_add_u32 s24, s24, s26")

OUT16 = int(os.environ.get("OUT16", "1"))
class FIN:
    ACC, XF, WF = 16, 56, 88
    DV = [4, 5, 6, 7, 8]
    TD, TM, TR = 11, 12, 13
    def __init__(self, a):
        self.a = a; self.vm = VM(a); self.q = [[], []]
    def roles(self):
        a = self.a
        a("s_and_b32 s46, s25, 1")
        a("s_lshr_b32 s47, s25, 1")
        a("s_mov_b32 s56, s25")
    BOFF = 0
    def zero_acc(self):
        for i in range(40):
            self.a(f"v_mov_b32 v{self.ACC+i}, 0")
    def setup(self, zero_acc=True):
        a = self.a
        srd(a, 28, S_WD, 1966080)
        srd(a, 36, S_WO, 819200)
        self.roles()
        a("s_lshl_b32 s26, s27, 1")
        a("s_add_u32 s26, s26, s46")
        a("s_lshl_b32 s3, s47, 11")
        a("s_mul_i32 s40, s26, 98304")
        a("s_add_u32 s40, s40, s3")
        a(f"s_add_u32 s40, s40, {WS_H}")
        a("s_mul_i32 s43, s26, 40960")
        a("s_add_u32 s43, s43, s3")
        a(f"s_add_u32 s43, s43, {WS_O}")
        a("s_mul_i32 s41, s24, 160")
        a("s_mul_i32 s3, s25, 40960")
        a("s_add_u32 s41, s41, s3")
        a("s_mov_b32 s44, s41")
        a("s_mul_i32 s49, s25, 5120")
        a("s_and_b32 s3, s25, 3")
        a("s_mul_i32 s42, s3, 5120")
        a("s_lshr_b32 s48, s25, 2")
        a("v_lshrrev_b32 v10, 4, v2")
        a("v_and_b32 v14, 15, v2")
        a("v_lshlrev_b32 v3, 4, v14")
        a("v_lshl_add_u32 v3, v10, 9, v3")
        a("s_movk_i32 s3, 1280")
        for b in range(5):
            a(f"v_add_u32 v11, {64*b}, v2")
            a("v_mul_u32_u24 v12, 6554, v11")
            a("v_lshrrev_b32 v12, 16, v12")
            a("v_mul_u32_u24 v13, 10, v12")
            a("v_sub_u32 v13, v11, v13")
            a("v_lshlrev_b32 v13, 4, v13")
            a(f"v_mad_u32_u24 v{self.DV[b]}, v12, s3, v13")
        a("s_lshl_b32 s45, s26, 5")
        a("v_add_u32 v14, s45, v14")
        a("v_mul_u32_u24 v14, 1280, v14")
        if OUT16:
            a("v_and_b32 v11, 1, v10")
            a("v_lshl_add_u32 v14, v11, 4, v14")
            a("v_lshrrev_b32 v11, 1, v10")
            a("v_lshl_add_u32 v14, v11, 3, v14")
        else:
            a("v_lshl_add_u32 v14, v10, 3, v14")
        a("s_mul_i32 s45, s24, 160")
        a("v_add_u32 v14, s45, v14")
        a("v_bfe_u32 v10, v2, 2, 2")
        a("v_bfe_u32 v15, v2, 4, 1")
        a("v_lshrrev_b32 v1, 5, v2")
        if OUT16:
            a("v_and_b32 v0, 1, v2")
            a("v_lshlrev_b32 v0, 4, v0")
            a("v_bfe_u32 v11, v2, 1, 1")
            a("v_lshl_add_u32 v0, v11, 3, v0")
        else:
            a("v_and_b32 v0, 3, v2")
            a("v_lshlrev_b32 v0, 3, v0")
        a("s_movk_i32 s3, 160")
        a(f"v_lshl_add_u32 v{self.TD}, v1, 4, v10")
        a(f"v_lshl_add_u32 v{self.TD}, v15, 2, v{self.TD}")
        a(f"v_mad_u32_u24 v{self.TD}, v{self.TD}, s3, v0")
        a("s_mul_i32 s45, s47, 5120")
        a(f"v_add_u32 v{self.TD}, s45, v{self.TD}")
        a(f"v_mul_u32_u24 v{self.TM}, 20, v1")
        a(f"v_lshl_add_u32 v{self.TM}, v15, 2, v{self.TM}")
        a(f"v_add_u32 v{self.TM}, v{self.TM}, v10")
        a(f"v_mad_u32_u24 v{self.TM}, v{self.TM}, s3, v0")
        a("s_mul_i32 s45, s47, 6400")
        a(f"v_add_u32 v{self.TM}, s45, v{self.TM}")
        a(f"v_mul_u32_u24 v{self.TR}, 80, v1")
        a("v_mul_u32_u24 v15, 20, v15")
        a(f"v_add3_u32 v{self.TR}, v{self.TR}, v15, v10")
        a(f"v_mad_u32_u24 v{self.TR}, v{self.TR}, s3, v0")
        a(f"v_add_u32 v{self.TR}, {16*160}, v{self.TR}")
        if zero_acc: self.zero_acc()
    def dma_wd(self, m):
        a = self.a
        L = uid("L_dwd")
        a(f"s_cmp_lg_u32 s48, {m % 2}")
        a(f"s_cbranch_scc1 {L}")
        for b in range(5):
            a(f"s_add_u32 m0, s42, {((m + self.BOFF) % 4) * 20480 + 1024 * b}")
            a("s_nop 0")
            a(f"buffer_load_dwordx4 v{self.DV[b]}, s[28:31], s41 offen lds")
        a(f"s_add_u32 s41, s41, {256*1280}")
        a.label(L)
        self.q[m % 2] += [("W", m)] * 5
    def hload(self, m):
        r = self.XF + 8 * (m % 4)
        for th in range(2):
            self.a(f"buffer_load_dwordx4 v[{r+4*th}:{r+4*th+3}], v3, s[32:35], s40 offen offset:{256*th}{cfg.sc}")
            for q in self.q: q.append(("X", m))
        self.a("s_add_u32 s40, s40, 8192")
    def wait2(self, preds, extra=""):
        n = 63
        for q in self.q:
            last = max([i for i, t in enumerate(q) if t in preds], default=-1)
            if last >= 0: n = min(n, len(q) - 1 - last)
        if n == 63:
            if extra: self.a(f"s_waitcnt {extra}")
            return
        self.a(f"s_waitcnt vmcnt({n}) {extra}".strip())
        self.q = [q[max(0, len(q) - n):] if n > 0 else [] for q in self.q]
    def wreads(self, w, base, off, ustep):
        for ft in range(5):
            for u in range(2):
                self.a(f"ds_read_b64_tr_b16 v[{w+4*ft+2*u}:{w+4*ft+2*u+1}], v{base} offset:{off + ustep*u + 32*ft}")
    def mfmas(self, w, x):
        if "dnomf" in os.environ.get("ABL", ""): return
        for ft in range(5):
            for th in range(2):
                d = self.ACC + 4 * (5 * th + ft)
                self.a(f"v_mfma_f32_16x16x32_bf16 v[{d}:{d+3}], v[{w+4*ft}:{w+4*ft+3}], v[{x+4*th}:{x+4*th+3}], v[{d}:{d+3}]")
    def down(self, npre=4):
        a = self.a
        for m in range(2): self.hload(m)
        nw = npre
        nh = 2
        TD2 = 15
        a(f"v_add_u32 v{TD2}, 40960, v{self.TD}")
        def reads(m):
            base = self.TD if (m % 4) < 2 else TD2
            self.wreads(self.WF + 20 * (m % 2), base, (m % 2) * 20480, 1280)
        self.wait2([("W", 0)])
        a("s_barrier")
        if not os.environ.get("GSTAMP"): stamp(a, 9)
        reads(0)
        for m in range(12):
            if m + 1 < 12:
                self.wait2([("W", m + 1)], "lgkmcnt(0)")
                a("s_barrier")
                reads(m + 1)
                for _ in range(2):
                    if nw <= m + 4 and nw < 12:
                        self.dma_wd(nw); nw += 1
                if m == 9:
                    a("s_waitcnt vmcnt(0)")
                    self.q = [[], []]
                    self.wo_dma((0, 8), 0, 0)
                if m == 10:
                    self.wo_dma((0, 4), 8, 8)
                self.wait2([("X", m)])
            else:
                self.wait2([("X", m)], "lgkmcnt(0)")
            self.mfmas(self.WF + 20 * (m % 2), self.XF + 8 * (m % 4))
            for _ in range(2):
                if nh <= m + 4 and nh < 12:
                    self.hload(nh); nh += 1
        if not os.environ.get("GSTAMP"): stamp(a, 10)
    def wo_dma(self, cond, first_group, lds_group):
        a = self.a
        lo, hi = cond
        L = uid("L_wod")
        if lo > 0:
            a(f"s_cmp_lt_u32 s25, {lo}")
            a(f"s_cbranch_scc1 {L}")
        if hi < 8:
            a(f"s_cmp_ge_u32 s25, {hi}")
            a(f"s_cbranch_scc1 {L}")
        a(f"s_add_u32 s3, s44, {(first_group - lo) * 32 * 1280}")
        for b in range(5):
            a(f"s_add_u32 m0, s49, {(lds_group - lo) * 5120 + 1024 * b}")
            a("s_nop 0")
            a(f"buffer_load_dwordx4 v{self.DV[b]}, s[36:39], s3 offen lds")
        a.label(L)
    def wo_prefetch(self, after_first=None):
        a = self.a
        if after_first is None:
            a("s_waitcnt vmcnt(5)")
            a("s_cmp_lt_u32 s25, 4")
            a("s_cbranch_scc1 L_fin_p0")
        a("s_waitcnt vmcnt(0)")
        a.label("L_fin_p0")
        a("s_barrier")
        if after_first: after_first()
        self.wo_dma((4, 7), 12, 12)
        self.wreads(self.WF + 20, self.TM, 0, 1280)
        a("s_cmp_lg_u32 s47, 0")
        a("s_cbranch_scc1 L_fin_p1")
        self.wreads(self.WF, self.TR, 0, 6400)
        a.label("L_fin_p1")
        a("s_cmp_eq_u32 s47, 3")
        a("s_cselect_b32 s3, 0, s47")
        a("s_mul_i32 s3, s3, 25600")
        a(f"v_add_u32 v{self.TR}, s3, v{self.TR}")
        a("s_waitcnt lgkmcnt(0)")
        a("s_barrier")
        self.wo_dma((0, 5), 15, 0)
        srd(a, 28, S_X, 2621440)
        if OUT16:
            a("s_lshl_b32 s52, s47, 5")
            a("s_add_u32 s53, s52, 20480")
            a("s_movk_i32 s54, 128")
            a("s_movk_i32 s55, 20608")
            a("v_lshrrev_b32 v15, 5, v2")
            a("v_and_b32 v10, 15, v2")
            a("v_lshl_add_u32 v15, v15, 4, v10")
            a("s_lshl_b32 s3, s26, 5")
            a("v_add_u32 v15, s3, v15")
            a("v_mul_u32_u24 v15, 1280, v15")
            a("v_bfe_u32 v10, v2, 4, 1")
            a("v_lshl_add_u32 v15, v10, 4, v15")
            a("s_mul_i32 s3, s24, 160")
            a("v_add_u32 v15, s3, v15")
        else:
            for i in range(3):
                a(f"s_add_u32 s3, s47, {4*i}")
                a("s_cmp_ge_u32 s3, 5")
                a(f"s_cselect_b32 s50, {20480 - 160}, 0")
                a("s_lshl_b32 s51, s3, 5")
                a(f"s_add_u32 s{52+i}, s50, s51")
            a("s_cmp_ge_u32 s47, 2")
            a("s_cselect_b32 s54, s53, s54")
        a("buffer_load_dwordx2 v[0:1], v14, s[28:31], s52 offen")
    def wo_main(self):
        a, vm = self.a, self.vm
        vm.q = []
        XS = {4: 56, 0: 64, 1: 72, 2: 80, 3: 4}
        def oload(rd):
            a(f"s_add_u32 s3, s43, {8192*rd}")
            for th in range(2):
                r = XS[rd] + 4 * th
                vm.issue(f"buffer_load_dwordx4 v[{r}:{r+3}], v3, s[32:35], s3 offen offset:{256*th}{cfg.sc}", ("X", rd))
        for rd in (4, 0, 1, 2, 3): oload(rd)
        srd(a, 36, S_OUT, 2621440)
        A, B = self.WF, self.WF + 20
        a("s_cmp_eq_u32 s47, 0")
        a("s_cbranch_scc1 L_fin_r4")
        self.wreads(A, self.TR, 0, 6400)
        a.label("L_fin_r4")
        vm.wait(lambda t: t == ("X", 4), "lgkmcnt(0)")
        if os.environ.get("TAILSTAMP"): stamp(a, 1)
        self.mfmas(A, XS[4])
        self.wreads(A, self.TM, 160 * 160, 1280)
        vm.wait(lambda t: t == ("X", 0))
        self.mfmas(B, XS[0])
        self.wreads(B, self.TM, 320 * 160, 1280)
        vm.wait(lambda t: t == ("X", 1), "lgkmcnt(10)")
        self.mfmas(A, XS[1])
        self.wreads(A, self.TM, 0, 1280)
        vm.wait(lambda t: t == ("X", 2), "lgkmcnt(10)")
        self.mfmas(B, XS[2])
        for i in range(1, 4 if OUT16 else 3):
            vm.issue(f"buffer_load_dwordx2 v[{56+2*i}:{57+2*i}], v14, s[28:31], s{52+i} offen", ("R", i))
        vm.wait(lambda t: t == ("X", 3), "lgkmcnt(0)")
        a("s_barrier")
        self.mfmas(A, XS[3])
        if not os.environ.get("GSTAMP"): stamp(a, 12)
        a("v_lshlrev_b32 v9, 4, v2")
        a("s_mul_i32 s3, s56, 10240")
        a("v_add_u32 v10, s3, v9")
        for j in range(10):
            L = uid("L_fw")
            a(f"s_cmp_eq_u32 s47, {min(j % 5, 3) if OUT16 else j % 4}")
            a(f"s_cbranch_scc1 {L}")
            a(f"ds_write_b128 v10, v[{self.ACC+4*j}:{self.ACC+4*j+3}] offset:{1024*j}")
            a(f"s_branch {L}_n")
            a.label(L)
            r = 64 + 16 * ((j // 5 + (2 if j % 5 == 4 else 0)) if OUT16 else j // 4)
            for t in range(4):
                a(f"v_mov_b32 v{r+t}, v{self.ACC+4*j+t}")
            a.label(L + "_n")
        a("s_mul_i32 s3, s46, 10240")
        a("s_lshl_b32 s50, s47, 10")
        a("s_add_u32 s3, s3, s50")
        a("v_add_u32 v10, s3, v9")
        for k in range(1, 4):
            a(f"s_add_u32 s3, s47, {k}")
            a("s_and_b32 s3, s3, 3")
            a("s_mul_i32 s3, s3, 20480")
            a(f"v_add_u32 v{3+k}, s3, v10")
        a("s_waitcnt lgkmcnt(0)")
        if os.environ.get("TAILSTAMP"): stamp(a, 3)
        a("s_barrier")
        if os.environ.get("TAILSTAMP"): stamp(a, 4)
        R = 64
        if OUT16:
            for i, off in enumerate((0, 5120, 1024, 6144)):
                if i == 2:
                    a("s_cmp_lg_u32 s47, 3")
                    a("s_cbranch_scc1 L_fin_r2")
                for k in range(1, 4):
                    r = R + 16 * i + 4 * k
                    a(f"ds_read_b128 v[{r}:{r+3}], v{3+k} offset:{off}")
            a.label("L_fin_r2")
            a("s_waitcnt vmcnt(0) lgkmcnt(0)")
            for un in range(2):
                if un == 1:
                    a("s_cmp_lg_u32 s47, 3")
                    a("s_cbranch_scc1 L_fin_end")
                o = R + 32 * un
                for th in range(2):
                    i = 2 * un + th
                    r = R + 16 * i; xr = 0 if i == 0 else 56 + 2 * i
                    a(f"v_lshlrev_b32 v4, 16, v{xr}")
                    a(f"v_and_b32 v5, 0xffff0000, v{xr}")
                    a(f"v_lshlrev_b32 v6, 16, v{xr+1}")
                    a(f"v_and_b32 v7, 0xffff0000, v{xr+1}")
                    for h in range(2):
                        a(f"v_pk_add_f32 v[{r+2*h}:{r+2*h+1}], v[{r+2*h}:{r+2*h+1}], v[{r+4+2*h}:{r+5+2*h}]")
                        a(f"v_pk_add_f32 v[{r+8+2*h}:{r+9+2*h}], v[{r+8+2*h}:{r+9+2*h}], v[{r+12+2*h}:{r+13+2*h}]")
                        a(f"v_pk_add_f32 v[{r+2*h}:{r+2*h+1}], v[{r+2*h}:{r+2*h+1}], v[{4+2*h}:{5+2*h}]")
                        a(f"v_pk_add_f32 v[{r+2*h}:{r+2*h+1}], v[{r+2*h}:{r+2*h+1}], v[{r+8+2*h}:{r+9+2*h}]")
                    a(f"v_cvt_pk_bf16_f32 v{o+4+2*th}, v{r}, v{r+1}")
                    a(f"v_cvt_pk_bf16_f32 v{o+5+2*th}, v{r+2}, v{r+3}")
                a("s_nop 1")
                a(f"v_permlane32_swap_b32 v{o+4}, v{o+6}")
                a(f"v_permlane32_swap_b32 v{o+5}, v{o+7}")
                a(f"buffer_store_dwordx4 v[{o+4}:{o+7}], v15, s[36:39], s{52+2*un} offen{os.environ.get('OUTSC', '')}")
            a.label("L_fin_end")
            return
        for i in range(3):
            if i == 2:
                a("s_cmp_ge_u32 s47, 2")
                a("s_cbranch_scc1 L_fin_r2")
            for k in range(1, 4):
                r = R + 16 * i + 4 * k
                a(f"ds_read_b128 v[{r}:{r+3}], v{3+k} offset:{4096*i}")
        a.label("L_fin_r2")
        a("s_waitcnt vmcnt(0) lgkmcnt(0)")
        if os.environ.get("TAILSTAMP"): stamp(a, 5)
        for i in range(3):
            r = R + 16 * i; xr = 0 if i == 0 else 56 + 2 * i
            if i == 2:
                a("s_cmp_ge_u32 s47, 2")
                a("s_cbranch_scc1 L_fin_end")
            a(f"v_lshlrev_b32 v4, 16, v{xr}")
            a(f"v_and_b32 v5, 0xffff0000, v{xr}")
            a(f"v_lshlrev_b32 v6, 16, v{xr+1}")
            a(f"v_and_b32 v7, 0xffff0000, v{xr+1}")
            for h in range(2):
                a(f"v_pk_add_f32 v[{r+2*h}:{r+2*h+1}], v[{r+2*h}:{r+2*h+1}], v[{r+4+2*h}:{r+5+2*h}]")
                a(f"v_pk_add_f32 v[{r+8+2*h}:{r+9+2*h}], v[{r+8+2*h}:{r+9+2*h}], v[{r+12+2*h}:{r+13+2*h}]")
                a(f"v_pk_add_f32 v[{r+2*h}:{r+2*h+1}], v[{r+2*h}:{r+2*h+1}], v[{4+2*h}:{5+2*h}]")
                a(f"v_pk_add_f32 v[{r+2*h}:{r+2*h+1}], v[{r+2*h}:{r+2*h+1}], v[{r+8+2*h}:{r+9+2*h}]")
            a(f"v_cvt_pk_bf16_f32 v{r}, v{r}, v{r+1}")
            a(f"v_cvt_pk_bf16_f32 v{r+1}, v{r+2}, v{r+3}")
            a(f"buffer_store_dwordx2 v[{r}:{r+1}], v14, s[36:39], s{52+i} offen{os.environ.get('OUTSC', '')}")
        a.label("L_fin_end")
        if os.environ.get("TAILSTAMP"): stamp(a, 6)

WS_ST = 0x1480000
def qkv2_decode(a):
    a("s_and_b32 s24, s2, 7")
    a("s_lshr_b32 s26, s2, 3")
    a("s_mul_i32 s24, s24, 30")
    a("s_add_u32 s27, s24, s26")
    a("s_cmp_ge_u32 s27, 80")
    a("s_cselect_b32 s24, 1, 0")
    a("s_cmp_ge_u32 s27, 160")
    a("s_cselect_b32 s24, 2, s24")
    a("s_mul_i32 s26, s24, 80")
    a("s_sub_u32 s27, s27, s26")
    a("s_mul_i32 s26, s27, 205")
    a("s_lshr_b32 s26, s26, 10")
    a("s_mul_i32 s3, s26, 5")
    a("s_sub_u32 s27, s27, s3")
    a("s_mul_i32 s47, s24, 5")
    a("s_add_u32 s47, s47, s27")
    a("s_lshl_b32 s46, s47, 4")
    a("s_add_u32 s46, s46, s26")

def qkv2(a, nonce_check):
    ACC, XF, WF, CS, SEL, AD = 16, 48, 64, 72, 76, 80
    XA0, XA1, TW, DX, DW = 3, 4, 5, 6, 7
    NSL, RING = 20, 5
    L_CS, L_ST = 0, 1024
    XB0, XB1, TW2 = 90, 91, 92
    vm = VM(a)
    srd(a, 28, S_WQKV, 2457600)
    srd(a, 36, S_X, 2621440)
    a("v_lshrrev_b32 v10, 2, v2")
    a("s_lshl_b32 s3, s25, 4")
    a("v_add_u32 v10, s3, v10")
    a("v_mul_u32_u24 v10, 1280, v10")
    a("v_lshrrev_b32 v11, 4, v2")
    a("v_and_b32 v12, 3, v2")
    a("v_xor_b32 v13, v12, v11")
    a(f"v_lshl_add_u32 v{DX}, v13, 4, v10")
    a("s_lshl_b32 s3, s25, 2")
    a("v_add_u32 v10, s3, v11")
    a("v_mul_u32_u24 v10, 3840, v10")
    a("v_bfe_u32 v13, v2, 2, 2")
    a("v_xor_b32 v13, v13, v11")
    a("v_lshl_add_u32 v10, v13, 6, v10")
    a(f"v_lshl_add_u32 v{DW}, v12, 4, v10")
    a("s_mul_i32 s40, s26, 163840")
    a("s_lshl_b32 s41, s47, 8")
    a("s_lshl_b32 s42, s25, 10")
    def dma(sl):
        base = (sl % RING) * 16384
        a(f"s_add_u32 m0, s42, {base}")
        a("s_nop 0")
        vm.issue(f"buffer_load_dwordx4 v{DX}, s[36:39], s40 offen lds", ("S", sl))
        a(f"s_add_u32 m0, s42, {base + 8192}")
        a("s_add_u32 s40, s40, 64")
        vm.issue(f"buffer_load_dwordx4 v{DW}, s[28:31], s41 offen lds", ("S", sl))
        a(f"s_add_u32 s41, s41, {32*3840}")
    NUP = int(os.environ.get('Q2UP', '5'))
    for sl in range(NUP): dma(sl)
    stamp(a, 1)
    a("s_lshr_b32 s48, s25, 2")
    a("s_and_b32 s49, s25, 3")
    a("v_and_b32 v10, 31, v2")
    a("v_lshrrev_b32 v8, 5, v2")
    a("v_bfe_u32 v11, v2, 2, 2")
    a("v_xor_b32 v12, v8, v11")
    a("v_lshlrev_b32 v13, 6, v10")
    a("s_lshl_b32 s3, s48, 12")
    a("v_add_u32 v13, s3, v13")
    a(f"v_lshl_add_u32 v{XA0}, v12, 4, v13")
    a(f"v_xor_b32 v{XA1}, 32, v{XA0}")
    a("v_lshl_add_u32 v12, v8, 3, v11")
    a("v_lshlrev_b32 v12, 8, v12")
    a("v_xor_b32 v13, s49, v11")
    a("v_lshl_add_u32 v12, v13, 6, v12")
    a("v_bfe_u32 v13, v2, 4, 1")
    a("v_lshl_add_u32 v12, v13, 5, v12")
    a("v_add_u32 v12, 8192, v12")
    a("v_and_b32 v14, 15, v2")
    a("v_cmp_eq_u32 vcc, v14, v13")
    a("v_mov_b32 v14, 0x3f803f80")
    for i in range(32): a(f"v_mov_b32 v{ACC+i}, 0")
    a("v_cndmask_b32 v14, 0, v14, vcc")
    for i in range(4):
        a(f"v_mov_b32 v{SEL+i}, v14")
        a(f"v_mov_b32 v{CS+i}, 0")
    a("s_lshl_b32 s3, s26, 8")
    a(f"s_add_u32 s50, s3, {F_XN}")
    a("v_lshlrev_b32 v15, 3, v10")
    a("s_lshl_b32 s51, s26, 10")
    a(f"s_add_u32 s51, s51, {WS_ST}")
    a("s_lshl_b32 s43, s26, 2")
    a("s_lshl_b32 s3, s48, 1")
    a("s_add_u32 s43, s43, s3")
    a("s_cmp_eq_u32 s24, 2")
    a("s_cbranch_scc1 L_q2_V")
    a("v_and_b32 v13, 1, v2")
    a("v_lshl_add_u32 v12, v13, 4, v12")
    a("v_bfe_u32 v13, v2, 1, 1")
    a(f"v_lshl_add_u32 v{TW}, v13, 3, v12")
    a("s_lshl_b32 s45, s43, 10")
    a(f"s_add_u32 s45, s45, {WS_QM}")
    a("s_lshl_b32 s44, s43, 8")
    a(f"s_add_u32 s44, s44, {WS_QR}")
    a("s_mov_b32 s52, 65536")
    a("s_mov_b32 s53, 16384")
    a("s_movk_i32 s54, 1024")
    a("s_movk_i32 s55, 256")
    a(f"s_mov_b32 s63, {f2hex(QSCALE)}")
    a("s_cmp_eq_u32 s24, 0")
    a("s_cbranch_scc1 L_q2_isq")
    a("s_mul_i32 s45, s43, 2560")
    a(f"s_add_u32 s45, s45, {WS_KV}")
    a("s_add_u32 s44, s45, 1024")
    a("s_mov_b32 s52, 163840")
    a("s_mov_b32 s53, 163840")
    a("s_movk_i32 s54, 2560")
    a("s_movk_i32 s55, 2560")
    a("s_mov_b32 s63, 1.0")
    a.label("L_q2_isq")
    a("s_lshl_b32 s3, s27, 2")
    a("s_add_u32 s3, s3, s49")
    a("s_lshl_b32 s3, s3, 2")
    a("v_add_u32 v11, s3, v8")
    a("v_lshl_add_u32 v12, v10, 4, s45")
    a("v_lshl_add_u32 v13, v10, 3, s44")
    for q in range(2):
        a(f"v_add_u32 v14, {2*q}, v11")
        a("v_mul_u32_u24 v1, 205, v14")
        a("v_lshrrev_b32 v1, 10, v1")
        a("v_mul_u32_u24 v0, 5, v1")
        a("v_sub_u32 v14, v14, v0")
        a("v_lshlrev_b32 v1, 1, v1")
        a("v_mul_lo_u32 v0, v1, s53")
        a(f"v_add_u32 v{AD+3*q+1}, v0, v13")
        a(f"v_add_u32 v{AD+3*q+2}, s53, v{AD+3*q+1}")
        a("v_cmp_lt_u32 vcc, 2, v14")
        a("v_subrev_u32 v0, 3, v14")
        a("s_nop 0")
        a("v_addc_co_u32 v1, s[86:87], 0, v1, vcc")
        a("v_cndmask_b32 v0, v14, v0, vcc")
        a("v_mul_lo_u32 v1, v1, s52")
        a("v_lshl_add_u32 v0, v0, 9, v12")
        a("v_add_u32 v0, v0, v1")
        a("v_cmp_eq_u32 vcc, 2, v14")
        a(f"v_mov_b32 v1, {OOB - 0x100000}")
        a("s_nop 0")
        a(f"v_cndmask_b32 v{AD+3*q}, v0, v1, vcc")
        a(f"v_cndmask_b32 v{AD+3*q+1}, v1, v{AD+3*q+1}, vcc")
        a(f"v_cndmask_b32 v{AD+3*q+2}, v1, v{AD+3*q+2}, vcc")

    def loop(vtype):
        vq = list(vm.q)
        a(f"v_add_u32 v{XB0}, 0x10000, v{XA0}")
        a(f"v_add_u32 v{XB1}, 0x10000, v{XA1}")
        a(f"v_add_u32 v{TW2}, 0x10000, v{TW}")
        nd = [NUP]
        def reads(s):
            sl, sp = s // 2, s % 2
            base = (sl % RING) * 16384
            x = XF + 8 * (s % 2); w = WF + 4 * (s % 2)
            xa = XA1 if sp else XA0; tw = TW
            if base >= 65536:
                base -= 65536; xa = XB1 if sp else XB0; tw = TW2
            a(f"ds_read_b128 v[{x}:{x+3}], v{xa} offset:{base}")
            a(f"ds_read_b64_tr_b16 v[{w}:{w+1}], v{tw} offset:{base + 16*sp*256}")
            a(f"ds_read_b64_tr_b16 v[{w+2}:{w+3}], v{tw} offset:{base + (16*sp+4)*256}")
            a(f"ds_read_b128 v[{x+4}:{x+7}], v{xa} offset:{base + 2048}")
        def pre(s):
            if s % 4: return
            sl = s // 2
            vm.wait(lambda t: t == ("S", sl + 1), "lgkmcnt(0)" if s else "")
            a("s_barrier")
            if sl in (0, 10): stamp(a, 2 if sl == 0 else 3)
            if PROFILE and os.environ.get("SLOTTRACE"):
                a("s_memtime s[84:85]")
                a("s_waitcnt lgkmcnt(0)")
                a("s_sub_u32 s84, s84, s64")
                a(f"v_writelane_b32 v120, s84, {sl // 2}")
            while nd[0] < sl + RING and nd[0] < NSL:
                dma(nd[0]); nd[0] += 1
            if cfg.fused:
                if sl == 6:
                    a("v_mov_b32 v0, 0")
                    vm.issue("buffer_load_dwordx2 v[88:89], v0, s[56:59], 0 offen sc1", ("N", 0))
                if sl == 10:
                    vm.wait(lambda t: t == ("N", 0))
                    nonce_check(88)
                if sl == 12:
                    vm.issue("buffer_load_dwordx2 v[88:89], v15, s[32:35], s50 offen sc1", ("F", 0))
                if sl == 16:
                    vm.wait(lambda t: t == ("F", 0))
                    L = uid("L_q2f")
                    a("v_cmp_ne_u64 vcc, s[60:61], v[88:89]")
                    a(f"s_cbranch_vccz {L}")
                    a("v_add_u32 v0, s50, v15")
                    poll(a, 0, 88)
                    a.label(L)
            if sl == 16:
                a(f"s_mov_b32 m0, {L_ST}")
                a("s_nop 0")
                vm.issue(f"buffer_load_dwordx4 v9, s[32:35], s51 offen{cfg.sc} lds", ("T", 0))
        pre(0); reads(0)
        for s in range(2 * NSL):
            if s + 1 < 2 * NSL:
                pre(s + 1); reads(s + 1)
                a("s_waitcnt lgkmcnt(4)")
            else:
                a("s_waitcnt lgkmcnt(0)")
            x = XF + 8 * (s % 2); w = WF + 4 * (s % 2)
            for j in range(2):
                W = f"v[{w}:{w+3}]"; X = f"v[{x+4*j}:{x+4*j+3}]"
                A, B = (X, W) if vtype else (W, X)
                D = f"v[{ACC+16*j}:{ACC+16*j+15}]"
                a(f"v_mfma_f32_32x32x16_bf16 {D}, {A}, {B}, {D}")
            L = uid("L_q2s")
            a(f"s_cmp_lg_u32 s48, {s % 2}")
            a(f"s_cbranch_scc1 {L}")
            a(f"v_mfma_f32_16x16x32_bf16 v[{CS}:{CS+3}], v[{w}:{w+3}], v[{SEL}:{SEL+3}], v[{CS}:{CS+3}]")
            a.label(L)
        stamp(a, 6)
        if qkv_hook: qkv_hook()
        a("v_and_b32 v0, 15, v2")
        a("v_lshrrev_b32 v1, 4, v2")
        a("v_lshlrev_b32 v1, 4, v1")
        a("v_lshl_add_u32 v1, v0, 6, v1")
        a("s_lshl_b32 s3, s25, 7")
        a(f"s_add_u32 s3, s3, {L_CS}")
        a("v_add_u32 v1, s3, v1")
        a("v_cmp_gt_u32 vcc, 2, v0")
        a("s_nop 1")
        a("s_mov_b64 exec, vcc")
        a(f"ds_write_b128 v1, v[{CS}:{CS+3}]")
        a("s_mov_b64 exec, -1")
        vm.wait(lambda t: t == ("T", 0), "lgkmcnt(0)")
        a("s_barrier")
        vm.q = vq
    loop(False)
    C0, C1, MR = 48, 64, 88
    a("s_lshl_b32 s3, s49, 7")
    a(f"s_add_u32 s3, s3, {L_CS}")
    a("v_lshl_add_u32 v0, v8, 4, s3")
    for g in range(4):
        a(f"ds_read_b128 v[{C0+4*g}:{C0+4*g+3}], v0 offset:{32*g}")
        a(f"ds_read_b128 v[{C1+4*g}:{C1+4*g+3}], v0 offset:{512 + 32*g}")
    a("s_lshl_b32 s3, s48, 8")
    a(f"s_add_u32 s3, s3, {L_ST}")
    a("v_lshl_add_u32 v1, v10, 2, s3")
    for j in range(2):
        a(f"ds_read_b32 v{MR+4*j}, v1 offset:{128*j}")
        a(f"ds_read_b32 v{MR+4*j+2}, v1 offset:{512 + 128*j}")
    a("s_waitcnt lgkmcnt(0)")
    for i in range(0, 16, 2):
        a(f"v_pk_add_f32 v[{C0+i}:{C0+i+1}], v[{C0+i}:{C0+i+1}], v[{C1+i}:{C1+i+1}]")
    for j in range(2):
        a(f"v_mov_b32 v{MR+4*j+1}, v{MR+4*j}")
        a(f"v_mul_f32 v{MR+4*j+2}, s63, v{MR+4*j+2}")
        a(f"v_mov_b32 v{MR+4*j+3}, v{MR+4*j+2}")
    for j in range(2):
        for q in range(2):
            r = ACC + 16 * j + 8 * q
            for i in range(0, 8, 2):
                c = C0 + 8 * q + i
                a(f"v_pk_fma_f32 v[{r+i}:{r+i+1}], v[{c}:{c+1}], v[{MR+4*j}:{MR+4*j+1}], v[{r+i}:{r+i+1}]")
            for i in range(0, 8, 2):
                a(f"v_pk_mul_f32 v[{r+i}:{r+i+1}], v[{r+i}:{r+i+1}], v[{MR+4*j+2}:{MR+4*j+3}]")
            for i in range(4):
                a(f"v_cvt_pk_bf16_f32 v{r+i}, v{r+2*i}, v{r+2*i+1}")
            sm, sr_ = ("0", "0") if j == 0 else ("s54", "s55")
            a(f"buffer_store_dwordx4 v[{r}:{r+3}], v{AD+3*q}, s[32:35], {sm} offen{cfg.sc}")
            a(f"buffer_store_dwordx2 v[{r}:{r+1}], v{AD+3*q+1}, s[32:35], {sr_} offen{cfg.sc}")
            a(f"buffer_store_dwordx2 v[{r+2}:{r+3}], v{AD+3*q+2}, s[32:35], {sr_} offen{cfg.sc}")
    a("s_branch L_q2_done")
    a.label("L_q2_V")
    a("v_and_b32 v13, 3, v2")
    a(f"v_lshl_add_u32 v{TW}, v13, 3, v12")
    a("s_mul_i32 s45, s43, 2560")
    a(f"s_add_u32 s45, s45, {WS_KV + 1280}")
    a("s_lshl_b32 s3, s27, 2")
    a("s_add_u32 s3, s3, s49")
    a("s_lshl_b32 s3, s3, 5")
    a("v_add_u32 v13, s3, v10")
    a("v_mul_u32_u24 v11, 320, v8")
    a("v_add_u32 v11, s45, v11")
    a("s_mov_b32 s52, 163840")
    a("v_mul_u32_u24 v14, 3277, v13")
    a("v_lshrrev_b32 v14, 16, v14")
    a("v_mul_u32_u24 v1, 20, v14")
    a("v_sub_u32 v1, v13, v1")
    a("v_lshl_add_u32 v0, v1, 4, v11")
    a("v_mul_lo_u32 v14, v14, s52")
    a(f"v_add_u32 v{AD}, v0, v14")
    loop(True)
    MN, RS = 48, 88
    a("s_lshl_b32 s3, s49, 7")
    a(f"s_add_u32 s3, s3, {L_CS}")
    a("v_lshl_add_u32 v0, v10, 2, s3")
    a("ds_read_b32 v12, v0")
    a("ds_read_b32 v13, v0 offset:512")
    a("s_lshl_b32 s3, s48, 8")
    a(f"s_add_u32 s3, s3, {L_ST}")
    a("v_lshl_add_u32 v1, v8, 4, s3")
    for j in range(2):
        for g in range(4):
            a(f"ds_read_b128 v[{MN+16*j+4*g}:{MN+16*j+4*g+3}], v1 offset:{128*j + 32*g}")
            a(f"ds_read_b128 v[{RS+16*j+4*g}:{RS+16*j+4*g+3}], v1 offset:{512 + 128*j + 32*g}")
    a("s_waitcnt lgkmcnt(15)")
    a("v_add_f32 v12, v12, v13")
    a("v_mov_b32 v13, v12")
    a("s_waitcnt lgkmcnt(0)")
    for j in range(2):
        for gm in range(2):
            r = ACC + 16 * j + 8 * gm
            for i in range(0, 8, 2):
                m = MN + 16 * j + 8 * gm + i
                a(f"v_pk_fma_f32 v[{r+i}:{r+i+1}], v[{m}:{m+1}], v[12:13], v[{r+i}:{r+i+1}]")
            for i in range(0, 8, 2):
                m = RS + 16 * j + 8 * gm + i
                a(f"v_pk_mul_f32 v[{r+i}:{r+i+1}], v[{r+i}:{r+i+1}], v[{m}:{m+1}]")
            for i in range(4):
                a(f"v_cvt_pk_bf16_f32 v{r+i}, v{r+2*i}, v{r+2*i+1}")
            a(f"buffer_store_dwordx4 v[{r}:{r+3}], v{AD}, s[32:35], 0 offen offset:{2560*j + 640*gm}{cfg.sc}")
    a.label("L_q2_done")
    if PROFILE and os.environ.get("SLOTTRACE"):
        a("s_lshl_b32 s84, s2, 4")
        a("s_add_u32 s84, s84, s25")
        a("s_lshl_b32 s84, s84, 6")
        a(f"s_add_u32 s84, s84, {WS_PROF + 0x600000}")
        a("v_lshlrev_b32 v1, 2, v2")
        a("s_mov_b64 exec, 0xffff")
        a("buffer_store_dword v120, v1, s[32:35], s84 offen")
        a("s_mov_b64 exec, -1")
    stamp(a, 7)

def attn_flag_addr2(a, vd):
    a("s_mul_i32 s3, s24, 20")
    a("s_lshr_b32 s26, s3, 7")
    a("s_add_u32 s3, s3, 19")
    a("s_lshr_b32 s3, s3, 7")
    a("s_sub_u32 s3, s3, s26")
    a("v_bfe_u32 v11, v2, 4, 1")
    a("v_mul_u32_u24 v11, 5, v11")
    a("v_lshrrev_b32 v12, 5, v2")
    a("v_mul_lo_u32 v12, v12, s3")
    a("v_add3_u32 v11, v11, v12, s26")
    a("v_add_u32 v11, 5, v11")
    a("v_and_b32 v12, 15, v2")
    a(f"v_lshl_add_u32 v{vd}, v11, 4, v12")
    a(f"v_lshlrev_b32 v{vd}, {FSH}, v{vd}")
    a(f"v_add_u32 v{vd}, {F_QKV}, v{vd}")
    a("v_bfe_u32 v12, v2, 1, 1")
    a("v_mul_lo_u32 v12, v12, s3")
    a("v_add_u32 v12, s26, v12")
    a("v_and_b32 v11, 1, v2")
    a("s_lshl_b32 s3, s27, 1")
    a("v_lshl_add_u32 v12, v12, 4, v11")
    a("v_add_u32 v12, s3, v12")
    a(f"v_lshlrev_b32 v{vd+1}, {FSH}, v12")
    a(f"v_add_u32 v{vd+1}, {F_QKV}, v{vd+1}")

C_XN, C_QKV, C_H, C_O, C_QL = 0, 8, 40, 48, 64
NCNT = 320
def cnt_base(a):
    a(f"s_add_u32 s60, s{S_WS}, {WS_FL}")
    a(f"s_addc_u32 s61, s{S_WS+1}, 0")

def cnt_init(a):
    a("v_lshlrev_b32 v10, 7, v2")
    a("v_mov_b32 v11, 0")
    for i in range(NCNT // 64):
        a(f"s_mov_b32 s62, {WS_FL + i * 8192}")
        a("buffer_store_dword v11, v10, s[32:35], s62 offen sc1")
    srd(a, 56, S_DBG, 256)
    a("v_mov_b32 v10, 1")
    a("s_waitcnt vmcnt(0)")
    a("s_mov_b64 exec, 1")
    a("buffer_store_dword v10, v11, s[56:59], 0 offen sc1")
    a("s_mov_b64 exec, -1")

def go_issue(a, t=10):
    srd(a, 56, S_DBG, 256)
    a(f"v_mov_b32 v{t+1}, 0")
    a(f"buffer_load_dword v{t}, v{t+1}, s[56:59], 0 offen sc1")

def wait_go(a, t=10, issued=False, sleep=1):
    L = uid("L_go")
    a("s_mov_b32 s83, 0x40000")
    if issued:
        a(f"s_branch {L}_chk")
    else:
        srd(a, 56, S_DBG, 256)
        a(f"v_mov_b32 v{t+1}, 0")
    a.label(L)
    a(f"buffer_load_dword v{t}, v{t+1}, s[56:59], 0 offen sc1")
    a.label(L + "_chk")
    a("s_waitcnt vmcnt(0)")
    a(f"v_readfirstlane_b32 s62, v{t}")
    a("s_cmp_lg_u32 s62, 0")
    a(f"s_cbranch_scc1 {L}_ok")
    a(f"s_sleep {sleep}")
    a("s_sub_u32 s83, s83, 1")
    a(f"s_cbranch_scc0 {L}")
    a.label(L + "_ok")

def vpoll(a, offs, target, t=10, sleep=1):
    L = uid("L_vp")
    a(f"v_mov_b32 v{t+1}, s{offs[0]}")
    for i, o in enumerate(offs[1:], 1):
        a(f"v_writelane_b32 v{t+1}, s{o}, {i}")
    a(f"s_mov_b32 s62, {WS_FL}")
    a("s_mov_b32 s83, 0x40000")
    a(f"s_mov_b64 exec, {(1 << len(offs)) - 1}")
    a.label(L)
    a(f"buffer_load_dword v{t}, v{t+1}, s[32:35], s62 offen sc1")
    a("s_waitcnt vmcnt(0)")
    a(f"v_cmp_gt_u32 vcc, {target}, v{t}")
    a(f"s_cbranch_vccz {L}_ok")
    a(f"s_sleep {sleep}")
    a("s_sub_u32 s83, s83, 1")
    a(f"s_cbranch_scc0 {L}")
    a.label(L + "_ok")
    a("s_mov_b64 exec, -1")

def cadd(a, base, idx_sgpr, t=10):
    a(f"s_lshl_b32 s62, s{idx_sgpr}, 7")
    a(f"s_add_u32 s62, s62, {WS_FL + base * 128}")
    a(f"v_mov_b32 v{t}, 1")
    a(f"v_mov_b32 v{t+1}, 0")
    a("s_mov_b64 exec, 1")
    a(f"buffer_atomic_add v{t}, v{t+1}, s[32:35], s62 offen sc1")
    a("s_mov_b64 exec, -1")

def cpoll(a, offs, target, sleep=1):
    L = uid("L_cp")
    a("s_mov_b32 s83, 0x40000")
    a.label(L)
    for i, o in enumerate(offs):
        a(f"s_load_dword s{88+i}, s[60:61], s{o} glc")
    a("s_waitcnt lgkmcnt(0)")
    for i in range(1, len(offs)):
        a(f"s_min_u32 s88, s88, s{88+i}")
    a(f"s_cmp_ge_u32 s88, {target}")
    a(f"s_cbranch_scc1 {L}_ok")
    a(f"s_sleep {sleep}")
    a("s_sub_u32 s83, s83, 1")
    a(f"s_cbranch_scc0 {L}")
    a.label(L + "_ok")


WS_EX = 0x1500000
F_EX = WS_FL + 0x50000
class FIN2(FIN):
    BOFF = 2
    def roles(self):
        a = self.a
        a("s_and_b32 s46, s25, 1")
        a("s_bfe_u32 s3, s25, 0x10001")
        a("s_and_b32 s58, s27, 1")
        a("s_xor_b32 s57, s3, s58")
        a("s_lshr_b32 s47, s25, 2")
        a("s_lshl_b32 s3, s57, 1")
        a("s_add_u32 s47, s47, s3")
        a("s_lshl_b32 s56, s47, 1")
        a("s_add_u32 s56, s56, s46")
    def setup(self, zero_acc=True):
        a = self.a
        FIN.setup(self, zero_acc)
        a("s_lshr_b32 s3, s27, 1")
        a("s_lshl_b32 s3, s3, 2")
        a("s_and_b32 s45, s25, 3")
        a("s_add_u32 s3, s3, s45")
        a("s_mul_i32 s40, s3, 98304")
        a("s_mul_i32 s3, s58, 49152")
        a("s_add_u32 s40, s40, s3")
        a("s_lshl_b32 s3, s48, 11")
        a("s_add_u32 s40, s40, s3")
        a(f"s_add_u32 s40, s40, {WS_H}")
        a(f"s_mul_i32 s3, s58, {768*1280}")
        a("s_add_u32 s41, s41, s3")
        a("s_mul_i32 s3, s57, 10240")
        a(f"v_subrev_u32 v{self.TD}, s3, v{self.TD}")
        a("s_and_b32 s3, s56, 3")
        a("s_mul_i32 s59, s3, 5120")
        a("s_and_b32 s3, s2, 255")
        a("s_mul_i32 s3, s3, 20480")
        a("s_add_u32 s59, s59, s3")
        a(f"s_add_u32 s59, s59, {WS_EX}")
    def hload(self, m):
        r = self.XF + 8 * (m % 4)
        for th in range(2):
            self.a(f"buffer_load_dwordx4 v[{r+4*th}:{r+4*th+3}], v3, s[32:35], s40 offen offset:{256*th}{cfg.sc}")
            for q in self.q: q.append(("X", m))
        self.a("s_add_u32 s40, s40, 4096")
    def down(self, npre=4):
        a = self.a
        for m in range(2): self.hload(m)
        nw, nh = npre, 2
        TD2 = 15
        a(f"v_add_u32 v{TD2}, 40960, v{self.TD}")
        def reads(i):
            buf = (i // 2 + self.BOFF) % 4
            base = self.TD if buf < 2 else TD2
            self.wreads(self.WF + 20 * (i % 2), base, (buf % 2) * 20480 + (i % 2) * 10240, 1280)
        self.wait2([("W", 0)])
        a("s_barrier")
        stamp(a, 9)
        reads(0)
        for i in range(12):
            if i + 1 < 12:
                if i % 2 == 1:
                    sl = i // 2
                    self.wait2([("W", sl + 1)], "lgkmcnt(0)")
                    a("s_barrier")
                    reads(i + 1)
                    for _ in range(2):
                        if nw <= sl + 4 and nw < 6:
                            self.dma_wd(nw); nw += 1
                    if sl == 3:
                        self.wo_dma((0, 8), 0, 0)
                        for q in self.q: q += [("O", 0)] * 5
                    if sl == 4:
                        self.wo_dma((0, 4), 8, 8)
                        self.q[0] += [("O", 1)] * 5
                    self.wait2([("X", i)])
                else:
                    reads(i + 1)
                    self.wait2([("X", i)], "lgkmcnt(10)")
            else:
                self.wait2([("X", i)], "lgkmcnt(0)")
            self.mfmas(self.WF + 20 * (i % 2), self.XF + 8 * (i % 4))
            for _ in range(2):
                if nh <= i + 4 and nh < 12:
                    self.hload(nh); nh += 1
        stamp(a, 10)
        a("s_cmp_eq_u32 s57, 0")
        a("s_cbranch_scc1 L_fin_keep")
        a("s_add_u32 s3, s59, 4096")
        a("s_nop 4")
        for j in range(20):
            a(f"v_cvt_pk_bf16_f32 v{self.XF+j}, v{self.ACC+2*j}, v{self.ACC+2*j+1}")
            if j % 4 == 3:
                k = j // 4
                so, off = ("s59", 1024 * k) if k < 4 else ("s3", 0)
                a(f"buffer_store_dwordx4 v[{self.XF+4*k}:{self.XF+4*k+3}], v9, s[32:35], {so} offen offset:{off}{cfg.sc}")
        a.label("L_fin_keep")
    def receive(self):
        a = self.a
        a("s_cmp_eq_u32 s57, 0")
        a("s_cbranch_scc1 L_fin_got")
        a("s_bitcmp1_b32 s2, 3")
        a("s_cselect_b32 s3, -8, 8")
        a("s_mul_i32 s3, s3, 20480")
        a("s_add_u32 s59, s59, s3")
        a("s_add_u32 s3, s59, 4096")
        for k in range(5):
            so, off = ("s59", 1024 * k) if k < 4 else ("s3", 0)
            a(f"buffer_load_dwordx4 v[{self.XF+4+4*k}:{self.XF+7+4*k}], v9, s[32:35], {so} offen offset:{off}{cfg.sc}")
        a("s_waitcnt vmcnt(0)")
        for j in range(20):
            a(f"v_lshlrev_b32 v{self.ACC+2*j}, 16, v{self.XF+4+j}")
            a(f"v_and_b32 v{self.ACC+2*j+1}, 0xffff0000, v{self.XF+4+j}")
        a.label("L_fin_got")
```

```python
from common import *
from k_ln import ln_rows
import struct

def f2hex(x):
    return "0x%08x" % struct.unpack("<I", struct.pack("<f", x))[0]

QSCALE = (20 ** -0.5) * 1.4426950408889634
WS_FL = 0x1400000
FSH = int(os.environ.get("FSH", "7"))
F_XN, F_QKV, F_QL, F_H, F_O = WS_FL, WS_FL + 0x10000, WS_FL + 0x20000, WS_FL + 0x30000, WS_FL + 0x40000
QSH = int(os.environ.get("QSH", "7"))
OOB = 0x7ffffff0
WS_ST = 0x1480000

class Cfg:
    fused = False
    sc = ""
cfg = Cfg()

_uid = [0]
def uid(p):
    _uid[0] += 1
    return f"{p}{_uid[0]}"

def publish(a, base, idx_sgpr, t=10, sh=None):
    if not cfg.fused: return
    a(f"s_lshl_b32 s62, s{idx_sgpr}, {FSH if sh is None else sh}")
    a(f"s_add_u32 s62, s62, {base}")
    a("v_mov_b32 v0, 0")
    a(f"v_mov_b32 v{t}, s60")
    a(f"v_mov_b32 v{t+1}, s61")
    a("s_mov_b64 exec, 1")
    a(f"buffer_store_dwordx2 v[{t}:{t+1}], v0, s[32:35], s62 offen sc1")
    a("s_mov_b64 exec, -1")

def poll(a, vaddr, t=10, sleep=2, single=False, sleep2=1, direct=False, t2=None):
    if not cfg.fused: return
    L = uid("L_poll")
    a("s_mov_b32 s83, 0x40000")
    if not direct:
        a("s_mov_b64 exec, 1")
        a.label(L)
        a(f"buffer_load_dwordx2 v[{t}:{t+1}], v{vaddr}, s[32:35], 0 offen sc1")
        a("s_waitcnt vmcnt(0)")
        a(f"v_cmp_ne_u64 vcc, s[60:61], v[{t}:{t+1}]")
        a(f"s_cbranch_vccz {L}_1")
        a(f"s_sleep {sleep}")
        a("s_sub_u32 s83, s83, 1")
        a(f"s_cbranch_scc0 {L}")
        a.label(L + "_1")
    if not single and t2 is not None:
        if not direct: a("s_mov_b64 exec, -2")
        a(f"buffer_load_dwordx2 v[{t}:{t+1}], v{vaddr}, s[32:35], 0 offen sc1")
        a.label(L + "_2")
        for x, y in ((t, t2), (t2, t)):
            a(f"s_sleep {int(os.environ.get('PSL', '5'))}")
            a(f"buffer_load_dwordx2 v[{y}:{y+1}], v{vaddr}, s[32:35], 0 offen sc1")
            a("s_waitcnt vmcnt(1)")
            a(f"v_cmp_ne_u64 vcc, s[60:61], v[{x}:{x+1}]")
            a(f"s_cbranch_vccz {L}_ok")
            a("s_mov_b64 exec, vcc")
        a("s_sub_u32 s83, s83, 1")
        a(f"s_cbranch_scc0 {L}_2")
        a.label(L + "_ok")
        a("s_mov_b64 exec, -1")
        return
    if not single:
        if not direct: a("s_mov_b64 exec, -2")
        a.label(L + "_2")
        a(f"buffer_load_dwordx2 v[{t}:{t+1}], v{vaddr}, s[32:35], 0 offen sc1")
        a("s_waitcnt vmcnt(0)")
        a(f"v_cmp_ne_u64 vcc, s[60:61], v[{t}:{t+1}]")
        a(f"s_cbranch_vccz {L}_ok")
        a("s_mov_b64 exec, vcc")
        a(f"s_sleep {sleep2}")
        a("s_sub_u32 s83, s83, 1")
        a(f"s_cbranch_scc0 {L}_2")
        a.label(L + "_ok")
    a("s_mov_b64 exec, -1")

LNWG = ["s2"]
GU16ON = int(os.environ.get("GU16", "1"))
XSWAP = GU16ON and int(os.environ.get("XSWAP", "0"))
def ln_issue(a):
    a(f"s_lshl_b32 s3, {LNWG[0]}, 3")
    a("v_lshrrev_b32 v3, 4, v0")
    a("v_add_u32 v3, s3, v3")
    a("v_mul_u32_u24 v3, 1280, v3")
    a("v_and_b32 v4, 15, v0")
    a("v_lshl_add_u32 v3, v4, 4, v3")
    srd(a, 36, S_X, 2621440)
    for i in range(5):
        a(f"buffer_load_dwordx4 v[{16+4*i}:{19+4*i}], v3, s[36:39], 0 offen offset:{256*i}")

def ln_addr(a):
    a("v_and_b32 v4, 3, v2")
    a("v_lshrrev_b32 v5, 2, v2")
    a("v_lshl_add_u32 v6, v4, 4, v5")
    a("v_lshlrev_b32 v6, 2, v6")
    a(f"s_lshl_b32 s3, {LNWG[0]}, 3")
    a("s_lshl_b32 s26, s25, 2")
    a("s_add_u32 s3, s3, s26")
    a("s_lshr_b32 s26, s3, 5")
    a("s_mul_i32 s26, s26, 40960")
    a("s_and_b32 s3, s3, 31")
    a("s_lshl_b32 s3, s3, 4")
    a("s_add_u32 s26, s26, s3")
    a("v_lshrrev_b32 v7, 1, v5")
    a("v_lshlrev_b32 v7, 10, v7")
    a("v_and_b32 v5, 1, v5")
    a("v_lshl_add_u32 v7, v5, 9, v7")
    a("v_lshl_add_u32 v7, v4, 4, v7")
    a("v_add_u32 v7, s26, v7")
    for i in range(5):
        a(f"s_mov_b32 s{40+i}, {WS_XN + 8192*i}")

def ln_body(a):
    if os.environ.get("LNFAST", "1") == "1":
        def bp(c):
            for i in range(4 * c, 4 * c + 4):
                a(f"ds_bpermute_b32 v{92+i}, v6, v{16+i}")
        ln_rows(a, 16, 40, 80, None, None, after=bp)
        return
    ln_rows(a, 16, 40, 80, None, None)
    for i in range(20):
        a(f"ds_bpermute_b32 v{92+i}, v6, v{16+i}")

def ln_finish(a):
    ln_addr(a)
    a("s_waitcnt vmcnt(0)")
    stamp(a, 1)
    ln_body(a)
    ln_store(a)

def ln_stats(a):
    a(f"s_lshl_b32 s3, {LNWG[0]}, 3")
    a("s_lshl_b32 s45, s25, 2")
    a("s_add_u32 s3, s3, s45")
    a("s_lshr_b32 s45, s3, 7")
    a("s_lshl_b32 s45, s45, 10")
    a("s_and_b32 s3, s3, 127")
    a("s_lshl_b32 s3, s3, 2")
    a("s_add_u32 s45, s45, s3")
    a(f"s_add_u32 s45, s45, {WS_ST}")
    a("v_lshrrev_b32 v4, 4, v2")
    a("v_lshlrev_b32 v4, 2, v4")
    a("s_mov_b32 exec_lo, 0x00010001")
    a("s_mov_b32 exec_hi, 0x00010001")
    a(f"buffer_store_dword v84, v4, s[32:35], s45 offen{cfg.sc}")
    a(f"buffer_store_dword v80, v4, s[32:35], s45 offen offset:512{cfg.sc}")
    a("s_mov_b64 exec, -1")

def ln_store(a):
    if XSWAP:
        a("v_and_b32 v4, 4, v2")
        a("v_cmp_ne_u32 vcc, 0, v4")
    for i in range(5):
        a(f"s_waitcnt lgkmcnt({min(15, 16-4*i)})")
        r = 92 + 4 * i
        if XSWAP:
            if i == 0: a("s_nop 0")
            for j in range(4):
                a(f"v_cndmask_b32 v{60+4*i+j}, v{r+j}, v{r+(j^2)}, vcc")
            r = 60 + 4 * i
        a(f"buffer_store_dwordx4 v[{r}:{r+3}], v7, s[32:35], s{40+i} offen{cfg.sc}")

qkv_hook = None
attn_hook = None
attn_hook0 = None
def qkv_decode(a):
    a("s_and_b32 s24, s2, 7")
    a("s_lshr_b32 s26, s2, 3")
    LM = int(os.environ.get("QMAP", "2"))
    a(f"s_lshr_b32 s27, s24, {LM}")
    a(f"s_lshl_b32 s27, s27, {LM}")
    a(f"s_and_b32 s24, s24, {(1 << LM) - 1}")
    a("s_mul_i32 s24, s24, 30")
    a("s_add_u32 s24, s24, s26")
    a(f"s_and_b32 s3, s24, {(1 << LM) - 1}")
    a("s_add_u32 s27, s27, s3")
    a(f"s_lshr_b32 s47, s24, {LM}")
    a("s_lshl_b32 s46, s47, 3")
    a("s_add_u32 s46, s46, s27")
    a("s_lshl_b32 s26, s27, 3")
    a("s_add_u32 s26, s26, s25")
    a("s_cmp_ge_u32 s47, 10")
    a("s_cselect_b32 s24, 1, 0")
    a("s_cmp_ge_u32 s47, 20")
    a("s_cselect_b32 s24, 2, s24")
    a("s_mul_i32 s3, s24, 10")
    a("s_sub_u32 s27, s47, s3")

def qkv_wdma(a, j0=0, j1=20, setup=True):
    if not setup:
        for j in range(j0, j1):
            a(f"s_add_u32 m0, s42, {4096*j}")
            a(f"s_add_u32 s3, s41, {4*30720*j}")
            a("buffer_load_dwordx4 v4, s[28:31], s3 offen lds")
        return
    srd(a, 28, S_WQKV, 2457600)
    a("v_lshrrev_b32 v4, 3, v2")
    a("v_bfe_u32 v5, v2, 2, 1")
    a("v_bfe_u32 v6, v2, 4, 1")
    a("v_xor_b32 v5, v5, v6")
    a("v_lshlrev_b32 v5, 6, v5")
    a("v_and_b32 v6, 3, v2")
    a("v_lshl_add_u32 v5, v6, 4, v5")
    a("s_movk_i32 s3, 3840")
    a("v_mad_u32_u24 v4, v4, s3, v5")
    a("s_sub_u32 s3, s25, 4")
    a("s_lshl_b32 s41, s47, 7")
    a("s_mul_i32 s42, s3, 30720")
    a("s_add_u32 s41, s41, s42")
    a("s_lshl_b32 s42, s3, 10")
    for j in range(j0, j1):
        a(f"s_add_u32 m0, s42, {4096*j}")
        a(f"s_add_u32 s3, s41, {4*30720*j}")
        a("buffer_load_dwordx4 v4, s[28:31], s3 offen lds")

def qkv_uaddr(a, T0, T1, U0, U1):
    if XSWAP:
        a(f"v_lshl_add_u32 v{T0}, v7, 9, v{T0}")
    a(f"v_xor_b32 v{T1}, 64, v{T0}")
    a(f"v_xor_b32 v{U0}, 512, v{T0}")
    a(f"v_xor_b32 v{U1}, 512, v{T1}")

def qkv_main(a, gate=None):
    ACC, XF, WF, AD = 16, 48, 96, 112
    XD = 12
    T0, T1, U0, U1 = 4, 5, 124, 125
    vm = VM(a)
    a("s_mul_i32 s40, s26, 40960")
    a(f"s_add_u32 s40, s40, {WS_XN}")
    def xload(s):
        r = XF + 4 * (s % XD)
        vm.issue(f"buffer_load_dwordx4 v[{r}:{r+3}], v9, s[32:35], s40 offen offset:{1024*(s%4)}{cfg.sc}", ("X", s))
        if s % 4 == 3:
            if ROT and s < 39:
                a("s_add_u32 s55, s55, 1")
                a("s_cmp_eq_u32 s55, 10")
                a("s_cselect_b32 s3, 40960, 0")
                a("s_sub_u32 s40, s40, s3")
            a("s_add_u32 s40, s40, 4096")
    X0 = int(os.environ.get("QX0", "4"))
    ROT = int(os.environ.get("ROT", "0"))
    if ROT:
        a(f"s_mul_i32 s55, s47, {ROT}")
        a("s_mul_i32 s3, s55, 205")
        a("s_lshr_b32 s3, s3, 11")
        a("s_mul_i32 s3, s3, 10")
        a("s_sub_u32 s55, s55, s3")
        a("s_mov_b32 s58, s55")
        a("s_lshl_b32 s3, s55, 12")
        a("s_add_u32 s40, s40, s3")
    a("v_bfe_u32 v6, v2, 2, 2")
    a("v_lshrrev_b32 v7, 5, v2")
    a("v_lshl_add_u32 v8, v7, 3, v6")
    a("v_lshlrev_b32 v8, 7, v8")
    a("v_bfe_u32 v10, v2, 4, 1")
    a("v_lshl_add_u32 v8, v10, 5, v8")
    a("v_lshrrev_b32 v6, 1, v6")
    a("v_lshl_add_u32 v8, v6, 6, v8")
    if ROT:
        a("s_lshl_b32 s3, s55, 13")
        a("v_add_u32 v8, s3, v8")
    a("v_and_b32 v10, 31, v2")
    for i in range(32):
        a(f"v_mov_b32 v{ACC+i}, 0")
    a("s_cmp_eq_u32 s24, 2")
    a("s_cbranch_scc1 L_qkv_V")
    a("v_and_b32 v11, 1, v2")
    a("v_lshlrev_b32 v11, 4, v11")
    a("v_bfe_u32 v12, v2, 1, 1")
    a("v_lshl_add_u32 v11, v12, 3, v11")
    a(f"v_add_u32 v{T0}, v8, v11")
    qkv_uaddr(a, T0, T1, U0, U1)
    a("s_lshl_b32 s45, s26, 10")
    a(f"s_add_u32 s45, s45, {WS_QM}")
    a("s_lshl_b32 s43, s26, 8")
    a(f"s_add_u32 s43, s43, {WS_QR}")
    a("s_mov_b32 s44, 65536")
    a("s_mov_b32 s42, 16384")
    a(f"s_mov_b32 s48, {f2hex(QSCALE)}")
    a("s_cmp_eq_u32 s24, 0")
    a("s_cbranch_scc1 L_qkv_isq")
    a("s_mul_i32 s45, s26, 2560")
    a(f"s_add_u32 s45, s45, {WS_KV}")
    a("s_add_u32 s43, s45, 1024")
    a("s_mov_b32 s44, 163840")
    a("s_mov_b32 s42, 163840")
    a("s_mov_b32 s48, 1.0")
    a.label("L_qkv_isq")
    a("s_mov_b32 s49, s48")
    a("s_lshl_b32 s3, s27, 3")
    a("v_add_u32 v11, s3, v7")
    a("v_lshl_add_u32 v12, v10, 4, s45")
    a("v_lshl_add_u32 v13, v10, 3, s43")
    a(f"s_mov_b32 s50, {OOB}")
    a("s_mov_b32 s51, 0")
    REM16 = int(os.environ.get("REM16", "1")) and not (PROFILE or DBGOUT)
    if REM16:
        a("s_mov_b32 s80, 0x55555555")
        a("s_mov_b32 s81, 0x55555555")
    for q in range(4):
        a(f"v_add_u32 v14, {2*q}, v11")
        a("v_mul_u32_u24 v15, 205, v14")
        a("v_lshrrev_b32 v15, 10, v15")
        a("v_mul_u32_u24 v3, 5, v15")
        a("v_sub_u32 v14, v14, v3")
        a("v_lshlrev_b32 v15, 1, v15")
        a("v_mul_lo_u32 v3, v15, s42")
        a(f"v_add_u32 v{AD+3*q+1}, v3, v13")
        a(f"v_add_u32 v{AD+3*q+2}, s42, v{AD+3*q+1}")
        a("v_cmp_lt_u32 vcc, 2, v14")
        a("v_subrev_u32 v3, 3, v14")
        a("s_nop 0")
        a("v_addc_co_u32 v15, s[52:53], 0, v15, vcc")
        a("v_cndmask_b32 v3, v14, v3, vcc")
        a("v_mul_lo_u32 v15, v15, s44")
        a("v_lshl_add_u32 v3, v3, 9, v12")
        a("v_add_u32 v3, v3, v15")
        a("v_cmp_eq_u32 vcc, 2, v14")
        a("v_mov_b32 v15, s50")
        a("s_cmp_lg_u64 vcc, 0")
        a(f"s_cselect_b32 s3, {1 << q}, 0")
        a("s_or_b32 s51, s51, s3")
        if REM16:
            a(f"s_and_b64 s[{64+4*q}:{65+4*q}], vcc, s[80:81]")
            a(f"s_andn2_b64 s[{66+4*q}:{67+4*q}], vcc, s[80:81]")
            a(f"v_subrev_u32 v15, 8, v{AD+3*q+2}")
            a(f"v_cndmask_b32 v{AD+3*q}, v3, v{AD+3*q+1}, s[{64+4*q}:{65+4*q}]")
            a(f"v_cndmask_b32 v{AD+3*q}, v{AD+3*q}, v15, s[{66+4*q}:{67+4*q}]")
            continue
        a(f"v_cndmask_b32 v{AD+3*q}, v3, v15, vcc")
        a(f"v_cndmask_b32 v{AD+3*q+1}, v15, v{AD+3*q+1}, vcc")
        a(f"v_cndmask_b32 v{AD+3*q+2}, v15, v{AD+3*q+2}, vcc")
    def loop(vtype):
        vq = list(vm.q)
        if gate: gate()
        for s in range(X0): xload(s)
        def reads(s):
            w = WF + 8 * (s % 2)
            if ROT and s % 4 == 0 and s:
                a("s_add_u32 s58, s58, 1")
                a("s_cmp_eq_u32 s58, 10")
                a("s_cselect_b32 s3, 81920, 0")
                a("s_sub_u32 s3, 8192, s3")
                for r in (T0, T1, U0, U1):
                    a(f"v_add_u32 v{r}, s3, v{r}")
            if s == 32 and not ROT:
                for r in (T0, T1, U0, U1):
                    a(f"v_add_u32 v{r}, 0x10000, v{r}")
            for ft in range(2):
                for u in range(2):
                    off = (16 * (s % 4) * 128) if ROT else (16 * s * 128) % 65536
                    a(f"ds_read_b64_tr_b16 v[{w+4*ft+2*u}:{w+4*ft+2*u+1}], v{(U0 if u else T0)+ft} offset:{off}")
        reads(0)
        nx = X0
        for s in range(40):
            if s + 1 < 40:
                reads(s + 1)
                vm.wait(lambda t: t == ("X", s), "lgkmcnt(4)")
            else:
                vm.wait(lambda t: t == ("X", s), "lgkmcnt(0)")
            if s == 0 and not os.environ.get('LNSTAMP'): stamp(a, 5)
            if str(s) in os.environ.get("QBAR", "").split(","): a("s_barrier")
            w = WF + 8 * (s % 2); x = XF + 4 * (s % XD)
            for ft in range(2):
                W = f"v[{w+4*ft}:{w+4*ft+3}]"; X = f"v[{x}:{x+3}]"
                A, B = (X, W) if vtype else (W, X)
                D = f"v[{ACC+16*ft}:{ACC+16*ft+15}]"
                if "q16" in os.environ.get("ABL", ""):
                    for q in range(2):
                        d = ACC + 16 * ft + 8 * q + 4 * (s % 2)
                        a(f"v_mfma_f32_16x16x32_bf16 v[{d}:{d+3}], {A}, {B}, v[{d}:{d+3}]")
                elif "q0" in os.environ.get("ABL", ""):
                    pass
                else:
                    a(f"v_mfma_f32_32x32x16_bf16 {D}, {A}, {B}, {D}")
            for _ in range(2):
                if nx <= s + XD and nx < 40:
                    xload(nx); nx += 1
        vm.q = vq
        stamp(a, 6)
        if qkv_hook: qkv_hook()
    loop(False)
    a("s_nop 10")
    for q in range(4):
        r = ACC + 8 * q
        for i in range(0, 8, 2):
            a(f"v_pk_mul_f32 v[{r+i}:{r+i+1}], v[{r+i}:{r+i+1}], s[48:49]")
        for i in range(4):
            a(f"v_cvt_pk_bf16_f32 v{r+i}, v{r+2*i}, v{r+2*i+1}")
        if REM16:
            L = uid("L_qr")
            a(f"s_bitcmp0_b32 s51, {q}")
            a(f"s_cbranch_scc1 {L}")
            a("s_nop 0")
            for i in range(4):
                a(f"v_mov_b32_dpp v{r+4+i}, v{r+i} quad_perm:[1,0,3,2] row_mask:0xf bank_mask:0xf")
            a(f"v_cndmask_b32 v{r+2}, v{r+2}, v{r+4}, s[{64+4*q}:{65+4*q}]")
            a(f"v_cndmask_b32 v{r+3}, v{r+3}, v{r+5}, s[{64+4*q}:{65+4*q}]")
            a(f"v_cndmask_b32 v{r}, v{r}, v{r+6}, s[{66+4*q}:{67+4*q}]")
            a(f"v_cndmask_b32 v{r+1}, v{r+1}, v{r+7}, s[{66+4*q}:{67+4*q}]")
            a.label(L)
            a(f"buffer_store_dwordx4 v[{r}:{r+3}], v{AD+3*q}, s[32:35], 0 offen{cfg.sc}")
            continue
        a(f"buffer_store_dwordx4 v[{r}:{r+3}], v{AD+3*q}, s[32:35], 0 offen{cfg.sc}")
        L = uid("L_qr")
        a(f"s_bitcmp0_b32 s51, {q}")
        a(f"s_cbranch_scc1 {L}")
        a(f"buffer_store_dwordx2 v[{r}:{r+1}], v{AD+3*q+1}, s[32:35], 0 offen{cfg.sc}")
        a(f"buffer_store_dwordx2 v[{r+2}:{r+3}], v{AD+3*q+2}, s[32:35], 0 offen{cfg.sc}")
        a.label(L)
    a("s_branch L_qkv_done")
    a.label("L_qkv_V")
    a("v_and_b32 v11, 3, v2")
    a(f"v_lshl_add_u32 v{T0}, v11, 3, v8")
    qkv_uaddr(a, T0, T1, U0, U1)
    a("s_mul_i32 s45, s26, 2560")
    a(f"s_add_u32 s45, s45, {WS_KV + 1280}")
    a("s_lshl_b32 s3, s27, 6")
    a("v_add_u32 v10, s3, v10")
    a("v_mul_u32_u24 v11, 320, v7")
    a("v_add_u32 v11, s45, v11")
    a("s_mov_b32 s44, 163840")
    for ft in range(2):
        a(f"v_add_u32 v13, {32*ft}, v10")
        a("v_mul_u32_u24 v14, 3277, v13")
        a("v_lshrrev_b32 v14, 16, v14")
        a("v_mul_u32_u24 v15, 20, v14")
        a("v_sub_u32 v15, v13, v15")
        a("v_lshl_add_u32 v3, v15, 4, v11")
        a("v_mul_lo_u32 v14, v14, s44")
        a(f"v_add_u32 v{AD+ft}, v3, v14")
    loop(True)
    a("s_nop 10")
    for ft in range(2):
        for gm in range(2):
            r = ACC + 16 * ft + 8 * gm
            for i in range(4):
                a(f"v_cvt_pk_bf16_f32 v{r+i}, v{r+2*i}, v{r+2*i+1}")
            a(f"buffer_store_dwordx4 v[{r}:{r+3}], v{AD+ft}, s[32:35], 0 offen offset:{640*gm}{cfg.sc}")
    a.label("L_qkv_done")
    stamp(a, 7)

CHUNK = 20480
NBUF = 3
DELTA = float(os.environ.get('DELTA', '96'))
S0, S1, P, O0, O1, Q0, Q1, KA, KB, VA, VB = 16, 32, 48, 56, 72, 88, 94, 100, 106, 112, 120
AK, AKR, AV = 3, 4, 5

def rowmax16(a, S, d, t):
    a(f"v_max3_f32 v{d}, v{S}, v{S+1}, v{S+2}")
    a(f"v_max3_f32 v{t}, v{S+3}, v{S+4}, v{S+5}")
    a(f"v_max3_f32 v{d}, v{d}, v{S+6}, v{S+7}")
    a(f"v_max3_f32 v{t}, v{t}, v{S+8}, v{S+9}")
    a(f"v_max3_f32 v{d}, v{d}, v{S+10}, v{S+11}")
    a(f"v_max3_f32 v{t}, v{t}, v{S+12}, v{S+13}")
    a(f"v_max3_f32 v{d}, v{d}, v{S+14}, v{S+15}")
    a(f"v_max_f32 v{d}, v{d}, v{t}")
    a(f"v_mov_b32 v{t}, v{d}")
    a("s_nop 1")
    a(f"v_permlane32_swap_b32 v{d}, v{t}")
    a(f"v_max_f32 v{d}, v{d}, v{t}")

def attn_decode(a):
    a("s_and_b32 s24, s2, 7")
    a("s_lshr_b32 s27, s2, 3")
    a("s_lshl_b32 s24, s24, 2")
    a("s_lshr_b32 s3, s27, 3")
    a("s_add_u32 s24, s24, s3")
    a("s_and_b32 s27, s27, 7")

def attn_flag_addr(a, vd):
    a("s_mul_i32 s3, s24, 20")
    a("s_lshr_b32 s26, s3, 6")
    a("s_add_u32 s3, s3, 19")
    a("s_lshr_b32 s3, s3, 6")
    a("s_sub_u32 s3, s3, s26")
    a("v_min_u32 v10, 47, v2")
    a("v_lshrrev_b32 v11, 4, v10")
    a("v_mul_u32_u24 v11, 10, v11")
    a("v_bfe_u32 v12, v10, 3, 1")
    a("v_mul_lo_u32 v12, v12, s3")
    a("v_add3_u32 v11, v11, v12, s26")
    a("v_and_b32 v12, 7, v10")
    a("v_mov_b32 v13, s27")
    a("v_cmp_gt_u32 vcc, 16, v10")
    a("s_nop 1")
    a("v_cndmask_b32 v12, v12, v13, vcc")
    a(f"v_lshl_add_u32 v{vd}, v11, 3, v12")
    a(f"v_lshlrev_b32 v{vd}, {QSH}, v{vd}")
    a(f"v_add_u32 v{vd}, {F_QKV}, v{vd}")

PA = [int(x) for x in os.environ.get("PA", "2,3,1").split(",")]
JLOW = int(os.environ.get("JLOW", "3"))
def attn_main(a, prio=True):
    sc = cfg.sc
    a("s_and_b32 s46, s25, 3")
    a("s_lshr_b32 s47, s25, 2")
    a("s_lshl_b32 s26, s27, 3")
    a("s_lshl_b32 s3, s46, 1")
    a("s_add_u32 s26, s26, s3")
    a("s_lshl_b32 s3, s24, 6")
    a("s_add_u32 s3, s3, s26")
    a("s_lshl_b32 s40, s3, 10")
    a(f"s_add_u32 s40, s40, {WS_QM}")
    a("s_lshl_b32 s41, s3, 8")
    a(f"s_add_u32 s41, s41, {WS_QR}")
    a("s_mul_i32 s42, s24, 163840")
    a(f"s_add_u32 s42, s42, {WS_KV}")
    a("s_mul_i32 s3, s25, 5120")
    a("s_add_u32 s43, s42, s3")
    a("s_mov_b32 s44, s3")
    def dma_chunk():
        a("s_mov_b32 m0, s44")
        a("s_add_u32 s50, s43, 4096")
        for i in range(4):
            off = f" offset:{1024*i}" if i else ""
            a(f"buffer_load_dwordx4 v9, s[32:35], s43 offen{off}{sc} lds")
        a("s_add_u32 m0, s44, 4096")
        a(f"s_add_u32 s43, s43, {CHUNK}")
        a(f"buffer_load_dwordx4 v9, s[32:35], s50 offen{sc} lds")
        a(f"s_add_u32 s44, s44, {CHUNK}")
    a("v_and_b32 v6, 31, v2")
    a(f"v_lshlrev_b32 v{AKR}, 3, v6")
    a(f"buffer_load_dwordx4 v[{Q0}:{Q0+3}], v9, s[32:35], s40 offen{sc}")
    a(f"buffer_load_dwordx4 v[{Q1}:{Q1+3}], v9, s[32:35], s40 offen offset:1024{sc}")
    for r in (Q0 + 4, Q0 + 5, Q1 + 4, Q1 + 5, KA + 5, KB + 5):
        a(f"v_mov_b32 v{r}, 0")
    a("s_mov_b32 exec_hi, 0")
    a(f"buffer_load_dwordx2 v[{Q0+4}:{Q0+5}], v{AKR}, s[32:35], s41 offen{sc}")
    a(f"buffer_load_dwordx2 v[{Q1+4}:{Q1+5}], v{AKR}, s[32:35], s41 offen offset:256{sc}")
    a("s_mov_b32 exec_hi, -1")
    a("s_cmp_ge_u32 s25, 4")
    a("s_cbranch_scc1 L_at_nodma0")
    dma_chunk()
    dma_chunk()
    dma_chunk()
    a(f"s_sub_u32 s44, s44, {NBUF*CHUNK}")
    a.label("L_at_nodma0")
    if attn_hook0: attn_hook0()
    a("v_lshrrev_b32 v7, 5, v2")
    a(f"v_mul_u32_u24 v{AV}, 320, v7")
    a(f"v_lshl_add_u32 v{AV}, v6, 4, v{AV}")
    a("s_mov_b32 s30, 0x000fffff")
    a("s_mov_b32 s31, 0x000fffff")
    a(f"v_mov_b32 v{KA+4}, 0x3f80")
    a(f"v_mov_b32 v{KB+4}, 0x3f80")
    a("v_cmp_eq_u32 vcc, 20, v6")
    a("v_mov_b32 v8, 0x3f803f80")
    a("s_nop 0")
    a("v_cndmask_b32 v8, 0, v8, vcc")
    for i in range(16):
        a(f"v_mov_b32 v{VA+i}, v8")
    for i in range(4, 8):
        a(f"v_mov_b32 v{P+i}, 0")
    a("s_cmp_ge_u32 s25, 4")
    a("s_cbranch_scc1 L_at_w0")
    a("s_waitcnt vmcnt(10)")
    a("s_branch L_at_w1")
    a.label("L_at_w0")
    a("s_waitcnt vmcnt(0)")
    a.label("L_at_w1")
    a("s_barrier")
    if not os.environ.get("LNSTAMP"): stamp(a, 10)
    if attn_hook: attn_hook()
    a("s_mul_i32 s3, s47, 10240")
    a("s_xor_b32 s50, s3, 10240")
    a("v_add_u32 v10, s50, v9")
    a(f"v_add_u32 v11, s50, v{AKR}")
    a(f"v_add_u32 v{AK}, s3, v9")
    a(f"v_add_u32 v{AKR}, s3, v{AKR}")
    a(f"v_add_u32 v{AV}, s3, v{AV}")
    a(f"ds_read_b128 v[{KB}:{KB+3}], v10")
    a(f"ds_read_b128 v[{KA}:{KA+3}], v{AK}")
    a("s_mov_b32 exec_hi, 0")
    a(f"ds_read_b64 v[{KB+4}:{KB+5}], v11 offset:1024")
    a(f"ds_read_b64 v[{KA+4}:{KA+5}], v{AKR} offset:1024")
    a("s_mov_b64 exec, s[30:31]")
    a(f"ds_read_b128 v[{VA}:{VA+3}], v{AV} offset:1280")
    a(f"ds_read_b128 v[{VA+4}:{VA+7}], v{AV} offset:1920")
    a("s_mov_b64 exec, -1")
    a("s_waitcnt lgkmcnt(2)")
    def qk(S, K, Q):
        return (f"v_mfma_f32_32x32x16_bf16 v[{S}:{S+15}], v[{K}:{K+3}], v[{Q}:{Q+3}], 0",
                f"v_mfma_f32_32x32x8_bf16 v[{S}:{S+15}], v[{K+4}:{K+5}], v[{Q+4}:{Q+5}], v[{S}:{S+15}]")
    for x in qk(S0, KB, Q0) + qk(S1, KA, Q0) + qk(O0, KB, Q1) + qk(O1, KA, Q1): a(x)
    a("s_nop 4")
    def max32(Sa, d, t):
        a(f"v_max3_f32 v{d}, v{Sa}, v{Sa+1}, v{Sa+2}")
        a(f"v_max3_f32 v{t}, v{Sa+3}, v{Sa+4}, v{Sa+5}")
        k = 0
        for i in range(6, 32, 2):
            r = d if k % 2 == 0 else t
            a(f"v_max3_f32 v{r}, v{r}, v{Sa+i}, v{Sa+i+1}")
            k += 1
        a(f"v_max_f32 v{d}, v{d}, v{t}")
        a(f"v_mov_b32 v{t}, v{d}")
        a("s_nop 1")
        a(f"v_permlane32_swap_b32 v{d}, v{t}")
        a(f"v_max_f32 v{d}, v{d}, v{t}")
        a(f"v_add_f32 v{d}, {f2hex(DELTA)}, v{d}")
        a(f"v_sub_f32 v{d}, 0, v{d}")
        a(f"v_cvt_pk_bf16_f32 v{d}, v{d}, 0")
    a("v_cmp_lt_u32 vcc, 31, v2")
    max32(S0, 10, 11)
    a(f"v_cndmask_b32 v{Q0+4}, v{Q0+4}, v10, vcc")
    max32(O0, 12, 13)
    for x in qk(S0, KA, Q0): a(x)
    a(f"v_cndmask_b32 v{Q1+4}, v{Q1+4}, v12, vcc")
    for i in range(32):
        a(f"v_mov_b32 v{O0+i}, 0")
    a("s_waitcnt lgkmcnt(0)")
    a("s_mov_b32 s45, 8")
    a(f"s_mov_b32 s48, {CHUNK}")
    a("s_mov_b32 s49, 0")
    a(".p2align 6")
    a.label("L_at_loop")
    if PROFILE:
        a("s_memtime s[84:85]")
        a("s_memrealtime s[86:87]")
        a("s_waitcnt lgkmcnt(0)")
        a("s_sub_u32 m0, 8, s45")
        a("s_nop 0")
        a("v_writelane_b32 v15, s84, m0")
        a("s_add_u32 m0, m0, 8")
        a("s_nop 0")
        a("v_writelane_b32 v15, s86, m0")
    def half(Sc, qks, pvp, pv1, mid=()):
        e = lambda i: f"v_exp_f32 v{Sc+i}, v{Sc+i}"
        c = lambda i: f"v_cvt_pk_bf16_f32 v{P+i}, v{Sc+2*i}, v{Sc+2*i+1}"
        seq = [qks[0], e(0), e(1), e(2), e(3), c(0), c(1), pvp] + list(mid) + [e(4), e(5), e(6), e(7), c(2), c(3), qks[1],
               e(8), e(9), e(10), e(11), e(12), pv1, e(13), e(14), e(15), c(4), c(5), c(6), c(7)]
        ORD = os.environ.get("ORD", "0")
        if ORD == "1":
            seq = [qks[0], e(0), e(1), e(2), e(3), pvp] + list(mid) + [e(4), c(0), e(5), c(1), e(6), e(7), qks[1], e(8), c(2), c(3), e(9), e(10),
                   e(11), pv1, e(12), c(4), e(13), c(5), e(14), e(15), c(6), c(7)]
        if ORD == "2":
            seq = [e(0), qks[0], e(1), e(2), e(3), c(0), e(4), pvp, c(1)] + list(mid) + [e(5), e(6), e(7), c(2), e(8), qks[1], c(3), e(9), e(10),
                   e(11), c(4), e(12), pv1, c(5), e(13), e(14), e(15), c(6), c(7)]
        if ORD == "3":
            seq = [qks[0]] + [e(i) for i in range(4)] + [pvp] + list(mid) + [e(i) for i in range(4, 8)] + [qks[1], c(0), c(1), c(2), c(3), e(8), e(9), pv1] + \
                  [e(i) for i in range(10, 16)] + [c(4), c(5), c(6), c(7)]
        if "noqk2" in os.environ.get("ABL", ""): seq = [x for x in seq if x != qks[1]]
        if "nokv" in os.environ.get("ABL", ""): seq = [x for x in seq if not x.startswith("ds_read")]
        if "nopv" in os.environ.get("ABL", ""): seq = [x for x in seq if x not in (pvp, pv1)]
        for x in seq: a(x)
    def pv(Oo, V, Pp):
        return f"v_mfma_f32_32x32x16_bf16 v[{Oo}:{Oo+15}], v[{V}:{V+3}], v[{Pp}:{Pp+3}], v[{Oo}:{Oo+15}]"
    for j in range(4):
        Kc, Kn = (KA, KB) if j % 2 == 0 else (KB, KA)
        Vc, Vn = (VA, VB) if j % 2 == 0 else (VB, VA)
        if j == 0 and prio:
            a("s_cmp_ge_u32 s25, 4")
            a("s_cbranch_scc1 L_at_y0")
            a(f"s_setprio {PA[0]}")
            a("s_branch L_at_y1")
            a.label("L_at_y0")
            a(f"s_setprio {PA[1]}")
            a.label("L_at_y1")
        if j == JLOW and JLOW != 3 and prio:
            a("s_cmp_lt_u32 s25, 4")
            a("s_cbranch_scc1 L_at_z")
            a(f"s_setprio {PA[2]}")
            a.label("L_at_z")
        if j == 3:
            a("s_cmp_eq_u32 s45, 8")
            a("s_cbranch_scc1 L_at_first")
            a("s_waitcnt vmcnt(0)")
            a.label("L_at_first")
            a("s_waitcnt vmcnt(5)")
            a("s_barrier")
            a("s_sub_u32 s3, s48, s49")
            a(f"v_add_u32 v{AK}, s3, v{AK}")
            a(f"v_add_u32 v{AKR}, s3, v{AKR}")
            a(f"v_add_u32 v{AV}, s3, v{AV}")
            a("s_mov_b32 s49, s48")
            a(f"s_add_u32 s48, s48, {CHUNK}")
            a(f"s_cmp_ge_u32 s48, {NBUF*CHUNK}")
            a("s_cselect_b32 s48, 0, s48")
            a("s_cmp_ge_u32 s25, 4")
            a("s_cbranch_scc1 L_at_young")
            a("s_sub_u32 s50, s45, 3")
            a("s_cmp_ge_u32 s50, 5")
            a("s_cbranch_scc1 L_at_nodma1")
            dma_chunk()
            a(f"s_cmp_ge_u32 s44, {NBUF*CHUNK}")
            a(f"s_cselect_b32 s50, {NBUF*CHUNK}, 0")
            a("s_sub_u32 s44, s44, s50")
            a("s_branch L_at_nodma1")
            a.label("L_at_young")
            if prio and JLOW == 3: a(f"s_setprio {PA[2]}")
            a.label("L_at_nodma1")
        o = 2560 * ((j + 1) % 4)
        rd = [f"ds_read_b128 v[{Kn}:{Kn+3}], v{AK} offset:{o}",
              "s_mov_b32 exec_hi, 0",
              f"ds_read_b64 v[{Kn+4}:{Kn+5}], v{AKR} offset:{o+1024}",
              "s_mov_b64 exec, s[30:31]",
              f"ds_read_b128 v[{Vn}:{Vn+3}], v{AV} offset:{o+1280}",
              f"ds_read_b128 v[{Vn+4}:{Vn+7}], v{AV} offset:{o+1920}",
              "s_mov_b64 exec, -1"]
        half(S0, qk(S1, Kc, Q1), pv(O1, Vn + 4, P + 4), pv(O0, Vc, P), rd)
        a("s_waitcnt lgkmcnt(0)")
        half(S1, qk(S0, Kn, Q0), pv(O0, Vc + 4, P + 4), pv(O1, Vc, P))
    a("s_sub_u32 s45, s45, 1")
    a("s_cmp_lg_u32 s45, 0")
    a("s_cbranch_scc1 L_at_loop")
    a(pv(O1, VB + 4, P + 4))
    if prio: a("s_setprio 3")
    stamp(a, 11)
    a("s_lshl_b32 s3, s46, 12")
    a("v_add_u32 v6, s3, v9")
    a(f"v_add_u32 v7, {NBUF*CHUNK}, v6")
    a("s_cmp_eq_u32 s47, 0")
    a("s_cbranch_scc1 L_at_x0")
    for i in range(3):
        a(f"ds_write_b128 v7, v[{O0+4*i}:{O0+4*i+3}] offset:{1024*i}")
    a("v_mov_b32 v7, v6")
    for i in range(6):
        a(f"v_mov_b32 v{Q0+i}, v{Q1+i}")
    a("s_nop 0")
    for i in range(12):
        a(f"v_mov_b32 v{O0+i}, v{O1+i}")
    a("s_branch L_at_x1")
    a.label("L_at_x0")
    a("s_nop 6")
    for i in range(3):
        a(f"ds_write_b128 v6, v[{O1+4*i}:{O1+4*i+3}] offset:{1024*i}")
    a.label("L_at_x1")
    a("s_add_u32 s26, s26, s47")
    a("s_waitcnt lgkmcnt(0)")
    if os.environ.get("TAILSTAMP"): stamp(a, 1)
    a("s_barrier")
    if os.environ.get("TAILSTAMP"): stamp(a, 2)
    for i in range(3):
        a(f"ds_read_b128 v[{S1+4*i}:{S1+4*i+3}], v7 offset:{1024*i}")
    a("s_mov_b32 s51, 0")
    a(f"s_mov_b32 s54, {f2hex(2.0**-(DELTA + 4))}")
    a(f"s_mov_b32 s55, {f2hex(2.0**122)}")
    a("s_mov_b32 s58, 0x7f800000")
    a("s_waitcnt lgkmcnt(0)")
    for i in range(0, 12, 2):
        a(f"v_pk_add_f32 v[{O0+i}:{O0+i+1}], v[{O0+i}:{O0+i+1}], v[{S1+i}:{S1+i+1}]")
    a.label("L_at_fin")
    a(f"v_mov_b32 v8, v{O0+8}")
    a(f"v_mov_b32 v10, v{O0+8}")
    a("s_nop 1")
    a("v_permlane32_swap_b32 v8, v10")
    a("v_rcp_f32 v11, v10")
    a("s_nop 0")
    for i in range(12):
        a(f"v_mul_f32 v{S0+i}, v11, v{O0+i}")
    a.label("L_at_store")
    if os.environ.get("TAILSTAMP"): stamp(a, 3)
    for i in range(6):
        a(f"v_cvt_pk_bf16_f32 v{P+i}, v{S0+2*i}, v{S0+2*i+1}")
    a("s_mul_i32 s3, s26, 40")
    a("s_add_u32 s50, s3, s24")
    a("s_lshl_b32 s50, s50, 10")
    a(f"s_add_u32 s50, s50, {WS_O}")
    a(f"buffer_store_dwordx4 v[{P}:{P+3}], v9, s[32:35], s50 offen{sc}")
    a("s_lshr_b32 s50, s24, 2")
    a("s_add_u32 s50, s50, s3")
    a("s_add_u32 s50, s50, 32")
    a("s_lshl_b32 s50, s50, 10")
    a("s_and_b32 s3, s24, 1")
    a("s_lshl_b32 s3, s3, 9")
    a("s_add_u32 s50, s50, s3")
    a("s_bfe_u32 s3, s24, 0x10001")
    a("s_lshl_b32 s3, s3, 3")
    a("s_add_u32 s50, s50, s3")
    a(f"s_add_u32 s50, s50, {WS_O}")
    a("s_mov_b32 exec_hi, 0")
    a(f"buffer_store_dwordx2 v[{P+4}:{P+5}], v9, s[32:35], s50 offen{sc}")
    a("s_mov_b32 exec_hi, -1")
    if os.environ.get("TAILSTAMP"): stamp(a, 4)
    a("s_cmp_eq_u32 s51, 1")
    a("s_cbranch_scc1 L_at_done")
    a(f"v_add_f32 v12, |v{S0}|, |v{S0+1}|")
    for i in range(2, 8):
        a(f"v_add_f32 v12, |v{S0+i}|, v12")
    a(f"v_add_f32 v13, |v{S0+8}|, |v{S0+9}|")
    a(f"v_add_f32 v13, |v{S0+10}|, v13")
    a(f"v_add_f32 v13, |v{S0+11}|, v13")
    a("v_cmp_gt_u32 vcc, 32, v2")
    a("s_nop 1")
    a("v_cndmask_b32 v13, 0, v13, vcc")
    a("v_add_f32 v12, v12, v13")
    a("v_cmp_gt_f32 s[52:53], v10, s54")
    a("v_cmp_lt_f32 s[56:57], v10, s55")
    a("v_cmp_lt_f32 vcc, v12, s58")
    a("s_and_b64 s[52:53], s[52:53], s[56:57]")
    a("s_and_b64 s[52:53], s[52:53], vcc")
    a("s_cmp_eq_u64 s[52:53], exec")
    if not os.environ.get("ABL", ""): a("s_cbranch_scc0 L_at_slow")
    a("s_branch L_at_done")
    NM = O1
    a.label("L_at_slow")
    a("s_waitcnt vmcnt(0)")
    a("v_and_b32 v6, 31, v2")
    a("v_lshlrev_b32 v4, 3, v6")
    a("v_lshrrev_b32 v7, 5, v2")
    a("v_mul_u32_u24 v5, 320, v7")
    a("v_lshl_add_u32 v5, v6, 4, v5")
    a("v_cmp_gt_u32 vcc, 32, v2")
    a("v_mov_b32 v14, 0xff800000")
    a("s_mov_b32 s50, s42")
    a(f"v_cndmask_b32 v{Q0+4}, 0, v{Q0+4}, vcc")
    a("s_mov_b32 s45, 64")
    a.label("L_at_slow1")
    a(f"buffer_load_dwordx4 v[{KA}:{KA+3}], v9, s[32:35], s50 offen{sc}")
    a(f"buffer_load_dwordx2 v[{KA+4}:{KA+5}], v4, s[32:35], s50 offen offset:1024{sc}")
    a("s_waitcnt vmcnt(0)")
    for x in qk(S0, KA, Q0): a(x)
    a("s_nop 11")
    rowmax16(a, S0, 8, 10)
    a("v_max_f32 v14, v14, v8")
    a("s_add_u32 s50, s50, 2560")
    a("s_sub_u32 s45, s45, 1")
    a("s_cmp_lg_u32 s45, 0")
    a("s_cbranch_scc1 L_at_slow1")
    a("v_sub_f32 v8, 0, v14")
    for i in range(16):
        a(f"v_mov_b32 v{NM+i}, v8")
        a(f"v_mov_b32 v{O0+i}, 0")
    a("s_mov_b32 s50, s42")
    a("s_mov_b32 s45, 64")
    a.label("L_at_slow2")
    a(f"buffer_load_dwordx4 v[{KA}:{KA+3}], v9, s[32:35], s50 offen{sc}")
    a(f"buffer_load_dwordx2 v[{KA+4}:{KA+5}], v4, s[32:35], s50 offen offset:1024{sc}")
    a("s_mov_b64 exec, s[30:31]")
    a(f"buffer_load_dwordx4 v[{VA}:{VA+3}], v5, s[32:35], s50 offen offset:1280{sc}")
    a(f"buffer_load_dwordx4 v[{VA+4}:{VA+7}], v5, s[32:35], s50 offen offset:1920{sc}")
    a("s_mov_b64 exec, -1")
    a("s_waitcnt vmcnt(0)")
    a(f"v_mfma_f32_32x32x16_bf16 v[{S0}:{S0+15}], v[{KA}:{KA+3}], v[{Q0}:{Q0+3}], v[{NM}:{NM+15}]")
    a(f"v_mfma_f32_32x32x8_bf16 v[{S0}:{S0+15}], v[{KA+4}:{KA+5}], v[{Q0+4}:{Q0+5}], v[{S0}:{S0+15}]")
    a("s_nop 11")
    for i in range(16):
        a(f"v_exp_f32 v{S0+i}, v{S0+i}")
    a("s_nop 0")
    for i in range(8):
        a(f"v_cvt_pk_bf16_f32 v{P+i}, v{S0+2*i}, v{S0+2*i+1}")
    a("s_nop 1")
    a(pv(O0, VA, P))
    a(pv(O0, VA + 4, P + 4))
    a("s_add_u32 s50, s50, 2560")
    a("s_sub_u32 s45, s45, 1")
    a("s_cmp_lg_u32 s45, 0")
    a("s_cbranch_scc1 L_at_slow2")
    a("s_mov_b32 s51, 1")
    a("s_nop 10")
    a("s_branch L_at_fin")
    a.label("L_at_done")

GU_BUF = 24832
GU_UP = 12416
def gu_decode(a):
    a("s_sub_u32 s3, s2, 256")
    a("s_and_b32 s24, s3, 7")
    a("s_lshr_b32 s26, s3, 3")
    a("s_lshr_b32 s27, s24, 2")
    a("s_lshl_b32 s27, s27, 2")
    a("s_and_b32 s3, s26, 3")
    a("s_add_u32 s27, s27, s3")
    a("s_and_b32 s24, s24, 3")
    a("s_lshl_b32 s24, s24, 3")
    a("s_lshr_b32 s26, s26, 2")
    a("s_add_u32 s24, s24, s26")
    a("s_lshl_b32 s26, s27, 3")
    a("s_add_u32 s26, s26, s25")

class GU:
    ACC, XF, WF, XD = 16, 64, 96, int(os.environ.get("GXD", "8"))
    def __init__(self, a):
        self.a = a; self.vm = VM(a)
    def setup(self):
        a = self.a
        a("s_mul_i32 s40, s26, 40960")
        a(f"s_add_u32 s40, s40, {WS_XN}")
        a("s_mul_i32 s41, s24, 96")
        a("s_and_b32 s3, s25, 3")
        a("s_mul_i32 s42, s3, 3072")
        a("s_cmp_ge_u32 s25, 4")
        a(f"s_cselect_b32 s43, {GU_UP}, 0")
        a(f"s_cselect_b32 s28, s{S_WU}, s{S_WG}")
        a(f"s_cselect_b32 s29, s{S_WU+1}, s{S_WG+1}")
        a("s_mov_b32 s30, 1966080")
        a("s_mov_b32 s31, 0x00020000")
        a("s_add_u32 s42, s42, s43")
        a("s_mul_i32 s3, s3, 192")
        a("s_movk_i32 s43, 3072")
        for i in range(3):
            a(f"v_add_u32 v8, s3, v2")
            if i: a(f"v_add_u32 v8, {64*i}, v8")
            a("v_mul_u32_u24 v10, 10923, v8")
            a("v_lshrrev_b32 v10, 16, v10")
            a("v_mul_u32_u24 v11, 6, v10")
            a("v_sub_u32 v11, v8, v11")
            a("v_lshlrev_b32 v11, 4, v11")
            if GU16ON and not XSWAP:
                a("v_bfe_u32 v8, v10, 2, 1")
                a("v_bfe_u32 v12, v10, 3, 1")
                a("v_xor_b32 v8, v8, v12")
                a("v_mul_u32_u24 v8, 12, v8")
                a("v_xor_b32 v10, v10, v8")
            a(f"v_mad_u32_u24 v{4+i}, v10, s43, v11")
        a("v_bfe_u32 v8, v2, 2, 2")
        a("v_lshrrev_b32 v10, 5, v2")
        a("v_lshl_add_u32 v8, v10, 3, v8")
        a("v_mul_u32_u24 v8, 96, v8")
        a("v_and_b32 v10, 3, v2")
        a("v_lshl_add_u32 v8, v10, 3, v8")
        a("v_bfe_u32 v10, v2, 4, 1")
        a(f"v_mul_u32_u24 v10, {GU_UP}, v10")
        a("v_add_u32 v7, v8, v10")
        a(f"v_add_u32 v8, {2*GU_BUF}, v7")
        for i in range(48):
            a(f"v_mov_b32 v{self.ACC+i}, 0")
    def dma_stage(self, st):
        a = self.a
        for i in range(3):
            a(f"s_add_u32 m0, s42, {(st % 3) * GU_BUF + 1024 * i}")
            a("s_nop 0")
            self.vm.issue(f"buffer_load_dwordx4 v{4+i}, s[28:31], s41 offen lds", ("W", st))
        a(f"s_add_u32 s41, s41, {128*3072}")
    def xload(self, s):
        r = self.XF + 4 * (s % self.XD)
        self.vm.issue(f"buffer_load_dwordx4 v[{r}:{r+3}], v9, s[32:35], s40 offen offset:{1024*(s%4)}{cfg.sc}", ("X", s))
        if s % 4 == 3: self.a("s_add_u32 s40, s40, 4096")
    def main(self, pre_dma, hook=None):
        a, vm, ACC, XF, WF, XD = self.a, self.vm, self.ACC, self.XF, self.WF, self.XD
        if pre_dma < 1: self.dma_stage(0)
        G0 = int(os.environ.get("G0", "4"))
        for s in range(G0): self.xload(s)
        a("s_barrier")
        for s in range(G0, XD): self.xload(s)
        if pre_dma < 2: self.dma_stage(1)
        nx = [XD]
        def reads(s):
            st, sp = s // 8, s % 8
            w = WF + 12 * (s % 2)
            buf = st % 3
            base = "v8" if buf == 2 else "v7"
            bo = 0 if buf == 2 else buf * GU_BUF
            AB = os.environ.get("ABL", "")
            for ft in range(3):
                if "b128" in AB and s > 1:
                    a(f"ds_read_b128 v[{w+4*ft}:{w+4*ft+3}], v9 offset:{bo + (sp*3+ft)*1024}")
                    a("s_nop 0") if False else None
                    continue
                for u in range(2):
                    if "notr" in AB and s > 1: continue
                    a(f"ds_read_b64_tr_b16 v[{w+4*ft+2*u}:{w+4*ft+2*u+1}], {base} offset:{bo + (16*sp+4*u)*96 + 32*ft}")
        def pre(s):
            if s % 8 == 0:
                st = s // 8
                vm.wait(lambda t: t == ("W", st), "lgkmcnt(0)" if s else "")
                if os.environ.get("GSTAMP") and st == 0: stamp(a, 12)
                a("s_barrier")
                if st in (0, 2, 4): stamp(a, 3 + st // 2)
                if st >= 1 and st + 2 < 5:
                    self.dma_stage(st + 2)
        pre(0); reads(0)
        for s in range(40):
            if s + 1 < 40:
                pre(s + 1); reads(s + 1)
                vm.wait(lambda t: t == ("X", s), "lgkmcnt(3)" if "b128" in os.environ.get("ABL", "") and s > 0 else "lgkmcnt(6)")
            else:
                vm.wait(lambda t: t == ("X", s), "lgkmcnt(0)")
            w = WF + 12 * (s % 2)
            x = XF + 4 * (s % XD)
            for ft in range(3):
                D = f"v[{ACC+16*ft}:{ACC+16*ft+15}]"
                if "m16" in os.environ.get("ABL", ""):
                    for q in range(2):
                        d = ACC + 16 * ft + 8 * q + 4 * (s % 2)
                        a(f"v_mfma_f32_16x16x32_bf16 v[{d}:{d+3}], v[{w+4*ft}:{w+4*ft+3}], v[{x}:{x+3}], v[{d}:{d+3}]")
                else:
                    a(f"v_mfma_f32_32x32x16_bf16 {D}, v[{w+4*ft}:{w+4*ft+3}], v[{x}:{x+3}], {D}")
            for _ in range(2):
                if nx[0] <= s + XD and nx[0] < 40:
                    self.xload(nx[0]); nx[0] += 1
            if s == 2 and pre_dma < 3: self.dma_stage(2)
            if s == 6 and hook: hook()
        stamp(a, 6)
        a("s_setprio 3")
        a("s_mul_i32 s50, s26, 96")
        a("s_mul_i32 s3, s24, 3")
        a("s_add_u32 s50, s50, s3")
        a("s_lshl_b32 s50, s50, 10")
        a(f"s_add_u32 s50, s50, {WS_H}")
        a(f"s_mov_b32 s52, {f2hex(-1.4426950408889634)}")
        a("s_mov_b32 s53, s52")
        a("s_mov_b32 s54, 1.0")
        a("s_mov_b32 s55, 1.0")
        a("s_nop 1")
        T = XF
        for ft in range(3):
            g = ACC + 16 * ft; u = g + 8
            for i in range(0, 8, 2):
                a(f"v_pk_mul_f32 v[{T+i}:{T+i+1}], v[{g+i}:{g+i+1}], s[52:53]")
            for i in range(8):
                a(f"v_exp_f32 v{T+i}, v{T+i}")
            for i in range(0, 8, 2):
                a(f"v_pk_add_f32 v[{T+i}:{T+i+1}], v[{T+i}:{T+i+1}], s[54:55]")
            for i in range(8):
                a(f"v_rcp_f32 v{T+i}, v{T+i}")
            for i in range(0, 8, 2):
                a(f"v_pk_mul_f32 v[{g+i}:{g+i+1}], v[{g+i}:{g+i+1}], v[{u+i}:{u+i+1}]")
            for i in range(0, 8, 2):
                a(f"v_pk_mul_f32 v[{g+i}:{g+i+1}], v[{g+i}:{g+i+1}], v[{T+i}:{T+i+1}]")
            for i in range(4):
                a(f"v_cvt_pk_bf16_f32 v{g+i}, v{g+2*i}, v{g+2*i+1}")
            a(f"buffer_store_dwordx4 v[{g}:{g+3}], v9, s[32:35], s50 offen offset:{1024*ft}{cfg.sc}")
        stamp(a, 7)

class GU16(GU):
    def setup(self):
        a = self.a
        GU.setup(self)
        a("v_lshrrev_b32 v10, 4, v2")
        a("v_and_b32 v11, 15, v2")
        a("v_lshlrev_b32 v3, 4, v11")
        a("v_lshl_add_u32 v3, v10, 9, v3")
        a("v_and_b32 v12, 1, v10")
        a("v_lshlrev_b32 v14, 4, v11")
        a("v_lshl_add_u32 v14, v12, 9, v14")
        a("v_lshrrev_b32 v13, 5, v2")
        a("v_lshl_add_u32 v14, v13, 8, v14")
        a("v_bfe_u32 v8, v2, 2, 2")
        if XSWAP:
            a("v_lshl_add_u32 v8, v10, 3, v8")
            a("v_lshl_add_u32 v7, v12, 2, v8")
            a("v_xor_b32 v8, 4, v7")
        else:
            a("v_lshl_add_u32 v8, v13, 4, v8")
            a("v_lshl_add_u32 v7, v12, 2, v8")
            a("v_add_u32 v8, 8, v7")
        a("v_and_b32 v10, 3, v2")
        a("v_lshlrev_b32 v10, 3, v10")
        a("s_movk_i32 s3, 96")
        a("v_mad_u32_u24 v7, v7, s3, v10")
        a("v_mad_u32_u24 v8, v8, s3, v10")
        a(f"v_add_u32 v12, {2*GU_BUF}, v7")
        a(f"v_add_u32 v13, {2*GU_BUF}, v8")
    def xload(self, k):
        r = self.XF + 8 * (k % 4)
        for th in range(2):
            self.vm.issue(f"buffer_load_dwordx4 v[{r+4*th}:{r+4*th+3}], v3, s[32:35], s40 offen offset:{2048*(k%2) + 256*th}{cfg.sc}", ("X", k))
        if k % 2 == 1: self.a("s_add_u32 s40, s40, 4096")
    def main(self, pre_dma, hook=None, gate2=None):
        a, vm, ACC, XF, WF = self.a, self.vm, self.ACC, self.XF, self.WF
        if pre_dma < 1: self.dma_stage(0)
        self.xload(0); self.xload(1)
        XR = int(os.environ.get("GXR", "0"))
        nx = [2]
        HY2 = gate2 and int(os.environ.get("HYB", "2")) == 2
        if HY2:
            a("s_barrier")
            self.xload(2); self.xload(3); nx = [4]
            if int(os.environ.get("H2W1", "0")): self.dma_stage(1)
        elif gate2:
            if int(os.environ.get("H2W1", "0")): self.dma_stage(1); pre_dma = 2
            gate2()
        if HY2: pass
        elif not XR:
            if pre_dma < 3: a("s_barrier")
            self.xload(2); self.xload(3); nx = [4]
        if pre_dma < 2 and not HY2: self.dma_stage(1)
        def reads(s):
            st, sp, reg = s // 8, (s % 8) // 2, s % 2
            w = WF + 12 * (s % 2)
            buf = st % 3
            bo = (0 if buf == 2 else buf * GU_BUF) + reg * GU_UP + 32 * sp * 96
            for ft in range(3):
                for u in range(2):
                    base = (12 if buf == 2 else 7) + u
                    if "gnotr" in os.environ.get("ABL", "") and s > 1: continue
                    a(f"ds_read_b64_tr_b16 v[{w+4*ft+2*u}:{w+4*ft+2*u+1}], v{base} offset:{bo + 32*ft}")
        def pre(s):
            if s % 8 == 0:
                st = s // 8
                vm.wait(lambda t: t == ("W", st), "lgkmcnt(0)" if s else "")
                a("s_barrier")
                if st in (0, 2, 4): stamp(a, 3 + st // 2)
                if st >= 1 and st + 2 < 5 and "gnow" not in os.environ.get("ABL", ""):
                    self.dma_stage(st + 2)
        pre(0); reads(0)
        for s in range(40):
            k = s // 2
            lg = "lgkmcnt(6)" if s + 1 < 40 else "lgkmcnt(0)"
            if s + 1 < 40:
                pre(s + 1); reads(s + 1)
            vm.wait(lambda t: t == ("X", k), lg)
            w = WF + 12 * (s % 2)
            x = XF + 8 * (k % 4)
            for ft in range(3):
                for th in range(2):
                    d = ACC + 16 * ft + 8 * (s % 2) + 4 * th
                    if "gnomf" in os.environ.get("ABL", ""): continue
                    a(f"v_mfma_f32_16x16x32_bf16 v[{d}:{d+3}], v[{w+4*ft}:{w+4*ft+3}], v[{x+4*th}:{x+4*th+3}], v[{d}:{d+3}]")
            if HY2 and s == 6:
                gate2()
                a("s_barrier")
                if not int(os.environ.get("H2W1", "0")): self.dma_stage(1)
                for _ in range(3):
                    self.xload(nx[0]); nx[0] += 1
            if s % 2 == 1 and not (HY2 and s < 6):
                for _ in range(2):
                    if nx[0] <= k + (2 if s < XR else 4) and nx[0] < 20:
                        self.xload(nx[0]); nx[0] += 1
            if s == (6 if HY2 else 2) and pre_dma < 3: self.dma_stage(2)
            if s == int(os.environ.get("HOOKS", "12")) and hook: hook()
        stamp(a, 6)
        a(f"s_setprio {os.environ.get('PE', '3')}")
        a("s_mul_i32 s50, s26, 96")
        a("s_mul_i32 s3, s24, 3")
        a("s_add_u32 s50, s50, s3")
        a("s_lshl_b32 s50, s50, 10")
        a(f"s_add_u32 s50, s50, {WS_H}")
        a(f"s_mov_b32 s52, {f2hex(-1.4426950408889634)}")
        a("s_mov_b32 s53, s52")
        a("s_mov_b32 s54, 1.0")
        a("s_mov_b32 s55, 1.0")
        T = XF
        for ft in range(3):
            g = ACC + 16 * ft; u = g + 8
            for i in range(0, 8, 2):
                a(f"v_pk_mul_f32 v[{T+i}:{T+i+1}], v[{g+i}:{g+i+1}], s[52:53]")
            for i in range(8):
                a(f"v_exp_f32 v{T+i}, v{T+i}")
            for i in range(0, 8, 2):
                a(f"v_pk_add_f32 v[{T+i}:{T+i+1}], v[{T+i}:{T+i+1}], s[54:55]")
            for i in range(8):
                a(f"v_rcp_f32 v{T+i}, v{T+i}")
            for i in range(0, 8, 2):
                a(f"v_pk_mul_f32 v[{g+i}:{g+i+1}], v[{g+i}:{g+i+1}], v[{u+i}:{u+i+1}]")
            for i in range(0, 8, 2):
                a(f"v_pk_mul_f32 v[{g+i}:{g+i+1}], v[{g+i}:{g+i+1}], v[{T+i}:{T+i+1}]")
            for i in range(4):
                a(f"v_cvt_pk_bf16_f32 v{g+i}, v{g+2*i}, v{g+2*i+1}")
            a("s_nop 1")
            a(f"v_permlane32_swap_b32 v{g}, v{g+2}")
            a(f"v_permlane32_swap_b32 v{g+1}, v{g+3}")
            a(f"buffer_store_dwordx4 v[{g}:{g+3}], v14, s[32:35], s50 offen offset:{1024*ft}{cfg.sc}")
        stamp(a, 7)

def fin_decode(a):
    a("s_and_b32 s3, s2, 255")
    a("s_and_b32 s24, s3, 7")
    a("s_lshr_b32 s26, s3, 3")
    a("s_lshr_b32 s27, s24, 1")
    a("s_lshl_b32 s27, s27, 3")
    a("s_and_b32 s3, s26, 7")
    a("s_add_u32 s27, s27, s3")
    a("s_and_b32 s24, s24, 1")
    a("s_lshl_b32 s24, s24, 2")
    a("s_lshr_b32 s26, s26, 3")
    a("s_add_u32 s24, s24, s26")

OUT16 = int(os.environ.get("OUT16", "1"))
class FIN:
    ACC, XF, WF = 16, 56, 88
    DV = [4, 5, 6, 7, 8]
    TD, TM, TR = 11, 12, 13
    def __init__(self, a):
        self.a = a; self.vm = VM(a); self.q = [[], []]
    def roles(self):
        a = self.a
        a("s_and_b32 s46, s25, 1")
        a("s_lshr_b32 s47, s25, 1")
        a("s_mov_b32 s56, s25")
    BOFF = 0
    def zero_acc(self):
        for i in range(40):
            self.a(f"v_mov_b32 v{self.ACC+i}, 0")
    def setup(self, zero_acc=True):
        a = self.a
        srd(a, 28, S_WD, 1966080)
        srd(a, 36, S_WO, 819200)
        self.roles()
        a("s_lshl_b32 s26, s27, 1")
        a("s_add_u32 s26, s26, s46")
        a("s_lshl_b32 s3, s47, 11")
        a("s_mul_i32 s40, s26, 98304")
        a("s_add_u32 s40, s40, s3")
        a(f"s_add_u32 s40, s40, {WS_H}")
        a("s_mul_i32 s43, s26, 40960")
        a("s_add_u32 s43, s43, s3")
        a(f"s_add_u32 s43, s43, {WS_O}")
        a("s_mul_i32 s41, s24, 160")
        a("s_mul_i32 s3, s25, 40960")
        a("s_add_u32 s41, s41, s3")
        a("s_mov_b32 s44, s41")
        a("s_mul_i32 s49, s25, 5120")
        a("s_and_b32 s3, s25, 3")
        a("s_mul_i32 s42, s3, 5120")
        a("s_lshr_b32 s48, s25, 2")
        a("v_lshrrev_b32 v10, 4, v2")
        a("v_and_b32 v14, 15, v2")
        a("v_lshlrev_b32 v3, 4, v14")
        a("v_lshl_add_u32 v3, v10, 9, v3")
        a("s_movk_i32 s3, 1280")
        for b in range(5):
            a(f"v_add_u32 v11, {64*b}, v2")
            a("v_mul_u32_u24 v12, 6554, v11")
            a("v_lshrrev_b32 v12, 16, v12")
            a("v_mul_u32_u24 v13, 10, v12")
            a("v_sub_u32 v13, v11, v13")
            a("v_lshlrev_b32 v13, 4, v13")
            a(f"v_mad_u32_u24 v{self.DV[b]}, v12, s3, v13")
        a("s_lshl_b32 s45, s26, 5")
        a("v_add_u32 v14, s45, v14")
        a("v_mul_u32_u24 v14, 1280, v14")
        if OUT16:
            a("v_and_b32 v11, 1, v10")
            a("v_lshl_add_u32 v14, v11, 4, v14")
            a("v_lshrrev_b32 v11, 1, v10")
            a("v_lshl_add_u32 v14, v11, 3, v14")
        else:
            a("v_lshl_add_u32 v14, v10, 3, v14")
        a("s_mul_i32 s45, s24, 160")
        a("v_add_u32 v14, s45, v14")
        a("v_bfe_u32 v10, v2, 2, 2")
        a("v_bfe_u32 v15, v2, 4, 1")
        a("v_lshrrev_b32 v1, 5, v2")
        if OUT16:
            a("v_and_b32 v0, 1, v2")
            a("v_lshlrev_b32 v0, 4, v0")
            a("v_bfe_u32 v11, v2, 1, 1")
            a("v_lshl_add_u32 v0, v11, 3, v0")
        else:
            a("v_and_b32 v0, 3, v2")
            a("v_lshlrev_b32 v0, 3, v0")
        a("s_movk_i32 s3, 160")
        a(f"v_lshl_add_u32 v{self.TD}, v1, 4, v10")
        a(f"v_lshl_add_u32 v{self.TD}, v15, 2, v{self.TD}")
        a(f"v_mad_u32_u24 v{self.TD}, v{self.TD}, s3, v0")
        a("s_mul_i32 s45, s47, 5120")
        a(f"v_add_u32 v{self.TD}, s45, v{self.TD}")
        a(f"v_mul_u32_u24 v{self.TM}, 20, v1")
        a(f"v_lshl_add_u32 v{self.TM}, v15, 2, v{self.TM}")
        a(f"v_add_u32 v{self.TM}, v{self.TM}, v10")
        a(f"v_mad_u32_u24 v{self.TM}, v{self.TM}, s3, v0")
        a("s_mul_i32 s45, s47, 6400")
        a(f"v_add_u32 v{self.TM}, s45, v{self.TM}")
        a(f"v_mul_u32_u24 v{self.TR}, 80, v1")
        a("v_mul_u32_u24 v15, 20, v15")
        a(f"v_add3_u32 v{self.TR}, v{self.TR}, v15, v10")
        a(f"v_mad_u32_u24 v{self.TR}, v{self.TR}, s3, v0")
        a(f"v_add_u32 v{self.TR}, {16*160}, v{self.TR}")
        if zero_acc: self.zero_acc()
    def dma_wd(self, m):
        a = self.a
        L = uid("L_dwd")
        a(f"s_cmp_lg_u32 s48, {m % 2}")
        a(f"s_cbranch_scc1 {L}")
        for b in range(5):
            a(f"s_add_u32 m0, s42, {((m + self.BOFF) % 4) * 20480 + 1024 * b}")
            a("s_nop 0")
            a(f"buffer_load_dwordx4 v{self.DV[b]}, s[28:31], s41 offen lds")
        a(f"s_add_u32 s41, s41, {256*1280}")
        a.label(L)
        self.q[m % 2] += [("W", m)] * 5
    def hload(self, m):
        r = self.XF + 8 * (m % 4)
        for th in range(2):
            self.a(f"buffer_load_dwordx4 v[{r+4*th}:{r+4*th+3}], v3, s[32:35], s40 offen offset:{256*th}{cfg.sc}")
            for q in self.q: q.append(("X", m))
        self.a("s_add_u32 s40, s40, 8192")
    def wait2(self, preds, extra=""):
        n = 63
        for q in self.q:
            last = max([i for i, t in enumerate(q) if t in preds], default=-1)
            if last >= 0: n = min(n, len(q) - 1 - last)
        if n == 63:
            if extra: self.a(f"s_waitcnt {extra}")
            return
        self.a(f"s_waitcnt vmcnt({n}) {extra}".strip())
        self.q = [q[max(0, len(q) - n):] if n > 0 else [] for q in self.q]
    def wreads(self, w, base, off, ustep):
        for ft in range(5):
            for u in range(2):
                self.a(f"ds_read_b64_tr_b16 v[{w+4*ft+2*u}:{w+4*ft+2*u+1}], v{base} offset:{off + ustep*u + 32*ft}")
    def mfmas(self, w, x):
        if "dnomf" in os.environ.get("ABL", ""): return
        for ft in range(5):
            for th in range(2):
                d = self.ACC + 4 * (5 * th + ft)
                self.a(f"v_mfma_f32_16x16x32_bf16 v[{d}:{d+3}], v[{w+4*ft}:{w+4*ft+3}], v[{x+4*th}:{x+4*th+3}], v[{d}:{d+3}]")
    def down(self, npre=4):
        a = self.a
        for m in range(2): self.hload(m)
        nw = npre
        nh = 2
        TD2 = 15
        a(f"v_add_u32 v{TD2}, 40960, v{self.TD}")
        def reads(m):
            base = self.TD if (m % 4) < 2 else TD2
            self.wreads(self.WF + 20 * (m % 2), base, (m % 2) * 20480, 1280)
        self.wait2([("W", 0)])
        a("s_barrier")
        if not os.environ.get("GSTAMP"): stamp(a, 9)
        reads(0)
        for m in range(12):
            if m + 1 < 12:
                self.wait2([("W", m + 1)], "lgkmcnt(0)")
                a("s_barrier")
                reads(m + 1)
                for _ in range(2):
                    if nw <= m + 4 and nw < 12:
                        self.dma_wd(nw); nw += 1
                if m == 9:
                    a("s_waitcnt vmcnt(0)")
                    self.q = [[], []]
                    self.wo_dma((0, 8), 0, 0)
                if m == 10:
                    self.wo_dma((0, 4), 8, 8)
                self.wait2([("X", m)])
            else:
                self.wait2([("X", m)], "lgkmcnt(0)")
            self.mfmas(self.WF + 20 * (m % 2), self.XF + 8 * (m % 4))
            for _ in range(2):
                if nh <= m + 4 and nh < 12:
                    self.hload(nh); nh += 1
        if not os.environ.get("GSTAMP"): stamp(a, 10)
    def wo_dma(self, cond, first_group, lds_group):
        a = self.a
        lo, hi = cond
        L = uid("L_wod")
        if lo > 0:
            a(f"s_cmp_lt_u32 s25, {lo}")
            a(f"s_cbranch_scc1 {L}")
        if hi < 8:
            a(f"s_cmp_ge_u32 s25, {hi}")
            a(f"s_cbranch_scc1 {L}")
        a(f"s_add_u32 s3, s44, {(first_group - lo) * 32 * 1280}")
        for b in range(5):
            a(f"s_add_u32 m0, s49, {(lds_group - lo) * 5120 + 1024 * b}")
            a("s_nop 0")
            a(f"buffer_load_dwordx4 v{self.DV[b]}, s[36:39], s3 offen lds")
        a.label(L)
    def wo_prefetch(self, after_first=None):
        a = self.a
        if after_first is None:
            a("s_waitcnt vmcnt(5)")
            a("s_cmp_lt_u32 s25, 4")
            a("s_cbranch_scc1 L_fin_p0")
        a("s_waitcnt vmcnt(0)")
        a.label("L_fin_p0")
        a("s_barrier")
        if after_first: after_first()
        self.wo_dma((4, 7), 12, 12)
        self.wreads(self.WF + 20, self.TM, 0, 1280)
        a("s_cmp_lg_u32 s47, 0")
        a("s_cbranch_scc1 L_fin_p1")
        self.wreads(self.WF, self.TR, 0, 6400)
        a.label("L_fin_p1")
        a("s_cmp_eq_u32 s47, 3")
        a("s_cselect_b32 s3, 0, s47")
        a("s_mul_i32 s3, s3, 25600")
        a(f"v_add_u32 v{self.TR}, s3, v{self.TR}")
        a("s_waitcnt lgkmcnt(0)")
        a("s_barrier")
        self.wo_dma((0, 5), 15, 0)
        srd(a, 28, S_X, 2621440)
        if OUT16:
            a("s_lshl_b32 s52, s47, 5")
            a("s_add_u32 s53, s52, 20480")
            a("s_movk_i32 s54, 128")
            a("s_movk_i32 s55, 20608")
            a("v_lshrrev_b32 v15, 5, v2")
            a("v_and_b32 v10, 15, v2")
            a("v_lshl_add_u32 v15, v15, 4, v10")
            a("s_lshl_b32 s3, s26, 5")
            a("v_add_u32 v15, s3, v15")
            a("v_mul_u32_u24 v15, 1280, v15")
            a("v_bfe_u32 v10, v2, 4, 1")
            a("v_lshl_add_u32 v15, v10, 4, v15")
            a("s_mul_i32 s3, s24, 160")
            a("v_add_u32 v15, s3, v15")
        else:
            for i in range(3):
                a(f"s_add_u32 s3, s47, {4*i}")
                a("s_cmp_ge_u32 s3, 5")
                a(f"s_cselect_b32 s50, {20480 - 160}, 0")
                a("s_lshl_b32 s51, s3, 5")
                a(f"s_add_u32 s{52+i}, s50, s51")
            a("s_cmp_ge_u32 s47, 2")
            a("s_cselect_b32 s54, s53, s54")
        a("buffer_load_dwordx2 v[0:1], v14, s[28:31], s52 offen")
    def wo_main(self):
        a, vm = self.a, self.vm
        vm.q = []
        XS = {4: 56, 0: 64, 1: 72, 2: 80, 3: 4}
        def oload(rd):
            a(f"s_add_u32 s3, s43, {8192*rd}")
            for th in range(2):
                r = XS[rd] + 4 * th
                vm.issue(f"buffer_load_dwordx4 v[{r}:{r+3}], v3, s[32:35], s3 offen offset:{256*th}{cfg.sc}", ("X", rd))
        for rd in (4, 0, 1, 2, 3): oload(rd)
        srd(a, 36, S_OUT, 2621440)
        A, B = self.WF, self.WF + 20
        a("s_cmp_eq_u32 s47, 0")
        a("s_cbranch_scc1 L_fin_r4")
        self.wreads(A, self.TR, 0, 6400)
        a.label("L_fin_r4")
        vm.wait(lambda t: t == ("X", 4), "lgkmcnt(0)")
        if os.environ.get("TAILSTAMP"): stamp(a, 1)
        self.mfmas(A, XS[4])
        self.wreads(A, self.TM, 160 * 160, 1280)
        vm.wait(lambda t: t == ("X", 0))
        self.mfmas(B, XS[0])
        self.wreads(B, self.TM, 320 * 160, 1280)
        vm.wait(lambda t: t == ("X", 1), "lgkmcnt(10)")
        self.mfmas(A, XS[1])
        self.wreads(A, self.TM, 0, 1280)
        vm.wait(lambda t: t == ("X", 2), "lgkmcnt(10)")
        self.mfmas(B, XS[2])
        for i in range(1, 4 if OUT16 else 3):
            vm.issue(f"buffer_load_dwordx2 v[{56+2*i}:{57+2*i}], v14, s[28:31], s{52+i} offen", ("R", i))
        vm.wait(lambda t: t == ("X", 3), "lgkmcnt(0)")
        a("s_barrier")
        self.mfmas(A, XS[3])
        if not os.environ.get("GSTAMP"): stamp(a, 12)
        a("v_lshlrev_b32 v9, 4, v2")
        a("s_mul_i32 s3, s56, 10240")
        a("v_add_u32 v10, s3, v9")
        for j in range(10):
            L = uid("L_fw")
            a(f"s_cmp_eq_u32 s47, {min(j % 5, 3) if OUT16 else j % 4}")
            a(f"s_cbranch_scc1 {L}")
            a(f"ds_write_b128 v10, v[{self.ACC+4*j}:{self.ACC+4*j+3}] offset:{1024*j}")
            a(f"s_branch {L}_n")
            a.label(L)
            r = 64 + 16 * ((j // 5 + (2 if j % 5 == 4 else 0)) if OUT16 else j // 4)
            for t in range(4):
                a(f"v_mov_b32 v{r+t}, v{self.ACC+4*j+t}")
            a.label(L + "_n")
        a("s_mul_i32 s3, s46, 10240")
        a("s_lshl_b32 s50, s47, 10")
        a("s_add_u32 s3, s3, s50")
        a("v_add_u32 v10, s3, v9")
        for k in range(1, 4):
            a(f"s_add_u32 s3, s47, {k}")
            a("s_and_b32 s3, s3, 3")
            a("s_mul_i32 s3, s3, 20480")
            a(f"v_add_u32 v{3+k}, s3, v10")
        a("s_waitcnt lgkmcnt(0)")
        if os.environ.get("TAILSTAMP"): stamp(a, 3)
        a("s_barrier")
        if os.environ.get("TAILSTAMP"): stamp(a, 4)
        R = 64
        if OUT16:
            for i, off in enumerate((0, 5120, 1024, 6144)):
                if i == 2:
                    a("s_cmp_lg_u32 s47, 3")
                    a("s_cbranch_scc1 L_fin_r2")
                for k in range(1, 4):
                    r = R + 16 * i + 4 * k
                    a(f"ds_read_b128 v[{r}:{r+3}], v{3+k} offset:{off}")
            a.label("L_fin_r2")
            a("s_waitcnt vmcnt(0) lgkmcnt(0)")
            for un in range(2):
                if un == 1:
                    a("s_cmp_lg_u32 s47, 3")
                    a("s_cbranch_scc1 L_fin_end")
                o = R + 32 * un
                for th in range(2):
                    i = 2 * un + th
                    r = R + 16 * i; xr = 0 if i == 0 else 56 + 2 * i
                    a(f"v_lshlrev_b32 v4, 16, v{xr}")
                    a(f"v_and_b32 v5, 0xffff0000, v{xr}")
                    a(f"v_lshlrev_b32 v6, 16, v{xr+1}")
                    a(f"v_and_b32 v7, 0xffff0000, v{xr+1}")
                    for h in range(2):
                        a(f"v_pk_add_f32 v[{r+2*h}:{r+2*h+1}], v[{r+2*h}:{r+2*h+1}], v[{r+4+2*h}:{r+5+2*h}]")
                        a(f"v_pk_add_f32 v[{r+8+2*h}:{r+9+2*h}], v[{r+8+2*h}:{r+9+2*h}], v[{r+12+2*h}:{r+13+2*h}]")
                        a(f"v_pk_add_f32 v[{r+2*h}:{r+2*h+1}], v[{r+2*h}:{r+2*h+1}], v[{4+2*h}:{5+2*h}]")
                        a(f"v_pk_add_f32 v[{r+2*h}:{r+2*h+1}], v[{r+2*h}:{r+2*h+1}], v[{r+8+2*h}:{r+9+2*h}]")
                    a(f"v_cvt_pk_bf16_f32 v{o+4+2*th}, v{r}, v{r+1}")
                    a(f"v_cvt_pk_bf16_f32 v{o+5+2*th}, v{r+2}, v{r+3}")
                a("s_nop 1")
                a(f"v_permlane32_swap_b32 v{o+4}, v{o+6}")
                a(f"v_permlane32_swap_b32 v{o+5}, v{o+7}")
                a(f"buffer_store_dwordx4 v[{o+4}:{o+7}], v15, s[36:39], s{52+2*un} offen{os.environ.get('OUTSC', '')}")
            a.label("L_fin_end")
            return
        for i in range(3):
            if i == 2:
                a("s_cmp_ge_u32 s47, 2")
                a("s_cbranch_scc1 L_fin_r2")
            for k in range(1, 4):
                r = R + 16 * i + 4 * k
                a(f"ds_read_b128 v[{r}:{r+3}], v{3+k} offset:{4096*i}")
        a.label("L_fin_r2")
        a("s_waitcnt vmcnt(0) lgkmcnt(0)")
        if os.environ.get("TAILSTAMP"): stamp(a, 5)
        for i in range(3):
            r = R + 16 * i; xr = 0 if i == 0 else 56 + 2 * i
            if i == 2:
                a("s_cmp_ge_u32 s47, 2")
                a("s_cbranch_scc1 L_fin_end")
            a(f"v_lshlrev_b32 v4, 16, v{xr}")
            a(f"v_and_b32 v5, 0xffff0000, v{xr}")
            a(f"v_lshlrev_b32 v6, 16, v{xr+1}")
            a(f"v_and_b32 v7, 0xffff0000, v{xr+1}")
            for h in range(2):
                a(f"v_pk_add_f32 v[{r+2*h}:{r+2*h+1}], v[{r+2*h}:{r+2*h+1}], v[{r+4+2*h}:{r+5+2*h}]")
                a(f"v_pk_add_f32 v[{r+8+2*h}:{r+9+2*h}], v[{r+8+2*h}:{r+9+2*h}], v[{r+12+2*h}:{r+13+2*h}]")
                a(f"v_pk_add_f32 v[{r+2*h}:{r+2*h+1}], v[{r+2*h}:{r+2*h+1}], v[{4+2*h}:{5+2*h}]")
                a(f"v_pk_add_f32 v[{r+2*h}:{r+2*h+1}], v[{r+2*h}:{r+2*h+1}], v[{r+8+2*h}:{r+9+2*h}]")
            a(f"v_cvt_pk_bf16_f32 v{r}, v{r}, v{r+1}")
            a(f"v_cvt_pk_bf16_f32 v{r+1}, v{r+2}, v{r+3}")
            a(f"buffer_store_dwordx2 v[{r}:{r+1}], v14, s[36:39], s{52+i} offen{os.environ.get('OUTSC', '')}")
        a.label("L_fin_end")
        if os.environ.get("TAILSTAMP"): stamp(a, 6)

WS_ST = 0x1480000
def qkv2_decode(a):
    a("s_and_b32 s24, s2, 7")
    a("s_lshr_b32 s26, s2, 3")
    a("s_mul_i32 s24, s24, 30")
    a("s_add_u32 s27, s24, s26")
    a("s_cmp_ge_u32 s27, 80")
    a("s_cselect_b32 s24, 1, 0")
    a("s_cmp_ge_u32 s27, 160")
    a("s_cselect_b32 s24, 2, s24")
    a("s_mul_i32 s26, s24, 80")
    a("s_sub_u32 s27, s27, s26")
    a("s_mul_i32 s26, s27, 205")
    a("s_lshr_b32 s26, s26, 10")
    a("s_mul_i32 s3, s26, 5")
    a("s_sub_u32 s27, s27, s3")
    a("s_mul_i32 s47, s24, 5")
    a("s_add_u32 s47, s47, s27")
    a("s_lshl_b32 s46, s47, 4")
    a("s_add_u32 s46, s46, s26")

def qkv2(a, nonce_check):
    ACC, XF, WF, CS, SEL, AD = 16, 48, 64, 72, 76, 80
    XA0, XA1, TW, DX, DW = 3, 4, 5, 6, 7
    NSL, RING = 20, 5
    L_CS, L_ST = 0, 1024
    XB0, XB1, TW2 = 90, 91, 92
    vm = VM(a)
    srd(a, 28, S_WQKV, 2457600)
    srd(a, 36, S_X, 2621440)
    a("v_lshrrev_b32 v10, 2, v2")
    a("s_lshl_b32 s3, s25, 4")
    a("v_add_u32 v10, s3, v10")
    a("v_mul_u32_u24 v10, 1280, v10")
    a("v_lshrrev_b32 v11, 4, v2")
    a("v_and_b32 v12, 3, v2")
    a("v_xor_b32 v13, v12, v11")
    a(f"v_lshl_add_u32 v{DX}, v13, 4, v10")
    a("s_lshl_b32 s3, s25, 2")
    a("v_add_u32 v10, s3, v11")
    a("v_mul_u32_u24 v10, 3840, v10")
    a("v_bfe_u32 v13, v2, 2, 2")
    a("v_xor_b32 v13, v13, v11")
    a("v_lshl_add_u32 v10, v13, 6, v10")
    a(f"v_lshl_add_u32 v{DW}, v12, 4, v10")
    a("s_mul_i32 s40, s26, 163840")
    a("s_lshl_b32 s41, s47, 8")
    a("s_lshl_b32 s42, s25, 10")
    def dma(sl):
        base = (sl % RING) * 16384
        a(f"s_add_u32 m0, s42, {base}")
        a("s_nop 0")
        vm.issue(f"buffer_load_dwordx4 v{DX}, s[36:39], s40 offen lds", ("S", sl))
        a(f"s_add_u32 m0, s42, {base + 8192}")
        a("s_add_u32 s40, s40, 64")
        vm.issue(f"buffer_load_dwordx4 v{DW}, s[28:31], s41 offen lds", ("S", sl))
        a(f"s_add_u32 s41, s41, {32*3840}")
    NUP = int(os.environ.get('Q2UP', '5'))
    for sl in range(NUP): dma(sl)
    stamp(a, 1)
    a("s_lshr_b32 s48, s25, 2")
    a("s_and_b32 s49, s25, 3")
    a("v_and_b32 v10, 31, v2")
    a("v_lshrrev_b32 v8, 5, v2")
    a("v_bfe_u32 v11, v2, 2, 2")
    a("v_xor_b32 v12, v8, v11")
    a("v_lshlrev_b32 v13, 6, v10")
    a("s_lshl_b32 s3, s48, 12")
    a("v_add_u32 v13, s3, v13")
    a(f"v_lshl_add_u32 v{XA0}, v12, 4, v13")
    a(f"v_xor_b32 v{XA1}, 32, v{XA0}")
    a("v_lshl_add_u32 v12, v8, 3, v11")
    a("v_lshlrev_b32 v12, 8, v12")
    a("v_xor_b32 v13, s49, v11")
    a("v_lshl_add_u32 v12, v13, 6, v12")
    a("v_bfe_u32 v13, v2, 4, 1")
    a("v_lshl_add_u32 v12, v13, 5, v12")
    a("v_add_u32 v12, 8192, v12")
    a("v_and_b32 v14, 15, v2")
    a("v_cmp_eq_u32 vcc, v14, v13")
    a("v_mov_b32 v14, 0x3f803f80")
    for i in range(32): a(f"v_mov_b32 v{ACC+i}, 0")
    a("v_cndmask_b32 v14, 0, v14, vcc")
    for i in range(4):
        a(f"v_mov_b32 v{SEL+i}, v14")
        a(f"v_mov_b32 v{CS+i}, 0")
    a("s_lshl_b32 s3, s26, 8")
    a(f"s_add_u32 s50, s3, {F_XN}")
    a("v_lshlrev_b32 v15, 3, v10")
    a("s_lshl_b32 s51, s26, 10")
    a(f"s_add_u32 s51, s51, {WS_ST}")
    a("s_lshl_b32 s43, s26, 2")
    a("s_lshl_b32 s3, s48, 1")
    a("s_add_u32 s43, s43, s3")
    a("s_cmp_eq_u32 s24, 2")
    a("s_cbranch_scc1 L_q2_V")
    a("v_and_b32 v13, 1, v2")
    a("v_lshl_add_u32 v12, v13, 4, v12")
    a("v_bfe_u32 v13, v2, 1, 1")
    a(f"v_lshl_add_u32 v{TW}, v13, 3, v12")
    a("s_lshl_b32 s45, s43, 10")
    a(f"s_add_u32 s45, s45, {WS_QM}")
    a("s_lshl_b32 s44, s43, 8")
    a(f"s_add_u32 s44, s44, {WS_QR}")
    a("s_mov_b32 s52, 65536")
    a("s_mov_b32 s53, 16384")
    a("s_movk_i32 s54, 1024")
    a("s_movk_i32 s55, 256")
    a(f"s_mov_b32 s63, {f2hex(QSCALE)}")
    a("s_cmp_eq_u32 s24, 0")
    a("s_cbranch_scc1 L_q2_isq")
    a("s_mul_i32 s45, s43, 2560")
    a(f"s_add_u32 s45, s45, {WS_KV}")
    a("s_add_u32 s44, s45, 1024")
    a("s_mov_b32 s52, 163840")
    a("s_mov_b32 s53, 163840")
    a("s_movk_i32 s54, 2560")
    a("s_movk_i32 s55, 2560")
    a("s_mov_b32 s63, 1.0")
    a.label("L_q2_isq")
    a("s_lshl_b32 s3, s27, 2")
    a("s_add_u32 s3, s3, s49")
    a("s_lshl_b32 s3, s3, 2")
    a("v_add_u32 v11, s3, v8")
    a("v_lshl_add_u32 v12, v10, 4, s45")
    a("v_lshl_add_u32 v13, v10, 3, s44")
    for q in range(2):
        a(f"v_add_u32 v14, {2*q}, v11")
        a("v_mul_u32_u24 v1, 205, v14")
        a("v_lshrrev_b32 v1, 10, v1")
        a("v_mul_u32_u24 v0, 5, v1")
        a("v_sub_u32 v14, v14, v0")
        a("v_lshlrev_b32 v1, 1, v1")
        a("v_mul_lo_u32 v0, v1, s53")
        a(f"v_add_u32 v{AD+3*q+1}, v0, v13")
        a(f"v_add_u32 v{AD+3*q+2}, s53, v{AD+3*q+1}")
        a("v_cmp_lt_u32 vcc, 2, v14")
        a("v_subrev_u32 v0, 3, v14")
        a("s_nop 0")
        a("v_addc_co_u32 v1, s[86:87], 0, v1, vcc")
        a("v_cndmask_b32 v0, v14, v0, vcc")
        a("v_mul_lo_u32 v1, v1, s52")
        a("v_lshl_add_u32 v0, v0, 9, v12")
        a("v_add_u32 v0, v0, v1")
        a("v_cmp_eq_u32 vcc, 2, v14")
        a(f"v_mov_b32 v1, {OOB - 0x100000}")
        a("s_nop 0")
        a(f"v_cndmask_b32 v{AD+3*q}, v0, v1, vcc")
        a(f"v_cndmask_b32 v{AD+3*q+1}, v1, v{AD+3*q+1}, vcc")
        a(f"v_cndmask_b32 v{AD+3*q+2}, v1, v{AD+3*q+2}, vcc")

    def loop(vtype):
        vq = list(vm.q)
        a(f"v_add_u32 v{XB0}, 0x10000, v{XA0}")
        a(f"v_add_u32 v{XB1}, 0x10000, v{XA1}")
        a(f"v_add_u32 v{TW2}, 0x10000, v{TW}")
        nd = [NUP]
        def reads(s):
            sl, sp = s // 2, s % 2
            base = (sl % RING) * 16384
            x = XF + 8 * (s % 2); w = WF + 4 * (s % 2)
            xa = XA1 if sp else XA0; tw = TW
            if base >= 65536:
                base -= 65536; xa = XB1 if sp else XB0; tw = TW2
            a(f"ds_read_b128 v[{x}:{x+3}], v{xa} offset:{base}")
            a(f"ds_read_b64_tr_b16 v[{w}:{w+1}], v{tw} offset:{base + 16*sp*256}")
            a(f"ds_read_b64_tr_b16 v[{w+2}:{w+3}], v{tw} offset:{base + (16*sp+4)*256}")
            a(f"ds_read_b128 v[{x+4}:{x+7}], v{xa} offset:{base + 2048}")
        def pre(s):
            if s % 4: return
            sl = s // 2
            vm.wait(lambda t: t == ("S", sl + 1), "lgkmcnt(0)" if s else "")
            a("s_barrier")
            if sl in (0, 10): stamp(a, 2 if sl == 0 else 3)
            if PROFILE and os.environ.get("SLOTTRACE"):
                a("s_memtime s[84:85]")
                a("s_waitcnt lgkmcnt(0)")
                a("s_sub_u32 s84, s84, s64")
                a(f"v_writelane_b32 v120, s84, {sl // 2}")
            while nd[0] < sl + RING and nd[0] < NSL:
                dma(nd[0]); nd[0] += 1
            if cfg.fused:
                if sl == 6:
                    a("v_mov_b32 v0, 0")
                    vm.issue("buffer_load_dwordx2 v[88:89], v0, s[56:59], 0 offen sc1", ("N", 0))
                if sl == 10:
                    vm.wait(lambda t: t == ("N", 0))
                    nonce_check(88)
                if sl == 12:
                    vm.issue("buffer_load_dwordx2 v[88:89], v15, s[32:35], s50 offen sc1", ("F", 0))
                if sl == 16:
                    vm.wait(lambda t: t == ("F", 0))
                    L = uid("L_q2f")
                    a("v_cmp_ne_u64 vcc, s[60:61], v[88:89]")
                    a(f"s_cbranch_vccz {L}")
                    a("v_add_u32 v0, s50, v15")
                    poll(a, 0, 88)
                    a.label(L)
            if sl == 16:
                a(f"s_mov_b32 m0, {L_ST}")
                a("s_nop 0")
                vm.issue(f"buffer_load_dwordx4 v9, s[32:35], s51 offen{cfg.sc} lds", ("T", 0))
        pre(0); reads(0)
        for s in range(2 * NSL):
            if s + 1 < 2 * NSL:
                pre(s + 1); reads(s + 1)
                a("s_waitcnt lgkmcnt(4)")
            else:
                a("s_waitcnt lgkmcnt(0)")
            x = XF + 8 * (s % 2); w = WF + 4 * (s % 2)
            for j in range(2):
                W = f"v[{w}:{w+3}]"; X = f"v[{x+4*j}:{x+4*j+3}]"
                A, B = (X, W) if vtype else (W, X)
                D = f"v[{ACC+16*j}:{ACC+16*j+15}]"
                a(f"v_mfma_f32_32x32x16_bf16 {D}, {A}, {B}, {D}")
            L = uid("L_q2s")
            a(f"s_cmp_lg_u32 s48, {s % 2}")
            a(f"s_cbranch_scc1 {L}")
            a(f"v_mfma_f32_16x16x32_bf16 v[{CS}:{CS+3}], v[{w}:{w+3}], v[{SEL}:{SEL+3}], v[{CS}:{CS+3}]")
            a.label(L)
        stamp(a, 6)
        if qkv_hook: qkv_hook()
        a("v_and_b32 v0, 15, v2")
        a("v_lshrrev_b32 v1, 4, v2")
        a("v_lshlrev_b32 v1, 4, v1")
        a("v_lshl_add_u32 v1, v0, 6, v1")
        a("s_lshl_b32 s3, s25, 7")
        a(f"s_add_u32 s3, s3, {L_CS}")
        a("v_add_u32 v1, s3, v1")
        a("v_cmp_gt_u32 vcc, 2, v0")
        a("s_nop 1")
        a("s_mov_b64 exec, vcc")
        a(f"ds_write_b128 v1, v[{CS}:{CS+3}]")
        a("s_mov_b64 exec, -1")
        vm.wait(lambda t: t == ("T", 0), "lgkmcnt(0)")
        a("s_barrier")
        vm.q = vq
    loop(False)
    C0, C1, MR = 48, 64, 88
    a("s_lshl_b32 s3, s49, 7")
    a(f"s_add_u32 s3, s3, {L_CS}")
    a("v_lshl_add_u32 v0, v8, 4, s3")
    for g in range(4):
        a(f"ds_read_b128 v[{C0+4*g}:{C0+4*g+3}], v0 offset:{32*g}")
        a(f"ds_read_b128 v[{C1+4*g}:{C1+4*g+3}], v0 offset:{512 + 32*g}")
    a("s_lshl_b32 s3, s48, 8")
    a(f"s_add_u32 s3, s3, {L_ST}")
    a("v_lshl_add_u32 v1, v10, 2, s3")
    for j in range(2):
        a(f"ds_read_b32 v{MR+4*j}, v1 offset:{128*j}")
        a(f"ds_read_b32 v{MR+4*j+2}, v1 offset:{512 + 128*j}")
    a("s_waitcnt lgkmcnt(0)")
    for i in range(0, 16, 2):
        a(f"v_pk_add_f32 v[{C0+i}:{C0+i+1}], v[{C0+i}:{C0+i+1}], v[{C1+i}:{C1+i+1}]")
    for j in range(2):
        a(f"v_mov_b32 v{MR+4*j+1}, v{MR+4*j}")
        a(f"v_mul_f32 v{MR+4*j+2}, s63, v{MR+4*j+2}")
        a(f"v_mov_b32 v{MR+4*j+3}, v{MR+4*j+2}")
    for j in range(2):
        for q in range(2):
            r = ACC + 16 * j + 8 * q
            for i in range(0, 8, 2):
                c = C0 + 8 * q + i
                a(f"v_pk_fma_f32 v[{r+i}:{r+i+1}], v[{c}:{c+1}], v[{MR+4*j}:{MR+4*j+1}], v[{r+i}:{r+i+1}]")
            for i in range(0, 8, 2):
                a(f"v_pk_mul_f32 v[{r+i}:{r+i+1}], v[{r+i}:{r+i+1}], v[{MR+4*j+2}:{MR+4*j+3}]")
            for i in range(4):
                a(f"v_cvt_pk_bf16_f32 v{r+i}, v{r+2*i}, v{r+2*i+1}")
            sm, sr_ = ("0", "0") if j == 0 else ("s54", "s55")
            a(f"buffer_store_dwordx4 v[{r}:{r+3}], v{AD+3*q}, s[32:35], {sm} offen{cfg.sc}")
            a(f"buffer_store_dwordx2 v[{r}:{r+1}], v{AD+3*q+1}, s[32:35], {sr_} offen{cfg.sc}")
            a(f"buffer_store_dwordx2 v[{r+2}:{r+3}], v{AD+3*q+2}, s[32:35], {sr_} offen{cfg.sc}")
    a("s_branch L_q2_done")
    a.label("L_q2_V")
    a("v_and_b32 v13, 3, v2")
    a(f"v_lshl_add_u32 v{TW}, v13, 3, v12")
    a("s_mul_i32 s45, s43, 2560")
    a(f"s_add_u32 s45, s45, {WS_KV + 1280}")
    a("s_lshl_b32 s3, s27, 2")
    a("s_add_u32 s3, s3, s49")
    a("s_lshl_b32 s3, s3, 5")
    a("v_add_u32 v13, s3, v10")
    a("v_mul_u32_u24 v11, 320, v8")
    a("v_add_u32 v11, s45, v11")
    a("s_mov_b32 s52, 163840")
    a("v_mul_u32_u24 v14, 3277, v13")
    a("v_lshrrev_b32 v14, 16, v14")
    a("v_mul_u32_u24 v1, 20, v14")
    a("v_sub_u32 v1, v13, v1")
    a("v_lshl_add_u32 v0, v1, 4, v11")
    a("v_mul_lo_u32 v14, v14, s52")
    a(f"v_add_u32 v{AD}, v0, v14")
    loop(True)
    MN, RS = 48, 88
    a("s_lshl_b32 s3, s49, 7")
    a(f"s_add_u32 s3, s3, {L_CS}")
    a("v_lshl_add_u32 v0, v10, 2, s3")
    a("ds_read_b32 v12, v0")
    a("ds_read_b32 v13, v0 offset:512")
    a("s_lshl_b32 s3, s48, 8")
    a(f"s_add_u32 s3, s3, {L_ST}")
    a("v_lshl_add_u32 v1, v8, 4, s3")
    for j in range(2):
        for g in range(4):
            a(f"ds_read_b128 v[{MN+16*j+4*g}:{MN+16*j+4*g+3}], v1 offset:{128*j + 32*g}")
            a(f"ds_read_b128 v[{RS+16*j+4*g}:{RS+16*j+4*g+3}], v1 offset:{512 + 128*j + 32*g}")
    a("s_waitcnt lgkmcnt(15)")
    a("v_add_f32 v12, v12, v13")
    a("v_mov_b32 v13, v12")
    a("s_waitcnt lgkmcnt(0)")
    for j in range(2):
        for gm in range(2):
            r = ACC + 16 * j + 8 * gm
            for i in range(0, 8, 2):
                m = MN + 16 * j + 8 * gm + i
                a(f"v_pk_fma_f32 v[{r+i}:{r+i+1}], v[{m}:{m+1}], v[12:13], v[{r+i}:{r+i+1}]")
            for i in range(0, 8, 2):
                m = RS + 16 * j + 8 * gm + i
                a(f"v_pk_mul_f32 v[{r+i}:{r+i+1}], v[{r+i}:{r+i+1}], v[{m}:{m+1}]")
            for i in range(4):
                a(f"v_cvt_pk_bf16_f32 v{r+i}, v{r+2*i}, v{r+2*i+1}")
            a(f"buffer_store_dwordx4 v[{r}:{r+3}], v{AD}, s[32:35], 0 offen offset:{2560*j + 640*gm}{cfg.sc}")
    a.label("L_q2_done")
    if PROFILE and os.environ.get("SLOTTRACE"):
        a("s_lshl_b32 s84, s2, 4")
        a("s_add_u32 s84, s84, s25")
        a("s_lshl_b32 s84, s84, 6")
        a(f"s_add_u32 s84, s84, {WS_PROF + 0x600000}")
        a("v_lshlrev_b32 v1, 2, v2")
        a("s_mov_b64 exec, 0xffff")
        a("buffer_store_dword v120, v1, s[32:35], s84 offen")
        a("s_mov_b64 exec, -1")
    stamp(a, 7)

def attn_flag_addr2(a, vd):
    a("s_mul_i32 s3, s24, 20")
    a("s_lshr_b32 s26, s3, 7")
    a("s_add_u32 s3, s3, 19")
    a("s_lshr_b32 s3, s3, 7")
    a("s_sub_u32 s3, s3, s26")
    a("v_bfe_u32 v11, v2, 4, 1")
    a("v_mul_u32_u24 v11, 5, v11")
    a("v_lshrrev_b32 v12, 5, v2")
    a("v_mul_lo_u32 v12, v12, s3")
    a("v_add3_u32 v11, v11, v12, s26")
    a("v_add_u32 v11, 5, v11")
    a("v_and_b32 v12, 15, v2")
    a(f"v_lshl_add_u32 v{vd}, v11, 4, v12")
    a(f"v_lshlrev_b32 v{vd}, {FSH}, v{vd}")
    a(f"v_add_u32 v{vd}, {F_QKV}, v{vd}")
    a("v_bfe_u32 v12, v2, 1, 1")
    a("v_mul_lo_u32 v12, v12, s3")
    a("v_add_u32 v12, s26, v12")
    a("v_and_b32 v11, 1, v2")
    a("s_lshl_b32 s3, s27, 1")
    a("v_lshl_add_u32 v12, v12, 4, v11")
    a("v_add_u32 v12, s3, v12")
    a(f"v_lshlrev_b32 v{vd+1}, {FSH}, v12")
    a(f"v_add_u32 v{vd+1}, {F_QKV}, v{vd+1}")

C_XN, C_QKV, C_H, C_O, C_QL = 0, 8, 40, 48, 64
NCNT = 320
def cnt_base(a):
    a(f"s_add_u32 s60, s{S_WS}, {WS_FL}")
    a(f"s_addc_u32 s61, s{S_WS+1}, 0")

def cnt_init(a):
    a("v_lshlrev_b32 v10, 7, v2")
    a("v_mov_b32 v11, 0")
    for i in range(NCNT // 64):
        a(f"s_mov_b32 s62, {WS_FL + i * 8192}")
        a("buffer_store_dword v11, v10, s[32:35], s62 offen sc1")
    srd(a, 56, S_DBG, 256)
    a("v_mov_b32 v10, 1")
    a("s_waitcnt vmcnt(0)")
    a("s_mov_b64 exec, 1")
    a("buffer_store_dword v10, v11, s[56:59], 0 offen sc1")
    a("s_mov_b64 exec, -1")

def go_issue(a, t=10):
    srd(a, 56, S_DBG, 256)
    a(f"v_mov_b32 v{t+1}, 0")
    a(f"buffer_load_dword v{t}, v{t+1}, s[56:59], 0 offen sc1")

def wait_go(a, t=10, issued=False, sleep=1):
    L = uid("L_go")
    a("s_mov_b32 s83, 0x40000")
    if issued:
        a(f"s_branch {L}_chk")
    else:
        srd(a, 56, S_DBG, 256)
        a(f"v_mov_b32 v{t+1}, 0")
    a.label(L)
    a(f"buffer_load_dword v{t}, v{t+1}, s[56:59], 0 offen sc1")
    a.label(L + "_chk")
    a("s_waitcnt vmcnt(0)")
    a(f"v_readfirstlane_b32 s62, v{t}")
    a("s_cmp_lg_u32 s62, 0")
    a(f"s_cbranch_scc1 {L}_ok")
    a(f"s_sleep {sleep}")
    a("s_sub_u32 s83, s83, 1")
    a(f"s_cbranch_scc0 {L}")
    a.label(L + "_ok")

def vpoll(a, offs, target, t=10, sleep=1):
    L = uid("L_vp")
    a(f"v_mov_b32 v{t+1}, s{offs[0]}")
    for i, o in enumerate(offs[1:], 1):
        a(f"v_writelane_b32 v{t+1}, s{o}, {i}")
    a(f"s_mov_b32 s62, {WS_FL}")
    a("s_mov_b32 s83, 0x40000")
    a(f"s_mov_b64 exec, {(1 << len(offs)) - 1}")
    a.label(L)
    a(f"buffer_load_dword v{t}, v{t+1}, s[32:35], s62 offen sc1")
    a("s_waitcnt vmcnt(0)")
    a(f"v_cmp_gt_u32 vcc, {target}, v{t}")
    a(f"s_cbranch_vccz {L}_ok")
    a(f"s_sleep {sleep}")
    a("s_sub_u32 s83, s83, 1")
    a(f"s_cbranch_scc0 {L}")
    a.label(L + "_ok")
    a("s_mov_b64 exec, -1")

def cadd(a, base, idx_sgpr, t=10):
    a(f"s_lshl_b32 s62, s{idx_sgpr}, 7")
    a(f"s_add_u32 s62, s62, {WS_FL + base * 128}")
    a(f"v_mov_b32 v{t}, 1")
    a(f"v_mov_b32 v{t+1}, 0")
    a("s_mov_b64 exec, 1")
    a(f"buffer_atomic_add v{t}, v{t+1}, s[32:35], s62 offen sc1")
    a("s_mov_b64 exec, -1")

def cpoll(a, offs, target, sleep=1):
    L = uid("L_cp")
    a("s_mov_b32 s83, 0x40000")
    a.label(L)
    for i, o in enumerate(offs):
        a(f"s_load_dword s{88+i}, s[60:61], s{o} glc")
    a("s_waitcnt lgkmcnt(0)")
    for i in range(1, len(offs)):
        a(f"s_min_u32 s88, s88, s{88+i}")
    a(f"s_cmp_ge_u32 s88, {target}")
    a(f"s_cbranch_scc1 {L}_ok")
    a(f"s_sleep {sleep}")
    a("s_sub_u32 s83, s83, 1")
    a(f"s_cbranch_scc0 {L}")
    a.label(L + "_ok")


WS_EX = 0x1500000
F_EX = WS_FL + 0x50000
class FIN2(FIN):
    BOFF = 2
    def roles(self):
        a = self.a
        a("s_and_b32 s46, s25, 1")
        a("s_bfe_u32 s3, s25, 0x10001")
        a("s_and_b32 s58, s27, 1")
        a("s_xor_b32 s57, s3, s58")
        a("s_lshr_b32 s47, s25, 2")
        a("s_lshl_b32 s3, s57, 1")
        a("s_add_u32 s47, s47, s3")
        a("s_lshl_b32 s56, s47, 1")
        a("s_add_u32 s56, s56, s46")
    def setup(self, zero_acc=True):
        a = self.a
        FIN.setup(self, zero_acc)
        a("s_lshr_b32 s3, s27, 1")
        a("s_lshl_b32 s3, s3, 2")
        a("s_and_b32 s45, s25, 3")
        a("s_add_u32 s3, s3, s45")
        a("s_mul_i32 s40, s3, 98304")
        a("s_mul_i32 s3, s58, 49152")
        a("s_add_u32 s40, s40, s3")
        a("s_lshl_b32 s3, s48, 11")
        a("s_add_u32 s40, s40, s3")
        a(f"s_add_u32 s40, s40, {WS_H}")
        a(f"s_mul_i32 s3, s58, {768*1280}")
        a("s_add_u32 s41, s41, s3")
        a("s_mul_i32 s3, s57, 10240")
        a(f"v_subrev_u32 v{self.TD}, s3, v{self.TD}")
        a("s_and_b32 s3, s56, 3")
        a("s_mul_i32 s59, s3, 5120")
        a("s_and_b32 s3, s2, 255")
        a("s_mul_i32 s3, s3, 20480")
        a("s_add_u32 s59, s59, s3")
        a(f"s_add_u32 s59, s59, {WS_EX}")
    def hload(self, m):
        r = self.XF + 8 * (m % 4)
        for th in range(2):
            self.a(f"buffer_load_dwordx4 v[{r+4*th}:{r+4*th+3}], v3, s[32:35], s40 offen offset:{256*th}{cfg.sc}")
            for q in self.q: q.append(("X", m))
        self.a("s_add_u32 s40, s40, 4096")
    def down(self, npre=4):
        a = self.a
        for m in range(2): self.hload(m)
        nw, nh = npre, 2
        TD2 = 15
        a(f"v_add_u32 v{TD2}, 40960, v{self.TD}")
        def reads(i):
            buf = (i // 2 + self.BOFF) % 4
            base = self.TD if buf < 2 else TD2
            self.wreads(self.WF + 20 * (i % 2), base, (buf % 2) * 20480 + (i % 2) * 10240, 1280)
        self.wait2([("W", 0)])
        a("s_barrier")
        stamp(a, 9)
        reads(0)
        for i in range(12):
            if i + 1 < 12:
                if i % 2 == 1:
                    sl = i // 2
                    self.wait2([("W", sl + 1)], "lgkmcnt(0)")
                    a("s_barrier")
                    reads(i + 1)
                    for _ in range(2):
                        if nw <= sl + 4 and nw < 6:
                            self.dma_wd(nw); nw += 1
                    if sl == 3:
                        self.wo_dma((0, 8), 0, 0)
                        for q in self.q: q += [("O", 0)] * 5
                    if sl == 4:
                        self.wo_dma((0, 4), 8, 8)
                        self.q[0] += [("O", 1)] * 5
                    self.wait2([("X", i)])
                else:
                    reads(i + 1)
                    self.wait2([("X", i)], "lgkmcnt(10)")
            else:
                self.wait2([("X", i)], "lgkmcnt(0)")
            self.mfmas(self.WF + 20 * (i % 2), self.XF + 8 * (i % 4))
            for _ in range(2):
                if nh <= i + 4 and nh < 12:
                    self.hload(nh); nh += 1
        stamp(a, 10)
        a("s_cmp_eq_u32 s57, 0")
        a("s_cbranch_scc1 L_fin_keep")
        a("s_add_u32 s3, s59, 4096")
        a("s_nop 4")
        for j in range(20):
            a(f"v_cvt_pk_bf16_f32 v{self.XF+j}, v{self.ACC+2*j}, v{self.ACC+2*j+1}")
            if j % 4 == 3:
                k = j // 4
                so, off = ("s59", 1024 * k) if k < 4 else ("s3", 0)
                a(f"buffer_store_dwordx4 v[{self.XF+4*k}:{self.XF+4*k+3}], v9, s[32:35], {so} offen offset:{off}{cfg.sc}")
        a.label("L_fin_keep")
    def receive(self):
        a = self.a
        a("s_cmp_eq_u32 s57, 0")
        a("s_cbranch_scc1 L_fin_got")
        a("s_bitcmp1_b32 s2, 3")
        a("s_cselect_b32 s3, -8, 8")
        a("s_mul_i32 s3, s3, 20480")
        a("s_add_u32 s59, s59, s3")
        a("s_add_u32 s3, s59, 4096")
        for k in range(5):
            so, off = ("s59", 1024 * k) if k < 4 else ("s3", 0)
            a(f"buffer_load_dwordx4 v[{self.XF+4+4*k}:{self.XF+7+4*k}], v9, s[32:35], {so} offen offset:{off}{cfg.sc}")
        a("s_waitcnt vmcnt(0)")
        for j in range(20):
            a(f"v_lshlrev_b32 v{self.ACC+2*j}, 16, v{self.XF+4+j}")
            a(f"v_and_b32 v{self.ACC+2*j+1}, 0xffff0000, v{self.XF+4+j}")
        a.label("L_fin_got")
```

```python
from common import *

def ln_rows(a, vx, vf, vt, srd_x, v_off, vm=None, after=None):
    t0, t1, t2, t3 = vt, vt + 2, vt + 4, vt + 6
    if os.environ.get("LNDOT", "0") == "1":
        ones = vt + 8
        a(f"v_mov_b32 v{ones}, 0x3f803f80")
        for r in (t0, t0 + 1, t1, t1 + 1): a(f"v_mov_b32 v{r}, 0")
        for i in range(20):
            a(f"v_dot2c_f32_bf16 v{t0 + i % 2}, v{vx+i}, v{ones}")
            a(f"v_dot2c_f32_bf16 v{t1 + i % 2}, v{vx+i}, v{vx+i}")
        fill = []
        for i in range(20):
            fill.append(f"v_lshlrev_b32 v{vf+2*i}, 16, v{vx+i}")
            fill.append(f"v_and_b32 v{vf+2*i+1}, 0xffff0000, v{vx+i}")
        def F(n):
            for _ in range(n):
                a(fill.pop(0) if fill else "s_nop 0")
        F(3)
        a(f"v_add_f32 v{t0}, v{t0}, v{t0+1}")
        a(f"v_add_f32 v{t1}, v{t1}, v{t1+1}")
        for sh in (8, 4, 2, 1):
            F(2)
            a(f"v_add_f32_dpp v{t0}, v{t0}, v{t0} row_ror:{sh} row_mask:0xf bank_mask:0xf")
            a(f"v_add_f32_dpp v{t1}, v{t1}, v{t1} row_ror:{sh} row_mask:0xf bank_mask:0xf")
        chain = [f"v_mul_f32 v{t2}, 0xbacccccd, v{t0}", f"v_mul_f32 v{t0}, 0x3acccccd, v{t1}",
                 f"v_fma_f32 v{t0}, -v{t2}, v{t2}, v{t0}", f"v_max_f32 v{t0}, 0, v{t0}",
                 f"v_cvt_pk_bf16_f32 v{t1}, v{t2}, v{t0}", f"v_and_b32 v{t0}, 0xffff0000, v{t1}",
                 f"v_add_f32 v{t0}, 0x3727c5ac, v{t0}", f"v_cvt_pk_bf16_f32 v{t0}, v{t0}, v{t0}",
                 f"v_and_b32 v{t0}, 0xffff0000, v{t0}", f"v_sqrt_f32 v{t0}, v{t0}",
                 f"v_cvt_pk_bf16_f32 v{t0}, v{t0}, v{t0}", f"v_and_b32 v{t0}, 0xffff0000, v{t0}",
                 f"v_rcp_f32 v{t0}, v{t0}", f"v_lshlrev_b32 v{t2}, 16, v{t1}", f"v_lshlrev_b32 v{t2+1}, 16, v{t1}",
                 f"v_mov_b32 v{t0+1}, v{t0}"]
        for c in chain:
            a(c); F(1)
        F(len(fill))
    else:
        for i in range(20):
            a(f"v_lshlrev_b32 v{vf+2*i}, 16, v{vx+i}")
            a(f"v_and_b32 v{vf+2*i+1}, 0xffff0000, v{vx+i}")
        t0, t1, t2, t3 = vt, vt + 2, vt + 4, vt + 6
        t4 = vt + 8
        a(f"v_pk_add_f32 v[{t0}:{t0+1}], v[{vf}:{vf+1}], v[{vf+2}:{vf+3}]")
        a(f"v_pk_mul_f32 v[{t1}:{t1+1}], v[{vf}:{vf+1}], v[{vf}:{vf+1}]")
        a(f"v_pk_add_f32 v[{t3}:{t3+1}], v[{vf+4}:{vf+5}], v[{vf+6}:{vf+7}]")
        a(f"v_pk_mul_f32 v[{t2}:{t2+1}], v[{vf+2}:{vf+3}], v[{vf+2}:{vf+3}]")
        for i in range(2, 20):
            q = t1 if i % 2 == 0 else t2
            a(f"v_pk_fma_f32 v[{q}:{q+1}], v[{vf+2*i}:{vf+2*i+1}], v[{vf+2*i}:{vf+2*i+1}], v[{q}:{q+1}]")
            if i >= 4:
                t = t0 if i % 2 == 0 else t3
                a(f"v_pk_add_f32 v[{t}:{t+1}], v[{t}:{t+1}], v[{vf+2*i}:{vf+2*i+1}]")
        a(f"v_pk_add_f32 v[{t0}:{t0+1}], v[{t0}:{t0+1}], v[{t3}:{t3+1}]")
        a(f"v_pk_add_f32 v[{t1}:{t1+1}], v[{t1}:{t1+1}], v[{t2}:{t2+1}]")
        a(f"v_add_f32 v{t0}, v{t0}, v{t0+1}")
        a(f"v_add_f32 v{t1}, v{t1}, v{t1+1}")
        for sh in (8, 4, 2, 1):
            a("s_nop 0")
            a(f"v_add_f32_dpp v{t0}, v{t0}, v{t0} row_ror:{sh} row_mask:0xf bank_mask:0xf")
            a(f"v_add_f32_dpp v{t1}, v{t1}, v{t1} row_ror:{sh} row_mask:0xf bank_mask:0xf")
        a(f"v_mul_f32 v{t2}, 0xbacccccd, v{t0}")
        a(f"v_mul_f32 v{t0}, 0x3acccccd, v{t1}")
        a(f"v_fma_f32 v{t0}, -v{t2}, v{t2}, v{t0}")
        a(f"v_max_f32 v{t0}, 0, v{t0}")
        a(f"v_cvt_pk_bf16_f32 v{t1}, v{t2}, v{t0}")
        a(f"v_lshlrev_b32 v{t2}, 16, v{t1}")
        a(f"v_lshlrev_b32 v{t2+1}, 16, v{t1}")
        a(f"v_and_b32 v{t0}, 0xffff0000, v{t1}")
        a(f"v_add_f32 v{t0}, 0x3727c5ac, v{t0}")
        a(f"v_cvt_pk_bf16_f32 v{t0}, v{t0}, v{t0}")
        a(f"v_and_b32 v{t0}, 0xffff0000, v{t0}")
        a(f"v_sqrt_f32 v{t0}, v{t0}")
        a("s_nop 0")
        a(f"v_cvt_pk_bf16_f32 v{t0}, v{t0}, v{t0}")
        a(f"v_and_b32 v{t0}, 0xffff0000, v{t0}")
        a(f"v_rcp_f32 v{t0}, v{t0}")
        a("s_nop 0")
        a(f"v_mov_b32 v{t0+1}, v{t0}")
    if os.environ.get("LNFAST", "1") == "1":
        a(f"v_pk_mul_f32 v[{t1}:{t1+1}], v[{t2}:{t2+1}], v[{t0}:{t0+1}]")
        for i in range(20):
            a(f"v_pk_fma_f32 v[{vf+2*i}:{vf+2*i+1}], v[{vf+2*i}:{vf+2*i+1}], v[{t0}:{t0+1}], v[{t1}:{t1+1}]")
            a(f"v_cvt_pk_bf16_f32 v{vx+i}, v{vf+2*i}, v{vf+2*i+1}")
            if after and i % 4 == 3: after(i // 4)
        return
    for i in range(20):
        a(f"v_pk_add_f32 v[{t3}:{t3+1}], v[{vf+2*i}:{vf+2*i+1}], v[{t2}:{t2+1}]")
        a(f"v_cvt_pk_bf16_f32 v{t1}, v{t3}, v{t3+1}")
        a(f"v_lshlrev_b32 v{t3}, 16, v{t1}")
        a(f"v_and_b32 v{t3+1}, 0xffff0000, v{t1}")
        a(f"v_pk_mul_f32 v[{t3}:{t3+1}], v[{t3}:{t3+1}], v[{t0}:{t0+1}]")
        a(f"v_cvt_pk_bf16_f32 v{vx+i}, v{t3}, v{t3+1}")

def gen_ln():
    a = Asm()
    a("s_cmp_ge_u32 s2, 128")
    a("s_cbranch_scc1 L_ln_end")
    stamp_start(a)
    load_args(a)
    a("v_lshrrev_b32 v1, 6, v0")
    a("v_and_b32 v2, 63, v0")
    a("s_lshl_b32 s3, s2, 4")
    a("v_readfirstlane_b32 s24, v1")
    a("v_lshrrev_b32 v3, 4, v0")
    a("v_add_u32 v3, s3, v3")
    a("v_mul_u32_u24 v3, 1280, v3")
    a("v_and_b32 v4, 15, v0")
    a("v_lshl_add_u32 v3, v4, 4, v3")
    a("v_and_b32 v4, 3, v2")
    a("v_lshrrev_b32 v5, 2, v2")
    a("v_lshl_add_u32 v6, v4, 4, v5")
    a("v_lshlrev_b32 v6, 2, v6")
    a("s_lshl_b32 s25, s24, 2")
    a("s_add_u32 s25, s25, s3")
    a("s_lshr_b32 s26, s25, 5")
    a("s_mul_i32 s26, s26, 40960")
    a("s_and_b32 s25, s25, 31")
    a("s_lshl_b32 s25, s25, 4")
    a("s_add_u32 s26, s26, s25")
    a("v_lshrrev_b32 v7, 1, v5")
    a("v_lshlrev_b32 v7, 10, v7")
    a("v_and_b32 v5, 1, v5")
    a("v_lshl_add_u32 v7, v5, 9, v7")
    a("v_lshl_add_u32 v7, v4, 4, v7")
    a("v_add_u32 v7, s26, v7")
    a("s_waitcnt lgkmcnt(0)")
    srd(a, 28, S_X, 2621440)
    srd(a, 32, S_WS, WS_SIZE)
    for i in range(5):
        a(f"buffer_load_dwordx4 v[{8+4*i}:{11+4*i}], v3, s[28:31], 0 offen offset:{256*i}")
    for i in range(1, 5):
        a(f"s_mov_b32 s{36+i}, {WS_XN + 8192*i}")
    a(f"s_mov_b32 s36, {WS_XN}")
    stamp(a, 1)
    a("s_waitcnt vmcnt(0)")
    stamp(a, 2)
    ln_rows(a, 8, 32, 72, 28, 3)
    stamp(a, 3)
    for i in range(20):
        a(f"ds_bpermute_b32 v{32+i}, v6, v{8+i}")
    for i in range(5):
        a(f"s_waitcnt lgkmcnt({min(15, 16-4*i)})")
        a(f"buffer_store_dwordx4 v[{32+4*i}:{35+4*i}], v7, s[32:35], s{36+i} offen")
    stamp_flush(a, 0, 24)
    a.label("L_ln_end")
    a("s_endpgm")
    return a, dict(name="ln_kernel", grid=128, block=256, lds=0, nvgpr=80, accoff=80)
```
